```python
import torch

def _softmax(x, axis=-1):
    return torch.softmax(x, dim=axis)
def _gelu(x):
    return torch.nn.functional.gelu(x, approximate="tanh")
def _silu(x):
    return torch.nn.functional.silu(x)
def _sigmoid(x):
    return torch.sigmoid(x)
def _layernorm(x, axis=-1, eps=1e-5):
    m = x.mean(dim=axis, keepdim=True)
    v = x.var(dim=axis, keepdim=True, unbiased=False)
    return (x - m) / torch.sqrt(v + eps)
def _scatter_add(tgt, idx, src, axis=0):
    return tgt.clone().index_add_(axis, idx, src)
def _segment_sum(src, seg, n):
    out = torch.zeros((n,) + src.shape[1:], dtype=src.dtype)
    return out.index_add_(0, seg, src)
def _pad(x, pw):
    flat = tuple(v for pair in reversed(pw) for v in pair)
    return torch.nn.functional.pad(x, flat)

kernel_name = 'gather_scatter__edge_featured_mpnn_egc__graph'

def setup_inputs():

    _w = (lambda a: (lambda t: t.to(torch.bfloat16) if t.is_floating_point() else t)(torch.as_tensor(a)))
    N, deg, D, De = 25000, 16, 128, max(16, 1)
    E = N * deg
    return {
        "x": _w((lambda *s: torch.randn(*s, dtype=torch.bfloat16) * 0.2)(N, D)),
        "e_attr": _w((lambda *s: torch.randn(*s, dtype=torch.bfloat16) * 0.2)(E, De)),
        "src": _w((lambda lo, hi, *s: torch.randint(lo, hi, s))(0, N, E).to(torch.int64)),
        "dst": _w((lambda lo, hi, *s: torch.randint(lo, hi, s))(0, N, E).to(torch.int64)),
        "u_w": _w((lambda *s: torch.randn(*s, dtype=torch.bfloat16) * 0.05)(D, D)),
        "v_w": _w((lambda *s: torch.randn(*s, dtype=torch.bfloat16) * 0.05)(D, D)),
        "g_w": _w((lambda *s: torch.randn(*s, dtype=torch.bfloat16) * 0.2)(2 * D + De, D)),
    }

def reference(x, e_attr, src, dst, u_w, v_w, g_w):
    N, D = x.shape
    g_in = torch.concatenate([x[dst], x[src], e_attr], axis=-1)
    eta = _sigmoid(g_in @ g_w)
    hv = x @ v_w
    msg = eta * hv[src]
    agg = _segment_sum(msg, dst, N)
    return _silu(x @ u_w + agg)
```

```python
import re
class Asm:
    def __init__(self):
        self.lines=[]
        self.nlabel=0
    def __call__(self, s):
        for l in s.split('\n'):
            l=l.strip()
            if l: self.lines.append('    '+l if not l.endswith(':') and not l.startswith('.') else l)
    def label(self, base):
        self.nlabel+=1
        return f"L_{base}_{self.nlabel}"
    def text(self): return '\n'.join(self.lines)+'\n'

def vr(b,n=1): return f"v{b}" if n==1 else f"v[{b}:{b+n-1}]"
def sr(b,n=1): return f"s{b}" if n==1 else f"s[{b}:{b+n-1}]"

TRANS=('v_exp_f32','v_rcp_f32','v_log_f32','v_rsq_f32','v_sqrt_f32','v_exp_f16','v_rcp_f16')
def regs(op):
    op=op.strip()
    op=op.replace('abs(','').replace(')','').replace('|','').lstrip('-')
    m=re.fullmatch(r'([vsa])\[(\d+):(\d+)\]',op)
    if m: return {(m.group(1),i) for i in range(int(m.group(2)),int(m.group(3))+1)}
    m=re.fullmatch(r'([vsa])(\d+)',op)
    if m: return {(m.group(1),int(m.group(2)))}
    if op in ('vcc','vcc_lo','vcc_hi'): return {('s','vcc')}
    if op in ('exec','exec_lo','exec_hi'): return {('s','exec')}
    if op=='m0': return {('s','m0')}
    return set()
def parse(line):
    line=line.split(';')[0].strip()
    if not line or line.endswith(':') or line.startswith('.'): return None
    p=line.split(None,1); mn=p[0]; rest=p[1] if len(p)>1 else ''
    ops=[];cur='';d=0
    for ch in rest:
        if ch=='[': d+=1
        if ch==']': d-=1
        if ch==',' and d==0: ops.append(cur.strip());cur=''
        else: cur+=ch
    if cur.strip(): ops.append(cur.strip())
    if ops:
        last=ops[-1].split(None,1); ops[-1]=last[0]; mods=last[1] if len(last)>1 else ''
    else: mods=''
    I=dict(mn=mn,ops=ops,mods=mods,line=line)
    w=set();r=set()
    isv=mn.startswith('v_');
    if mn.startswith('v_cmp'):
        w|=regs(ops[0]); [r.update(regs(o)) for o in ops[1:]]
        if mn.startswith('v_cmpx'): w.add(('s','exec'))
    elif isv:
        w|=regs(ops[0]); [r.update(regs(o)) for o in ops[1:]]
        if mn.startswith(('v_fmac','v_mac','v_dot2c')) or 'dpp' in mn or mn.startswith('v_writelane'): r|=regs(ops[0])
        if mn.startswith(('v_add_co','v_addc_co','v_sub_co')):
            w|=regs(ops[1]); r=set(); [r.update(regs(o)) for o in ops[2:]]
        if mn.startswith('v_cndmask') and len(ops)==3: r.add(('s','vcc'))
    elif mn.startswith('ds_'):
        if mn.startswith(('ds_read','ds_bpermute','ds_permute','ds_swizzle')) or '_rtn' in mn:
            w|=regs(ops[0]); [r.update(regs(o)) for o in ops[1:]]
        else: [r.update(regs(o)) for o in ops]
    elif mn.startswith('buffer_'):
        if 'lds' in mods.split(): [r.update(regs(o)) for o in ops]; r.add(('s','m0'))
        elif mn.startswith('buffer_load'):
            w|=regs(ops[0]); [r.update(regs(o)) for o in ops[1:]]
        else: [r.update(regs(o)) for o in ops]
    elif mn.startswith('global_'):
        if mn.startswith('global_load'): w|=regs(ops[0]); [r.update(regs(o)) for o in ops[1:]]
        else: [r.update(regs(o)) for o in ops]
    elif mn.startswith('s_'):
        if mn.startswith(('s_cmp','s_cbranch','s_branch','s_waitcnt','s_nop','s_barrier','s_endpgm','s_setprio','s_sleep','s_bitcmp')):
            [r.update(regs(o)) for o in ops]
        else:
            if ops: w|=regs(ops[0]); [r.update(regs(o)) for o in ops[1:]]
            if 'saveexec' in mn: w.add(('s','exec'))
    I['w']=w;I['r']=r
    I['valu']=isv and not mn.startswith('v_mfma')
    I['mfma']=mn.startswith('v_mfma')
    I['vmem']=mn.startswith(('buffer_','global_'))
    I['ds']=mn.startswith('ds_')
    I['states']= int(ops[0])+1 if mn=='s_nop' else 1
    return I
def check(lines):
    ins=[parse(l) for l in lines]; ins=[i for i in ins if i]
    errs=[]
    for n,c in enumerate(ins):
        dist=0
        for k in range(n-1,max(-1,n-24),-1):
            p=ins[k]
            need=0;why=''
            vw={x for x in p['w'] if x[0] in 'va'}; sw={x for x in p['w'] if x[0]=='s'}
            if p['valu']:
                if c['mfma'] and vw&c['r']: need,why=2,'valu->mfma'
                if 'dpp' in c['mn'] and vw&c['r']: need,why=max(need,2),'valu->dpp'
                if c['mn'].startswith(('v_readlane','v_readfirstlane')) and vw&c['r']: need,why=max(need,1),'valu->readlane'
                if c['mn'].startswith('v_permlane') and vw&(c['r']|c['w']): need,why=max(need,2),'valu->permlane'
                if p['mn'].startswith(TRANS) and c['valu'] and not c['mn'].startswith(TRANS) and vw&c['r']: need,why=max(need,1),'trans->valu'
                if p['mn'].startswith(TRANS) and (c['mfma']) and vw&c['r']: need,why=max(need,2),'trans->mfma'
                if ('op_sel' in p['mods'] and p['mn'].startswith(('v_mad_mix','v_fma_mixlo','v_fma_mixhi')) or 'dst_sel:WORD' in p['mods'] or 'dst_sel:BYTE' in p['mods']) and c['valu'] and vw&(c['r']|c['w']): need,why=max(need,1),'opsel'
                if sw and c['vmem'] and sw&c['r']: need,why=max(need,5),'valu sgpr->vmem'
                if sw and c['valu'] and sw&c['r']:
                    if c['mn'].startswith(('v_readlane','v_writelane')): need,why=max(need,4),'valu sgpr->lanesel'
                    else: need,why=max(need,2),'valu sgpr->valu'
                if ('s','exec') in sw and (c['mfma']): need,why=max(need,4),'exec->mfma'
                if ('s','exec') in sw and 'dpp' in c['mn']: need,why=max(need,5),'exec->dpp'
            if p['mfma']:
                passes=8 if '32x32' in p['mn'] else 4
                big={4:8,8:12}[passes]
                D=p['w']
                if c['mfma']:
                    ab=regs(c['ops'][1])|regs(c['ops'][2]); cc=regs(c['ops'][3])
                    if D&ab: need,why=big,'mfma D->AB'
                    if D&cc and cc!=D: need,why=max(need,big-2),'mfma D->C partial'
                    if D&c['w'] and not (cc==D): need,why=max(need,big),'mfma WAW(?)'
                elif (c['valu'] or c['vmem'] or c['ds']) and D&(c['r']|c['w']): need,why=big,'mfma D->use'
                cs=regs(p['ops'][3])
                if c['valu'] and cs&c['w'] : need,why=max(need,{4:3,8:7}[passes]),'mfma C WAR'
            if p['vmem'] and ('dwordx4' in p['mn'] or 'dwordx3' in p['mn']) and 'store' in p['mn']:
                data=regs(p['ops'][0]) if p['mn'].startswith('buffer') else regs(p['ops'][1])
                if data&c['w']: need,why=max(need,2 if c['valu'] else 1),'store data WAR'
            if ('s','m0') in p['w'] and not p['valu'] and ('s','m0') in c['r'] and c['vmem']: need,why=max(need,1),'m0->dma'
            if need>dist: errs.append(f"HAZARD {why}: need {need} have {dist}: [{p['line']}] -> [{c['line']}]")
            dist+=p['states']
            if dist>=20: break
    return errs
```

```python
import sys
from dsl import *
OPT=dict(a.split('=') if '=' in a else (a,'1') for a in sys.argv[2:])
STAMP=int(OPT.get('stamp',0))
NT=OPT.get('nt','nt')
if NT=='none': NT=''
ST=OPT.get('st','sc0 sc1')
if ST=='none': ST=''
ST=ST.replace('+',' ')

N=25000; E=400000; BS=196; CH=3136
NROW=25088; HS=NROW*256
TAB_OFF=0; REC_OFF=0x0D00000; EP_OFF=0x1100000; MISC_OFF=0x3100000
WIMG=0; CIMG=0x10000; FLAGO=0x12000; MISC_SZ=0x13000
STAMP_OFF=0x3200000
LOG2E_NEG=0xbfb8aa3b
A=Asm()

def srd(s, base_lo, base_hi, off, size):
    if off:
        A(f"s_add_u32 s{s}, s{base_lo}, {hex(off)}\ns_addc_u32 s{s+1}, s{base_hi}, 0")
    else:
        A(f"s_mov_b32 s{s}, s{base_lo}\ns_mov_b32 s{s+1}, s{base_hi}")
    A(f"s_mov_b32 s{s+2}, {hex(size)}\ns_mov_b32 s{s+3}, 0x20000")

def stamp(idx, kern):
    if not STAMP: return
    A(f"""s_memrealtime s[88:89]
    s_waitcnt lgkmcnt(0)
    s_mov_b32 s{90+idx}, s88""")
def stamp_init(kern, wave_s, wsl, wsh):
    if not STAMP: return
    for i in range(8): A(f"s_mov_b32 s{90+i}, 0")
    A(f"s_add_u32 s98, s{wsl}, {hex(STAMP_OFF+kern*0x80000)}\ns_addc_u32 s99, s{wsh}, 0")
def stamp_flush():
    if not STAMP: return
    A("""s_mov_b32 s4, s98
    s_mov_b32 s5, s99
    s_mov_b32 s6, 0x80000
    s_mov_b32 s7, 0x20000
    s_lshl_b32 s8, s2, 4
    s_add_u32 s8, s8, s3
    s_lshl_b32 s8, s8, 6
    s_mov_b64 exec, 1
    v_mov_b32 v8, 0""")
    for i in range(8): A(f"v_mov_b32 v{i}, s{90+i}")
    A("buffer_store_dwordx4 v[0:3], v8, s[4:7], s8 offen\nbuffer_store_dwordx4 v[4:7], v8, s[4:7], s8 offen offset:16")

K1_E=0; K1_REC=100352; K1_PERM=K1_REC+32768; K1_HIST=K1_PERM+16384; K1_OVF=K1_HIST+1024; K1_LDS=K1_OVF+256
WROW=544
def woff(k): return k*WROW+(k>>3)*128

def k1():
    A(".p2align 8\nprep_kernel:")
    A("""s_cmp_ge_u32 s2, 256
    s_cbranch_scc1 L_k1_end
    s_load_dwordx4 s[4:7], s[0:1], 0
    s_load_dwordx4 s[8:11], s[0:1], 16
    s_load_dwordx4 s[12:15], s[0:1], 32
    s_load_dwordx2 s[16:17], s[0:1], 48
    s_load_dwordx2 s[18:19], s[0:1], 72
    v_lshrrev_b32 v1, 6, v0
    v_and_b32 v2, 63, v0
    v_readfirstlane_b32 s3, v1
    v_lshlrev_b32 v3, 4, v2
    v_lshlrev_b32 v4, 4, v0
    s_waitcnt lgkmcnt(0)""")
    stamp_init(0,3,18,19)
    stamp(0,0)
    srd(44,18,19,MISC_OFF,MISC_SZ)
    A("""s_cmp_ge_u32 s2, 128
    s_cbranch_scc1 L_k1_gemm""")
    srd(20,10,11,0,E*4)
    srd(24,8,9,0,E*4)
    srd(28,6,7,0,E*32)
    srd(32,18,19,REC_OFF,0x400000)
    srd(36,18,19,EP_OFF,0x2000000)
    D=8; S=12
    A(f"""s_mul_i32 s50, s2, {CH}
    s_sub_u32 s51, {E}, s50
    s_lshr_b32 s51, s51, 2
    s_min_u32 s51, s51, {CH//4}
    s_lshl_b32 s52, s50, 2
    v_cmp_gt_u32 vcc, s51, v0
    s_mov_b64 s[54:55], vcc
    s_mov_b64 exec, vcc
    s_cbranch_execz L_k1_noidx
    buffer_load_dwordx4 v[{D}:{D+3}], v4, s[20:23], s52 offen {NT}
    buffer_load_dwordx4 v[{S}:{S+3}], v4, s[24:27], s52 offen {NT}
L_k1_noidx:
    s_mov_b64 exec, -1
    s_lshl_b32 s53, s3, 10
    s_lshl_b32 s56, s50, 5
    s_add_u32 s56, s56, s53""")
    for i in range(7):
        if i==6: A("s_cmp_ge_u32 s3, 2\ns_cbranch_scc1 L_k1_dmadone")
        A(f"""s_mov_b32 m0, s53
        s_add_u32 s53, s53, 16384
        buffer_load_dwordx4 v3, s[28:31], s56 offen {NT} lds
        s_add_u32 s56, s56, 16384""")
    A(f"""L_k1_dmadone:
    v_mov_b32 v16, -1
    v_mov_b32 v17, -1
    v_mov_b32 v18, -1
    v_mov_b32 v19, -1
    v_mov_b32 v20, 0
    v_add_u32 v5, {K1_REC}, v4
    v_lshlrev_b32 v6, 2, v0
    v_add_u32 v6, {K1_HIST}, v6
    ds_write_b128 v5, v[16:19]
    ds_write_b128 v5, v[16:19] offset:16384
    v_cmp_gt_u32 vcc, 0x140, v0
    s_mov_b64 exec, vcc
    ds_write_b32 v6, v20
    s_mov_b64 exec, -1
    v_mov_b32 v21, 1
    v_mov_b32 v22, 21400
    v_mov_b32 v23, -196
    v_mov_b32 v24, 5352
    v_mov_b32 v25, 4014
    v_mov_b32 v26, 1342
    s_waitcnt lgkmcnt(0)
    s_barrier
    s_mov_b64 exec, s[54:55]
    s_cbranch_execz L_k1_b1
    s_waitcnt vmcnt(6)""")
    stamp(1,0)
    B,RC,HA,PH,RK,T=28,32,36,40,44,48
    for j in range(4):
        A(f"""v_mul_u32_u24 v{T}, v{D+j}, v22
        v_mul_u32_u24 v{T+1}, v{S+j}, v26
        v_lshrrev_b32 v{B+j}, 22, v{T}
        v_lshrrev_b32 v{T+1}, 22, v{T+1}
        v_mad_i32_i24 v{T}, v{B+j}, v23, v{D+j}
        v_lshrrev_b32 v{PH+j}, 2, v{T+1}
        v_mad_u32_u24 v{T+2}, v{T}, v24, v25
        v_lshl_add_u32 v{HA+j}, v{B+j}, 1, v{PH+j}
        v_lshrrev_b32 v{T+2}, 16, v{T+2}
        v_lshlrev_b32 v{HA+j}, 2, v{HA+j}
        v_mul_u32_u24 v{T+3}, 49, v{T+2}
        v_add_u32 v{HA+j}, {K1_HIST}, v{HA+j}
        v_lshrrev_b32 v{T+3}, 2, v{T+3}
        ds_add_rtn_u32 v{RK+j}, v{HA+j}, v21
        v_lshl_add_u32 v{T+2}, v{T+2}, 3, v{T+1}
        v_sub_u32 v{T}, v{T}, v{T+3}
        v_lshl_or_b32 v{T}, v{T}, 16, v{S+j}
        v_lshl_or_b32 v{RC+j}, v{T+2}, 24, v{T}""")
    A("""L_k1_b1:
    s_mov_b64 exec, -1
    s_waitcnt lgkmcnt(0)
    s_barrier""")
    stamp(2,0)
    A(f"""v_cmp_gt_u32 vcc, 128, v0
    s_mov_b64 exec, vcc
    s_cbranch_execz L_k1_nohdr
    v_lshlrev_b32 v{T}, 3, v0
    v_lshlrev_b32 v{T+1}, 8, v0""")
    A(f"""v_add_u32 v{T}, {K1_HIST}, v{T}
    v_add_u32 v{T+1}, {K1_REC+252}, v{T+1}
    ds_read_b64 v[{T+2}:{T+3}], v{T}
    v_mov_b32 v{T+5}, {K1_OVF}
    s_waitcnt lgkmcnt(0)
    v_lshl_or_b32 v{T+4}, v{T+3}, 16, v{T+2}
    v_add_u32 v{T+2}, v{T+2}, v{T+3}
    ds_write_b32 v{T+1}, v{T+4}
    v_cmp_lt_u32 vcc, 63, v{T+2}
    s_and_b64 exec, exec, vcc
    ds_write_b32 v{T+5}, v21
L_k1_nohdr:
    s_mov_b64 exec, s[54:55]
    s_cbranch_execz L_k1_b2""")
    for j in range(4):
        A(f"v_and_b32 v{T+j}, -8, v{HA+j}\nds_read_b32 v{T+4+j}, v{T+j}")
    A(f"v_lshlrev_b32 v{T+8}, 2, v0\ns_waitcnt lgkmcnt(0)")
    for j in range(4):
        A(f"""v_mad_u32_u24 v{T}, v{PH+j}, v{T+4+j}, v{RK+j}
        v_min_u32 v{T}, 62, v{T}
        v_lshl_add_u32 v{T+1}, v{B+j}, 6, v{T}
        v_and_b32 v{T+2}, 15, v{T}
        v_lshrrev_b32 v{T+3}, 4, v{T}
        v_lshlrev_b32 v{T+1}, 1, v{T+1}
        v_lshl_add_u32 v{T+2}, v{T+2}, 2, v{T+3}
        v_add_u32 v{T+1}, {K1_PERM}, v{T+1}
        v_lshl_add_u32 v{T+2}, v{B+j}, 6, v{T+2}
        v_add_u32 v{T+9}, {j}, v{T+8}
        v_lshlrev_b32 v{T+2}, 2, v{T+2}
        ds_write_b16 v{T+1}, v{T+9}
        v_add_u32 v{T+2}, {K1_REC}, v{T+2}
        ds_write_b32 v{T+2}, v{RC+j}""")
    A(f"""L_k1_b2:
    s_mov_b64 exec, -1
    s_waitcnt vmcnt(0) lgkmcnt(0)
    s_barrier""")
    stamp(3,0)
    EI=8; EV=64
    A(f"""ds_read_b128 v[16:19], v5
    ds_read_b128 v[20:23], v5 offset:16384
    v_and_b32 v24, 7, v2
    s_lshl_b32 s57, s3, 6
    v_lshl_add_u32 v24, v24, 3, s57
    v_add_u32 v24, {K1_HIST}, v24
    ds_read_b64 v[26:27], v24
    v_lshrrev_b32 v28, 1, v2
    s_lshl_b32 s57, s3, 10
    s_add_u32 s57, s57, {K1_PERM}
    v_lshl_add_u32 v29, v28, 1, s57""")
    for i in range(8): A(f"ds_read_u16 v{EI+i}, v29 offset:{i*128}")
    A(f"""v_lshrrev_b32 v30, 4, v0
    v_and_b32 v31, 15, v0
    v_lshlrev_b32 v30, 15, v30
    v_lshl_or_b32 v30, v31, 4, v30
    s_lshl_b32 s58, s2, 8
    s_add_u32 s59, s58, 0x200000
    v_and_b32 v31, 1, v2
    v_lshlrev_b32 v31, 4, v31
    s_waitcnt lgkmcnt(8)
    buffer_store_dwordx4 v[16:19], v30, s[32:35], s58 offen {ST}
    buffer_store_dwordx4 v[20:23], v30, s[32:35], s59 offen {ST}
    v_add_u32 v26, v26, v27
    v_min_u32 v26, 63, v26
    s_waitcnt lgkmcnt(0)""")
    for i in range(8):
        A(f"v_lshl_add_u32 v{EI+i}, v{EI+i}, 5, v31\nds_read_b128 v[{EV+4*i}:{EV+4*i+3}], v{EI+i}\nv_readlane_b32 s{60+i}, v26, {i}")
    A(f"""s_lshl_b32 s57, s3, 21
    s_lshl_b32 s58, s2, 11
    s_add_u32 s57, s57, s58""")
    for i in range(8):
        A(f"""v_cmp_gt_u32 vcc, s{60+i}, v28
        s_mov_b64 exec, vcc
        s_waitcnt lgkmcnt({7-i})
        buffer_store_dwordx4 v[{EV+4*i}:{EV+4*i+3}], v3, s[36:39], s57 offen {ST}
        s_mov_b64 exec, -1
        s_add_u32 s57, s57, 0x40000""")
    A(f"s_sub_u32 s57, s57, 0x200000\nv_add_u32 v32, 32, v28")
    for i in range(8):
        L=A.label("k1long")
        A(f"""s_cmp_le_u32 s{60+i}, 32
        s_cbranch_scc1 {L}
        ds_read_u16 v33, v29 offset:{i*128+64}
        s_waitcnt lgkmcnt(0)
        v_lshl_add_u32 v33, v33, 5, v31
        ds_read_b128 v[36:39], v33
        v_cmp_gt_u32 vcc, s{60+i}, v32
        s_mov_b64 exec, vcc
        s_waitcnt lgkmcnt(0)
        buffer_store_dwordx4 v[36:39], v3, s[36:39], s57 offen offset:1024 {ST}
        s_mov_b64 exec, -1
        s_nop 0
{L}:
        s_add_u32 s57, s57, 0x40000""")
    A("s_branch L_k1_flag")
    A("L_k1_gemm:")
    srd(20,4,5,0,N*256)
    srd(24,16,17,0,272*256)
    srd(28,14,15,0,128*256)
    srd(32,12,13,0,128*256)
    srd(36,18,19,TAB_OFF,HS)
    srd(40,18,19,TAB_OFF+HS,HS)
    XR=8; WL=24; XA=40; ACC=56; BF=8
    A(f"""s_sub_u32 s50, s2, 128
    s_lshl_b32 s51, s3, 7
    s_add_u32 s51, s51, s50
    v_mov_b32 v6, 0
    v_mov_b32 v7, {K1_OVF}
    ds_write_b32 v7, v6
    s_cmp_ge_u32 s51, 1568
    s_cbranch_scc1 L_k1_nox
    s_lshl_b32 s52, s51, 12
    v_lshrrev_b32 v5, 2, v2
    v_and_b32 v6, 3, v2
    v_lshlrev_b32 v5, 8, v5
    v_lshl_or_b32 v5, v6, 4, v5""")
    for ks in range(4): A(f"buffer_load_dwordx4 v[{XR+4*ks}:{XR+4*ks+3}], v5, s[20:23], s52 offen offset:{ks*64} {NT}")
    A(f"""L_k1_nox:
    s_mov_b32 s53, {128*256}
    s_mov_b32 s54, {128*256+16384}
    s_mov_b32 s55, 16384
    buffer_load_dwordx4 v[{WL}:{WL+3}], v4, s[24:27], s53 offen
    buffer_load_dwordx4 v[{WL+4}:{WL+7}], v4, s[24:27], s54 offen
    buffer_load_dwordx4 v[{WL+8}:{WL+11}], v4, s[28:31], 0 offen
    buffer_load_dwordx4 v[{WL+12}:{WL+15}], v4, s[28:31], s55 offen
    v_lshrrev_b32 v5, 4, v0
    v_lshrrev_b32 v6, 7, v0
    v_mul_u32_u24 v5, {WROW}, v5
    v_lshl_add_u32 v5, v6, 7, v5
    v_bfe_u32 v6, v0, 3, 1
    v_lshl_add_u32 v5, v6, 7, v5
    v_and_b32 v6, 7, v0
    v_lshl_add_u32 v5, v6, 2, v5
    s_mov_b32 s56, 0x05040100
    s_mov_b32 s57, 0x07060302""")
    A(f"""s_cmp_lg_u32 s3, 15
    s_cbranch_scc1 L_k1_noimg
    s_cmp_ge_u32 s50, 72
    s_cbranch_scc1 L_k1_noimg
    v_and_b32 v6, 15, v2
    v_lshrrev_b32 v7, 4, v2
    v_lshlrev_b32 v6, 3, v6
    s_cmp_ge_u32 s50, 64
    s_cbranch_scc1 L_k1_cimg
    s_bfe_u32 s58, s50, 0x10005
    s_bfe_u32 s59, s50, 0x20002
    s_and_b32 s60, s50, 3
    s_lshl_b32 s58, s58, 7
    s_lshl_b32 s59, s59, 1
    s_lshl_b32 s60, s60, 13
    s_add_u32 s58, s58, s59
    s_add_u32 s58, s58, s60
    v_lshl_add_u32 v6, v7, 11, v6
    s_bitcmp1_b32 s50, 4
    s_cbranch_scc1 L_k1_uimg""")
    for i in range(8): A(f"buffer_load_ushort v{64+i}, v6, s[24:27], s58 offen offset:{i*256}")
    A("s_branch L_k1_imgst\nL_k1_uimg:")
    for i in range(8): A(f"buffer_load_ushort v{64+i}, v6, s[32:35], s58 offen offset:{i*256}")
    A(f"""L_k1_imgst:
    s_lshl_b32 s58, s50, 10
    s_waitcnt vmcnt(0)
    v_lshl_or_b32 v56, v65, 16, v64
    v_lshl_or_b32 v57, v67, 16, v66
    v_lshl_or_b32 v58, v69, 16, v68
    v_lshl_or_b32 v59, v71, 16, v70
    buffer_store_dwordx4 v[56:59], v3, s[44:47], s58 offen
    s_branch L_k1_noimg
L_k1_cimg:
    s_sub_u32 s61, s50, 64
    s_lshr_b32 s58, s61, 2
    s_and_b32 s59, s61, 3
    s_lshl_b32 s58, s58, 7
    s_lshl_b32 s59, s59, 1
    s_add_u32 s58, s58, s59
    s_add_u32 s58, s58, {256*256}
    v_lshl_add_u32 v6, v7, 10, v6""")
    for i in range(4): A(f"buffer_load_ushort v{56+i}, v6, s[24:27], s58 offen offset:{i*256}")
    A(f"""s_mov_b32 s59, {hex(LOG2E_NEG)}
    s_lshl_b32 s58, s61, 9
    s_add_u32 s58, s58, {CIMG}
    v_lshlrev_b32 v7, 3, v2
    s_waitcnt vmcnt(0)""")
    for i in range(4): A(f"v_lshlrev_b32 v{56+i}, 16, v{56+i}\nv_mul_f32 v{56+i}, s59, v{56+i}")
    A(f"""v_cvt_pk_bf16_f32 v56, v56, v57
    v_cvt_pk_bf16_f32 v57, v58, v59
    buffer_store_dwordx2 v[56:57], v7, s[44:47], s58 offen
L_k1_noimg:""")
    for u in range(4):
        w=WL+4*u; base=(u&1)*woff(64)+(u>>1)*256
        A(f"""s_waitcnt vmcnt({3-u})
        v_perm_b32 v60, v{w+2}, v{w}, s56
        v_perm_b32 v61, v{w+2}, v{w}, s57
        v_perm_b32 v62, v{w+3}, v{w+1}, s56
        v_perm_b32 v63, v{w+3}, v{w+1}, s57
        ds_write_b32 v5, v60 offset:{base}
        ds_write_b32 v5, v61 offset:{base+32}
        ds_write_b32 v5, v62 offset:{base+64}
        ds_write_b32 v5, v63 offset:{base+96}""")
    A(f"""v_and_b32 v6, 15, v2
    v_lshrrev_b32 v7, 4, v2
    v_lshl_add_u32 v60, v6, 2, v7
    v_lshlrev_b32 v60, 2, v60
    s_cmp_ge_u32 s51, 1568
    s_cbranch_scc1 L_k1_nobp""")
    for i in range(16): A(f"ds_bpermute_b32 v{XA+i}, v60, v{XR+i}")
    A(f"""L_k1_nobp:
    v_bfe_u32 v61, v2, 2, 2
    v_lshl_add_u32 v61, v7, 3, v61
    v_mul_u32_u24 v61, {WROW}, v61
    v_lshl_add_u32 v61, v7, 7, v61
    v_and_b32 v62, 3, v2
    v_lshl_add_u32 v5, v62, 3, v61
    s_waitcnt lgkmcnt(0)
    s_barrier""")
    stamp(1,0)
    A("""s_cmp_ge_u32 s51, 1568
    s_cbranch_scc1 L_k1_gdone""")
    seq=[(h,t,mat,ks) for h in range(2) for t in range(4) for mat in range(2) for ks in range(4)]
    def rd(n):
        h,t,mat,ks=seq[n]; o=woff(32*ks)+mat*256+h*128+t*32; b=BF+4*(n%8)
        A(f"ds_read_b64_tr_b16 v[{b}:{b+1}], v5 offset:{o}\nds_read_b64_tr_b16 v[{b+2}:{b+3}], v5 offset:{o+4*WROW}")
    def acc(h,t,mat): return ACC+((h*4+t)*2+mat)*4
    PF=6
    for n in range(PF): rd(n)
    for n in range(64):
        h,t,mat,ks=seq[n]; b=BF+4*(n%8); a=acc(h,t,mat)
        out=min(63-n,PF-1)
        A(f"s_waitcnt lgkmcnt({2*out})")
        A(f"v_mfma_f32_16x16x32_bf16 v[{a}:{a+3}], v[{XA+4*ks}:{XA+4*ks+3}], v[{b}:{b+3}], {'0' if ks==0 else f'v[{a}:{a+3}]'}")
        if n+PF<64: rd(n+PF)
    stamp(2,0)
    A(f"""v_mov_b32 v8, {hex(LOG2E_NEG)}
    v_mov_b32 v9, 0x7fff
    v_mov_b32 v10, 0xffff0000
    v_mov_b32 v11, 0
    v_lshlrev_b32 v12, 10, v7
    v_lshl_or_b32 v12, v6, 4, v12
    s_nop 3""")
    for h in range(2):
        for r in range(4):
            o=16+4*((h*4+r)%2); tt=24
            for t in range(4): A(f"v_mul_f32 v{tt+t}, v8, v{acc(h,t,0)+r}")
            A(f"v_max3_f32 v11, abs(v{tt}), abs(v{tt+1}), v11\nv_max3_f32 v11, abs(v{tt+2}), abs(v{tt+3}), v11")
            for t in range(4): A(f"v_exp_f32 v{tt+t}, v{tt+t}")
            A("s_nop 0")
            for t in range(4): A(f"v_cvt_pk_f16_f32 v{tt+t}, v{tt+t}, 0")
            for t in range(4): A(f"v_xad_u32 v{tt+4+t}, v{tt+t}, v9, v{acc(h,t,1)+r}")
            for t in range(4): A(f"v_bfi_b32 v{o+t}, v10, v{tt+4+t}, v{tt+t}")
            A(f"buffer_store_dwordx4 v[{o}:{o+3}], v12, s[{36+4*h}:{39+4*h}], s52 offen offset:{r*256} {ST}")
    A(f"""v_mov_b32 v13, 0x41600000
    v_mov_b32 v14, 1
    v_mov_b32 v15, {K1_OVF}
    v_cmp_nle_f32 vcc, v11, v13""")
    A(f"""s_mov_b64 exec, vcc
    ds_write_b32 v15, v14
    s_mov_b64 exec, -1
L_k1_gdone:
    s_waitcnt lgkmcnt(0)
    s_barrier
L_k1_flag:
    s_cmp_lg_u32 s3, 0
    s_cbranch_scc1 L_k1_fin
    v_mov_b32 v15, {K1_OVF}
    ds_read_b32 v14, v15
    s_lshl_b32 s58, s2, 2
    s_add_u32 s58, s58, {FLAGO}
    v_mov_b32 v15, 0
    s_mov_b64 exec, 1
    s_waitcnt lgkmcnt(0)
    buffer_store_dword v14, v15, s[44:47], s58 offen
    s_mov_b64 exec, -1
L_k1_fin:""")
    if STAMP:
        stamp(4,0)
        A("s_waitcnt vmcnt(0)")
        stamp(5,0)
        stamp_flush()
    A("L_k1_end:\ns_endpgm")

ECAP=3584; WCAP=320
K2_W=ECAP*32-32768
K2_L1=ECAP*32; K2_L2=K2_L1+16*WCAP*4; K2_OH=K2_L2+16*WCAP*4
K2_HIST=K2_OH+1024; K2_BASE=K2_HIST+512; K2_CNT=K2_BASE+512; K2_EOFF=K2_CNT+512; K2_LDS=K2_EOFF+512
ZIDX=(K2_OH+512)//32
assert K2_LDS<=163840 and (K2_L2-K2_L1)%256==0 and K2_OH%32==0

def k2():
    L=0; D=32; EE=48; ACC=64; GB=80; A0=96; A1=100; S=104; EA0,OA0,EA1,OA1,SA0,SA1=108,109,110,111,112,113
    cJ16,cG8,cG8O,cS,pL1,pLm,pLs,LANE,L16=114,115,116,117,118,119,120,121,122
    TID=123
    A(".p2align 8\nmain_kernel:")
    A(f"""s_cmp_ge_u32 s2, 256
    s_cbranch_scc1 L_k2_end
    s_load_dwordx2 s[4:5], s[0:1], 0
    s_load_dwordx2 s[6:7], s[0:1], 56
    s_load_dwordx2 s[18:19], s[0:1], 72
    v_mov_b32 v{TID}, v0
    v_lshrrev_b32 v1, 6, v0
    v_and_b32 v{LANE}, 63, v0
    v_readfirstlane_b32 s3, v1
    v_lshlrev_b32 v{L16}, 4, v{LANE}
    v_lshlrev_b32 v4, 4, v0
    s_bfe_u32 s40, s2, 0x10002
    s_lshr_b32 s41, s2, 3
    s_and_b32 s42, s2, 3
    s_lshl_b32 s41, s41, 2
    s_add_u32 s41, s41, s42
    s_mul_i32 s42, s3, 49
    s_add_u32 s43, s42, 49
    s_lshr_b32 s42, s42, 2
    s_lshr_b32 s43, s43, 2
    s_sub_u32 s43, s43, s42
    s_mul_i32 s44, s41, {BS}
    s_add_u32 s44, s44, s42
    s_waitcnt lgkmcnt(0)""")
    stamp_init(1,3,18,19)
    stamp(0,1)
    srd(8,18,19,REC_OFF,0x400000)
    A(f"s_lshl_b32 s45, s41, 15\ns_add_u32 s46, s45, 16384")
    R=0; RK=8; HA=16; XR=32;
    A(f"""buffer_load_dwordx4 v[{R}:{R+3}], v4, s[8:11], s45 offen {NT}
    buffer_load_dwordx4 v[{R+4}:{R+7}], v4, s[8:11], s46 offen {NT}""")
    srd(24,18,19,MISC_OFF,MISC_SZ)
    srd(20,4,5,0,N*256)
    A(f"""s_mov_b32 s45, {FLAGO}
    buffer_load_dwordx4 v[24:27], v{L16}, s[24:27], s45 offen
    v_lshrrev_b32 v28, 2, v{LANE}
    v_and_b32 v29, 3, v{LANE}
    v_lshlrev_b32 v28, 8, v28
    v_lshl_or_b32 v28, v29, 4, v28
    s_lshl_b32 s45, s44, 8""")
    for ks in range(4): A(f"buffer_load_dwordx4 v[{XR+4*ks}:{XR+4*ks+3}], v28, s[20:23], s45 offen offset:{ks*64} {NT}")
    A(f"""s_lshl_b32 s45, s40, 11
    s_add_u32 s45, s45, {CIMG}
    v_lshlrev_b32 v28, 3, v{LANE}""")
    for t in range(4): A(f"buffer_load_dwordx2 v[{GB+4*t}:{GB+4*t+1}], v28, s[24:27], s45 offen offset:{t*512}")
    A(f"""s_lshl_b32 s45, s3, 11
    s_add_u32 m0, s45, {K2_W}
    s_lshl_b32 s46, s40, 15
    s_add_u32 s45, s45, s46
    buffer_load_dwordx4 v{L16}, s[24:27], s45 offen lds
    buffer_load_dwordx4 v{L16}, s[24:27], s45 offen offset:1024 lds""")
    srd(12,18,19,EP_OFF,0x2000000)
    A(f"s_mul_i32 s45, s40, {HS}\ns_add_u32 s16, s18, s45\ns_addc_u32 s17, s19, 0\ns_mov_b32 s18, {HS}\ns_mov_b32 s19, 0x20000")
    srd(28,6,7,0,N*256)
    A(f"""v_lshrrev_b32 v28, 3, v{TID}
    v_and_b32 v29, 7, v{TID}
    v_lshrrev_b32 v30, 1, v28
    v_and_b32 v28, 1, v28
    v_lshlrev_b32 v28, 4, v28
    v_mov_b32 v31, 0x3f80
    v_lshlrev_b32 v31, v28, v31
    v_cmp_eq_u32 vcc, v29, v30
    v_lshlrev_b32 v29, 2, v{TID}
    v_add_u32 v29, {K2_OH}, v29
    v_cndmask_b32 v31, 0, v31, vcc
    v_cmp_gt_u32 vcc, 0x180, v{TID}
    s_mov_b64 exec, vcc
    ds_write_b32 v29, v31
    s_mov_b64 exec, -1
    v_and_b32 v28, 15, v{LANE}
    v_lshrrev_b32 v29, 4, v{LANE}
    v_lshlrev_b32 v{cJ16}, 4, v28
    v_lshlrev_b32 v{cG8}, 3, v29
    v_add_u32 v{cG8O}, {K2_OH}, v{cG8}
    v_and_b32 v30, 3, v{LANE}
    v_lshlrev_b32 v30, 3, v30
    v_add_u32 v{cS}, {K2_OH}, v30
    s_mul_i32 s47, s3, {WCAP*4}
    s_add_u32 s48, s47, {K2_L1}
    v_lshl_add_u32 v{pL1}, v29, 4, s48
    s_add_u32 s48, s47, {K2_L2}
    v_lshl_add_u32 v{pLm}, v28, 2, s48
    v_and_b32 v30, -4, v{LANE}
    v_add_u32 v{pLs}, s48, v30
    v_mov_b32 v31, 1
    s_mov_b32 s50, 0x80008000
    s_mov_b32 s51, 0x80008000
    s_waitcnt lgkmcnt(0)
    s_barrier
    s_waitcnt vmcnt(10)""")
    stamp(1,1)
    A(f"""v_or_b32 v24, v24, v25
    v_or3_b32 v24, v24, v26, v27
    v_cmp_ne_u32 vcc, 0, v24
    s_cmp_lg_u64 vcc, 0
    s_cbranch_scc1 L_k2_fallback""")
    MK=52
    for j in range(8):
        Lb=A.label("k2h")
        A(f"v_cmp_le_i32 s[{MK+2*j}:{MK+2*j+1}], 0, v{R+j}")
        if j&3==3: A(f"s_andn2_b64 s[{MK+2*j}:{MK+2*j+1}], s[{MK+2*j}:{MK+2*j+1}], s[50:51]")
        A(f"s_mov_b64 exec, s[{MK+2*j}:{MK+2*j+1}]")
        if j&3>=2: A(f"s_cbranch_execz {Lb}")
        A(f"""v_lshrrev_b32 v{HA+j}, 22, v{R+j}
        v_and_b32 v{HA+j}, 0x1fc, v{HA+j}
        v_add_u32 v{HA+j}, {K2_HIST}, v{HA+j}
        ds_add_rtn_u32 v{RK+j}, v{HA+j}, v31""")
        if j&3>=2: A(f"{Lb}:")
        A("s_mov_b64 exec, -1")
    A(f"""v_lshrrev_b32 v24, 4, v{TID}
    v_lshlrev_b32 v24, 2, v24
    v_add_u32 v24, {K2_CNT}, v24
    s_mov_b64 exec, s[50:51]
    ds_write2st64_b32 v24, v{R+3}, v{R+7} offset0:0 offset1:1
    s_mov_b64 exec, -1
    v_lshlrev_b32 v25, 3, v{LANE}
    v_add_u32 v25, {K2_HIST}, v25
    s_waitcnt lgkmcnt(0)
    s_barrier""")
    stamp(2,1)
    C0,C1,H0,H1,SS,HSs,T=48,49,50,51,52,53,54
    A(f"""ds_read_b64 v[{C0}:{C1}], v25 offset:{K2_CNT-K2_HIST}
    ds_read_b64 v[{H0}:{H1}], v25
    v_and_b32 v{T}, 3, v{LANE}
    v_cmp_le_u32 vcc, 1, v{T}
    v_lshrrev_b32 v{T+3}, 2, v{LANE}
    v_mul_u32_u24 v{T+3}, {WCAP}, v{T+3}
    v_cndmask_b32 v{T+1}, 0, -1, vcc
    v_cmp_le_u32 vcc, 2, v{T}
    s_lshl_b32 s45, s3, 2
    s_add_u32 s46, s45, 1
    v_cndmask_b32 v{T+2}, 0, -1, vcc
    s_waitcnt lgkmcnt(0)
    v_add_u32 v{SS}, v{C0}, v{C1}
    v_add_u32 v{HSs}, v{H0}, v{H1}
    s_nop 0
    v_add_u32_dpp v{SS}, v{SS}, v{SS} row_shr:1 row_mask:0xf bank_mask:0xf bound_ctrl:1
    v_and_b32_dpp v{T}, v{HSs}, v{T+1} row_shr:1 row_mask:0xf bank_mask:0xf bound_ctrl:1
    v_add_u32 v{HSs}, v{HSs}, v{T}
    v_add_u32_dpp v{SS}, v{SS}, v{SS} row_shr:2 row_mask:0xf bank_mask:0xf bound_ctrl:1
    s_nop 0
    v_and_b32_dpp v{T}, v{HSs}, v{T+2} row_shr:2 row_mask:0xf bank_mask:0xf bound_ctrl:1
    v_add_u32_dpp v{SS}, v{SS}, v{SS} row_shr:4 row_mask:0xf bank_mask:0xf bound_ctrl:1
    v_add_u32 v{HSs}, v{HSs}, v{T}
    s_add_u32 s47, s45, 3
    v_add_u32_dpp v{SS}, v{SS}, v{SS} row_shr:8 row_mask:0xf bank_mask:0xf bound_ctrl:1
    v_cmp_lt_u32 vcc, {WCAP}, v{HSs}
    v_readlane_b32 s68, v{HSs}, s47
    v_add_u32_dpp v{SS}, v{SS}, v{SS} row_bcast:15 row_mask:0xa bank_mask:0xf
    v_readlane_b32 s69, v{HSs}, s46
    v_sub_u32 v{T}, v{HSs}, v{H0}
    v_add_u32_dpp v{SS}, v{SS}, v{SS} row_bcast:31 row_mask:0xc bank_mask:0xf
    v_sub_u32 v{T}, v{T}, v{H1}
    v_add_u32 v{T+4}, v{T}, v{T+3}
    v_readlane_b32 s70, v{SS}, 63
    v_add_u32 v{T+5}, v{T+4}, v{H0}
    ds_write_b64 v25, v[{T+4}:{T+5}] offset:{K2_BASE-K2_HIST}
    s_cmp_lg_u64 vcc, 0
    s_cbranch_scc1 L_k2_fallback
    s_and_b32 s71, s70, 0xffff
    s_lshr_b32 s72, s70, 16
    s_add_u32 s72, s72, s71
    s_cmp_gt_u32 s71, {K2_W//32}
    s_cbranch_scc1 L_k2_fallback
    s_cmp_gt_u32 s72, {ECAP}
    s_cbranch_scc1 L_k2_fallback
    s_lshl_b32 s71, s71, 16
    v_sub_u32 v{SS}, v{SS}, v{C0}
    v_sub_u32 v{SS}, v{SS}, v{C1}
    v_add_u32 v{T+1}, s71, v{SS}
    v_lshlrev_b32 v{T}, 16, v{C0}
    v_sub_u32 v{T+6}, v{T+1}, v{T}
    v_add_u32 v{T+1}, v{T+1}, v{C0}
    v_lshlrev_b32 v{T}, 16, v{C1}
    v_sub_u32 v{T+7}, v{T+1}, v{T}
    ds_write_b64 v25, v[{T+6}:{T+7}] offset:{K2_EOFF-K2_HIST}""")
    assert (T+4)%2==0 and (T+6)%2==0
    for i in range(4):
        A(f"""v_readlane_b32 s{72+2*i}, v{T+6}, s45
        v_readlane_b32 s{73+2*i}, v{T+7}, s45
        v_readlane_b32 s{80+2*i}, v{C0}, s45
        v_readlane_b32 s{81+2*i}, v{C1}, s45
        s_add_u32 s45, s45, 1""")
    A("s_waitcnt lgkmcnt(0)")
    BP=56
    for j in range(8):
        if j&3<2: A(f"ds_read_b32 v{BP+j}, v{HA+j} offset:{K2_BASE-K2_HIST}")
    A(f"""ds_read2st64_b32 v[{BP+8}:{BP+9}], v24 offset0:{(K2_EOFF-K2_CNT)//256} offset1:{(K2_EOFF-K2_CNT)//256+1}
    v_lshrrev_b32 v26, 1, v{LANE}
    s_lshl_b32 s46, s41, 18
    s_lshl_b32 s47, s3, 14
    s_add_u32 s46, s46, s47""")
    def dma(part, vh=26):
        for i in range(8):
            Lx=A.label("dma");
            if part==0:
                A(f"""s_and_b32 s47, s{72+i}, 0xffff
                s_and_b32 s48, s{80+i}, 0xffff
                s_add_u32 s49, s46, {i*2048}""")
            else:
                A(f"""s_and_b32 s49, s{80+i}, 0xffff
                s_lshr_b32 s47, s{72+i}, 16
                s_add_u32 s47, s47, s49
                s_lshl_b32 s49, s49, 5
                s_lshr_b32 s48, s{80+i}, 16
                s_add_u32 s49, s49, s46
                s_add_u32 s49, s49, {i*2048}""")
            A(f"""s_lshl_b32 m0, s47, 5
            v_cmp_gt_u32 vcc, s48, v{vh}
            s_mov_b64 exec, vcc
            buffer_load_dwordx4 v{L16}, s[12:15], s49 offen {NT} lds
            s_cmp_le_u32 s48, 32
            s_cbranch_scc1 {Lx}
            s_sub_u32 s48, s48, 32
            s_mov_b64 exec, -1
            v_cmp_gt_u32 vcc, s48, v{vh}
            s_mov_b64 exec, vcc
            buffer_load_dwordx4 v{L16}, s[12:15], s49 offen offset:1024 {NT} lds
{Lx}:
            s_mov_b64 exec, -1""")
    A('s_waitcnt vmcnt(0)')
    dma(0)
    A(f"""v_and_b32 v27, 15, v{LANE}
    v_mov_b32 v28, 0x7fff
    v_mov_b32 v29, 0xf0000
    s_waitcnt lgkmcnt(0)
    v_and_b32 v{BP+10}, 0xffff, v{BP+8}
    v_and_b32 v{BP+11}, 0xffff, v{BP+9}
    v_lshrrev_b32 v{BP+8}, 16, v{BP+8}
    v_lshrrev_b32 v{BP+9}, 16, v{BP+9}""")
    for j in range(8):
        Lb=A.label("k2s")
        A(f"s_mov_b64 exec, s[{MK+2*j}:{MK+2*j+1}]")
        if j&3>=2:
            A(f"s_cbranch_execz {Lb}\nds_read_b32 v{BP+j}, v{HA+j} offset:{K2_BASE-K2_HIST}")
        u=j>>2
        A(f"""v_and_b32 v30, 0x4000000, v{R+j}
        v_cmp_ne_u32 vcc, 0, v30
        v_and_b32 v30, v28, v{R+j}
        v_lshlrev_b32 v30, 8, v30
        v_cndmask_b32 v31, v{BP+10+u}, v{BP+8+u}, vcc
        v_add3_u32 v31, v31, v27, {16*(j&3)}
        v_and_or_b32 v31, v{R+j}, v29, v31""")
        if j&3>=2: A("s_waitcnt lgkmcnt(0)")
        A(f"""v_add_lshl_u32 v{BP+j}, v{BP+j}, v{RK+j}, 2
        v_add_u32 v{BP+j}, {K2_L1}, v{BP+j}
        ds_write2st64_b32 v{BP+j}, v30, v31 offset0:0 offset1:{(K2_L2-K2_L1)//256}""")
        if j&3>=2: A(f"{Lb}:")
    A(f"""s_mov_b64 exec, -1
    s_sub_u32 s47, 0, s68
    s_and_b32 s47, s47, 31
    s_mul_i32 s48, s3, {WCAP}
    s_add_u32 s48, s48, s68
    v_add_lshl_u32 v30, v{LANE}, s48, 2
    v_add_u32 v30, {K2_L1}, v30
    v_mov_b32 v28, {N<<8}
    v_mov_b32 v29, {hex(ZIDX|(16<<16))}
    v_cmp_gt_u32 vcc, s47, v{LANE}
    s_mov_b64 exec, vcc
    ds_write2st64_b32 v30, v28, v29 offset0:0 offset1:{(K2_L2-K2_L1)//256}
    s_mov_b64 exec, -1
    s_add_u32 s68, s68, 31
    s_lshr_b32 s68, s68, 5
    s_lshr_b32 s69, s69, 5
    s_min_u32 s69, s69, 2
    s_min_u32 s69, s69, s68""")
    XA=96
    A(f"""v_and_b32 v28, 15, v{LANE}
    v_lshrrev_b32 v29, 4, v{LANE}
    v_lshl_add_u32 v28, v28, 2, v29
    v_lshlrev_b32 v28, 2, v28""")
    for i in range(16): A(f"ds_bpermute_b32 v{XA+i}, v28, v{XR+i}")
    A("s_waitcnt lgkmcnt(0)\ns_barrier")
    stamp(3,1)
    LM0,LM1,LS0,LS1=124,125,112,113
    def loadstep(first):
        G=EE
        A(f"""ds_read_b128 v[{G}:{G+3}], v{pL1}
        ds_read_b128 v[{G+4}:{G+7}], v{pL1} offset:64
        ds_read_b32 v{LM0}, v{pLm}
        ds_read_b32 v{LM1}, v{pLm} offset:64
        ds_read_b32 v{LS0}, v{pLs}
        ds_read_b32 v{LS1}, v{pLs} offset:64
        v_add_u32 v{pL1}, 128, v{pL1}
        v_add_u32 v{pLm}, 128, v{pLm}
        v_add_u32 v{pLs}, 128, v{pLs}
        s_waitcnt lgkmcnt(5)""")
        for i in range(8):
            if i==4: A("s_waitcnt lgkmcnt(4)")
            A(f"v_or_b32 v{G+i}, v{G+i}, v{cJ16}\nbuffer_load_dwordx4 v[{L+4*i}:{L+4*i+3}], v{G+i}, s[16:19], 0 offen")
    def addrs():
        A(f"""v_mad_u32_u16 v{EA0}, v{LM0}, 32, v{cG8}
        v_mad_u32_u16 v{OA0}, v{LM0}, 32, v{cG8O} op_sel:[1,0,0,0]
        v_mad_u32_u16 v{EA1}, v{LM1}, 32, v{cG8}
        v_mad_u32_u16 v{OA1}, v{LM1}, 32, v{cG8O} op_sel:[1,0,0,0]
        v_mad_u32_u16 v{SA0}, v{LS0}, 32, v{cS} op_sel:[1,0,0,0]
        v_mad_u32_u16 v{SA1}, v{LS1}, 32, v{cS} op_sel:[1,0,0,0]""")
    A("s_cmp_eq_u32 s68, 0\ns_cbranch_scc1 L_k2_noload0")
    loadstep(True)
    A("L_k2_noload0:")
    A(f"v_add_u32 v126, {K2_W}, v{L16}")
    BFR=32
    seq=[(mat,t,ks) for mat in range(2) for t in range(4) for ks in range(4)]
    def rd(n):
        mat,t,ks=seq[n]; b=BFR+4*(n%8)
        A(f"ds_read_b128 v[{b}:{b+3}], v126 offset:{n*1024}")
    PF=6
    A("s_waitcnt lgkmcnt(0)")
    for n in range(PF): rd(n)
    for n in range(32):
        mat,t,ks=seq[n]; b=BFR+4*(n%8); a=ACC+4*t
        if n==16:
            A(f"v_mov_b32 v127, {hex(LOG2E_NEG)}\ns_nop 6")
            for tt in range(4):
                for r in range(4): A(f"v_mul_f32 v{ACC+4*tt+r}, v127, v{ACC+4*tt+r}")
                A(f"v_cvt_pk_bf16_f32 v{GB+4*tt+2}, v{ACC+4*tt}, v{ACC+4*tt+1}\nv_cvt_pk_bf16_f32 v{GB+4*tt+3}, v{ACC+4*tt+2}, v{ACC+4*tt+3}")
        out=min(31-n,PF-1)
        A(f"s_waitcnt lgkmcnt({out})")
        A(f"v_mfma_f32_16x16x32_bf16 v[{a}:{a+3}], v[{XA+4*ks}:{XA+4*ks+3}], v[{b}:{b+3}], {'0' if ks==0 else f'v[{a}:{a+3}]'}")
        if n+PF<32: rd(n+PF)
    addrs()
    A("s_waitcnt vmcnt(0)\ns_barrier")
    stamp(4,1)
    A(f"v_lshrrev_b32 v{D}, 1, v{LANE}")
    dma(1, D)
    A("s_mov_b32 s70, 0")
    A(""".p2align 6
L_k2_loop:
    s_cmp_lg_u32 s70, s69
    s_cbranch_scc1 L_k2_nobar
    s_waitcnt vmcnt(0)
    s_barrier
L_k2_nobar:
    s_cmp_ge_u32 s70, s68
    s_cbranch_scc1 L_k2_done""")
    A(f"""ds_read_b64 v[{A0}:{A0+1}], v{EA0}
    ds_read_b64 v[{A0+2}:{A0+3}], v{OA0}
    ds_read_b64 v[{A1}:{A1+1}], v{EA1}
    ds_read_b64 v[{A1+2}:{A1+3}], v{OA1}
    ds_read_b64_tr_b16 v[{S}:{S+1}], v{SA0}
    ds_read_b64_tr_b16 v[{S+2}:{S+3}], v{SA1}
    s_add_u32 s70, s70, 1
    s_waitcnt lgkmcnt(4)""")
    def gate(Ar):
        for t in range(4): A(f"v_mfma_f32_16x16x32_bf16 v[{D+4*t}:{D+4*t+3}], v[{Ar}:{Ar+3}], v[{GB+4*t}:{GB+4*t+3}], 0")
    def exps():
        for t in range(4):
            for r in range(4): A(f"v_exp_f32 v{EE+4*r+t}, v{D+4*t+r}")
    def rest(q):
        Lq=L+16*q
        order=[(r,t) for t in range(4) for r in range(4)]
        for r,t in order: A(f"v_fma_mix_f32 v{EE+4*r+t}, v{Lq+4*r+t}, v{EE+4*r+t}, 1.0 op_sel_hi:[1,0,0]")
        for r,t in order: A(f"v_rcp_f32 v{EE+4*r+t}, v{EE+4*r+t}")
        for t in (0,2):
            for r in range(4): A(f"v_pk_mul_f32 v[{EE+4*r+t}:{EE+4*r+t+1}], v[{EE+4*r+t}:{EE+4*r+t+1}], v[{Lq+4*r+t}:{Lq+4*r+t+1}]")
        for t in range(4):
            for p in range(2): A(f"v_cvt_pk_bf16_f32 v{L+4*t+2*q+p}, v{EE+8*p+t}, v{EE+8*p+4+t}")
    gate(A0)
    A("s_nop 4")
    exps()
    A("s_waitcnt lgkmcnt(0)")
    gate(A1)
    rest(0)
    exps()
    rest(1)
    A("s_nop 1")
    for t in range(4): A(f"v_mfma_f32_16x16x32_bf16 v[{ACC+4*t}:{ACC+4*t+3}], v[{S}:{S+3}], v[{L+4*t}:{L+4*t+3}], v[{ACC+4*t}:{ACC+4*t+3}]")
    A("s_cmp_ge_u32 s70, s68\ns_cbranch_scc1 L_k2_loop")
    loadstep(False)
    A("s_waitcnt lgkmcnt(0)")
    addrs()
    A("s_waitcnt vmcnt(0)\ns_branch L_k2_loop")
    A("L_k2_done:")
    stamp(5,1)
    A(f"""v_lshrrev_b32 v0, 4, v{LANE}
    v_lshlrev_b32 v0, 2, v0
    v_add_u32 v1, s44, v0
    v_lshlrev_b32 v1, 8, v1
    v_lshrrev_b32 v2, 1, v{cJ16}
    s_lshl_b32 s45, s40, 7
    v_add3_u32 v1, v1, v2, s45
    v_mov_b32 v3, {hex(LOG2E_NEG)}
    v_mov_b32 v4, 0x80000000""")
    for r in range(4):
        for t in range(4): A(f"v_mul_f32 v{8+t}, v3, v{ACC+4*t+r}")
        for t in range(4): A(f"v_exp_f32 v{8+t}, v{8+t}")
        A(f"v_add_u32 v5, {r}, v0\nv_cmp_gt_u32 vcc, s43, v5")
        for t in range(4): A(f"v_add_f32 v{8+t}, 1.0, v{8+t}")
        for t in range(4): A(f"v_rcp_f32 v{8+t}, v{8+t}")
        A(f"v_cndmask_b32 v{16+r}, v4, v1, vcc")
        for t in range(4): A(f"v_mul_f32 v{8+t}, v{8+t}, v{ACC+4*t+r}")
        A(f"""v_cvt_pk_bf16_f32 v{20+2*r}, v8, v9
        v_cvt_pk_bf16_f32 v{21+2*r}, v10, v11
        buffer_store_dwordx2 v[{20+2*r}:{21+2*r}], v{16+r}, s[28:31], 0 offen offset:{r*256}""")
    if STAMP:
        A("s_waitcnt vmcnt(0)")
        stamp(6,1)
        stamp_flush()
    A("s_endpgm")
    fallback()
    A("L_k2_end:\ns_endpgm")

def fallback():
    LANE=121; TID=123
    A(f"""L_k2_fallback:
    s_mov_b64 exec, -1
    s_load_dwordx2 s[50:51], s[0:1], 8
    s_load_dwordx4 s[52:55], s[0:1], 16
    s_load_dwordx4 s[56:59], s[0:1], 32
    s_load_dwordx2 s[60:61], s[0:1], 48
    s_waitcnt vmcnt(0) lgkmcnt(0)
    s_barrier""")
    srd(8,50,51,0,E*32)
    srd(12,52,53,0,E*4)
    srd(16,54,55,0,E*4)
    srd(24,56,57,0,128*256)
    srd(32,58,59,0,128*256)
    srd(36,60,61,0,272*256)
    A(f"""v_mov_b32 v0, 0
    v_mov_b32 v1, 0
    v_mov_b32 v2, 0
    v_mov_b32 v3, 0
    v_lshlrev_b32 v4, 4, v{TID}
    ds_write_b128 v4, v[0:3]
    ds_write_b128 v4, v[0:3] offset:16384
    ds_write_b128 v4, v[0:3] offset:32768
    ds_write_b128 v4, v[0:3] offset:49152
    s_lshl_b32 s45, s40, 7
    v_lshl_add_u32 v5, v{LANE}, 1, s45
    v_lshlrev_b32 v6, 2, v{LANE}
    s_mul_i32 s46, s41, {BS}
    s_lshl_b32 s47, s3, 6
    s_waitcnt lgkmcnt(0)
    s_barrier
L_fb_chunk:
    s_cmp_ge_u32 s47, {E}
    s_cbranch_scc1 L_fb_fin
    s_lshl_b32 s48, s47, 2
    buffer_load_dword v7, v6, s[16:19], s48 offen
    buffer_load_dword v8, v6, s[12:15], s48 offen
    s_waitcnt vmcnt(0)
    v_subrev_u32 v9, s46, v7
    v_cmp_gt_u32 s[62:63], v10, v9
    """.replace("v_cmp_gt_u32 s[62:63], v10, v9",f"v_mov_b32 v10, {BS}\nv_cmp_gt_u32 s[62:63], v10, v9")+f"""
L_fb_edge:
    s_cmp_eq_u64 s[62:63], 0
    s_cbranch_scc1 L_fb_next
    s_ff1_i32_b64 s49, s[62:63]
    s_bitset0_b64 s[62:63], s49
    v_readlane_b32 s64, v7, s49
    v_readlane_b32 s65, v8, s49
    s_add_u32 s66, s47, s49
    s_lshl_b32 s67, s64, 8
    s_lshl_b32 s68, s65, 8
    s_lshl_b32 s66, s66, 5
    s_nop 2
    buffer_load_dword v11, v6, s[20:23], s67 offen
    buffer_load_dword v12, v6, s[20:23], s68 offen
    v_and_b32 v14, 28, v6
    buffer_load_dword v13, v14, s[8:11], s66 offen
    v_mov_b32 v15, 0
    v_mov_b32 v16, 0
    s_mov_b32 s69, 0
    s_waitcnt vmcnt(0)
L_fb_k:
    s_lshl_b32 s70, s69, 9
    s_add_u32 s71, s70, {128*256}
    buffer_load_ushort v17, v5, s[36:39], s70 offen
    buffer_load_ushort v18, v5, s[36:39], s70 offen offset:256
    buffer_load_ushort v19, v5, s[36:39], s71 offen
    buffer_load_ushort v20, v5, s[36:39], s71 offen offset:256
    buffer_load_ushort v21, v5, s[32:35], s70 offen
    buffer_load_ushort v22, v5, s[32:35], s70 offen offset:256
    v_readlane_b32 s72, v11, s69
    v_readlane_b32 s73, v12, s69
    s_lshl_b32 s74, s72, 16
    s_and_b32 s72, s72, 0xffff0000
    s_lshl_b32 s75, s73, 16
    s_and_b32 s73, s73, 0xffff0000
    s_waitcnt vmcnt(0)""")
    for i in range(17,23): A(f"v_lshlrev_b32 v{i}, 16, v{i}")
    A(f"""v_fmac_f32 v15, s74, v17
    v_fmac_f32 v15, s72, v18
    v_fmac_f32 v15, s75, v19
    v_fmac_f32 v15, s73, v20
    v_fmac_f32 v16, s75, v21
    v_fmac_f32 v16, s73, v22
    s_add_u32 s69, s69, 1
    s_cmp_lt_u32 s69, 64
    s_cbranch_scc1 L_fb_k
    s_mov_b32 s69, 0
L_fb_ke:
    s_lshl_b32 s70, s69, 9
    s_add_u32 s70, s70, {256*256}
    buffer_load_ushort v17, v5, s[36:39], s70 offen
    buffer_load_ushort v18, v5, s[36:39], s70 offen offset:256
    v_readlane_b32 s72, v13, s69
    s_lshl_b32 s74, s72, 16
    s_and_b32 s72, s72, 0xffff0000
    s_waitcnt vmcnt(0)
    v_lshlrev_b32 v17, 16, v17
    v_lshlrev_b32 v18, 16, v18
    v_fmac_f32 v15, s74, v17
    v_fmac_f32 v15, s72, v18
    s_add_u32 s69, s69, 1
    s_cmp_lt_u32 s69, 8
    s_cbranch_scc1 L_fb_ke
    v_mul_f32 v15, {hex(LOG2E_NEG)}, v15
    v_exp_f32 v15, v15
    s_sub_u32 s64, s64, s46
    s_lshl_b32 s64, s64, 8
    v_add_f32 v15, 1.0, v15
    v_rcp_f32 v15, v15
    v_add_u32 v17, s64, v6
    v_mul_f32 v15, v15, v16
    ds_add_f32 v17, v15
    s_branch L_fb_edge
L_fb_next:
    s_add_u32 s47, s47, 1024
    s_branch L_fb_chunk
L_fb_fin:
    s_waitcnt lgkmcnt(0)
    s_barrier
    s_mov_b32 s47, s3
L_fb_node:
    s_cmp_ge_u32 s47, {BS}
    s_cbranch_scc1 L_k2_end
    s_add_u32 s64, s46, s47
    s_lshl_b32 s67, s64, 8
    buffer_load_dword v11, v6, s[20:23], s67 offen
    s_lshl_b32 s48, s47, 8
    v_add_u32 v17, s48, v6
    ds_read_b32 v15, v17
    s_mov_b32 s69, 0
    s_waitcnt vmcnt(0) lgkmcnt(0)
L_fb_ku:
    s_lshl_b32 s70, s69, 9
    buffer_load_ushort v17, v5, s[24:27], s70 offen
    buffer_load_ushort v18, v5, s[24:27], s70 offen offset:256
    v_readlane_b32 s72, v11, s69
    s_lshl_b32 s74, s72, 16
    s_and_b32 s72, s72, 0xffff0000
    s_waitcnt vmcnt(0)
    v_lshlrev_b32 v17, 16, v17
    v_lshlrev_b32 v18, 16, v18
    v_fmac_f32 v15, s74, v17
    v_fmac_f32 v15, s72, v18
    s_add_u32 s69, s69, 1
    s_cmp_lt_u32 s69, 64
    s_cbranch_scc1 L_fb_ku
    v_mul_f32 v16, {hex(LOG2E_NEG)}, v15
    v_exp_f32 v16, v16
    s_nop 0
    v_add_f32 v16, 1.0, v16
    v_rcp_f32 v16, v16
    s_nop 0
    v_mul_f32 v15, v15, v16
    v_cvt_pk_bf16_f32 v15, v15, v15
    buffer_store_short v15, v5, s[28:31], s67 offen
    s_add_u32 s47, s47, 16
    s_branch L_fb_node""")

def desc(name, vg, sg=102):
    return f""".amdhsa_kernel {name}
  .amdhsa_next_free_vgpr {vg}
  .amdhsa_next_free_sgpr {sg}
  .amdhsa_accum_offset {vg}
  .amdhsa_group_segment_fixed_size 0
  .amdhsa_kernarg_size 80
  .amdhsa_user_sgpr_count 2
  .amdhsa_user_sgpr_kernarg_segment_ptr 1
  .amdhsa_system_sgpr_workgroup_id_x 1
.end_amdhsa_kernel
"""
k1(); k2()
errs=check(A.lines)
for e in errs: print(e, file=sys.stderr)
hdr=open('gather_scatter__edge_featured_mpnn_egc__graph.s.ref').read().split('; Override launch')[0]
out=hdr+f"""; Two launches: prep (edge partition + node tables), main (gated gather / aggregate / silu)
; @launch kernel=prep_kernel grid=(256,1,1) block=(1024,1,1) lds={K1_LDS}
; @launch kernel=main_kernel grid=(256,1,1) block=(1024,1,1) lds={K2_LDS}
.amdgcn_target "amdgcn-amd-amdhsa--gfx950"
.text
.globl prep_kernel
.type prep_kernel,@function
.globl main_kernel
.type main_kernel,@function
"""+A.text()+""".section .rodata,"a"
.p2align 6
"""+desc("prep_kernel",128)+".p2align 6\n"+desc("main_kernel",128)
open(sys.argv[1],'w').write(out)
print("written",sys.argv[1],len(A.lines),"lines; hazards:",len(errs))
```

```python
import sys
from dsl import *
OPT=dict(a.split('=') if '=' in a else (a,'1') for a in sys.argv[2:])
STAMP=int(OPT.get('stamp',0))
NT=OPT.get('nt','nt')
if NT=='none': NT=''
ST=OPT.get('st','sc0 sc1')
if ST=='none': ST=''
ST=ST.replace('+',' ')

N=25000; E=400000; BS=196; CH=3136
NROW=25088; HS=NROW*256
TAB_OFF=0; REC_OFF=0x0D00000; EP_OFF=0x1100000; MISC_OFF=0x3100000
WIMG=0; CIMG=0x10000; FLAGO=0x12000; MISC_SZ=0x13000
STAMP_OFF=0x3200000
LOG2E_NEG=0xbfb8aa3b
A=Asm()

def srd(s, base_lo, base_hi, off, size):
    if off:
        A(f"s_add_u32 s{s}, s{base_lo}, {hex(off)}\ns_addc_u32 s{s+1}, s{base_hi}, 0")
    else:
        A(f"s_mov_b32 s{s}, s{base_lo}\ns_mov_b32 s{s+1}, s{base_hi}")
    A(f"s_mov_b32 s{s+2}, {hex(size)}\ns_mov_b32 s{s+3}, 0x20000")

def stamp(idx, kern):
    if not STAMP: return
    A(f"""s_memrealtime s[88:89]
    s_waitcnt lgkmcnt(0)
    s_mov_b32 s{90+idx}, s88""")
def stamp_init(kern, wave_s, wsl, wsh):
    if not STAMP: return
    for i in range(8): A(f"s_mov_b32 s{90+i}, 0")
    A(f"s_add_u32 s98, s{wsl}, {hex(STAMP_OFF+kern*0x80000)}\ns_addc_u32 s99, s{wsh}, 0")
def stamp_flush(kern=0):
    if not STAMP: return
    if STAMP==2:
        sel=[0,1,3,5] if kern==0 else [0,1,4,6]
        A(f"""s_load_dwordx2 s[4:5], s[0:1], 64
        s_waitcnt lgkmcnt(0)
        s_sub_u32 s4, s4, {512*kern}
        s_subb_u32 s5, s5, 0
        s_mov_b32 s6, 256
        s_mov_b32 s7, 0x20000
        s_mov_b64 exec, 1
        v_mov_b32 v8, 0""")
        for n,i in enumerate(sel):
            A(f"""v_mov_b32 v0, s{90+i}
            v_not_b32 v1, v0
            s_cmp_eq_u32 s{90+i}, 0
            s_cbranch_scc1 L_sf_{kern}_{n}
            buffer_atomic_umax v1, v8, s[4:7], 0 offen offset:{kern*32+n*8}
            buffer_atomic_umax v0, v8, s[4:7], 0 offen offset:{kern*32+n*8+4}
L_sf_{kern}_{n}:""")
        return
    A("""s_mov_b32 s4, s98
    s_mov_b32 s5, s99
    s_mov_b32 s6, 0x80000
    s_mov_b32 s7, 0x20000
    s_lshl_b32 s8, s2, 4
    s_add_u32 s8, s8, s3
    s_lshl_b32 s8, s8, 6
    s_mov_b64 exec, 1
    v_mov_b32 v8, 0""")
    for i in range(8): A(f"v_mov_b32 v{i}, s{90+i}")
    A("buffer_store_dwordx4 v[0:3], v8, s[4:7], s8 offen\nbuffer_store_dwordx4 v[4:7], v8, s[4:7], s8 offen offset:16")

K1_E=0; K1_REC=100352; K1_PERM=K1_REC+32768; K1_HIST=K1_PERM+16384; K1_OVF=K1_HIST+1024; K1_LDS=K1_OVF+256
WROW=544
def woff(k): return k*WROW+(k>>3)*128

def k1():
    A(".p2align 8\nprep_kernel:")
    A("""s_cmp_ge_u32 s2, 256
    s_cbranch_scc1 L_k1_end
    s_load_dwordx4 s[4:7], s[0:1], 0
    s_load_dwordx4 s[8:11], s[0:1], 16
    s_load_dwordx4 s[12:15], s[0:1], 32
    s_load_dwordx2 s[16:17], s[0:1], 48
    s_load_dwordx2 s[18:19], s[0:1], 72
    v_lshrrev_b32 v1, 6, v0
    v_and_b32 v2, 63, v0
    v_readfirstlane_b32 s3, v1
    v_lshlrev_b32 v3, 4, v2
    v_lshlrev_b32 v4, 4, v0
    s_waitcnt lgkmcnt(0)""")
    stamp_init(0,3,18,19)
    stamp(0,0)
    srd(44,18,19,MISC_OFF,MISC_SZ)
    A("""s_cmp_ge_u32 s2, 128
    s_cbranch_scc1 L_k1_gemm""")
    srd(20,10,11,0,E*4)
    srd(24,8,9,0,E*4)
    srd(28,6,7,0,E*32)
    srd(32,18,19,REC_OFF,0x400000)
    srd(36,18,19,EP_OFF,0x2000000)
    D=8; S=12
    A(f"""s_mul_i32 s50, s2, {CH}
    s_sub_u32 s51, {E}, s50
    s_lshr_b32 s51, s51, 2
    s_min_u32 s51, s51, {CH//4}
    s_lshl_b32 s52, s50, 2
    v_cmp_gt_u32 vcc, s51, v0
    s_mov_b64 s[54:55], vcc
    s_mov_b64 exec, vcc
    s_cbranch_execz L_k1_noidx
    buffer_load_dwordx4 v[{D}:{D+3}], v4, s[20:23], s52 offen {NT}
    buffer_load_dwordx4 v[{S}:{S+3}], v4, s[24:27], s52 offen {NT}
L_k1_noidx:
    s_mov_b64 exec, -1
    s_lshl_b32 s53, s3, 10
    s_lshl_b32 s56, s50, 5
    s_add_u32 s56, s56, s53""")
    for i in range(7):
        if i==6: A("s_cmp_ge_u32 s3, 2\ns_cbranch_scc1 L_k1_dmadone")
        A(f"""s_mov_b32 m0, s53
        s_add_u32 s53, s53, 16384
        buffer_load_dwordx4 v3, s[28:31], s56 offen {NT} lds
        s_add_u32 s56, s56, 16384""")
    A(f"""L_k1_dmadone:
    v_mov_b32 v16, -1
    v_mov_b32 v17, -1
    v_mov_b32 v18, -1
    v_mov_b32 v19, -1
    v_mov_b32 v20, 0
    v_add_u32 v5, {K1_REC}, v4
    v_lshlrev_b32 v6, 2, v0
    v_add_u32 v6, {K1_HIST}, v6
    ds_write_b128 v5, v[16:19]
    ds_write_b128 v5, v[16:19] offset:16384
    v_cmp_gt_u32 vcc, 0x140, v0
    s_mov_b64 exec, vcc
    ds_write_b32 v6, v20
    s_mov_b64 exec, -1
    v_mov_b32 v21, 1
    v_mov_b32 v22, 21400
    v_mov_b32 v23, -196
    v_mov_b32 v24, 5352
    v_mov_b32 v25, 4014
    v_mov_b32 v26, 1342
    s_waitcnt lgkmcnt(0)
    s_barrier
    s_mov_b64 exec, s[54:55]
    s_cbranch_execz L_k1_b1
    s_waitcnt vmcnt(6)""")
    stamp(1,0)
    B,RC,HA,PH,RK,T=28,32,36,40,44,48
    for j in range(4):
        A(f"""v_mul_u32_u24 v{T}, v{D+j}, v22
        v_mul_u32_u24 v{T+1}, v{S+j}, v26
        v_lshrrev_b32 v{B+j}, 22, v{T}
        v_lshrrev_b32 v{T+1}, 22, v{T+1}
        v_mad_i32_i24 v{T}, v{B+j}, v23, v{D+j}
        v_lshrrev_b32 v{PH+j}, 2, v{T+1}
        v_mad_u32_u24 v{T+2}, v{T}, v24, v25
        v_lshl_add_u32 v{HA+j}, v{B+j}, 1, v{PH+j}
        v_lshrrev_b32 v{T+2}, 16, v{T+2}
        v_lshlrev_b32 v{HA+j}, 2, v{HA+j}
        v_mul_u32_u24 v{T+3}, 49, v{T+2}
        v_add_u32 v{HA+j}, {K1_HIST}, v{HA+j}
        v_lshrrev_b32 v{T+3}, 2, v{T+3}
        ds_add_rtn_u32 v{RK+j}, v{HA+j}, v21
        v_lshl_add_u32 v{T+2}, v{T+2}, 3, v{T+1}
        v_sub_u32 v{T}, v{T}, v{T+3}
        v_lshl_or_b32 v{T}, v{T}, 16, v{S+j}
        v_lshl_or_b32 v{RC+j}, v{T+2}, 24, v{T}""")
    A("""L_k1_b1:
    s_mov_b64 exec, -1
    s_waitcnt lgkmcnt(0)
    s_barrier""")
    stamp(2,0)
    A(f"""v_cmp_gt_u32 vcc, 128, v0
    s_mov_b64 exec, vcc
    s_cbranch_execz L_k1_nohdr
    v_lshlrev_b32 v{T}, 3, v0
    v_lshlrev_b32 v{T+1}, 8, v0""")
    A(f"""v_add_u32 v{T}, {K1_HIST}, v{T}
    v_add_u32 v{T+1}, {K1_REC+252}, v{T+1}
    ds_read_b64 v[{T+2}:{T+3}], v{T}
    v_mov_b32 v{T+5}, {K1_OVF}
    s_waitcnt lgkmcnt(0)
    v_lshl_or_b32 v{T+4}, v{T+3}, 16, v{T+2}
    v_add_u32 v{T+2}, v{T+2}, v{T+3}
    ds_write_b32 v{T+1}, v{T+4}
    v_cmp_lt_u32 vcc, 63, v{T+2}
    s_and_b64 exec, exec, vcc
    ds_write_b32 v{T+5}, v21
L_k1_nohdr:
    s_mov_b64 exec, s[54:55]
    s_cbranch_execz L_k1_b2""")
    for j in range(4):
        A(f"v_and_b32 v{T+j}, -8, v{HA+j}\nds_read_b32 v{T+4+j}, v{T+j}")
    A(f"v_lshlrev_b32 v{T+8}, 2, v0\ns_waitcnt lgkmcnt(0)")
    for j in range(4):
        A(f"""v_mad_u32_u24 v{T}, v{PH+j}, v{T+4+j}, v{RK+j}
        v_min_u32 v{T}, 62, v{T}
        v_lshl_add_u32 v{T+1}, v{B+j}, 6, v{T}
        v_and_b32 v{T+2}, 15, v{T}
        v_lshrrev_b32 v{T+3}, 4, v{T}
        v_lshlrev_b32 v{T+1}, 1, v{T+1}
        v_lshl_add_u32 v{T+2}, v{T+2}, 2, v{T+3}
        v_add_u32 v{T+1}, {K1_PERM}, v{T+1}
        v_lshl_add_u32 v{T+2}, v{B+j}, 6, v{T+2}
        v_add_u32 v{T+9}, {j}, v{T+8}
        v_lshlrev_b32 v{T+2}, 2, v{T+2}
        ds_write_b16 v{T+1}, v{T+9}
        v_add_u32 v{T+2}, {K1_REC}, v{T+2}
        ds_write_b32 v{T+2}, v{RC+j}""")
    A(f"""L_k1_b2:
    s_mov_b64 exec, -1
    s_waitcnt vmcnt(0) lgkmcnt(0)
    s_barrier""")
    stamp(3,0)
    EI=8; EV=64
    A(f"""ds_read_b128 v[16:19], v5
    ds_read_b128 v[20:23], v5 offset:16384
    v_and_b32 v24, 7, v2
    s_lshl_b32 s57, s3, 6
    v_lshl_add_u32 v24, v24, 3, s57
    v_add_u32 v24, {K1_HIST}, v24
    ds_read_b64 v[26:27], v24
    v_lshrrev_b32 v28, 1, v2
    s_lshl_b32 s57, s3, 10
    s_add_u32 s57, s57, {K1_PERM}
    v_lshl_add_u32 v29, v28, 1, s57""")
    for i in range(8): A(f"ds_read_u16 v{EI+i}, v29 offset:{i*128}")
    A(f"""v_lshrrev_b32 v30, 4, v0
    v_and_b32 v31, 15, v0
    v_lshlrev_b32 v30, 15, v30
    v_lshl_or_b32 v30, v31, 4, v30
    s_lshl_b32 s58, s2, 8
    s_add_u32 s59, s58, 0x200000
    v_and_b32 v31, 1, v2
    v_lshlrev_b32 v31, 4, v31
    s_waitcnt lgkmcnt(8)
    buffer_store_dwordx4 v[16:19], v30, s[32:35], s58 offen {ST}
    buffer_store_dwordx4 v[20:23], v30, s[32:35], s59 offen {ST}
    v_add_u32 v26, v26, v27
    v_min_u32 v26, 63, v26
    s_waitcnt lgkmcnt(0)""")
    for i in range(8):
        A(f"v_lshl_add_u32 v{EI+i}, v{EI+i}, 5, v31\nds_read_b128 v[{EV+4*i}:{EV+4*i+3}], v{EI+i}\nv_readlane_b32 s{60+i}, v26, {i}")
    A(f"""s_lshl_b32 s57, s3, 21
    s_lshl_b32 s58, s2, 11
    s_add_u32 s57, s57, s58""")
    for i in range(8):
        A(f"""v_cmp_gt_u32 vcc, s{60+i}, v28
        s_mov_b64 exec, vcc
        s_waitcnt lgkmcnt({7-i})
        buffer_store_dwordx4 v[{EV+4*i}:{EV+4*i+3}], v3, s[36:39], s57 offen {ST}
        s_mov_b64 exec, -1
        s_add_u32 s57, s57, 0x40000""")
    A(f"s_sub_u32 s57, s57, 0x200000\nv_add_u32 v32, 32, v28")
    for i in range(8):
        L=A.label("k1long")
        A(f"""s_cmp_le_u32 s{60+i}, 32
        s_cbranch_scc1 {L}
        ds_read_u16 v33, v29 offset:{i*128+64}
        s_waitcnt lgkmcnt(0)
        v_lshl_add_u32 v33, v33, 5, v31
        ds_read_b128 v[36:39], v33
        v_cmp_gt_u32 vcc, s{60+i}, v32
        s_mov_b64 exec, vcc
        s_waitcnt lgkmcnt(0)
        buffer_store_dwordx4 v[36:39], v3, s[36:39], s57 offen offset:1024 {ST}
        s_mov_b64 exec, -1
        s_nop 0
{L}:
        s_add_u32 s57, s57, 0x40000""")
    A("s_branch L_k1_flag")
    A("L_k1_gemm:")
    srd(20,4,5,0,N*256)
    srd(24,16,17,0,272*256)
    srd(28,14,15,0,128*256)
    srd(32,12,13,0,128*256)
    srd(36,18,19,TAB_OFF,HS)
    srd(40,18,19,TAB_OFF+HS,HS)
    XR=8; WL=24; XA=40; ACC=56; BF=8
    A(f"""s_sub_u32 s50, s2, 128
    s_lshl_b32 s51, s3, 7
    s_add_u32 s51, s51, s50
    v_mov_b32 v6, 0
    v_mov_b32 v7, {K1_OVF}
    ds_write_b32 v7, v6
    s_cmp_ge_u32 s51, 1568
    s_cbranch_scc1 L_k1_nox
    s_lshl_b32 s52, s51, 12
    v_lshrrev_b32 v5, 2, v2
    v_and_b32 v6, 3, v2
    v_lshlrev_b32 v5, 8, v5
    v_lshl_or_b32 v5, v6, 4, v5""")
    for ks in range(4): A(f"buffer_load_dwordx4 v[{XR+4*ks}:{XR+4*ks+3}], v5, s[20:23], s52 offen offset:{ks*64} {NT}")
    A(f"""L_k1_nox:
    s_mov_b32 s53, {128*256}
    s_mov_b32 s54, {128*256+16384}
    s_mov_b32 s55, 16384
    buffer_load_dwordx4 v[{WL}:{WL+3}], v4, s[24:27], s53 offen
    buffer_load_dwordx4 v[{WL+4}:{WL+7}], v4, s[24:27], s54 offen
    buffer_load_dwordx4 v[{WL+8}:{WL+11}], v4, s[28:31], 0 offen
    buffer_load_dwordx4 v[{WL+12}:{WL+15}], v4, s[28:31], s55 offen
    v_lshrrev_b32 v5, 4, v0
    v_lshrrev_b32 v6, 7, v0
    v_mul_u32_u24 v5, {WROW}, v5
    v_lshl_add_u32 v5, v6, 7, v5
    v_bfe_u32 v6, v0, 3, 1
    v_lshl_add_u32 v5, v6, 7, v5
    v_and_b32 v6, 7, v0
    v_lshl_add_u32 v5, v6, 2, v5
    s_mov_b32 s56, 0x05040100
    s_mov_b32 s57, 0x07060302""")
    A(f"""s_cmp_lg_u32 s3, 15
    s_cbranch_scc1 L_k1_noimg
    s_cmp_ge_u32 s50, 72
    s_cbranch_scc1 L_k1_noimg
    v_and_b32 v6, 15, v2
    v_lshrrev_b32 v7, 4, v2
    v_lshlrev_b32 v6, 3, v6
    s_cmp_ge_u32 s50, 64
    s_cbranch_scc1 L_k1_cimg
    s_bfe_u32 s58, s50, 0x10005
    s_bfe_u32 s59, s50, 0x20002
    s_and_b32 s60, s50, 3
    s_lshl_b32 s58, s58, 7
    s_lshl_b32 s59, s59, 1
    s_lshl_b32 s60, s60, 13
    s_add_u32 s58, s58, s59
    s_add_u32 s58, s58, s60
    v_lshl_add_u32 v6, v7, 11, v6
    s_bitcmp1_b32 s50, 4
    s_cbranch_scc1 L_k1_uimg""")
    for i in range(8): A(f"buffer_load_ushort v{64+i}, v6, s[24:27], s58 offen offset:{i*256}")
    A("s_branch L_k1_imgst\nL_k1_uimg:")
    for i in range(8): A(f"buffer_load_ushort v{64+i}, v6, s[32:35], s58 offen offset:{i*256}")
    A(f"""L_k1_imgst:
    s_lshl_b32 s58, s50, 10
    s_waitcnt vmcnt(0)
    v_lshl_or_b32 v56, v65, 16, v64
    v_lshl_or_b32 v57, v67, 16, v66
    v_lshl_or_b32 v58, v69, 16, v68
    v_lshl_or_b32 v59, v71, 16, v70
    buffer_store_dwordx4 v[56:59], v3, s[44:47], s58 offen
    s_branch L_k1_noimg
L_k1_cimg:
    s_sub_u32 s61, s50, 64
    s_lshr_b32 s58, s61, 2
    s_and_b32 s59, s61, 3
    s_lshl_b32 s58, s58, 7
    s_lshl_b32 s59, s59, 1
    s_add_u32 s58, s58, s59
    s_add_u32 s58, s58, {256*256}
    v_lshl_add_u32 v6, v7, 10, v6""")
    for i in range(4): A(f"buffer_load_ushort v{56+i}, v6, s[24:27], s58 offen offset:{i*256}")
    A(f"""s_mov_b32 s59, {hex(LOG2E_NEG)}
    s_lshl_b32 s58, s61, 9
    s_add_u32 s58, s58, {CIMG}
    v_lshlrev_b32 v7, 3, v2
    s_waitcnt vmcnt(0)""")
    for i in range(4): A(f"v_lshlrev_b32 v{56+i}, 16, v{56+i}\nv_mul_f32 v{56+i}, s59, v{56+i}")
    A(f"""v_cvt_pk_bf16_f32 v56, v56, v57
    v_cvt_pk_bf16_f32 v57, v58, v59
    buffer_store_dwordx2 v[56:57], v7, s[44:47], s58 offen
L_k1_noimg:""")
    for u in range(4):
        w=WL+4*u; base=(u&1)*woff(64)+(u>>1)*256
        A(f"""s_waitcnt vmcnt({3-u})
        v_perm_b32 v60, v{w+2}, v{w}, s56
        v_perm_b32 v61, v{w+2}, v{w}, s57
        v_perm_b32 v62, v{w+3}, v{w+1}, s56
        v_perm_b32 v63, v{w+3}, v{w+1}, s57
        ds_write_b32 v5, v60 offset:{base}
        ds_write_b32 v5, v61 offset:{base+32}
        ds_write_b32 v5, v62 offset:{base+64}
        ds_write_b32 v5, v63 offset:{base+96}""")
    A(f"""v_and_b32 v6, 15, v2
    v_lshrrev_b32 v7, 4, v2
    v_lshl_add_u32 v60, v6, 2, v7
    v_lshlrev_b32 v60, 2, v60
    s_cmp_ge_u32 s51, 1568
    s_cbranch_scc1 L_k1_nobp""")
    for i in range(16): A(f"ds_bpermute_b32 v{XA+i}, v60, v{XR+i}")
    A(f"""L_k1_nobp:
    v_bfe_u32 v61, v2, 2, 2
    v_lshl_add_u32 v61, v7, 3, v61
    v_mul_u32_u24 v61, {WROW}, v61
    v_lshl_add_u32 v61, v7, 7, v61
    v_and_b32 v62, 3, v2
    v_lshl_add_u32 v5, v62, 3, v61
    s_waitcnt lgkmcnt(0)
    s_barrier""")
    stamp(1,0)
    A("""s_cmp_ge_u32 s51, 1568
    s_cbranch_scc1 L_k1_gdone""")
    seq=[(h,t,mat,ks) for h in range(2) for t in range(4) for mat in range(2) for ks in range(4)]
    def rd(n):
        h,t,mat,ks=seq[n]; o=woff(32*ks)+mat*256+h*128+t*32; b=BF+4*(n%8)
        A(f"ds_read_b64_tr_b16 v[{b}:{b+1}], v5 offset:{o}\nds_read_b64_tr_b16 v[{b+2}:{b+3}], v5 offset:{o+4*WROW}")
    def acc(h,t,mat): return ACC+((h*4+t)*2+mat)*4
    PF=6
    for n in range(PF): rd(n)
    for n in range(64):
        h,t,mat,ks=seq[n]; b=BF+4*(n%8); a=acc(h,t,mat)
        out=min(63-n,PF-1)
        A(f"s_waitcnt lgkmcnt({2*out})")
        A(f"v_mfma_f32_16x16x32_bf16 v[{a}:{a+3}], v[{XA+4*ks}:{XA+4*ks+3}], v[{b}:{b+3}], {'0' if ks==0 else f'v[{a}:{a+3}]'}")
        if n+PF<64: rd(n+PF)
    stamp(2,0)
    A(f"""v_mov_b32 v8, {hex(LOG2E_NEG)}
    v_mov_b32 v9, 0x7fff
    v_mov_b32 v10, 0xffff0000
    v_mov_b32 v11, 0
    v_lshlrev_b32 v12, 10, v7
    v_lshl_or_b32 v12, v6, 4, v12
    s_nop 3""")
    for h in range(2):
        for r in range(4):
            o=16+4*((h*4+r)%2); tt=24
            for t in range(4): A(f"v_mul_f32 v{tt+t}, v8, v{acc(h,t,0)+r}")
            A(f"v_max3_f32 v11, abs(v{tt}), abs(v{tt+1}), v11\nv_max3_f32 v11, abs(v{tt+2}), abs(v{tt+3}), v11")
            for t in range(4): A(f"v_exp_f32 v{tt+t}, v{tt+t}")
            A("s_nop 0")
            for t in range(4): A(f"v_cvt_pk_f16_f32 v{tt+t}, v{tt+t}, 0")
            for t in range(4): A(f"v_xad_u32 v{tt+4+t}, v{tt+t}, v9, v{acc(h,t,1)+r}")
            for t in range(4): A(f"v_bfi_b32 v{o+t}, v10, v{tt+4+t}, v{tt+t}")
            A(f"buffer_store_dwordx4 v[{o}:{o+3}], v12, s[{36+4*h}:{39+4*h}], s52 offen offset:{r*256} {ST}")
    A(f"""v_mov_b32 v13, 0x41600000
    v_mov_b32 v14, 1
    v_mov_b32 v15, {K1_OVF}
    v_cmp_nle_f32 vcc, v11, v13""")
    A(f"""s_mov_b64 exec, vcc
    ds_write_b32 v15, v14
    s_mov_b64 exec, -1
L_k1_gdone:
    s_waitcnt lgkmcnt(0)
    s_barrier
L_k1_flag:
    s_cmp_lg_u32 s3, 0
    s_cbranch_scc1 L_k1_fin
    v_mov_b32 v15, {K1_OVF}
    ds_read_b32 v14, v15
    s_lshl_b32 s58, s2, 2
    s_add_u32 s58, s58, {FLAGO}
    v_mov_b32 v15, 0
    s_mov_b64 exec, 1
    s_waitcnt lgkmcnt(0)
    buffer_store_dword v14, v15, s[44:47], s58 offen
    s_mov_b64 exec, -1
L_k1_fin:""")
    if STAMP:
        stamp(4,0)
        A("s_waitcnt vmcnt(0)")
        stamp(5,0)
        stamp_flush()
    A("L_k1_end:\ns_endpgm")

ECAP=3584; WCAP=320
K2_W=ECAP*32-32768
K2_L1=ECAP*32; K2_L2=K2_L1+16*WCAP*4; K2_OH=K2_L2+16*WCAP*4
K2_HIST=K2_OH+1024; K2_BASE=K2_HIST+512; K2_CNT=K2_BASE+512; K2_EOFF=K2_CNT+512; K2_LDS=K2_EOFF+512
ZIDX=(K2_OH+512)//32
assert K2_LDS<=163840 and (K2_L2-K2_L1)%256==0 and K2_OH%32==0

def k2():
    L=0; D=32; EE=48; ACC=64; GB=80; A0=96; A1=100; S=104; EA0,OA0,EA1,OA1,SA0,SA1=108,109,110,111,112,113
    cJ16,cG8,cG8O,cS,pL1,pLm,pLs,LANE,L16=114,115,116,117,118,119,120,121,122
    TID=123
    A(".p2align 8\nmain_kernel:")
    A(f"""s_cmp_ge_u32 s2, 256
    s_cbranch_scc1 L_k2_end
    s_load_dwordx2 s[4:5], s[0:1], 0
    s_load_dwordx2 s[6:7], s[0:1], 56
    s_load_dwordx2 s[18:19], s[0:1], 72
    v_mov_b32 v{TID}, v0
    v_lshrrev_b32 v1, 6, v0
    v_and_b32 v{LANE}, 63, v0
    v_readfirstlane_b32 s3, v1
    v_lshlrev_b32 v{L16}, 4, v{LANE}
    v_lshlrev_b32 v4, 4, v0
    s_bfe_u32 s40, s2, 0x10002
    s_lshr_b32 s41, s2, 3
    s_and_b32 s42, s2, 3
    s_lshl_b32 s41, s41, 2
    s_add_u32 s41, s41, s42
    s_mul_i32 s42, s3, 49
    s_add_u32 s43, s42, 49
    s_lshr_b32 s42, s42, 2
    s_lshr_b32 s43, s43, 2
    s_sub_u32 s43, s43, s42
    s_mul_i32 s44, s41, {BS}
    s_add_u32 s44, s44, s42
    s_waitcnt lgkmcnt(0)""")
    stamp_init(1,3,18,19)
    stamp(0,1)
    srd(8,18,19,REC_OFF,0x400000)
    A(f"s_lshl_b32 s45, s41, 15\ns_add_u32 s46, s45, 16384")
    R=0; RK=8; HA=16; XR=32;
    A(f"""buffer_load_dwordx4 v[{R}:{R+3}], v4, s[8:11], s45 offen {NT}
    buffer_load_dwordx4 v[{R+4}:{R+7}], v4, s[8:11], s46 offen {NT}""")
    srd(24,18,19,MISC_OFF,MISC_SZ)
    srd(20,4,5,0,N*256)
    A(f"""s_mov_b32 s45, {FLAGO}
    buffer_load_dwordx4 v[24:27], v{L16}, s[24:27], s45 offen
    v_lshrrev_b32 v28, 2, v{LANE}
    v_and_b32 v29, 3, v{LANE}
    v_lshlrev_b32 v28, 8, v28
    v_lshl_or_b32 v28, v29, 4, v28
    s_lshl_b32 s45, s44, 8""")
    for ks in range(4): A(f"buffer_load_dwordx4 v[{XR+4*ks}:{XR+4*ks+3}], v28, s[20:23], s45 offen offset:{ks*64} {NT}")
    A(f"""s_lshl_b32 s45, s40, 11
    s_add_u32 s45, s45, {CIMG}
    v_lshlrev_b32 v28, 3, v{LANE}""")
    for t in range(4): A(f"buffer_load_dwordx2 v[{GB+4*t}:{GB+4*t+1}], v28, s[24:27], s45 offen offset:{t*512}")
    A(f"""s_lshl_b32 s45, s3, 11
    s_add_u32 m0, s45, {K2_W}
    s_lshl_b32 s46, s40, 15
    s_add_u32 s45, s45, s46
    buffer_load_dwordx4 v{L16}, s[24:27], s45 offen lds
    buffer_load_dwordx4 v{L16}, s[24:27], s45 offen offset:1024 lds""")
    srd(12,18,19,EP_OFF,0x2000000)
    A(f"s_mul_i32 s45, s40, {HS}\ns_add_u32 s16, s18, s45\ns_addc_u32 s17, s19, 0\ns_mov_b32 s18, {HS}\ns_mov_b32 s19, 0x20000")
    srd(28,6,7,0,N*256)
    A(f"""v_lshrrev_b32 v28, 3, v{TID}
    v_and_b32 v29, 7, v{TID}
    v_lshrrev_b32 v30, 1, v28
    v_and_b32 v28, 1, v28
    v_lshlrev_b32 v28, 4, v28
    v_mov_b32 v31, 0x3f80
    v_lshlrev_b32 v31, v28, v31
    v_cmp_eq_u32 vcc, v29, v30
    v_lshlrev_b32 v29, 2, v{TID}
    v_add_u32 v29, {K2_OH}, v29
    v_cndmask_b32 v31, 0, v31, vcc
    v_cmp_gt_u32 vcc, 0x180, v{TID}
    s_mov_b64 exec, vcc
    ds_write_b32 v29, v31
    s_mov_b64 exec, -1
    v_and_b32 v28, 15, v{LANE}
    v_lshrrev_b32 v29, 4, v{LANE}
    v_lshlrev_b32 v{cJ16}, 4, v28
    v_lshlrev_b32 v{cG8}, 3, v29
    v_add_u32 v{cG8O}, {K2_OH}, v{cG8}
    v_and_b32 v30, 3, v{LANE}
    v_lshlrev_b32 v30, 3, v30
    v_add_u32 v{cS}, {K2_OH}, v30
    s_mul_i32 s47, s3, {WCAP*4}
    s_add_u32 s48, s47, {K2_L1}
    v_lshl_add_u32 v{pL1}, v29, 4, s48
    s_add_u32 s48, s47, {K2_L2}
    v_lshl_add_u32 v{pLm}, v28, 2, s48
    v_and_b32 v30, -4, v{LANE}
    v_add_u32 v{pLs}, s48, v30
    v_mov_b32 v31, 1
    s_mov_b32 s50, 0x80008000
    s_mov_b32 s51, 0x80008000
    s_waitcnt lgkmcnt(0)
    s_barrier
    s_waitcnt vmcnt(10)""")
    stamp(1,1)
    A(f"""v_or_b32 v24, v24, v25
    v_or3_b32 v24, v24, v26, v27
    v_cmp_ne_u32 vcc, 0, v24
    s_cmp_lg_u64 vcc, 0
    s_cbranch_scc1 L_k2_fallback""")
    MK=52
    for j in range(8):
        Lb=A.label("k2h")
        A(f"v_cmp_le_i32 s[{MK+2*j}:{MK+2*j+1}], 0, v{R+j}")
        if j&3==3: A(f"s_andn2_b64 s[{MK+2*j}:{MK+2*j+1}], s[{MK+2*j}:{MK+2*j+1}], s[50:51]")
        A(f"s_mov_b64 exec, s[{MK+2*j}:{MK+2*j+1}]")
        if j&3>=2: A(f"s_cbranch_execz {Lb}")
        A(f"""v_lshrrev_b32 v{HA+j}, 22, v{R+j}
        v_and_b32 v{HA+j}, 0x1fc, v{HA+j}
        v_add_u32 v{HA+j}, {K2_HIST}, v{HA+j}
        ds_add_rtn_u32 v{RK+j}, v{HA+j}, v31""")
        if j&3>=2: A(f"{Lb}:")
        A("s_mov_b64 exec, -1")
    A(f"""v_lshrrev_b32 v24, 4, v{TID}
    v_lshlrev_b32 v24, 2, v24
    v_add_u32 v24, {K2_CNT}, v24
    s_mov_b64 exec, s[50:51]
    ds_write2st64_b32 v24, v{R+3}, v{R+7} offset0:0 offset1:1
    s_mov_b64 exec, -1
    v_lshlrev_b32 v25, 3, v{LANE}
    v_add_u32 v25, {K2_HIST}, v25
    s_waitcnt lgkmcnt(0)
    s_barrier""")
    stamp(2,1)
    C0,C1,H0,H1,SS,HSs,T=48,49,50,51,52,53,54
    A(f"""ds_read_b64 v[{C0}:{C1}], v25 offset:{K2_CNT-K2_HIST}
    ds_read_b64 v[{H0}:{H1}], v25
    v_and_b32 v{T}, 3, v{LANE}
    v_cmp_le_u32 vcc, 1, v{T}
    v_lshrrev_b32 v{T+3}, 2, v{LANE}
    v_mul_u32_u24 v{T+3}, {WCAP}, v{T+3}
    v_cndmask_b32 v{T+1}, 0, -1, vcc
    v_cmp_le_u32 vcc, 2, v{T}
    s_lshl_b32 s45, s3, 2
    s_add_u32 s46, s45, 1
    v_cndmask_b32 v{T+2}, 0, -1, vcc
    s_waitcnt lgkmcnt(0)
    v_add_u32 v{SS}, v{C0}, v{C1}
    v_add_u32 v{HSs}, v{H0}, v{H1}
    s_nop 0
    v_add_u32_dpp v{SS}, v{SS}, v{SS} row_shr:1 row_mask:0xf bank_mask:0xf bound_ctrl:1
    v_and_b32_dpp v{T}, v{HSs}, v{T+1} row_shr:1 row_mask:0xf bank_mask:0xf bound_ctrl:1
    v_add_u32 v{HSs}, v{HSs}, v{T}
    v_add_u32_dpp v{SS}, v{SS}, v{SS} row_shr:2 row_mask:0xf bank_mask:0xf bound_ctrl:1
    s_nop 0
    v_and_b32_dpp v{T}, v{HSs}, v{T+2} row_shr:2 row_mask:0xf bank_mask:0xf bound_ctrl:1
    v_add_u32_dpp v{SS}, v{SS}, v{SS} row_shr:4 row_mask:0xf bank_mask:0xf bound_ctrl:1
    v_add_u32 v{HSs}, v{HSs}, v{T}
    s_add_u32 s47, s45, 3
    v_add_u32_dpp v{SS}, v{SS}, v{SS} row_shr:8 row_mask:0xf bank_mask:0xf bound_ctrl:1
    v_cmp_lt_u32 vcc, {WCAP}, v{HSs}
    v_readlane_b32 s68, v{HSs}, s47
    v_add_u32_dpp v{SS}, v{SS}, v{SS} row_bcast:15 row_mask:0xa bank_mask:0xf
    v_readlane_b32 s69, v{HSs}, s46
    v_sub_u32 v{T}, v{HSs}, v{H0}
    v_add_u32_dpp v{SS}, v{SS}, v{SS} row_bcast:31 row_mask:0xc bank_mask:0xf
    v_sub_u32 v{T}, v{T}, v{H1}
    v_add_u32 v{T+4}, v{T}, v{T+3}
    v_readlane_b32 s70, v{SS}, 63
    v_add_u32 v{T+5}, v{T+4}, v{H0}
    ds_write_b64 v25, v[{T+4}:{T+5}] offset:{K2_BASE-K2_HIST}
    s_cmp_lg_u64 vcc, 0
    s_cbranch_scc1 L_k2_fallback
    s_and_b32 s71, s70, 0xffff
    s_lshr_b32 s72, s70, 16
    s_add_u32 s72, s72, s71
    s_cmp_gt_u32 s71, {K2_W//32}
    s_cbranch_scc1 L_k2_fallback
    s_cmp_gt_u32 s72, {ECAP}
    s_cbranch_scc1 L_k2_fallback
    s_lshl_b32 s71, s71, 16
    v_sub_u32 v{SS}, v{SS}, v{C0}
    v_sub_u32 v{SS}, v{SS}, v{C1}
    v_add_u32 v{T+1}, s71, v{SS}
    v_lshlrev_b32 v{T}, 16, v{C0}
    v_sub_u32 v{T+6}, v{T+1}, v{T}
    v_add_u32 v{T+1}, v{T+1}, v{C0}
    v_lshlrev_b32 v{T}, 16, v{C1}
    v_sub_u32 v{T+7}, v{T+1}, v{T}
    ds_write_b64 v25, v[{T+6}:{T+7}] offset:{K2_EOFF-K2_HIST}""")
    assert (T+4)%2==0 and (T+6)%2==0
    for i in range(4):
        A(f"""v_readlane_b32 s{72+2*i}, v{T+6}, s45
        v_readlane_b32 s{73+2*i}, v{T+7}, s45
        v_readlane_b32 s{80+2*i}, v{C0}, s45
        v_readlane_b32 s{81+2*i}, v{C1}, s45
        s_add_u32 s45, s45, 1""")
    A("s_waitcnt lgkmcnt(0)")
    BP=56
    for j in range(8):
        if j&3<2: A(f"ds_read_b32 v{BP+j}, v{HA+j} offset:{K2_BASE-K2_HIST}")
    A(f"""ds_read2st64_b32 v[{BP+8}:{BP+9}], v24 offset0:{(K2_EOFF-K2_CNT)//256} offset1:{(K2_EOFF-K2_CNT)//256+1}
    v_lshrrev_b32 v26, 1, v{LANE}
    s_lshl_b32 s46, s41, 18
    s_lshl_b32 s47, s3, 14
    s_add_u32 s46, s46, s47""")
    def dma(part, vh=26):
        for i in range(8):
            Lx=A.label("dma");
            if part==0:
                A(f"""s_and_b32 s47, s{72+i}, 0xffff
                s_and_b32 s48, s{80+i}, 0xffff
                s_add_u32 s49, s46, {i*2048}""")
            else:
                A(f"""s_and_b32 s49, s{80+i}, 0xffff
                s_lshr_b32 s47, s{72+i}, 16
                s_add_u32 s47, s47, s49
                s_lshl_b32 s49, s49, 5
                s_lshr_b32 s48, s{80+i}, 16
                s_add_u32 s49, s49, s46
                s_add_u32 s49, s49, {i*2048}""")
            A(f"""s_lshl_b32 m0, s47, 5
            v_cmp_gt_u32 vcc, s48, v{vh}
            s_mov_b64 exec, vcc
            buffer_load_dwordx4 v{L16}, s[12:15], s49 offen {NT} lds
            s_cmp_le_u32 s48, 32
            s_cbranch_scc1 {Lx}
            s_sub_u32 s48, s48, 32
            s_mov_b64 exec, -1
            v_cmp_gt_u32 vcc, s48, v{vh}
            s_mov_b64 exec, vcc
            buffer_load_dwordx4 v{L16}, s[12:15], s49 offen offset:1024 {NT} lds
{Lx}:
            s_mov_b64 exec, -1""")
    A('s_waitcnt vmcnt(0)')
    dma(0)
    A(f"""v_and_b32 v27, 15, v{LANE}
    v_mov_b32 v28, {OPT.get('srcmask','0x7fff')}
    v_mov_b32 v29, 0xf0000
    s_waitcnt lgkmcnt(0)
    v_and_b32 v{BP+10}, 0xffff, v{BP+8}
    v_and_b32 v{BP+11}, 0xffff, v{BP+9}
    v_lshrrev_b32 v{BP+8}, 16, v{BP+8}
    v_lshrrev_b32 v{BP+9}, 16, v{BP+9}""")
    for j in range(8):
        Lb=A.label("k2s")
        A(f"s_mov_b64 exec, s[{MK+2*j}:{MK+2*j+1}]")
        if j&3>=2:
            A(f"s_cbranch_execz {Lb}\nds_read_b32 v{BP+j}, v{HA+j} offset:{K2_BASE-K2_HIST}")
        u=j>>2
        A(f"""v_and_b32 v30, 0x4000000, v{R+j}
        v_cmp_ne_u32 vcc, 0, v30
        v_and_b32 v30, v28, v{R+j}
        v_lshlrev_b32 v30, 8, v30
        v_cndmask_b32 v31, v{BP+10+u}, v{BP+8+u}, vcc
        v_add3_u32 v31, v31, v27, {16*(j&3)}
        v_and_or_b32 v31, v{R+j}, v29, v31""")
        if j&3>=2: A("s_waitcnt lgkmcnt(0)")
        A(f"""v_add_lshl_u32 v{BP+j}, v{BP+j}, v{RK+j}, 2
        v_add_u32 v{BP+j}, {K2_L1}, v{BP+j}
        ds_write2st64_b32 v{BP+j}, v30, v31 offset0:0 offset1:{(K2_L2-K2_L1)//256}""")
        if j&3>=2: A(f"{Lb}:")
    A(f"""s_mov_b64 exec, -1
    s_sub_u32 s47, 0, s68
    s_and_b32 s47, s47, 31
    s_mul_i32 s48, s3, {WCAP}
    s_add_u32 s48, s48, s68
    v_add_lshl_u32 v30, v{LANE}, s48, 2
    v_add_u32 v30, {K2_L1}, v30
    v_mov_b32 v28, {N<<8}
    v_mov_b32 v29, {hex(ZIDX|(16<<16))}
    v_cmp_gt_u32 vcc, s47, v{LANE}
    s_mov_b64 exec, vcc
    ds_write2st64_b32 v30, v28, v29 offset0:0 offset1:{(K2_L2-K2_L1)//256}
    s_mov_b64 exec, -1
    s_add_u32 s68, s68, 31
    s_lshr_b32 s68, s68, 5
    s_lshr_b32 s69, s69, 5
    s_min_u32 s69, s69, 2
    s_min_u32 s69, s69, s68""")
    XA=96
    A(f"""v_and_b32 v28, 15, v{LANE}
    v_lshrrev_b32 v29, 4, v{LANE}
    v_lshl_add_u32 v28, v28, 2, v29
    v_lshlrev_b32 v28, 2, v28""")
    for i in range(16): A(f"ds_bpermute_b32 v{XA+i}, v28, v{XR+i}")
    A("s_waitcnt lgkmcnt(0)\ns_barrier")
    stamp(3,1)
    LM0,LM1,LS0,LS1=124,125,112,113
    def loadstep(first):
        G=EE
        A(f"""ds_read_b128 v[{G}:{G+3}], v{pL1}
        ds_read_b128 v[{G+4}:{G+7}], v{pL1} offset:64
        ds_read_b32 v{LM0}, v{pLm}
        ds_read_b32 v{LM1}, v{pLm} offset:64
        ds_read_b32 v{LS0}, v{pLs}
        ds_read_b32 v{LS1}, v{pLs} offset:64
        v_add_u32 v{pL1}, 128, v{pL1}
        v_add_u32 v{pLm}, 128, v{pLm}
        v_add_u32 v{pLs}, 128, v{pLs}
        s_waitcnt lgkmcnt(5)""")
        for i in range(8):
            if i==4: A("s_waitcnt lgkmcnt(4)")
            A(f"v_or_b32 v{G+i}, v{G+i}, v{cJ16}\nbuffer_load_dwordx4 v[{L+4*i}:{L+4*i+3}], v{G+i}, s[16:19], 0 offen")
    def addrs():
        A(f"""v_mad_u32_u16 v{EA0}, v{LM0}, 32, v{cG8}
        v_mad_u32_u16 v{OA0}, v{LM0}, 32, v{cG8O} op_sel:[1,0,0,0]
        v_mad_u32_u16 v{EA1}, v{LM1}, 32, v{cG8}
        v_mad_u32_u16 v{OA1}, v{LM1}, 32, v{cG8O} op_sel:[1,0,0,0]
        v_mad_u32_u16 v{SA0}, v{LS0}, 32, v{cS} op_sel:[1,0,0,0]
        v_mad_u32_u16 v{SA1}, v{LS1}, 32, v{cS} op_sel:[1,0,0,0]""")
    A("s_cmp_eq_u32 s68, 0\ns_cbranch_scc1 L_k2_noload0")
    loadstep(True)
    A("L_k2_noload0:")
    A(f"v_add_u32 v126, {K2_W}, v{L16}")
    BFR=32
    seq=[(mat,t,ks) for mat in range(2) for t in range(4) for ks in range(4)]
    def rd(n):
        mat,t,ks=seq[n]; b=BFR+4*(n%8)
        A(f"ds_read_b128 v[{b}:{b+3}], v126 offset:{n*1024}")
    PF=6
    A("s_waitcnt lgkmcnt(0)")
    for n in range(PF): rd(n)
    for n in range(32):
        mat,t,ks=seq[n]; b=BFR+4*(n%8); a=ACC+4*t
        if n==16:
            A(f"v_mov_b32 v127, {hex(LOG2E_NEG)}\ns_nop 6")
            for tt in range(4):
                for r in range(4): A(f"v_mul_f32 v{ACC+4*tt+r}, v127, v{ACC+4*tt+r}")
                A(f"v_cvt_pk_bf16_f32 v{GB+4*tt+2}, v{ACC+4*tt}, v{ACC+4*tt+1}\nv_cvt_pk_bf16_f32 v{GB+4*tt+3}, v{ACC+4*tt+2}, v{ACC+4*tt+3}")
        out=min(31-n,PF-1)
        A(f"s_waitcnt lgkmcnt({out})")
        A(f"v_mfma_f32_16x16x32_bf16 v[{a}:{a+3}], v[{XA+4*ks}:{XA+4*ks+3}], v[{b}:{b+3}], {'0' if ks==0 else f'v[{a}:{a+3}]'}")
        if n+PF<32: rd(n+PF)
    addrs()
    A("s_waitcnt vmcnt(0)\ns_barrier")
    stamp(4,1)
    A(f"v_lshrrev_b32 v{D}, 1, v{LANE}")
    dma(1, D)
    A("s_mov_b32 s70, 0")
    A(""".p2align 6
L_k2_loop:
    s_cmp_lg_u32 s70, s69
    s_cbranch_scc1 L_k2_nobar
    s_waitcnt vmcnt(0)
    s_barrier
L_k2_nobar:
    s_cmp_ge_u32 s70, s68
    s_cbranch_scc1 L_k2_done""")
    A(f"""ds_read_b64 v[{A0}:{A0+1}], v{EA0}
    ds_read_b64 v[{A0+2}:{A0+3}], v{OA0}
    ds_read_b64 v[{A1}:{A1+1}], v{EA1}
    ds_read_b64 v[{A1+2}:{A1+3}], v{OA1}
    ds_read_b64_tr_b16 v[{S}:{S+1}], v{SA0}
    ds_read_b64_tr_b16 v[{S+2}:{S+3}], v{SA1}
    s_add_u32 s70, s70, 1
    s_waitcnt lgkmcnt(4)""")
    def gate(Ar):
        for t in range(4): A(f"v_mfma_f32_16x16x32_bf16 v[{D+4*t}:{D+4*t+3}], v[{Ar}:{Ar+3}], v[{GB+4*t}:{GB+4*t+3}], 0")
    def exps():
        for t in range(4):
            for r in range(4): A(f"v_exp_f32 v{EE+4*r+t}, v{D+4*t+r}")
    def rest(q):
        Lq=L+16*q
        order=[(r,t) for t in range(4) for r in range(4)]
        for r,t in order: A(f"v_fma_mix_f32 v{EE+4*r+t}, v{Lq+4*r+t}, v{EE+4*r+t}, 1.0 op_sel_hi:[1,0,0]")
        for r,t in order: A(f"v_rcp_f32 v{EE+4*r+t}, v{EE+4*r+t}")
        for t in (0,2):
            for r in range(4): A(f"v_pk_mul_f32 v[{EE+4*r+t}:{EE+4*r+t+1}], v[{EE+4*r+t}:{EE+4*r+t+1}], v[{Lq+4*r+t}:{Lq+4*r+t+1}]")
        for t in range(4):
            for p in range(2): A(f"v_cvt_pk_bf16_f32 v{L+4*t+2*q+p}, v{EE+8*p+t}, v{EE+8*p+4+t}")
    if not OPT.get('nocomp'):
        gate(A0)
        A("s_nop 4")
        exps()
        A("s_waitcnt lgkmcnt(0)")
        gate(A1)
        rest(0)
        exps()
        rest(1)
    A("s_nop 1")
    for t in range(4): A(f"v_mfma_f32_16x16x32_bf16 v[{ACC+4*t}:{ACC+4*t+3}], v[{S}:{S+3}], v[{L+4*t}:{L+4*t+3}], v[{ACC+4*t}:{ACC+4*t+3}]")
    A("s_cmp_ge_u32 s70, s68\ns_cbranch_scc1 L_k2_loop")
    loadstep(False)
    A("s_waitcnt lgkmcnt(0)")
    addrs()
    A("s_waitcnt vmcnt(0)\ns_branch L_k2_loop")
    A("L_k2_done:")
    stamp(5,1)
    A(f"""v_lshrrev_b32 v0, 4, v{LANE}
    v_lshlrev_b32 v0, 2, v0
    v_add_u32 v1, s44, v0
    v_lshlrev_b32 v1, 8, v1
    v_lshrrev_b32 v2, 1, v{cJ16}
    s_lshl_b32 s45, s40, 7
    v_add3_u32 v1, v1, v2, s45
    v_mov_b32 v3, {hex(LOG2E_NEG)}
    v_mov_b32 v4, 0x80000000""")
    for r in range(4):
        for t in range(4): A(f"v_mul_f32 v{8+t}, v3, v{ACC+4*t+r}")
        for t in range(4): A(f"v_exp_f32 v{8+t}, v{8+t}")
        A(f"v_add_u32 v5, {r}, v0\nv_cmp_gt_u32 vcc, s43, v5")
        for t in range(4): A(f"v_add_f32 v{8+t}, 1.0, v{8+t}")
        for t in range(4): A(f"v_rcp_f32 v{8+t}, v{8+t}")
        A(f"v_cndmask_b32 v{16+r}, v4, v1, vcc")
        for t in range(4): A(f"v_mul_f32 v{8+t}, v{8+t}, v{ACC+4*t+r}")
        A(f"""v_cvt_pk_bf16_f32 v{20+2*r}, v8, v9
        v_cvt_pk_bf16_f32 v{21+2*r}, v10, v11
        buffer_store_dwordx2 v[{20+2*r}:{21+2*r}], v{16+r}, s[28:31], 0 offen offset:{r*256}""")
    if STAMP:
        A("s_waitcnt vmcnt(0)")
        stamp(6,1)
        stamp_flush(1)
    A("s_endpgm")
    fallback()
    A("L_k2_end:\ns_endpgm")

def fallback():
    LANE=121; TID=123
    A(f"""L_k2_fallback:
    s_mov_b64 exec, -1
    s_load_dwordx2 s[50:51], s[0:1], 8
    s_load_dwordx4 s[52:55], s[0:1], 16
    s_load_dwordx4 s[56:59], s[0:1], 32
    s_load_dwordx2 s[60:61], s[0:1], 48
    s_waitcnt vmcnt(0) lgkmcnt(0)
    s_barrier""")
    srd(8,50,51,0,E*32)
    srd(12,52,53,0,E*4)
    srd(16,54,55,0,E*4)
    srd(24,56,57,0,128*256)
    srd(32,58,59,0,128*256)
    srd(36,60,61,0,272*256)
    A(f"""v_mov_b32 v0, 0
    v_mov_b32 v1, 0
    v_mov_b32 v2, 0
    v_mov_b32 v3, 0
    v_lshlrev_b32 v4, 4, v{TID}
    ds_write_b128 v4, v[0:3]
    ds_write_b128 v4, v[0:3] offset:16384
    ds_write_b128 v4, v[0:3] offset:32768
    ds_write_b128 v4, v[0:3] offset:49152
    s_lshl_b32 s45, s40, 7
    v_lshl_add_u32 v5, v{LANE}, 1, s45
    v_lshlrev_b32 v6, 2, v{LANE}
    s_mul_i32 s46, s41, {BS}
    s_lshl_b32 s47, s3, 6
    s_waitcnt lgkmcnt(0)
    s_barrier
L_fb_chunk:
    s_cmp_ge_u32 s47, {E}
    s_cbranch_scc1 L_fb_fin
    s_lshl_b32 s48, s47, 2
    buffer_load_dword v7, v6, s[16:19], s48 offen
    buffer_load_dword v8, v6, s[12:15], s48 offen
    s_waitcnt vmcnt(0)
    v_subrev_u32 v9, s46, v7
    v_cmp_gt_u32 s[62:63], v10, v9
    """.replace("v_cmp_gt_u32 s[62:63], v10, v9",f"v_mov_b32 v10, {BS}\nv_cmp_gt_u32 s[62:63], v10, v9")+f"""
L_fb_edge:
    s_cmp_eq_u64 s[62:63], 0
    s_cbranch_scc1 L_fb_next
    s_ff1_i32_b64 s49, s[62:63]
    s_bitset0_b64 s[62:63], s49
    v_readlane_b32 s64, v7, s49
    v_readlane_b32 s65, v8, s49
    s_add_u32 s66, s47, s49
    s_lshl_b32 s67, s64, 8
    s_lshl_b32 s68, s65, 8
    s_lshl_b32 s66, s66, 5
    s_nop 2
    buffer_load_dword v11, v6, s[20:23], s67 offen
    buffer_load_dword v12, v6, s[20:23], s68 offen
    v_and_b32 v14, 28, v6
    buffer_load_dword v13, v14, s[8:11], s66 offen
    v_mov_b32 v15, 0
    v_mov_b32 v16, 0
    s_mov_b32 s69, 0
    s_waitcnt vmcnt(0)
L_fb_k:
    s_lshl_b32 s70, s69, 9
    s_add_u32 s71, s70, {128*256}
    buffer_load_ushort v17, v5, s[36:39], s70 offen
    buffer_load_ushort v18, v5, s[36:39], s70 offen offset:256
    buffer_load_ushort v19, v5, s[36:39], s71 offen
    buffer_load_ushort v20, v5, s[36:39], s71 offen offset:256
    buffer_load_ushort v21, v5, s[32:35], s70 offen
    buffer_load_ushort v22, v5, s[32:35], s70 offen offset:256
    v_readlane_b32 s72, v11, s69
    v_readlane_b32 s73, v12, s69
    s_lshl_b32 s74, s72, 16
    s_and_b32 s72, s72, 0xffff0000
    s_lshl_b32 s75, s73, 16
    s_and_b32 s73, s73, 0xffff0000
    s_waitcnt vmcnt(0)""")
    for i in range(17,23): A(f"v_lshlrev_b32 v{i}, 16, v{i}")
    A(f"""v_fmac_f32 v15, s74, v17
    v_fmac_f32 v15, s72, v18
    v_fmac_f32 v15, s75, v19
    v_fmac_f32 v15, s73, v20
    v_fmac_f32 v16, s75, v21
    v_fmac_f32 v16, s73, v22
    s_add_u32 s69, s69, 1
    s_cmp_lt_u32 s69, 64
    s_cbranch_scc1 L_fb_k
    s_mov_b32 s69, 0
L_fb_ke:
    s_lshl_b32 s70, s69, 9
    s_add_u32 s70, s70, {256*256}
    buffer_load_ushort v17, v5, s[36:39], s70 offen
    buffer_load_ushort v18, v5, s[36:39], s70 offen offset:256
    v_readlane_b32 s72, v13, s69
    s_lshl_b32 s74, s72, 16
    s_and_b32 s72, s72, 0xffff0000
    s_waitcnt vmcnt(0)
    v_lshlrev_b32 v17, 16, v17
    v_lshlrev_b32 v18, 16, v18
    v_fmac_f32 v15, s74, v17
    v_fmac_f32 v15, s72, v18
    s_add_u32 s69, s69, 1
    s_cmp_lt_u32 s69, 8
    s_cbranch_scc1 L_fb_ke
    v_mul_f32 v15, {hex(LOG2E_NEG)}, v15
    v_exp_f32 v15, v15
    s_sub_u32 s64, s64, s46
    s_lshl_b32 s64, s64, 8
    v_add_f32 v15, 1.0, v15
    v_rcp_f32 v15, v15
    v_add_u32 v17, s64, v6
    v_mul_f32 v15, v15, v16
    ds_add_f32 v17, v15
    s_branch L_fb_edge
L_fb_next:
    s_add_u32 s47, s47, 1024
    s_branch L_fb_chunk
L_fb_fin:
    s_waitcnt lgkmcnt(0)
    s_barrier
    s_mov_b32 s47, s3
L_fb_node:
    s_cmp_ge_u32 s47, {BS}
    s_cbranch_scc1 L_k2_end
    s_add_u32 s64, s46, s47
    s_lshl_b32 s67, s64, 8
    buffer_load_dword v11, v6, s[20:23], s67 offen
    s_lshl_b32 s48, s47, 8
    v_add_u32 v17, s48, v6
    ds_read_b32 v15, v17
    s_mov_b32 s69, 0
    s_waitcnt vmcnt(0) lgkmcnt(0)
L_fb_ku:
    s_lshl_b32 s70, s69, 9
    buffer_load_ushort v17, v5, s[24:27], s70 offen
    buffer_load_ushort v18, v5, s[24:27], s70 offen offset:256
    v_readlane_b32 s72, v11, s69
    s_lshl_b32 s74, s72, 16
    s_and_b32 s72, s72, 0xffff0000
    s_waitcnt vmcnt(0)
    v_lshlrev_b32 v17, 16, v17
    v_lshlrev_b32 v18, 16, v18
    v_fmac_f32 v15, s74, v17
    v_fmac_f32 v15, s72, v18
    s_add_u32 s69, s69, 1
    s_cmp_lt_u32 s69, 64
    s_cbranch_scc1 L_fb_ku
    v_mul_f32 v16, {hex(LOG2E_NEG)}, v15
    v_exp_f32 v16, v16
    s_nop 0
    v_add_f32 v16, 1.0, v16
    v_rcp_f32 v16, v16
    s_nop 0
    v_mul_f32 v15, v15, v16
    v_cvt_pk_bf16_f32 v15, v15, v15
    buffer_store_short v15, v5, s[28:31], s67 offen
    s_add_u32 s47, s47, 16
    s_branch L_fb_node""")

def desc(name, vg, sg=102):
    return f""".amdhsa_kernel {name}
  .amdhsa_next_free_vgpr {vg}
  .amdhsa_next_free_sgpr {sg}
  .amdhsa_accum_offset {vg}
  .amdhsa_group_segment_fixed_size 0
  .amdhsa_kernarg_size 80
  .amdhsa_user_sgpr_count 2
  .amdhsa_user_sgpr_kernarg_segment_ptr 1
  .amdhsa_system_sgpr_workgroup_id_x 1
.end_amdhsa_kernel
"""
k1(); k2()
errs=check(A.lines)
for e in errs: print(e, file=sys.stderr)
hdr=open('gather_scatter__edge_featured_mpnn_egc__graph.s.ref').read().split('; Override launch')[0]
out=hdr+f"""; Two launches: prep (edge partition + node tables), main (gated gather / aggregate / silu)
; @launch kernel=prep_kernel grid=(256,1,1) block=(1024,1,1) lds={K1_LDS}
; @launch kernel=main_kernel grid=(256,1,1) block=(1024,1,1) lds={K2_LDS}
.amdgcn_target "amdgcn-amd-amdhsa--gfx950"
.text
.globl prep_kernel
.type prep_kernel,@function
.globl main_kernel
.type main_kernel,@function
"""+A.text()+""".section .rodata,"a"
.p2align 6
"""+desc("prep_kernel",128)+".p2align 6\n"+desc("main_kernel",128)
open(sys.argv[1],'w').write(out)
print("written",sys.argv[1],len(A.lines),"lines; hazards:",len(errs))
```

```python
import sys
from dsl import *
OPT=dict(a.split('=') if '=' in a else (a,'1') for a in sys.argv[2:])
STAMP=int(OPT.get('stamp',0))
NT=OPT.get('nt','nt')
if NT=='none': NT=''
ST=OPT.get('st','sc0 sc1')
if ST=='none': ST=''
ST=ST.replace('+',' ')

N=25000; E=400000; BS=196; CH=3136
NROW=25088; HS=NROW*256
TAB_OFF=0; REC_OFF=0x0D00000; EP_OFF=0x1100000; MISC_OFF=0x3100000
WIMG=0; CIMG=0x10000; FLAGO=0x12000; MISC_SZ=0x13000
STAMP_OFF=0x3200000
LOG2E_NEG=0xbfb8aa3b
A=Asm()

def srd(s, base_lo, base_hi, off, size):
    if off:
        A(f"s_add_u32 s{s}, s{base_lo}, {hex(off)}\ns_addc_u32 s{s+1}, s{base_hi}, 0")
    else:
        A(f"s_mov_b32 s{s}, s{base_lo}\ns_mov_b32 s{s+1}, s{base_hi}")
    A(f"s_mov_b32 s{s+2}, {hex(size)}\ns_mov_b32 s{s+3}, 0x20000")

def stamp(idx, kern):
    if not STAMP: return
    A(f"""s_memrealtime s[88:89]
    s_waitcnt lgkmcnt(0)
    s_mov_b32 s{90+idx}, s88""")
def stamp_init(kern, wave_s, wsl, wsh):
    if not STAMP: return
    for i in range(8): A(f"s_mov_b32 s{90+i}, 0")
    A(f"s_add_u32 s98, s{wsl}, {hex(STAMP_OFF+kern*0x80000)}\ns_addc_u32 s99, s{wsh}, 0")
def stamp_flush(kern=0):
    if not STAMP: return
    if STAMP==2:
        sel=[0,1,3,5] if kern==0 else [0,1,4,6]
        A(f"""s_load_dwordx2 s[4:5], s[0:1], 64
        s_waitcnt lgkmcnt(0)
        s_add_u32 s4, s4, {512*(1-kern)}
        s_addc_u32 s5, s5, 0
        s_cmp_lg_u32 s3, 15
        s_cbranch_scc1 L_sf_{kern}_3
        s_mov_b32 s6, 256
        s_mov_b32 s7, 0x20000
        s_mov_b64 exec, 1
        v_mov_b32 v8, 0""")
        for n,i in enumerate(sel):
            A(f"""v_mov_b32 v0, s{90+i}
            v_not_b32 v1, v0
            s_cmp_eq_u32 s{90+i}, 0
            s_cbranch_scc1 L_sf_{kern}_{n}
            buffer_atomic_umax v1, v8, s[4:7], 0 offen offset:{kern*32+n*8}
            buffer_atomic_umax v0, v8, s[4:7], 0 offen offset:{kern*32+n*8+4}
L_sf_{kern}_{n}:""")
        return
    A("""s_mov_b32 s4, s98
    s_mov_b32 s5, s99
    s_mov_b32 s6, 0x80000
    s_mov_b32 s7, 0x20000
    s_lshl_b32 s8, s2, 4
    s_add_u32 s8, s8, s3
    s_lshl_b32 s8, s8, 6
    s_mov_b64 exec, 1
    v_mov_b32 v8, 0""")
    for i in range(8): A(f"v_mov_b32 v{i}, s{90+i}")
    A("buffer_store_dwordx4 v[0:3], v8, s[4:7], s8 offen\nbuffer_store_dwordx4 v[4:7], v8, s[4:7], s8 offen offset:16")

K1_E=0; K1_REC=100352; K1_PERM=K1_REC+32768; K1_HIST=K1_PERM+16384; K1_OVF=K1_HIST+1024; K1_LDS=K1_OVF+256
WROW=544
def woff(k): return k*WROW+(k>>3)*128

def k1():
    A(".p2align 8\nprep_kernel:")
    A("""s_cmp_ge_u32 s2, 256
    s_cbranch_scc1 L_k1_end
    s_load_dwordx4 s[4:7], s[0:1], 0
    s_load_dwordx4 s[8:11], s[0:1], 16
    s_load_dwordx4 s[12:15], s[0:1], 32
    s_load_dwordx2 s[16:17], s[0:1], 48
    s_load_dwordx2 s[18:19], s[0:1], 72
    v_lshrrev_b32 v1, 6, v0
    v_and_b32 v2, 63, v0
    v_readfirstlane_b32 s3, v1
    v_lshlrev_b32 v3, 4, v2
    v_lshlrev_b32 v4, 4, v0
    s_waitcnt lgkmcnt(0)""")
    stamp_init(0,3,18,19)
    stamp(0,0)
    srd(44,18,19,MISC_OFF,MISC_SZ)
    A("""s_cmp_ge_u32 s2, 128
    s_cbranch_scc1 L_k1_gemm""")
    srd(20,10,11,0,E*4)
    srd(24,8,9,0,E*4)
    srd(28,6,7,0,E*32)
    srd(32,18,19,REC_OFF,0x400000)
    srd(36,18,19,EP_OFF,0x2000000)
    D=8; S=12
    A(f"""s_mul_i32 s50, s2, {CH}
    s_sub_u32 s51, {E}, s50
    s_lshr_b32 s51, s51, 2
    s_min_u32 s51, s51, {CH//4}
    s_lshl_b32 s52, s50, 2
    v_cmp_gt_u32 vcc, s51, v0
    s_mov_b64 s[54:55], vcc
    s_mov_b64 exec, vcc
    s_cbranch_execz L_k1_noidx
    buffer_load_dwordx4 v[{D}:{D+3}], v4, s[20:23], s52 offen {NT}
    buffer_load_dwordx4 v[{S}:{S+3}], v4, s[24:27], s52 offen {NT}
L_k1_noidx:
    s_mov_b64 exec, -1
    s_lshl_b32 s53, s3, 10
    s_lshl_b32 s56, s50, 5
    s_add_u32 s56, s56, s53""")
    for i in range(7):
        if i==6: A("s_cmp_ge_u32 s3, 2\ns_cbranch_scc1 L_k1_dmadone")
        A(f"""s_mov_b32 m0, s53
        s_add_u32 s53, s53, 16384
        buffer_load_dwordx4 v3, s[28:31], s56 offen {NT} lds
        s_add_u32 s56, s56, 16384""")
    A(f"""L_k1_dmadone:
    v_mov_b32 v16, -1
    v_mov_b32 v17, -1
    v_mov_b32 v18, -1
    v_mov_b32 v19, -1
    v_mov_b32 v20, 0
    v_add_u32 v5, {K1_REC}, v4
    v_lshlrev_b32 v6, 2, v0
    v_add_u32 v6, {K1_HIST}, v6
    ds_write_b128 v5, v[16:19]
    ds_write_b128 v5, v[16:19] offset:16384
    v_cmp_gt_u32 vcc, 0x140, v0
    s_mov_b64 exec, vcc
    ds_write_b32 v6, v20
    s_mov_b64 exec, -1
    v_mov_b32 v21, 1
    v_mov_b32 v22, 21400
    v_mov_b32 v23, -196
    v_mov_b32 v24, 5352
    v_mov_b32 v25, 4014
    v_mov_b32 v26, 1342
    s_waitcnt lgkmcnt(0)
    s_barrier
    s_mov_b64 exec, s[54:55]
    s_cbranch_execz L_k1_b1
    s_waitcnt vmcnt(6)""")
    stamp(1,0)
    B,RC,HA,PH,RK,T=28,32,36,40,44,48
    for j in range(4):
        A(f"""v_mul_u32_u24 v{T}, v{D+j}, v22
        v_mul_u32_u24 v{T+1}, v{S+j}, v26
        v_lshrrev_b32 v{B+j}, 22, v{T}
        v_lshrrev_b32 v{T+1}, 22, v{T+1}
        v_mad_i32_i24 v{T}, v{B+j}, v23, v{D+j}
        v_lshrrev_b32 v{PH+j}, 2, v{T+1}
        v_mad_u32_u24 v{T+2}, v{T}, v24, v25
        v_lshl_add_u32 v{HA+j}, v{B+j}, 1, v{PH+j}
        v_lshrrev_b32 v{T+2}, 16, v{T+2}
        v_lshlrev_b32 v{HA+j}, 2, v{HA+j}
        v_mul_u32_u24 v{T+3}, 49, v{T+2}
        v_add_u32 v{HA+j}, {K1_HIST}, v{HA+j}
        v_lshrrev_b32 v{T+3}, 2, v{T+3}
        ds_add_rtn_u32 v{RK+j}, v{HA+j}, v21
        v_lshl_add_u32 v{T+2}, v{T+2}, 3, v{T+1}
        v_sub_u32 v{T}, v{T}, v{T+3}
        v_lshl_or_b32 v{T}, v{T}, 16, v{S+j}
        v_lshl_or_b32 v{RC+j}, v{T+2}, 24, v{T}""")
    A("""L_k1_b1:
    s_mov_b64 exec, -1
    s_waitcnt lgkmcnt(0)
    s_barrier""")
    stamp(2,0)
    A(f"""v_cmp_gt_u32 vcc, 128, v0
    s_mov_b64 exec, vcc
    s_cbranch_execz L_k1_nohdr
    v_lshlrev_b32 v{T}, 3, v0
    v_lshlrev_b32 v{T+1}, 8, v0""")
    A(f"""v_add_u32 v{T}, {K1_HIST}, v{T}
    v_add_u32 v{T+1}, {K1_REC+252}, v{T+1}
    ds_read_b64 v[{T+2}:{T+3}], v{T}
    v_mov_b32 v{T+5}, {K1_OVF}
    s_waitcnt lgkmcnt(0)
    v_lshl_or_b32 v{T+4}, v{T+3}, 16, v{T+2}
    v_add_u32 v{T+2}, v{T+2}, v{T+3}
    ds_write_b32 v{T+1}, v{T+4}
    v_cmp_lt_u32 vcc, 63, v{T+2}
    s_and_b64 exec, exec, vcc
    ds_write_b32 v{T+5}, v21
L_k1_nohdr:
    s_mov_b64 exec, s[54:55]
    s_cbranch_execz L_k1_b2""")
    for j in range(4):
        A(f"v_and_b32 v{T+j}, -8, v{HA+j}\nds_read_b32 v{T+4+j}, v{T+j}")
    A(f"v_lshlrev_b32 v{T+8}, 2, v0\ns_waitcnt lgkmcnt(0)")
    for j in range(4):
        A(f"""v_mad_u32_u24 v{T}, v{PH+j}, v{T+4+j}, v{RK+j}
        v_min_u32 v{T}, 62, v{T}
        v_lshl_add_u32 v{T+1}, v{B+j}, 6, v{T}
        v_and_b32 v{T+2}, 15, v{T}
        v_lshrrev_b32 v{T+3}, 4, v{T}
        v_lshlrev_b32 v{T+1}, 1, v{T+1}
        v_lshl_add_u32 v{T+2}, v{T+2}, 2, v{T+3}
        v_add_u32 v{T+1}, {K1_PERM}, v{T+1}
        v_lshl_add_u32 v{T+2}, v{B+j}, 6, v{T+2}
        v_add_u32 v{T+9}, {j}, v{T+8}
        v_lshlrev_b32 v{T+2}, 2, v{T+2}
        ds_write_b16 v{T+1}, v{T+9}
        v_add_u32 v{T+2}, {K1_REC}, v{T+2}
        ds_write_b32 v{T+2}, v{RC+j}""")
    A(f"""L_k1_b2:
    s_mov_b64 exec, -1
    s_waitcnt vmcnt(0) lgkmcnt(0)
    s_barrier""")
    stamp(3,0)
    EI=8; EV=64
    A(f"""ds_read_b128 v[16:19], v5
    ds_read_b128 v[20:23], v5 offset:16384
    v_and_b32 v24, 7, v2
    s_lshl_b32 s57, s3, 6
    v_lshl_add_u32 v24, v24, 3, s57
    v_add_u32 v24, {K1_HIST}, v24
    ds_read_b64 v[26:27], v24
    v_lshrrev_b32 v28, 1, v2
    s_lshl_b32 s57, s3, 10
    s_add_u32 s57, s57, {K1_PERM}
    v_lshl_add_u32 v29, v28, 1, s57""")
    for i in range(8): A(f"ds_read_u16 v{EI+i}, v29 offset:{i*128}")
    A(f"""v_lshrrev_b32 v30, 4, v0
    v_and_b32 v31, 15, v0
    v_lshlrev_b32 v30, 15, v30
    v_lshl_or_b32 v30, v31, 4, v30
    s_lshl_b32 s58, s2, 8
    s_add_u32 s59, s58, 0x200000
    v_and_b32 v31, 1, v2
    v_lshlrev_b32 v31, 4, v31
    s_waitcnt lgkmcnt(8)
    buffer_store_dwordx4 v[16:19], v30, s[32:35], s58 offen {ST}
    buffer_store_dwordx4 v[20:23], v30, s[32:35], s59 offen {ST}
    v_add_u32 v26, v26, v27
    v_min_u32 v26, 63, v26
    s_waitcnt lgkmcnt(0)""")
    for i in range(8):
        A(f"v_lshl_add_u32 v{EI+i}, v{EI+i}, 5, v31\nds_read_b128 v[{EV+4*i}:{EV+4*i+3}], v{EI+i}\nv_readlane_b32 s{60+i}, v26, {i}")
    A(f"""s_lshl_b32 s57, s3, 21
    s_lshl_b32 s58, s2, 11
    s_add_u32 s57, s57, s58""")
    for i in range(8):
        A(f"""v_cmp_gt_u32 vcc, s{60+i}, v28
        s_mov_b64 exec, vcc
        s_waitcnt lgkmcnt({7-i})
        buffer_store_dwordx4 v[{EV+4*i}:{EV+4*i+3}], v3, s[36:39], s57 offen {ST}
        s_mov_b64 exec, -1
        s_add_u32 s57, s57, 0x40000""")
    A(f"s_sub_u32 s57, s57, 0x200000\nv_add_u32 v32, 32, v28")
    for i in range(8):
        L=A.label("k1long")
        A(f"""s_cmp_le_u32 s{60+i}, 32
        s_cbranch_scc1 {L}
        ds_read_u16 v33, v29 offset:{i*128+64}
        s_waitcnt lgkmcnt(0)
        v_lshl_add_u32 v33, v33, 5, v31
        ds_read_b128 v[36:39], v33
        v_cmp_gt_u32 vcc, s{60+i}, v32
        s_mov_b64 exec, vcc
        s_waitcnt lgkmcnt(0)
        buffer_store_dwordx4 v[36:39], v3, s[36:39], s57 offen offset:1024 {ST}
        s_mov_b64 exec, -1
        s_nop 0
{L}:
        s_add_u32 s57, s57, 0x40000""")
    A("s_branch L_k1_flag")
    A("L_k1_gemm:")
    srd(20,4,5,0,N*256)
    srd(24,16,17,0,272*256)
    srd(28,14,15,0,128*256)
    srd(32,12,13,0,128*256)
    srd(36,18,19,TAB_OFF,HS)
    srd(40,18,19,TAB_OFF+HS,HS)
    XR=8; WL=24; XA=40; ACC=56; BF=8
    A(f"""s_sub_u32 s50, s2, 128
    s_lshl_b32 s51, s3, 7
    s_add_u32 s51, s51, s50
    v_mov_b32 v6, 0
    v_mov_b32 v7, {K1_OVF}
    ds_write_b32 v7, v6
    s_cmp_ge_u32 s51, 1568
    s_cbranch_scc1 L_k1_nox
    s_lshl_b32 s52, s51, 12
    v_lshrrev_b32 v5, 2, v2
    v_and_b32 v6, 3, v2
    v_lshlrev_b32 v5, 8, v5
    v_lshl_or_b32 v5, v6, 4, v5""")
    for ks in range(4): A(f"buffer_load_dwordx4 v[{XR+4*ks}:{XR+4*ks+3}], v5, s[20:23], s52 offen offset:{ks*64} {NT}")
    A(f"""L_k1_nox:
    s_mov_b32 s53, {128*256}
    s_mov_b32 s54, {128*256+16384}
    s_mov_b32 s55, 16384
    buffer_load_dwordx4 v[{WL}:{WL+3}], v4, s[24:27], s53 offen
    buffer_load_dwordx4 v[{WL+4}:{WL+7}], v4, s[24:27], s54 offen
    buffer_load_dwordx4 v[{WL+8}:{WL+11}], v4, s[28:31], 0 offen
    buffer_load_dwordx4 v[{WL+12}:{WL+15}], v4, s[28:31], s55 offen
    v_lshrrev_b32 v5, 4, v0
    v_lshrrev_b32 v6, 7, v0
    v_mul_u32_u24 v5, {WROW}, v5
    v_lshl_add_u32 v5, v6, 7, v5
    v_bfe_u32 v6, v0, 3, 1
    v_lshl_add_u32 v5, v6, 7, v5
    v_and_b32 v6, 7, v0
    v_lshl_add_u32 v5, v6, 2, v5
    s_mov_b32 s56, 0x05040100
    s_mov_b32 s57, 0x07060302""")
    A(f"""s_cmp_lg_u32 s3, 15
    s_cbranch_scc1 L_k1_noimg
    s_cmp_ge_u32 s50, 72
    s_cbranch_scc1 L_k1_noimg
    v_and_b32 v6, 15, v2
    v_lshrrev_b32 v7, 4, v2
    v_lshlrev_b32 v6, 3, v6
    s_cmp_ge_u32 s50, 64
    s_cbranch_scc1 L_k1_cimg
    s_bfe_u32 s58, s50, 0x10005
    s_bfe_u32 s59, s50, 0x20002
    s_and_b32 s60, s50, 3
    s_lshl_b32 s58, s58, 7
    s_lshl_b32 s59, s59, 1
    s_lshl_b32 s60, s60, 13
    s_add_u32 s58, s58, s59
    s_add_u32 s58, s58, s60
    v_lshl_add_u32 v6, v7, 11, v6
    s_bitcmp1_b32 s50, 4
    s_cbranch_scc1 L_k1_uimg""")
    for i in range(8): A(f"buffer_load_ushort v{64+i}, v6, s[24:27], s58 offen offset:{i*256}")
    A("s_branch L_k1_imgst\nL_k1_uimg:")
    for i in range(8): A(f"buffer_load_ushort v{64+i}, v6, s[32:35], s58 offen offset:{i*256}")
    A(f"""L_k1_imgst:
    s_lshl_b32 s58, s50, 10
    s_waitcnt vmcnt(0)
    v_lshl_or_b32 v56, v65, 16, v64
    v_lshl_or_b32 v57, v67, 16, v66
    v_lshl_or_b32 v58, v69, 16, v68
    v_lshl_or_b32 v59, v71, 16, v70
    buffer_store_dwordx4 v[56:59], v3, s[44:47], s58 offen
    s_branch L_k1_noimg
L_k1_cimg:
    s_sub_u32 s61, s50, 64
    s_lshr_b32 s58, s61, 2
    s_and_b32 s59, s61, 3
    s_lshl_b32 s58, s58, 7
    s_lshl_b32 s59, s59, 1
    s_add_u32 s58, s58, s59
    s_add_u32 s58, s58, {256*256}
    v_lshl_add_u32 v6, v7, 10, v6""")
    for i in range(4): A(f"buffer_load_ushort v{56+i}, v6, s[24:27], s58 offen offset:{i*256}")
    A(f"""s_mov_b32 s59, {hex(LOG2E_NEG)}
    s_lshl_b32 s58, s61, 9
    s_add_u32 s58, s58, {CIMG}
    v_lshlrev_b32 v7, 3, v2
    s_waitcnt vmcnt(0)""")
    for i in range(4): A(f"v_lshlrev_b32 v{56+i}, 16, v{56+i}\nv_mul_f32 v{56+i}, s59, v{56+i}")
    A(f"""v_cvt_pk_bf16_f32 v56, v56, v57
    v_cvt_pk_bf16_f32 v57, v58, v59
    buffer_store_dwordx2 v[56:57], v7, s[44:47], s58 offen
L_k1_noimg:""")
    for u in range(4):
        w=WL+4*u; base=(u&1)*woff(64)+(u>>1)*256
        A(f"""s_waitcnt vmcnt({3-u})
        v_perm_b32 v60, v{w+2}, v{w}, s56
        v_perm_b32 v61, v{w+2}, v{w}, s57
        v_perm_b32 v62, v{w+3}, v{w+1}, s56
        v_perm_b32 v63, v{w+3}, v{w+1}, s57
        ds_write_b32 v5, v60 offset:{base}
        ds_write_b32 v5, v61 offset:{base+32}
        ds_write_b32 v5, v62 offset:{base+64}
        ds_write_b32 v5, v63 offset:{base+96}""")
    A(f"""v_and_b32 v6, 15, v2
    v_lshrrev_b32 v7, 4, v2
    v_lshl_add_u32 v60, v6, 2, v7
    v_lshlrev_b32 v60, 2, v60
    s_cmp_ge_u32 s51, 1568
    s_cbranch_scc1 L_k1_nobp""")
    for i in range(16): A(f"ds_bpermute_b32 v{XA+i}, v60, v{XR+i}")
    A(f"""L_k1_nobp:
    v_bfe_u32 v61, v2, 2, 2
    v_lshl_add_u32 v61, v7, 3, v61
    v_mul_u32_u24 v61, {WROW}, v61
    v_lshl_add_u32 v61, v7, 7, v61
    v_and_b32 v62, 3, v2
    v_lshl_add_u32 v5, v62, 3, v61
    s_waitcnt lgkmcnt(0)
    s_barrier""")
    stamp(1,0)
    A("""s_cmp_ge_u32 s51, 1568
    s_cbranch_scc1 L_k1_gdone""")
    seq=[(h,t,mat,ks) for h in range(2) for t in range(4) for mat in range(2) for ks in range(4)]
    def rd(n):
        h,t,mat,ks=seq[n]; o=woff(32*ks)+mat*256+h*128+t*32; b=BF+4*(n%8)
        A(f"ds_read_b64_tr_b16 v[{b}:{b+1}], v5 offset:{o}\nds_read_b64_tr_b16 v[{b+2}:{b+3}], v5 offset:{o+4*WROW}")
    def acc(h,t,mat): return ACC+((h*4+t)*2+mat)*4
    PF=6
    for n in range(PF): rd(n)
    for n in range(64):
        h,t,mat,ks=seq[n]; b=BF+4*(n%8); a=acc(h,t,mat)
        out=min(63-n,PF-1)
        A(f"s_waitcnt lgkmcnt({2*out})")
        A(f"v_mfma_f32_16x16x32_bf16 v[{a}:{a+3}], v[{XA+4*ks}:{XA+4*ks+3}], v[{b}:{b+3}], {'0' if ks==0 else f'v[{a}:{a+3}]'}")
        if n+PF<64: rd(n+PF)
    stamp(2,0)
    A(f"""v_mov_b32 v8, {hex(LOG2E_NEG)}
    v_mov_b32 v9, 0x7fff
    v_mov_b32 v10, 0xffff0000
    v_mov_b32 v11, 0
    v_lshlrev_b32 v12, 10, v7
    v_lshl_or_b32 v12, v6, 4, v12
    s_nop 3""")
    for h in range(2):
        for r in range(4):
            o=16+4*((h*4+r)%2); tt=24
            for t in range(4): A(f"v_mul_f32 v{tt+t}, v8, v{acc(h,t,0)+r}")
            A(f"v_max3_f32 v11, abs(v{tt}), abs(v{tt+1}), v11\nv_max3_f32 v11, abs(v{tt+2}), abs(v{tt+3}), v11")
            for t in range(4): A(f"v_exp_f32 v{tt+t}, v{tt+t}")
            A("s_nop 0")
            for t in range(4): A(f"v_cvt_pk_f16_f32 v{tt+t}, v{tt+t}, 0")
            for t in range(4): A(f"v_xad_u32 v{tt+4+t}, v{tt+t}, v9, v{acc(h,t,1)+r}")
            for t in range(4): A(f"v_bfi_b32 v{o+t}, v10, v{tt+4+t}, v{tt+t}")
            A(f"buffer_store_dwordx4 v[{o}:{o+3}], v12, s[{36+4*h}:{39+4*h}], s52 offen offset:{r*256} {ST}")
    A(f"""v_mov_b32 v13, 0x41600000
    v_mov_b32 v14, 1
    v_mov_b32 v15, {K1_OVF}
    v_cmp_nle_f32 vcc, v11, v13""")
    A(f"""s_mov_b64 exec, vcc
    ds_write_b32 v15, v14
    s_mov_b64 exec, -1
L_k1_gdone:
    s_waitcnt lgkmcnt(0)
    s_barrier
L_k1_flag:
    s_cmp_lg_u32 s3, 0
    s_cbranch_scc1 L_k1_fin
    v_mov_b32 v15, {K1_OVF}
    ds_read_b32 v14, v15
    s_lshl_b32 s58, s2, 2
    s_add_u32 s58, s58, {FLAGO}
    v_mov_b32 v15, 0
    s_mov_b64 exec, 1
    s_waitcnt lgkmcnt(0)
    buffer_store_dword v14, v15, s[44:47], s58 offen
    s_mov_b64 exec, -1
L_k1_fin:""")
    if STAMP:
        stamp(4,0)
        A("s_waitcnt vmcnt(0)")
        stamp(5,0)
        stamp_flush()
    A("L_k1_end:\ns_endpgm")

ECAP=3584; WCAP=320
K2_W=ECAP*32-32768
K2_L1=ECAP*32; K2_L2=K2_L1+16*WCAP*4; K2_OH=K2_L2+16*WCAP*4
K2_HIST=K2_OH+1024; K2_BASE=K2_HIST+512; K2_CNT=K2_BASE+512; K2_EOFF=K2_CNT+512; K2_LDS=K2_EOFF+512
ZIDX=(K2_OH+512)//32
assert K2_LDS<=163840 and (K2_L2-K2_L1)%256==0 and K2_OH%32==0

def k2():
    L=0; D=32; EE=48; ACC=64; GB=80; A0=96; A1=100; S=104; EA0,OA0,EA1,OA1,SA0,SA1=108,109,110,111,112,113
    cJ16,cG8,cG8O,cS,pL1,pLm,pLs,LANE,L16=114,115,116,117,118,119,120,121,122
    TID=123
    A(".p2align 8\nmain_kernel:")
    A(f"""s_cmp_ge_u32 s2, 256
    s_cbranch_scc1 L_k2_end
    s_load_dwordx2 s[4:5], s[0:1], 0
    s_load_dwordx2 s[6:7], s[0:1], 56
    s_load_dwordx2 s[18:19], s[0:1], 72
    v_mov_b32 v{TID}, v0
    v_lshrrev_b32 v1, 6, v0
    v_and_b32 v{LANE}, 63, v0
    v_readfirstlane_b32 s3, v1
    v_lshlrev_b32 v{L16}, 4, v{LANE}
    v_lshlrev_b32 v4, 4, v0
    s_bfe_u32 s40, s2, 0x10002
    s_lshr_b32 s41, s2, 3
    s_and_b32 s42, s2, 3
    s_lshl_b32 s41, s41, 2
    s_add_u32 s41, s41, s42
    s_mul_i32 s42, s3, 49
    s_add_u32 s43, s42, 49
    s_lshr_b32 s42, s42, 2
    s_lshr_b32 s43, s43, 2
    s_sub_u32 s43, s43, s42
    s_mul_i32 s44, s41, {BS}
    s_add_u32 s44, s44, s42
    s_waitcnt lgkmcnt(0)""")
    stamp_init(1,3,18,19)
    stamp(0,1)
    srd(8,18,19,REC_OFF,0x400000)
    A(f"s_lshl_b32 s45, s41, 15\ns_add_u32 s46, s45, 16384")
    R=0; RK=8; HA=16; XR=32;
    A(f"""buffer_load_dwordx4 v[{R}:{R+3}], v4, s[8:11], s45 offen {NT}
    buffer_load_dwordx4 v[{R+4}:{R+7}], v4, s[8:11], s46 offen {NT}""")
    srd(24,18,19,MISC_OFF,MISC_SZ)
    srd(20,4,5,0,N*256)
    A(f"""s_mov_b32 s45, {FLAGO}
    buffer_load_dwordx4 v[24:27], v{L16}, s[24:27], s45 offen
    v_lshrrev_b32 v28, 2, v{LANE}
    v_and_b32 v29, 3, v{LANE}
    v_lshlrev_b32 v28, 8, v28
    v_lshl_or_b32 v28, v29, 4, v28
    s_lshl_b32 s45, s44, 8""")
    for ks in range(4): A(f"buffer_load_dwordx4 v[{XR+4*ks}:{XR+4*ks+3}], v28, s[20:23], s45 offen offset:{ks*64} {NT}")
    A(f"""s_lshl_b32 s45, s40, 11
    s_add_u32 s45, s45, {CIMG}
    v_lshlrev_b32 v28, 3, v{LANE}""")
    for t in range(4): A(f"buffer_load_dwordx2 v[{GB+4*t}:{GB+4*t+1}], v28, s[24:27], s45 offen offset:{t*512}")
    A(f"""s_lshl_b32 s45, s3, 11
    s_add_u32 m0, s45, {K2_W}
    s_lshl_b32 s46, s40, 15
    s_add_u32 s45, s45, s46
    buffer_load_dwordx4 v{L16}, s[24:27], s45 offen lds
    buffer_load_dwordx4 v{L16}, s[24:27], s45 offen offset:1024 lds""")
    srd(12,18,19,EP_OFF,0x2000000)
    A(f"s_mul_i32 s45, s40, {HS}\ns_add_u32 s16, s18, s45\ns_addc_u32 s17, s19, 0\ns_mov_b32 s18, {HS}\ns_mov_b32 s19, 0x20000")
    srd(28,6,7,0,N*256)
    A(f"""v_lshrrev_b32 v28, 3, v{TID}
    v_and_b32 v29, 7, v{TID}
    v_lshrrev_b32 v30, 1, v28
    v_and_b32 v28, 1, v28
    v_lshlrev_b32 v28, 4, v28
    v_mov_b32 v31, 0x3f80
    v_lshlrev_b32 v31, v28, v31
    v_cmp_eq_u32 vcc, v29, v30
    v_lshlrev_b32 v29, 2, v{TID}
    v_add_u32 v29, {K2_OH}, v29
    v_cndmask_b32 v31, 0, v31, vcc
    v_cmp_gt_u32 vcc, 0x180, v{TID}
    s_mov_b64 exec, vcc
    ds_write_b32 v29, v31
    s_mov_b64 exec, -1
    v_and_b32 v28, 15, v{LANE}
    v_lshrrev_b32 v29, 4, v{LANE}
    v_lshlrev_b32 v{cJ16}, 4, v28
    v_lshlrev_b32 v{cG8}, 3, v29
    v_add_u32 v{cG8O}, {K2_OH}, v{cG8}
    v_and_b32 v30, 3, v{LANE}
    v_lshlrev_b32 v30, 3, v30
    v_add_u32 v{cS}, {K2_OH}, v30
    s_mul_i32 s47, s3, {WCAP*4}
    s_add_u32 s48, s47, {K2_L1}
    v_lshl_add_u32 v{pL1}, v29, 4, s48
    s_add_u32 s48, s47, {K2_L2}
    v_lshl_add_u32 v{pLm}, v28, 2, s48
    v_and_b32 v30, -4, v{LANE}
    v_add_u32 v{pLs}, s48, v30
    v_mov_b32 v31, 1
    s_mov_b32 s50, 0x80008000
    s_mov_b32 s51, 0x80008000
    s_waitcnt lgkmcnt(0)
    s_barrier
    s_waitcnt vmcnt(10)""")
    stamp(1,1)
    A(f"""v_or_b32 v24, v24, v25
    v_or3_b32 v24, v24, v26, v27
    v_cmp_ne_u32 vcc, 0, v24
    s_cmp_lg_u64 vcc, 0
    s_cbranch_scc1 L_k2_fallback""")
    MK=52
    for j in range(8):
        Lb=A.label("k2h")
        A(f"v_cmp_le_i32 s[{MK+2*j}:{MK+2*j+1}], 0, v{R+j}")
        if j&3==3: A(f"s_andn2_b64 s[{MK+2*j}:{MK+2*j+1}], s[{MK+2*j}:{MK+2*j+1}], s[50:51]")
        A(f"s_mov_b64 exec, s[{MK+2*j}:{MK+2*j+1}]")
        if j&3>=2: A(f"s_cbranch_execz {Lb}")
        A(f"""v_lshrrev_b32 v{HA+j}, 22, v{R+j}
        v_and_b32 v{HA+j}, 0x1fc, v{HA+j}
        v_add_u32 v{HA+j}, {K2_HIST}, v{HA+j}
        ds_add_rtn_u32 v{RK+j}, v{HA+j}, v31""")
        if j&3>=2: A(f"{Lb}:")
        A("s_mov_b64 exec, -1")
    A(f"""v_lshrrev_b32 v24, 4, v{TID}
    v_lshlrev_b32 v24, 2, v24
    v_add_u32 v24, {K2_CNT}, v24
    s_mov_b64 exec, s[50:51]
    ds_write2st64_b32 v24, v{R+3}, v{R+7} offset0:0 offset1:1
    s_mov_b64 exec, -1
    v_lshlrev_b32 v25, 3, v{LANE}
    v_add_u32 v25, {K2_HIST}, v25
    s_waitcnt lgkmcnt(0)
    s_barrier""")
    stamp(2,1)
    C0,C1,H0,H1,SS,HSs,T=48,49,50,51,52,53,54
    A(f"""ds_read_b64 v[{C0}:{C1}], v25 offset:{K2_CNT-K2_HIST}
    ds_read_b64 v[{H0}:{H1}], v25
    v_and_b32 v{T}, 3, v{LANE}
    v_cmp_le_u32 vcc, 1, v{T}
    v_lshrrev_b32 v{T+3}, 2, v{LANE}
    v_mul_u32_u24 v{T+3}, {WCAP}, v{T+3}
    v_cndmask_b32 v{T+1}, 0, -1, vcc
    v_cmp_le_u32 vcc, 2, v{T}
    s_lshl_b32 s45, s3, 2
    s_add_u32 s46, s45, 1
    v_cndmask_b32 v{T+2}, 0, -1, vcc
    s_waitcnt lgkmcnt(0)
    v_add_u32 v{SS}, v{C0}, v{C1}
    v_add_u32 v{HSs}, v{H0}, v{H1}
    s_nop 0
    v_add_u32_dpp v{SS}, v{SS}, v{SS} row_shr:1 row_mask:0xf bank_mask:0xf bound_ctrl:1
    v_and_b32_dpp v{T}, v{HSs}, v{T+1} row_shr:1 row_mask:0xf bank_mask:0xf bound_ctrl:1
    v_add_u32 v{HSs}, v{HSs}, v{T}
    v_add_u32_dpp v{SS}, v{SS}, v{SS} row_shr:2 row_mask:0xf bank_mask:0xf bound_ctrl:1
    s_nop 0
    v_and_b32_dpp v{T}, v{HSs}, v{T+2} row_shr:2 row_mask:0xf bank_mask:0xf bound_ctrl:1
    v_add_u32_dpp v{SS}, v{SS}, v{SS} row_shr:4 row_mask:0xf bank_mask:0xf bound_ctrl:1
    v_add_u32 v{HSs}, v{HSs}, v{T}
    s_add_u32 s47, s45, 3
    v_add_u32_dpp v{SS}, v{SS}, v{SS} row_shr:8 row_mask:0xf bank_mask:0xf bound_ctrl:1
    v_cmp_lt_u32 vcc, {WCAP}, v{HSs}
    v_readlane_b32 s68, v{HSs}, s47
    v_add_u32_dpp v{SS}, v{SS}, v{SS} row_bcast:15 row_mask:0xa bank_mask:0xf
    v_readlane_b32 s69, v{HSs}, s46
    v_sub_u32 v{T}, v{HSs}, v{H0}
    v_add_u32_dpp v{SS}, v{SS}, v{SS} row_bcast:31 row_mask:0xc bank_mask:0xf
    v_sub_u32 v{T}, v{T}, v{H1}
    v_add_u32 v{T+4}, v{T}, v{T+3}
    v_readlane_b32 s70, v{SS}, 63
    v_add_u32 v{T+5}, v{T+4}, v{H0}
    ds_write_b64 v25, v[{T+4}:{T+5}] offset:{K2_BASE-K2_HIST}
    s_cmp_lg_u64 vcc, 0
    s_cbranch_scc1 L_k2_fallback
    s_and_b32 s71, s70, 0xffff
    s_lshr_b32 s72, s70, 16
    s_add_u32 s72, s72, s71
    s_cmp_gt_u32 s71, {K2_W//32}
    s_cbranch_scc1 L_k2_fallback
    s_cmp_gt_u32 s72, {ECAP}
    s_cbranch_scc1 L_k2_fallback
    s_lshl_b32 s71, s71, 16
    v_sub_u32 v{SS}, v{SS}, v{C0}
    v_sub_u32 v{SS}, v{SS}, v{C1}
    v_add_u32 v{T+1}, s71, v{SS}
    v_lshlrev_b32 v{T}, 16, v{C0}
    v_sub_u32 v{T+6}, v{T+1}, v{T}
    v_add_u32 v{T+1}, v{T+1}, v{C0}
    v_lshlrev_b32 v{T}, 16, v{C1}
    v_sub_u32 v{T+7}, v{T+1}, v{T}
    ds_write_b64 v25, v[{T+6}:{T+7}] offset:{K2_EOFF-K2_HIST}""")
    assert (T+4)%2==0 and (T+6)%2==0
    for i in range(4):
        A(f"""v_readlane_b32 s{72+2*i}, v{T+6}, s45
        v_readlane_b32 s{73+2*i}, v{T+7}, s45
        v_readlane_b32 s{80+2*i}, v{C0}, s45
        v_readlane_b32 s{81+2*i}, v{C1}, s45
        s_add_u32 s45, s45, 1""")
    A("s_waitcnt lgkmcnt(0)")
    BP=56
    for j in range(8):
        if j&3<2: A(f"ds_read_b32 v{BP+j}, v{HA+j} offset:{K2_BASE-K2_HIST}")
    A(f"""ds_read2st64_b32 v[{BP+8}:{BP+9}], v24 offset0:{(K2_EOFF-K2_CNT)//256} offset1:{(K2_EOFF-K2_CNT)//256+1}
    v_lshrrev_b32 v26, 1, v{LANE}
    s_lshl_b32 s46, s41, 18
    s_lshl_b32 s47, s3, 14
    s_add_u32 s46, s46, s47""")
    def dma(part, vh=26):
        for i in range(8):
            Lx=A.label("dma");
            if part==0:
                A(f"""s_and_b32 s47, s{72+i}, 0xffff
                s_and_b32 s48, s{80+i}, 0xffff
                s_add_u32 s49, s46, {i*2048}""")
            else:
                A(f"""s_and_b32 s49, s{80+i}, 0xffff
                s_lshr_b32 s47, s{72+i}, 16
                s_add_u32 s47, s47, s49
                s_lshl_b32 s49, s49, 5
                s_lshr_b32 s48, s{80+i}, 16
                s_add_u32 s49, s49, s46
                s_add_u32 s49, s49, {i*2048}""")
            A(f"""s_lshl_b32 m0, s47, 5
            v_cmp_gt_u32 vcc, s48, v{vh}
            s_mov_b64 exec, vcc
            buffer_load_dwordx4 v{L16}, s[12:15], s49 offen {NT} lds
            s_cmp_le_u32 s48, 32
            s_cbranch_scc1 {Lx}
            s_sub_u32 s48, s48, 32
            s_mov_b64 exec, -1
            v_cmp_gt_u32 vcc, s48, v{vh}
            s_mov_b64 exec, vcc
            buffer_load_dwordx4 v{L16}, s[12:15], s49 offen offset:1024 {NT} lds
{Lx}:
            s_mov_b64 exec, -1""")
    A('s_waitcnt vmcnt(0)')
    dma(0)
    A(f"""v_and_b32 v27, 15, v{LANE}
    v_mov_b32 v28, {OPT.get('srcmask','0x7fff')}
    v_mov_b32 v29, 0xf0000
    s_waitcnt lgkmcnt(0)
    v_and_b32 v{BP+10}, 0xffff, v{BP+8}
    v_and_b32 v{BP+11}, 0xffff, v{BP+9}
    v_lshrrev_b32 v{BP+8}, 16, v{BP+8}
    v_lshrrev_b32 v{BP+9}, 16, v{BP+9}""")
    for j in range(8):
        Lb=A.label("k2s")
        A(f"s_mov_b64 exec, s[{MK+2*j}:{MK+2*j+1}]")
        if j&3>=2:
            A(f"s_cbranch_execz {Lb}\nds_read_b32 v{BP+j}, v{HA+j} offset:{K2_BASE-K2_HIST}")
        u=j>>2
        A(f"""v_and_b32 v30, 0x4000000, v{R+j}
        v_cmp_ne_u32 vcc, 0, v30
        v_and_b32 v30, v28, v{R+j}
        v_lshlrev_b32 v30, 8, v30
        v_cndmask_b32 v31, v{BP+10+u}, v{BP+8+u}, vcc
        v_add3_u32 v31, v31, v27, {16*(j&3)}
        v_and_or_b32 v31, v{R+j}, v29, v31""")
        if j&3>=2: A("s_waitcnt lgkmcnt(0)")
        A(f"""v_add_lshl_u32 v{BP+j}, v{BP+j}, v{RK+j}, 2
        v_add_u32 v{BP+j}, {K2_L1}, v{BP+j}
        ds_write2st64_b32 v{BP+j}, v30, v31 offset0:0 offset1:{(K2_L2-K2_L1)//256}""")
        if j&3>=2: A(f"{Lb}:")
    A(f"""s_mov_b64 exec, -1
    s_sub_u32 s47, 0, s68
    s_and_b32 s47, s47, 31
    s_mul_i32 s48, s3, {WCAP}
    s_add_u32 s48, s48, s68
    v_add_lshl_u32 v30, v{LANE}, s48, 2
    v_add_u32 v30, {K2_L1}, v30
    v_mov_b32 v28, {N<<8}
    v_mov_b32 v29, {hex(ZIDX|(16<<16))}
    v_cmp_gt_u32 vcc, s47, v{LANE}
    s_mov_b64 exec, vcc
    ds_write2st64_b32 v30, v28, v29 offset0:0 offset1:{(K2_L2-K2_L1)//256}
    s_mov_b64 exec, -1
    s_add_u32 s68, s68, 31
    s_lshr_b32 s68, s68, 5
    s_lshr_b32 s69, s69, 5
    s_min_u32 s69, s69, 2
    s_min_u32 s69, s69, s68""")
    XA=96
    A(f"""v_and_b32 v28, 15, v{LANE}
    v_lshrrev_b32 v29, 4, v{LANE}
    v_lshl_add_u32 v28, v28, 2, v29
    v_lshlrev_b32 v28, 2, v28""")
    for i in range(16): A(f"ds_bpermute_b32 v{XA+i}, v28, v{XR+i}")
    A("s_waitcnt lgkmcnt(0)\ns_barrier")
    stamp(3,1)
    LM0,LM1,LS0,LS1=124,125,112,113
    def loadstep(first):
        G=EE
        A(f"""ds_read_b128 v[{G}:{G+3}], v{pL1}
        ds_read_b128 v[{G+4}:{G+7}], v{pL1} offset:64
        ds_read_b32 v{LM0}, v{pLm}
        ds_read_b32 v{LM1}, v{pLm} offset:64
        ds_read_b32 v{LS0}, v{pLs}
        ds_read_b32 v{LS1}, v{pLs} offset:64
        v_add_u32 v{pL1}, 128, v{pL1}
        v_add_u32 v{pLm}, 128, v{pLm}
        v_add_u32 v{pLs}, 128, v{pLs}
        s_waitcnt lgkmcnt(5)""")
        for i in range(8):
            if i==4: A("s_waitcnt lgkmcnt(4)")
            A(f"v_or_b32 v{G+i}, v{G+i}, v{cJ16}\nbuffer_load_dwordx4 v[{L+4*i}:{L+4*i+3}], v{G+i}, s[16:19], 0 offen")
    def addrs():
        A(f"""v_mad_u32_u16 v{EA0}, v{LM0}, 32, v{cG8}
        v_mad_u32_u16 v{OA0}, v{LM0}, 32, v{cG8O} op_sel:[1,0,0,0]
        v_mad_u32_u16 v{EA1}, v{LM1}, 32, v{cG8}
        v_mad_u32_u16 v{OA1}, v{LM1}, 32, v{cG8O} op_sel:[1,0,0,0]
        v_mad_u32_u16 v{SA0}, v{LS0}, 32, v{cS} op_sel:[1,0,0,0]
        v_mad_u32_u16 v{SA1}, v{LS1}, 32, v{cS} op_sel:[1,0,0,0]""")
    A("s_cmp_eq_u32 s68, 0\ns_cbranch_scc1 L_k2_noload0")
    loadstep(True)
    A("L_k2_noload0:")
    A(f"v_add_u32 v126, {K2_W}, v{L16}")
    BFR=32
    seq=[(mat,t,ks) for mat in range(2) for t in range(4) for ks in range(4)]
    def rd(n):
        mat,t,ks=seq[n]; b=BFR+4*(n%8)
        A(f"ds_read_b128 v[{b}:{b+3}], v126 offset:{n*1024}")
    PF=6
    A("s_waitcnt lgkmcnt(0)")
    for n in range(PF): rd(n)
    for n in range(32):
        mat,t,ks=seq[n]; b=BFR+4*(n%8); a=ACC+4*t
        if n==16:
            A(f"v_mov_b32 v127, {hex(LOG2E_NEG)}\ns_nop 6")
            for tt in range(4):
                for r in range(4): A(f"v_mul_f32 v{ACC+4*tt+r}, v127, v{ACC+4*tt+r}")
                A(f"v_cvt_pk_bf16_f32 v{GB+4*tt+2}, v{ACC+4*tt}, v{ACC+4*tt+1}\nv_cvt_pk_bf16_f32 v{GB+4*tt+3}, v{ACC+4*tt+2}, v{ACC+4*tt+3}")
        out=min(31-n,PF-1)
        A(f"s_waitcnt lgkmcnt({out})")
        A(f"v_mfma_f32_16x16x32_bf16 v[{a}:{a+3}], v[{XA+4*ks}:{XA+4*ks+3}], v[{b}:{b+3}], {'0' if ks==0 else f'v[{a}:{a+3}]'}")
        if n+PF<32: rd(n+PF)
    addrs()
    A("s_waitcnt vmcnt(0)\ns_barrier")
    stamp(4,1)
    A(f"v_lshrrev_b32 v{D}, 1, v{LANE}")
    dma(1, D)
    A("s_mov_b32 s70, 0")
    A(""".p2align 6
L_k2_loop:
    s_cmp_lg_u32 s70, s69
    s_cbranch_scc1 L_k2_nobar
    s_waitcnt vmcnt(0)
    s_barrier
L_k2_nobar:
    s_cmp_ge_u32 s70, s68
    s_cbranch_scc1 L_k2_done""")
    A(f"""ds_read_b64 v[{A0}:{A0+1}], v{EA0}
    ds_read_b64 v[{A0+2}:{A0+3}], v{OA0}
    ds_read_b64 v[{A1}:{A1+1}], v{EA1}
    ds_read_b64 v[{A1+2}:{A1+3}], v{OA1}
    ds_read_b64_tr_b16 v[{S}:{S+1}], v{SA0}
    ds_read_b64_tr_b16 v[{S+2}:{S+3}], v{SA1}
    s_add_u32 s70, s70, 1
    s_waitcnt lgkmcnt(4)""")
    def gate(Ar):
        for t in range(4): A(f"v_mfma_f32_16x16x32_bf16 v[{D+4*t}:{D+4*t+3}], v[{Ar}:{Ar+3}], v[{GB+4*t}:{GB+4*t+3}], 0")
    def exps():
        for t in range(4):
            for r in range(4): A(f"v_exp_f32 v{EE+4*r+t}, v{D+4*t+r}")
    def rest(q):
        Lq=L+16*q
        order=[(r,t) for t in range(4) for r in range(4)]
        for r,t in order: A(f"v_fma_mix_f32 v{EE+4*r+t}, v{Lq+4*r+t}, v{EE+4*r+t}, 1.0 op_sel_hi:[1,0,0]")
        for r,t in order: A(f"v_rcp_f32 v{EE+4*r+t}, v{EE+4*r+t}")
        for t in (0,2):
            for r in range(4): A(f"v_pk_mul_f32 v[{EE+4*r+t}:{EE+4*r+t+1}], v[{EE+4*r+t}:{EE+4*r+t+1}], v[{Lq+4*r+t}:{Lq+4*r+t+1}]")
        for t in range(4):
            for p in range(2): A(f"v_cvt_pk_bf16_f32 v{L+4*t+2*q+p}, v{EE+8*p+t}, v{EE+8*p+4+t}")
    if not OPT.get('nocomp'):
        gate(A0)
        A("s_nop 4")
        exps()
        A("s_waitcnt lgkmcnt(0)")
        gate(A1)
        rest(0)
        exps()
        rest(1)
    A("s_nop 1")
    for t in range(4): A(f"v_mfma_f32_16x16x32_bf16 v[{ACC+4*t}:{ACC+4*t+3}], v[{S}:{S+3}], v[{L+4*t}:{L+4*t+3}], v[{ACC+4*t}:{ACC+4*t+3}]")
    A("s_cmp_ge_u32 s70, s68\ns_cbranch_scc1 L_k2_loop")
    loadstep(False)
    A("s_waitcnt lgkmcnt(0)")
    addrs()
    A("s_waitcnt vmcnt(0)\ns_branch L_k2_loop")
    A("L_k2_done:")
    stamp(5,1)
    A(f"""v_lshrrev_b32 v0, 4, v{LANE}
    v_lshlrev_b32 v0, 2, v0
    v_add_u32 v1, s44, v0
    v_lshlrev_b32 v1, 8, v1
    v_lshrrev_b32 v2, 1, v{cJ16}
    s_lshl_b32 s45, s40, 7
    v_add3_u32 v1, v1, v2, s45
    v_mov_b32 v3, {hex(LOG2E_NEG)}
    v_mov_b32 v4, 0x80000000""")
    for r in range(4):
        for t in range(4): A(f"v_mul_f32 v{8+t}, v3, v{ACC+4*t+r}")
        for t in range(4): A(f"v_exp_f32 v{8+t}, v{8+t}")
        A(f"v_add_u32 v5, {r}, v0\nv_cmp_gt_u32 vcc, s43, v5")
        for t in range(4): A(f"v_add_f32 v{8+t}, 1.0, v{8+t}")
        for t in range(4): A(f"v_rcp_f32 v{8+t}, v{8+t}")
        A(f"v_cndmask_b32 v{16+r}, v4, v1, vcc")
        for t in range(4): A(f"v_mul_f32 v{8+t}, v{8+t}, v{ACC+4*t+r}")
        A(f"""v_cvt_pk_bf16_f32 v{20+2*r}, v8, v9
        v_cvt_pk_bf16_f32 v{21+2*r}, v10, v11
        buffer_store_dwordx2 v[{20+2*r}:{21+2*r}], v{16+r}, s[28:31], 0 offen offset:{r*256}""")
    if STAMP:
        A("s_waitcnt vmcnt(0)")
        stamp(6,1)
        stamp_flush(1)
    A("s_endpgm")
    fallback()
    A("L_k2_end:\ns_endpgm")

def fallback():
    LANE=121; TID=123
    A(f"""L_k2_fallback:
    s_mov_b64 exec, -1
    s_load_dwordx2 s[50:51], s[0:1], 8
    s_load_dwordx4 s[52:55], s[0:1], 16
    s_load_dwordx4 s[56:59], s[0:1], 32
    s_load_dwordx2 s[60:61], s[0:1], 48
    s_waitcnt vmcnt(0) lgkmcnt(0)
    s_barrier""")
    srd(8,50,51,0,E*32)
    srd(12,52,53,0,E*4)
    srd(16,54,55,0,E*4)
    srd(24,56,57,0,128*256)
    srd(32,58,59,0,128*256)
    srd(36,60,61,0,272*256)
    A(f"""v_mov_b32 v0, 0
    v_mov_b32 v1, 0
    v_mov_b32 v2, 0
    v_mov_b32 v3, 0
    v_lshlrev_b32 v4, 4, v{TID}
    ds_write_b128 v4, v[0:3]
    ds_write_b128 v4, v[0:3] offset:16384
    ds_write_b128 v4, v[0:3] offset:32768
    ds_write_b128 v4, v[0:3] offset:49152
    s_lshl_b32 s45, s40, 7
    v_lshl_add_u32 v5, v{LANE}, 1, s45
    v_lshlrev_b32 v6, 2, v{LANE}
    s_mul_i32 s46, s41, {BS}
    s_lshl_b32 s47, s3, 6
    s_waitcnt lgkmcnt(0)
    s_barrier
L_fb_chunk:
    s_cmp_ge_u32 s47, {E}
    s_cbranch_scc1 L_fb_fin
    s_lshl_b32 s48, s47, 2
    buffer_load_dword v7, v6, s[16:19], s48 offen
    buffer_load_dword v8, v6, s[12:15], s48 offen
    s_waitcnt vmcnt(0)
    v_subrev_u32 v9, s46, v7
    v_cmp_gt_u32 s[62:63], v10, v9
    """.replace("v_cmp_gt_u32 s[62:63], v10, v9",f"v_mov_b32 v10, {BS}\nv_cmp_gt_u32 s[62:63], v10, v9")+f"""
L_fb_edge:
    s_cmp_eq_u64 s[62:63], 0
    s_cbranch_scc1 L_fb_next
    s_ff1_i32_b64 s49, s[62:63]
    s_bitset0_b64 s[62:63], s49
    v_readlane_b32 s64, v7, s49
    v_readlane_b32 s65, v8, s49
    s_add_u32 s66, s47, s49
    s_lshl_b32 s67, s64, 8
    s_lshl_b32 s68, s65, 8
    s_lshl_b32 s66, s66, 5
    s_nop 2
    buffer_load_dword v11, v6, s[20:23], s67 offen
    buffer_load_dword v12, v6, s[20:23], s68 offen
    v_and_b32 v14, 28, v6
    buffer_load_dword v13, v14, s[8:11], s66 offen
    v_mov_b32 v15, 0
    v_mov_b32 v16, 0
    s_mov_b32 s69, 0
    s_waitcnt vmcnt(0)
L_fb_k:
    s_lshl_b32 s70, s69, 9
    s_add_u32 s71, s70, {128*256}
    buffer_load_ushort v17, v5, s[36:39], s70 offen
    buffer_load_ushort v18, v5, s[36:39], s70 offen offset:256
    buffer_load_ushort v19, v5, s[36:39], s71 offen
    buffer_load_ushort v20, v5, s[36:39], s71 offen offset:256
    buffer_load_ushort v21, v5, s[32:35], s70 offen
    buffer_load_ushort v22, v5, s[32:35], s70 offen offset:256
    v_readlane_b32 s72, v11, s69
    v_readlane_b32 s73, v12, s69
    s_lshl_b32 s74, s72, 16
    s_and_b32 s72, s72, 0xffff0000
    s_lshl_b32 s75, s73, 16
    s_and_b32 s73, s73, 0xffff0000
    s_waitcnt vmcnt(0)""")
    for i in range(17,23): A(f"v_lshlrev_b32 v{i}, 16, v{i}")
    A(f"""v_fmac_f32 v15, s74, v17
    v_fmac_f32 v15, s72, v18
    v_fmac_f32 v15, s75, v19
    v_fmac_f32 v15, s73, v20
    v_fmac_f32 v16, s75, v21
    v_fmac_f32 v16, s73, v22
    s_add_u32 s69, s69, 1
    s_cmp_lt_u32 s69, 64
    s_cbranch_scc1 L_fb_k
    s_mov_b32 s69, 0
L_fb_ke:
    s_lshl_b32 s70, s69, 9
    s_add_u32 s70, s70, {256*256}
    buffer_load_ushort v17, v5, s[36:39], s70 offen
    buffer_load_ushort v18, v5, s[36:39], s70 offen offset:256
    v_readlane_b32 s72, v13, s69
    s_lshl_b32 s74, s72, 16
    s_and_b32 s72, s72, 0xffff0000
    s_waitcnt vmcnt(0)
    v_lshlrev_b32 v17, 16, v17
    v_lshlrev_b32 v18, 16, v18
    v_fmac_f32 v15, s74, v17
    v_fmac_f32 v15, s72, v18
    s_add_u32 s69, s69, 1
    s_cmp_lt_u32 s69, 8
    s_cbranch_scc1 L_fb_ke
    v_mul_f32 v15, {hex(LOG2E_NEG)}, v15
    v_exp_f32 v15, v15
    s_sub_u32 s64, s64, s46
    s_lshl_b32 s64, s64, 8
    v_add_f32 v15, 1.0, v15
    v_rcp_f32 v15, v15
    v_add_u32 v17, s64, v6
    v_mul_f32 v15, v15, v16
    ds_add_f32 v17, v15
    s_branch L_fb_edge
L_fb_next:
    s_add_u32 s47, s47, 1024
    s_branch L_fb_chunk
L_fb_fin:
    s_waitcnt lgkmcnt(0)
    s_barrier
    s_mov_b32 s47, s3
L_fb_node:
    s_cmp_ge_u32 s47, {BS}
    s_cbranch_scc1 L_k2_end
    s_add_u32 s64, s46, s47
    s_lshl_b32 s67, s64, 8
    buffer_load_dword v11, v6, s[20:23], s67 offen
    s_lshl_b32 s48, s47, 8
    v_add_u32 v17, s48, v6
    ds_read_b32 v15, v17
    s_mov_b32 s69, 0
    s_waitcnt vmcnt(0) lgkmcnt(0)
L_fb_ku:
    s_lshl_b32 s70, s69, 9
    buffer_load_ushort v17, v5, s[24:27], s70 offen
    buffer_load_ushort v18, v5, s[24:27], s70 offen offset:256
    v_readlane_b32 s72, v11, s69
    s_lshl_b32 s74, s72, 16
    s_and_b32 s72, s72, 0xffff0000
    s_waitcnt vmcnt(0)
    v_lshlrev_b32 v17, 16, v17
    v_lshlrev_b32 v18, 16, v18
    v_fmac_f32 v15, s74, v17
    v_fmac_f32 v15, s72, v18
    s_add_u32 s69, s69, 1
    s_cmp_lt_u32 s69, 64
    s_cbranch_scc1 L_fb_ku
    v_mul_f32 v16, {hex(LOG2E_NEG)}, v15
    v_exp_f32 v16, v16
    s_nop 0
    v_add_f32 v16, 1.0, v16
    v_rcp_f32 v16, v16
    s_nop 0
    v_mul_f32 v15, v15, v16
    v_cvt_pk_bf16_f32 v15, v15, v15
    buffer_store_short v15, v5, s[28:31], s67 offen
    s_add_u32 s47, s47, 16
    s_branch L_fb_node""")

def desc(name, vg, sg=102):
    return f""".amdhsa_kernel {name}
  .amdhsa_next_free_vgpr {vg}
  .amdhsa_next_free_sgpr {sg}
  .amdhsa_accum_offset {vg}
  .amdhsa_group_segment_fixed_size 0
  .amdhsa_kernarg_size 80
  .amdhsa_user_sgpr_count 2
  .amdhsa_user_sgpr_kernarg_segment_ptr 1
  .amdhsa_system_sgpr_workgroup_id_x 1
.end_amdhsa_kernel
"""
k1(); k2()
errs=check(A.lines)
for e in errs: print(e, file=sys.stderr)
hdr=open('gather_scatter__edge_featured_mpnn_egc__graph.s.ref').read().split('; Override launch')[0]
out=hdr+f"""; Two launches: prep (edge partition + node tables), main (gated gather / aggregate / silu)
; @launch kernel=prep_kernel grid=(256,1,1) block=(1024,1,1) lds={K1_LDS}
; @launch kernel=main_kernel grid=(256,1,1) block=(1024,1,1) lds={K2_LDS}
.amdgcn_target "amdgcn-amd-amdhsa--gfx950"
.text
.globl prep_kernel
.type prep_kernel,@function
.globl main_kernel
.type main_kernel,@function
"""+A.text()+""".section .rodata,"a"
.p2align 6
"""+desc("prep_kernel",128)+".p2align 6\n"+desc("main_kernel",128)
open(sys.argv[1],'w').write(out)
print("written",sys.argv[1],len(A.lines),"lines; hazards:",len(errs))
```

```python
import sys
from dsl import *
OPT=dict(a.split('=') if '=' in a else (a,'1') for a in sys.argv[2:])
STAMP=int(OPT.get('stamp',0))
NT=OPT.get('nt','nt')
if NT=='none': NT=''
ST=OPT.get('st','sc0 sc1')
if ST=='none': ST=''
ST=ST.replace('+',' ')

N=25000; E=400000; BS=196; CH=3136
NROW=25088; HS=NROW*256
TAB_OFF=0; REC_OFF=0x0D00000; EP_OFF=0x1100000; MISC_OFF=0x3100000
WIMG=0; CIMG=0x10000; FLAGO=0x12000; MISC_SZ=0x13000
STAMP_OFF=0x3200000
LOG2E_NEG=0xbfb8aa3b
A=Asm()

def srd(s, base_lo, base_hi, off, size):
    if off:
        A(f"s_add_u32 s{s}, s{base_lo}, {hex(off)}\ns_addc_u32 s{s+1}, s{base_hi}, 0")
    else:
        A(f"s_mov_b32 s{s}, s{base_lo}\ns_mov_b32 s{s+1}, s{base_hi}")
    A(f"s_mov_b32 s{s+2}, {hex(size)}\ns_mov_b32 s{s+3}, 0x20000")

def stamp(idx, kern):
    if not STAMP: return
    A(f"""s_memrealtime s[88:89]
    s_waitcnt lgkmcnt(0)
    s_mov_b32 s{90+idx}, s88""")
def stamp_init(kern, wave_s, wsl, wsh):
    if not STAMP: return
    for i in range(8): A(f"s_mov_b32 s{90+i}, 0")
    A(f"s_add_u32 s98, s{wsl}, {hex(STAMP_OFF+kern*0x80000)}\ns_addc_u32 s99, s{wsh}, 0")
def stamp_flush(kern=0):
    if not STAMP: return
    if STAMP==2:
        sel=[0,1,3,5] if kern==0 else [0,1,4,6]
        A(f"""s_load_dwordx2 s[4:5], s[0:1], 64
        s_waitcnt lgkmcnt(0)
        s_add_u32 s4, s4, {512*(1-kern)}
        s_addc_u32 s5, s5, 0
        s_cmp_lg_u32 s3, 15
        s_cbranch_scc1 L_sf_{kern}_3
        s_mov_b32 s6, 256
        s_mov_b32 s7, 0x20000
        s_mov_b64 exec, 1
        v_mov_b32 v8, 0""")
        for n,i in enumerate(sel):
            A(f"""v_mov_b32 v0, s{90+i}
            v_not_b32 v1, v0
            s_cmp_eq_u32 s{90+i}, 0
            s_cbranch_scc1 L_sf_{kern}_{n}
            buffer_atomic_umax v1, v8, s[4:7], 0 offen offset:{kern*32+n*8}
            buffer_atomic_umax v0, v8, s[4:7], 0 offen offset:{kern*32+n*8+4}
L_sf_{kern}_{n}:""")
        return
    A("""s_mov_b32 s4, s98
    s_mov_b32 s5, s99
    s_mov_b32 s6, 0x80000
    s_mov_b32 s7, 0x20000
    s_lshl_b32 s8, s2, 4
    s_add_u32 s8, s8, s3
    s_lshl_b32 s8, s8, 6
    s_mov_b64 exec, 1
    v_mov_b32 v8, 0""")
    for i in range(8): A(f"v_mov_b32 v{i}, s{90+i}")
    A("buffer_store_dwordx4 v[0:3], v8, s[4:7], s8 offen\nbuffer_store_dwordx4 v[4:7], v8, s[4:7], s8 offen offset:16")

K1_E=0; K1_REC=100352; K1_PERM=K1_REC+32768; K1_HIST=K1_PERM+16384; K1_OVF=K1_HIST+1024; K1_LDS=K1_OVF+256
WROW=544
def woff(k): return k*WROW+(k>>3)*128

def k1():
    A(".p2align 8\nprep_kernel:")
    A("""s_cmp_ge_u32 s2, 256
    s_cbranch_scc1 L_k1_end
    s_load_dwordx4 s[4:7], s[0:1], 0
    s_load_dwordx4 s[8:11], s[0:1], 16
    s_load_dwordx4 s[12:15], s[0:1], 32
    s_load_dwordx2 s[16:17], s[0:1], 48
    s_load_dwordx2 s[18:19], s[0:1], 72
    v_lshrrev_b32 v1, 6, v0
    v_and_b32 v2, 63, v0
    v_readfirstlane_b32 s3, v1
    v_lshlrev_b32 v3, 4, v2
    v_lshlrev_b32 v4, 4, v0
    s_waitcnt lgkmcnt(0)""")
    stamp_init(0,3,18,19)
    stamp(0,0)
    srd(44,18,19,MISC_OFF,MISC_SZ)
    A("""s_cmp_ge_u32 s2, 128
    s_cbranch_scc1 L_k1_gemm""")
    srd(20,10,11,0,E*4)
    srd(24,8,9,0,E*4)
    srd(28,6,7,0,E*32)
    srd(32,18,19,REC_OFF,0x400000)
    srd(36,18,19,EP_OFF,0x2000000)
    D=8; S=12
    A(f"""s_mul_i32 s50, s2, {CH}
    s_sub_u32 s51, {E}, s50
    s_lshr_b32 s51, s51, 2
    s_min_u32 s51, s51, {CH//4}
    s_lshl_b32 s52, s50, 2
    v_cmp_gt_u32 vcc, s51, v0
    s_mov_b64 s[54:55], vcc
    s_mov_b64 exec, vcc
    s_cbranch_execz L_k1_noidx
    buffer_load_dwordx4 v[{D}:{D+3}], v4, s[20:23], s52 offen {NT}
    buffer_load_dwordx4 v[{S}:{S+3}], v4, s[24:27], s52 offen {NT}
L_k1_noidx:
    s_mov_b64 exec, -1
    s_lshl_b32 s53, s3, 10
    s_lshl_b32 s56, s50, 5
    s_add_u32 s56, s56, s53
    v_mov_b32 v16, -1
    v_mov_b32 v17, -1
    v_mov_b32 v18, -1
    v_mov_b32 v19, -1
    v_mov_b32 v20, 0
    v_add_u32 v5, {K1_REC}, v4
    v_lshlrev_b32 v6, 2, v0
    v_add_u32 v6, {K1_HIST}, v6
    ds_write_b128 v5, v[16:19]
    ds_write_b128 v5, v[16:19] offset:16384
    v_cmp_gt_u32 vcc, 0x140, v0
    s_mov_b64 exec, vcc
    ds_write_b32 v6, v20
    s_mov_b64 exec, -1
    v_mov_b32 v20, 1
    v_mov_b32 v21, 0
    v_mov_b32 v22, 21400
    v_mov_b32 v23, -196
    v_mov_b32 v24, 5372
    v_mov_b32 v25, 208
    v_mov_b32 v26, 1342
    v_mov_b32 v27, {OPT.get('sbmask','7')}
    s_mov_b64 s[70:71], 0
    s_waitcnt lgkmcnt(0)
    s_barrier""")
    def edma():
        for i in range(7):
            if i==6: A("s_cmp_ge_u32 s3, 2\ns_cbranch_scc1 L_k1_dmadone")
            A(f"""s_mov_b32 m0, s53
            s_add_u32 s53, s53, 16384
            buffer_load_dwordx4 v3, s[28:31], s56 offen {NT} lds
            s_add_u32 s56, s56, 16384""")
        A("L_k1_dmadone:")
    if OPT.get('elate','1')=='1':
        A("s_waitcnt vmcnt(0)"); edma()
    else:
        edma(); A("s_waitcnt vmcnt(6)")
    stamp(1,0)
    A("""s_mov_b64 exec, s[54:55]
    s_cbranch_execz L_k1_b1""")
    B,RC,HA,SH,INC,OLD,T=28,32,36,40,44,52,60
    for j in range(4):
        A(f"""v_mul_u32_u24 v{T}, v{D+j}, v22
        v_mul_u32_u24 v{T+1}, v{S+j}, v26
        v_lshrrev_b32 v{B+j}, 22, v{T}
        v_lshrrev_b32 v{T+1}, 22, v{T+1}
        v_mad_i32_i24 v{T}, v{B+j}, v23, v{D+j}
        v_and_b32 v{T+1}, v27, v{T+1}
        v_lshlrev_b32 v{HA+j}, 3, v{B+j}
        v_lshlrev_b32 v{SH+j}, 3, v{T+1}
        v_add_u32 v{HA+j}, {K1_HIST}, v{HA+j}
        v_lshlrev_b64 v[{INC+2*j}:{INC+2*j+1}], v{SH+j}, v[20:21]
        v_mul_u32_u24 v{T+2}, v{T}, v24
        ds_add_rtn_u64 v[{OLD+2*j}:{OLD+2*j+1}], v{HA+j}, v[{INC+2*j}:{INC+2*j+1}]
        v_lshrrev_b32 v{T+2}, 16, v{T+2}
        v_mad_u32_u24 v{T+3}, v{T+2}, 52, 208
        v_mad_i32_i24 v{T}, v{T+2}, -12, v{T}
        v_lshrrev_b32 v{T+3}, 8, v{T+3}
        v_lshl_add_u32 v{T+2}, v{T+2}, 3, v{T+1}
        v_sub_u32 v{T}, v{T}, v{T+3}
        v_lshl_or_b32 v{T}, v{T}, 16, v{S+j}
        v_lshl_or_b32 v{RC+j}, v{T+2}, 24, v{T}""".replace("52, 208","52, v25"))
    A("""L_k1_b1:
    s_mov_b64 exec, -1
    s_waitcnt lgkmcnt(0)
    s_barrier""")
    stamp(2,0)
    FIN=8
    A(f"""s_mov_b64 exec, s[54:55]
    s_cbranch_execz L_k1_b2""")
    for j in range(4): A(f"ds_read_b64 v[{FIN+2*j}:{FIN+2*j+1}], v{HA+j}")
    A(f"v_lshlrev_b32 v{T+8}, 2, v0")
    for j in range(4):
        A(f"""v_lshrrev_b64 v[{OLD+2*j}:{OLD+2*j+1}], v{SH+j}, v[{OLD+2*j}:{OLD+2*j+1}]
        v_add_co_u32 v{INC+2*j}, vcc, -1, v{INC+2*j}
        v_and_b32 v{OLD+2*j}, 0xff, v{OLD+2*j}
        s_nop 0
        v_addc_co_u32 v{INC+2*j+1}, vcc, -1, v{INC+2*j+1}, vcc""")
    A("s_waitcnt lgkmcnt(0)")
    for j in range(4):
        A(f"""v_and_b32 v{T}, v{FIN+2*j}, v{INC+2*j}
        v_and_b32 v{T+1}, v{FIN+2*j+1}, v{INC+2*j+1}
        v_sad_u8 v{T}, v{T}, 0, v{OLD+2*j}
        v_sad_u8 v{T}, v{T+1}, 0, v{T}
        v_cmp_lt_u32 vcc, 63, v{T}
        v_min_u32 v{T}, 63, v{T}
        s_or_b64 s[70:71], s[70:71], vcc
        v_lshl_add_u32 v{T+1}, v{B+j}, 6, v{T}
        v_and_b32 v{T+2}, 15, v{T}
        v_lshrrev_b32 v{T+3}, 4, v{T}
        v_lshlrev_b32 v{T+1}, 1, v{T+1}
        v_lshl_add_u32 v{T+2}, v{T+2}, 2, v{T+3}
        v_add_u32 v{T+1}, {K1_PERM}, v{T+1}
        v_lshl_add_u32 v{T+2}, v{B+j}, 6, v{T+2}
        v_add_u32 v{T+9}, {j}, v{T+8}
        v_lshlrev_b32 v{T+2}, 2, v{T+2}
        ds_write_b16 v{T+1}, v{T+9}
        v_add_u32 v{T+2}, {K1_REC}, v{T+2}
        ds_write_b32 v{T+2}, v{RC+j}""")
    A(f"""s_mov_b64 exec, s[70:71]
    v_mov_b32 v{T}, {K1_OVF}
    ds_write_b32 v{T}, v20
L_k1_b2:
    s_mov_b64 exec, -1
    s_waitcnt lgkmcnt(0)
    s_barrier""")
    stamp(3,0)
    EI=8; EV=64
    A(f"""ds_read_b128 v[16:19], v5
    ds_read_b128 v[20:23], v5 offset:16384
    v_and_b32 v24, 7, v2
    s_lshl_b32 s57, s3, 6
    v_lshl_add_u32 v24, v24, 3, s57
    v_add_u32 v24, {K1_HIST}, v24
    ds_read_b64 v[26:27], v24
    v_lshrrev_b32 v28, 1, v2
    s_lshl_b32 s57, s3, 10
    s_add_u32 s57, s57, {K1_PERM}
    v_lshl_add_u32 v29, v28, 1, s57""")
    for i in range(8): A(f"ds_read_u16 v{EI+i}, v29 offset:{i*128}")
    A(f"""v_lshrrev_b32 v30, 4, v0
    v_and_b32 v31, 15, v0
    v_lshlrev_b32 v30, 15, v30
    v_lshl_or_b32 v30, v31, 4, v30
    s_lshl_b32 s58, s2, 8
    s_add_u32 s59, s58, 0x200000
    v_and_b32 v31, 1, v2
    v_lshlrev_b32 v31, 4, v31
    s_waitcnt lgkmcnt(0)
    buffer_store_dwordx4 v[16:19], v30, s[32:35], s58 offen {ST}
    buffer_store_dwordx4 v[20:23], v30, s[32:35], s59 offen {ST}
    v_sad_u8 v26, v26, 0, 0
    v_sad_u8 v26, v27, 0, v26
    v_add_u32 v26, {OPT.get('padrows','3')}, v26
    v_and_b32 v26, {~int(OPT.get('padrows','3'))}, v26
    v_min_u32 v26, 64, v26
    s_waitcnt vmcnt(2)
    s_barrier""")
    stamp(6,0)
    for i in range(8):
        A(f"v_lshl_add_u32 v{EI+i}, v{EI+i}, 5, v31\nds_read_b128 v[{EV+4*i}:{EV+4*i+3}], v{EI+i}\nv_readlane_b32 s{60+i}, v26, {i}")
    A(f"""s_lshl_b32 s57, s3, 21
    s_lshl_b32 s58, s2, 11
    s_add_u32 s57, s57, s58""")
    for i in range(8):
        A(f"""v_cmp_gt_u32 vcc, s{60+i}, v28
        s_mov_b64 exec, vcc
        s_waitcnt lgkmcnt({7-i})
        buffer_store_dwordx4 v[{EV+4*i}:{EV+4*i+3}], v3, s[36:39], s57 offen {ST}
        s_mov_b64 exec, -1
        s_add_u32 s57, s57, 0x40000""")
    A(f"s_sub_u32 s57, s57, 0x200000\nv_add_u32 v32, 32, v28")
    for i in range(8):
        L=A.label("k1long")
        A(f"""s_cmp_le_u32 s{60+i}, 32
        s_cbranch_scc1 {L}
        ds_read_u16 v33, v29 offset:{i*128+64}
        s_waitcnt lgkmcnt(0)
        v_lshl_add_u32 v33, v33, 5, v31
        ds_read_b128 v[36:39], v33
        v_cmp_gt_u32 vcc, s{60+i}, v32
        s_mov_b64 exec, vcc
        s_waitcnt lgkmcnt(0)
        buffer_store_dwordx4 v[36:39], v3, s[36:39], s57 offen offset:1024 {ST}
        s_mov_b64 exec, -1
        s_nop 0
{L}:
        s_add_u32 s57, s57, 0x40000""")
    A("s_branch L_k1_flag")
    A("L_k1_gemm:")
    srd(20,4,5,0,N*256)
    srd(24,16,17,0,272*256)
    srd(28,14,15,0,128*256)
    srd(32,12,13,0,128*256)
    srd(36,18,19,TAB_OFF,HS)
    srd(40,18,19,TAB_OFF+HS,HS)
    XR=8; WL=24; XA=40; ACC=56; BF=8
    A(f"""s_sub_u32 s50, s2, 128
    s_lshl_b32 s51, s3, 7
    s_add_u32 s51, s51, s50
    v_mov_b32 v6, 0
    v_mov_b32 v7, {K1_OVF}
    ds_write_b32 v7, v6
    s_cmp_ge_u32 s51, 1568
    s_cbranch_scc1 L_k1_nox
    s_lshl_b32 s52, s51, 12
    v_lshrrev_b32 v5, 2, v2
    v_and_b32 v6, 3, v2
    v_lshlrev_b32 v5, 8, v5
    v_lshl_or_b32 v5, v6, 4, v5""")
    for ks in range(4): A(f"buffer_load_dwordx4 v[{XR+4*ks}:{XR+4*ks+3}], v5, s[20:23], s52 offen offset:{ks*64} {NT}")
    A(f"""L_k1_nox:
    s_mov_b32 s53, {128*256}
    s_mov_b32 s54, {128*256+16384}
    s_mov_b32 s55, 16384
    buffer_load_dwordx4 v[{WL}:{WL+3}], v4, s[24:27], s53 offen
    buffer_load_dwordx4 v[{WL+4}:{WL+7}], v4, s[24:27], s54 offen
    buffer_load_dwordx4 v[{WL+8}:{WL+11}], v4, s[28:31], 0 offen
    buffer_load_dwordx4 v[{WL+12}:{WL+15}], v4, s[28:31], s55 offen
    v_lshrrev_b32 v5, 4, v0
    v_lshrrev_b32 v6, 7, v0
    v_mul_u32_u24 v5, {WROW}, v5
    v_lshl_add_u32 v5, v6, 7, v5
    v_bfe_u32 v6, v0, 3, 1
    v_lshl_add_u32 v5, v6, 7, v5
    v_and_b32 v6, 7, v0
    v_lshl_add_u32 v5, v6, 2, v5
    s_mov_b32 s56, 0x05040100
    s_mov_b32 s57, 0x07060302""")
    A(f"""s_cmp_lg_u32 s3, 15
    s_cbranch_scc1 L_k1_noimg
    s_cmp_ge_u32 s50, 72
    s_cbranch_scc1 L_k1_noimg
    v_and_b32 v6, 15, v2
    v_lshrrev_b32 v7, 4, v2
    v_lshlrev_b32 v6, 3, v6
    s_cmp_ge_u32 s50, 64
    s_cbranch_scc1 L_k1_cimg
    s_bfe_u32 s58, s50, 0x10005
    s_bfe_u32 s59, s50, 0x20002
    s_and_b32 s60, s50, 3
    s_lshl_b32 s58, s58, 7
    s_lshl_b32 s59, s59, 1
    s_lshl_b32 s60, s60, 13
    s_add_u32 s58, s58, s59
    s_add_u32 s58, s58, s60
    v_lshl_add_u32 v6, v7, 11, v6
    s_bitcmp1_b32 s50, 4
    s_cbranch_scc1 L_k1_uimg""")
    for i in range(8): A(f"buffer_load_ushort v{64+i}, v6, s[24:27], s58 offen offset:{i*256}")
    A("s_branch L_k1_imgst\nL_k1_uimg:")
    for i in range(8): A(f"buffer_load_ushort v{64+i}, v6, s[32:35], s58 offen offset:{i*256}")
    A(f"""L_k1_imgst:
    s_lshl_b32 s58, s50, 10
    s_waitcnt vmcnt(0)
    v_lshl_or_b32 v56, v65, 16, v64
    v_lshl_or_b32 v57, v67, 16, v66
    v_lshl_or_b32 v58, v69, 16, v68
    v_lshl_or_b32 v59, v71, 16, v70
    buffer_store_dwordx4 v[56:59], v3, s[44:47], s58 offen
    s_branch L_k1_noimg
L_k1_cimg:
    s_sub_u32 s61, s50, 64
    s_lshr_b32 s58, s61, 2
    s_and_b32 s59, s61, 3
    s_lshl_b32 s58, s58, 7
    s_lshl_b32 s59, s59, 1
    s_add_u32 s58, s58, s59
    s_add_u32 s58, s58, {256*256}
    v_lshl_add_u32 v6, v7, 10, v6""")
    for i in range(4): A(f"buffer_load_ushort v{56+i}, v6, s[24:27], s58 offen offset:{i*256}")
    A(f"""s_mov_b32 s59, {hex(LOG2E_NEG)}
    s_lshl_b32 s58, s61, 9
    s_add_u32 s58, s58, {CIMG}
    v_lshlrev_b32 v7, 3, v2
    s_waitcnt vmcnt(0)""")
    for i in range(4): A(f"v_lshlrev_b32 v{56+i}, 16, v{56+i}\nv_mul_f32 v{56+i}, s59, v{56+i}")
    A(f"""v_cvt_pk_bf16_f32 v56, v56, v57
    v_cvt_pk_bf16_f32 v57, v58, v59
    buffer_store_dwordx2 v[56:57], v7, s[44:47], s58 offen
L_k1_noimg:""")
    for u in range(4):
        w=WL+4*u; base=(u&1)*woff(64)+(u>>1)*256
        A(f"""s_waitcnt vmcnt({3-u})
        v_perm_b32 v60, v{w+2}, v{w}, s56
        v_perm_b32 v61, v{w+2}, v{w}, s57
        v_perm_b32 v62, v{w+3}, v{w+1}, s56
        v_perm_b32 v63, v{w+3}, v{w+1}, s57
        ds_write_b32 v5, v60 offset:{base}
        ds_write_b32 v5, v61 offset:{base+32}
        ds_write_b32 v5, v62 offset:{base+64}
        ds_write_b32 v5, v63 offset:{base+96}""")
    A(f"""v_and_b32 v6, 15, v2
    v_lshrrev_b32 v7, 4, v2
    v_lshl_add_u32 v60, v6, 2, v7
    v_lshlrev_b32 v60, 2, v60
    s_cmp_ge_u32 s51, 1568
    s_cbranch_scc1 L_k1_nobp""")
    for i in range(16): A(f"ds_bpermute_b32 v{XA+i}, v60, v{XR+i}")
    A(f"""L_k1_nobp:
    v_bfe_u32 v61, v2, 2, 2
    v_lshl_add_u32 v61, v7, 3, v61
    v_mul_u32_u24 v61, {WROW}, v61
    v_lshl_add_u32 v61, v7, 7, v61
    v_and_b32 v62, 3, v2
    v_lshl_add_u32 v5, v62, 3, v61
    s_waitcnt lgkmcnt(0)
    s_barrier""")
    stamp(1,0)
    A("""s_cmp_ge_u32 s51, 1568
    s_cbranch_scc1 L_k1_gdone""")
    seq=[(h,t,mat,ks) for h in range(2) for t in range(4) for mat in range(2) for ks in range(4)]
    def rd(n):
        h,t,mat,ks=seq[n]; o=woff(32*ks)+mat*256+h*128+t*32; b=BF+4*(n%8)
        A(f"ds_read_b64_tr_b16 v[{b}:{b+1}], v5 offset:{o}\nds_read_b64_tr_b16 v[{b+2}:{b+3}], v5 offset:{o+4*WROW}")
    def acc(h,t,mat): return ACC+((h*4+t)*2+mat)*4
    PF=6
    for n in range(PF): rd(n)
    for n in range(64):
        h,t,mat,ks=seq[n]; b=BF+4*(n%8); a=acc(h,t,mat)
        out=min(63-n,PF-1)
        A(f"s_waitcnt lgkmcnt({2*out})")
        A(f"v_mfma_f32_16x16x32_bf16 v[{a}:{a+3}], v[{XA+4*ks}:{XA+4*ks+3}], v[{b}:{b+3}], {'0' if ks==0 else f'v[{a}:{a+3}]'}")
        if n+PF<64: rd(n+PF)
    stamp(2,0)
    A(f"""v_mov_b32 v8, {hex(LOG2E_NEG)}
    v_mov_b32 v9, 0x7fff
    v_mov_b32 v10, 0xffff0000
    v_mov_b32 v11, 0
    v_lshlrev_b32 v12, 10, v7
    v_lshl_or_b32 v12, v6, 4, v12
    s_nop 3""")
    for h in range(2):
        for r in range(4):
            o=16+4*((h*4+r)%2); tt=24
            for t in range(4): A(f"v_mul_f32 v{tt+t}, v8, v{acc(h,t,0)+r}")
            A(f"v_max3_f32 v11, abs(v{tt}), abs(v{tt+1}), v11\nv_max3_f32 v11, abs(v{tt+2}), abs(v{tt+3}), v11")
            for t in range(4): A(f"v_exp_f32 v{tt+t}, v{tt+t}")
            A("s_nop 0")
            for t in range(4): A(f"v_cvt_pk_f16_f32 v{tt+t}, v{tt+t}, 0")
            for t in range(4): A(f"v_xad_u32 v{tt+4+t}, v{tt+t}, v9, v{acc(h,t,1)+r}")
            for t in range(4): A(f"v_bfi_b32 v{o+t}, v10, v{tt+4+t}, v{tt+t}")
            A(f"buffer_store_dwordx4 v[{o}:{o+3}], v12, s[{36+4*h}:{39+4*h}], s52 offen offset:{r*256} {ST}")
    A(f"""v_mov_b32 v13, 0x41600000
    v_mov_b32 v14, 1
    v_mov_b32 v15, {K1_OVF}
    v_cmp_nle_f32 vcc, v11, v13""")
    A(f"""s_mov_b64 exec, vcc
    ds_write_b32 v15, v14
    s_mov_b64 exec, -1
L_k1_gdone:
    s_waitcnt lgkmcnt(0)
    s_barrier
L_k1_flag:
    s_cmp_lg_u32 s3, 0
    s_cbranch_scc1 L_k1_fin
    v_mov_b32 v15, {K1_OVF}
    ds_read_b32 v14, v15
    s_lshl_b32 s58, s2, 2
    s_add_u32 s58, s58, {FLAGO}
    v_mov_b32 v15, 0
    s_mov_b64 exec, 1
    s_waitcnt lgkmcnt(0)
    buffer_store_dword v14, v15, s[44:47], s58 offen
    s_mov_b64 exec, -1
L_k1_fin:""")
    if STAMP:
        stamp(4,0)
        A("s_waitcnt vmcnt(0)")
        stamp(5,0)
        stamp_flush()
    A("L_k1_end:\ns_endpgm")

K2_L1=0; K2_L2=32768; K2_W=65536; K2_ER=98304; K2_OH=K2_ER+16384; K2_HIST=K2_OH+1024; K2_LDS=K2_HIST+512

def k2():
    L=0; D=32; EE=48; ACC=64; GB=80; A0=96; A1=100; S=104; OA0,OA1,SA0,SA1=108,109,110,111
    cJ16,cEA,cG8O,cS,cH16,pL1,pLm,pLs,pLe,LANE=112,113,114,115,116,117,118,119,120,121
    LE,TID,LM0,LM1,LS0,LS1=122,123,124,125,126,127
    L16=LE
    A(".p2align 8\nmain_kernel:")
    A(f"""s_cmp_ge_u32 s2, 256
    s_cbranch_scc1 L_k2_end
    s_load_dwordx2 s[18:19], s[0:1], 72
    s_load_dwordx2 s[4:5], s[0:1], 0
    s_load_dwordx2 s[6:7], s[0:1], 56
    v_mov_b32 v{TID}, v0
    v_lshrrev_b32 v1, 6, v0
    v_and_b32 v{LANE}, 63, v0
    v_readfirstlane_b32 s3, v1
    v_lshlrev_b32 v{L16}, 4, v{LANE}
    v_lshlrev_b32 v4, 4, v0
    s_bfe_u32 s40, s2, 0x10002
    s_lshr_b32 s41, s2, 3
    s_and_b32 s42, s2, 3
    s_lshl_b32 s41, s41, 2
    s_add_u32 s41, s41, s42
    s_lshl_b32 s45, s41, 15
    s_add_u32 s46, s45, 16384
    s_mov_b32 s10, 0x400000
    s_mov_b32 s11, 0x20000
    s_waitcnt lgkmcnt(0)
    s_add_u32 s8, s18, {hex(REC_OFF)}
    s_addc_u32 s9, s19, 0""")
    R=0; RK=8; HA=16; XR=32
    A(f"""buffer_load_dwordx4 v[{R}:{R+3}], v4, s[8:11], s45 offen {NT}
    buffer_load_dwordx4 v[{R+4}:{R+7}], v4, s[8:11], s46 offen {NT}""")
    stamp_init(1,3,18,19)
    stamp(0,1)
    srd(24,18,19,MISC_OFF,MISC_SZ)
    A(f"""s_mov_b32 s45, {FLAGO}
    buffer_load_dwordx4 v[24:27], v{L16}, s[24:27], s45 offen""")
    A(f"""s_add_u32 s42, s3, 4
    s_mul_i32 s42, s42, 52
    s_lshr_b32 s42, s42, 8
    s_add_u32 s43, s3, 5
    s_mul_i32 s43, s43, 52
    s_lshr_b32 s43, s43, 8
    s_sub_u32 s43, s43, s42
    s_add_u32 s43, s43, 12
    s_mul_i32 s44, s3, 12
    s_add_u32 s42, s42, s44
    s_mul_i32 s44, s41, {BS}
    s_add_u32 s44, s44, s42""")
    srd(20,4,5,0,N*256)
    A(f"""s_lshl_b32 s45, s41, 18
    s_add_u32 s12, s18, s45
    s_addc_u32 s13, s19, 0
    s_add_u32 s12, s12, {hex(EP_OFF)}
    s_addc_u32 s13, s13, 0
    s_mov_b32 s14, 0x40000
    s_mov_b32 s15, 0x20000
    s_mul_i32 s45, s40, {HS}
    s_add_u32 s16, s18, s45
    s_addc_u32 s17, s19, 0
    s_mov_b32 s18, {HS}
    s_mov_b32 s19, 0x20000""")
    srd(28,6,7,0,N*256)
    A(f"""v_lshrrev_b32 v28, 3, v{TID}
    v_and_b32 v29, 7, v{TID}
    v_lshrrev_b32 v30, 1, v28
    v_and_b32 v28, 1, v28
    v_lshlrev_b32 v28, 4, v28
    v_mov_b32 v31, 0x3f80
    v_lshlrev_b32 v31, v28, v31
    v_cmp_eq_u32 vcc, v29, v30
    v_lshlrev_b32 v29, 2, v{TID}
    v_add_u32 v29, {K2_OH}, v29
    v_cndmask_b32 v31, 0, v31, vcc
    v_cmp_gt_u32 vcc, 0x180, v{TID}
    s_mov_b64 exec, vcc
    ds_write_b32 v29, v31
    s_mov_b64 exec, -1
    v_lshrrev_b32 v28, 2, v{LANE}
    v_and_b32 v29, 3, v{LANE}
    v_cmp_gt_u32 s[50:51], s43, v28
    v_lshlrev_b32 v28, 8, v28
    v_lshl_or_b32 v28, v29, 4, v28
    v_lshlrev_b32 v30, 3, v{LANE}
    s_lshl_b32 s45, s44, 8
    s_lshl_b32 s46, s40, 11
    s_add_u32 s46, s46, {CIMG}
    s_lshl_b32 s47, s3, 11
    s_add_u32 m0, s47, {K2_W}
    s_lshl_b32 s48, s40, 15
    s_add_u32 s47, s47, s48""")
    for i in range(16): A(f"v_mov_b32 v{XR+i}, 0")
    A(f"""s_waitcnt lgkmcnt(0)
    s_barrier
    s_mov_b64 exec, s[50:51]""")
    for ks in range(4): A(f"buffer_load_dwordx4 v[{XR+4*ks}:{XR+4*ks+3}], v28, s[20:23], s45 offen offset:{ks*64} {NT}")
    A("s_mov_b64 exec, -1")
    for t in range(4): A(f"buffer_load_dwordx2 v[{GB+4*t}:{GB+4*t+1}], v30, s[24:27], s46 offen offset:{t*512}")
    A(f"""buffer_load_dwordx4 v{L16}, s[24:27], s47 offen lds
    buffer_load_dwordx4 v{L16}, s[24:27], s47 offen offset:1024 lds
    v_and_b32 v28, 15, v{LANE}
    v_lshrrev_b32 v29, 4, v{LANE}
    v_lshlrev_b32 v{cJ16}, 4, v28
    v_lshlrev_b32 v30, 3, v29
    v_add_u32 v{cG8O}, {K2_OH}, v30
    v_lshl_add_u32 v30, v28, 5, v30
    s_lshl_b32 s47, s3, 10
    s_add_u32 s49, s47, {K2_ER}
    v_add_u32 v{cEA}, s49, v30
    v_and_b32 v30, 3, v{LANE}
    v_lshlrev_b32 v30, 3, v30
    v_add_u32 v{cS}, {K2_OH}, v30
    v_and_b32 v30, 1, v{LANE}
    v_lshlrev_b32 v{cH16}, 4, v30
    s_lshl_b32 s47, s3, 11
    v_lshl_add_u32 v{pL1}, v29, 4, s47
    s_add_u32 s48, s47, {K2_L2}
    v_lshl_add_u32 v{pLm}, v28, 2, s48
    v_and_b32 v30, -4, v{LANE}
    v_add_u32 v{pLs}, s48, v30
    v_lshrrev_b32 v30, 1, v{LANE}
    v_lshl_add_u32 v{pLe}, v30, 2, s48
    v_lshrrev_b32 v30, 4, v{TID}
    v_lshl_add_u32 v29, v30, 6, v28
    v_mov_b32 v31, 1
    v_mov_b32 v30, {OPT.get('srcmask','0x7fff')}
    v_mov_b32 v28, 0xf0000
    s_waitcnt vmcnt(10)""")
    stamp(1,1)
    A(f"""v_or_b32 v24, v24, v25
    v_or3_b32 v24, v24, v26, v27
    v_cmp_ne_u32 vcc, 0, v24
    s_cmp_lg_u64 vcc, 0
    s_cbranch_scc1 L_k2_fallback""")
    MK=52; O1=48; O2=56
    order=[0,4,1,5,2,6,3,7]
    for j in order:
        Lb=A.label("k2h")
        A(f"v_cmp_le_i32 s[{MK+2*j}:{MK+2*j+1}], 0, v{R+j}\ns_mov_b64 exec, s[{MK+2*j}:{MK+2*j+1}]")
        if j&3>=2: A(f"s_cbranch_execz {Lb}")
        A(f"""v_lshrrev_b32 v{HA+j}, 22, v{R+j}
        v_and_b32 v{HA+j}, 0x1fc, v{HA+j}
        v_add_u32 v24, {K2_HIST}, v{HA+j}
        ds_add_rtn_u32 v{RK+j}, v24, v31
        v_and_b32 v{O1+j}, v30, v{R+j}
        v_add_u32 v{O2+j}, {16*(j&3)+4096*(j>>2)}, v29
        v_lshlrev_b32 v{O1+j}, 8, v{O1+j}
        v_and_or_b32 v{O2+j}, v{R+j}, v28, v{O2+j}""")
        if j&3>=2: A(f"{Lb}:")
        A("s_mov_b64 exec, -1")
    A("s_waitcnt lgkmcnt(0)")
    for j in order:
        Lb=A.label("k2s")
        A(f"s_mov_b64 exec, s[{MK+2*j}:{MK+2*j+1}]")
        if j&3>=2: A(f"s_cbranch_execz {Lb}")
        A(f"""v_min_u32 v{RK+j}, 63, v{RK+j}
        v_lshlrev_b32 v{RK+j}, 2, v{RK+j}
        v_lshl_add_u32 v{RK+j}, v{HA+j}, 6, v{RK+j}
        ds_write2st64_b32 v{RK+j}, v{O1+j}, v{O2+j} offset0:0 offset1:128""")
        if j&3>=2: A(f"{Lb}:")
    A(f"""s_mov_b64 exec, -1
    v_lshlrev_b32 v25, 3, v{LANE}
    v_add_u32 v25, {K2_HIST}, v25
    v_lshl_add_u32 v26, v{LANE}, 2, s47
    s_lshl_b32 s45, s3, 2
    s_waitcnt lgkmcnt(0)
    s_barrier""")
    stamp(2,1)
    H0,H1=0,1; CP=2
    A(f"ds_read_b64 v[{H0}:{H1}], v25")
    for b in range(1,8): A(f"ds_read2st64_b32 v[{CP+2*b}:{CP+2*b+1}], v26 offset0:{b} offset1:{128+b}")
    A(f"""s_waitcnt lgkmcnt(7)
    v_max_u32 v24, v{H0}, v{H1}
    v_cmp_lt_u32 vcc, 64, v24""")
    for i in range(4):
        A(f"v_readlane_b32 s{72+2*i}, v{H0}, s45\nv_readlane_b32 s{73+2*i}, v{H1}, s45\ns_add_u32 s45, s45, 1")
    A(f"""s_cmp_lg_u64 vcc, 0
    s_cbranch_scc1 L_k2_fallback
    s_mov_b32 s68, s72
    s_waitcnt lgkmcnt(0)""")
    for b in range(1,8):
        A(f"""v_cmp_gt_u32 vcc, s{72+b}, v{LANE}
        v_lshl_add_u32 v24, s68, 2, v26
        s_add_u32 s68, s68, s{72+b}
        s_mov_b64 exec, vcc
        ds_write2st64_b32 v24, v{CP+2*b}, v{CP+2*b+1} offset0:0 offset1:128
        s_mov_b64 exec, -1""")
    A(f"""s_sub_u32 s46, 0, s68
    s_and_b32 s46, s46, 31
    v_cmp_gt_u32 vcc, s46, v{LANE}
    v_lshl_add_u32 v24, s68, 2, v26
    v_mov_b32 v28, {N<<8}
    v_mov_b32 v29, 0x10ffff
    s_mov_b64 exec, vcc
    ds_write2st64_b32 v24, v28, v29 offset0:0 offset1:128
    s_mov_b64 exec, -1
    s_add_u32 s68, s68, 15
    s_lshr_b32 s68, s68, 4
    s_mov_b32 m0, s49""")
    XA=96
    G=A0
    def listreads(G):
        A(f"""ds_read_b32 v{LE}, v{pLe}
        ds_read_b128 v[{G}:{G+3}], v{pL1}
        ds_read_b128 v[{G+4}:{G+7}], v{pL1} offset:64
        ds_read_b32 v{LM0}, v{pLm}
        ds_read_b32 v{LM1}, v{pLm} offset:64
        ds_read_b32 v{LS0}, v{pLs}
        ds_read_b32 v{LS1}, v{pLs} offset:64
        v_add_u32 v{pL1}, 128, v{pL1}
        v_add_u32 v{pLm}, 128, v{pLm}
        v_add_u32 v{pLs}, 128, v{pLs}
        v_add_u32 v{pLe}, 128, v{pLe}""")
    def edma():
        A(f"v_mad_u32_u16 v{LE}, v{LE}, 32, v{cH16}\nbuffer_load_dwordx4 v{LE}, s[12:15], 0 offen lds")
    def gathers(Gr, lo=0, hi=8):
        for i in range(lo,hi):
            A(f"v_or_b32 v{Gr+i}, v{Gr+i}, v{cJ16}")
            if not OPT.get('nogather'): A(f"buffer_load_dwordx4 v[{L+4*i}:{L+4*i+3}], v{Gr+i}, s[16:19], 0 offen")
    def addrs():
        A(f"""v_mad_u32_u16 v{OA0}, v{LM0}, 32, v{cG8O} op_sel:[1,0,0,0]
        v_mad_u32_u16 v{OA1}, v{LM1}, 32, v{cG8O} op_sel:[1,0,0,0]
        v_mad_u32_u16 v{SA0}, v{LS0}, 32, v{cS} op_sel:[1,0,0,0]
        v_mad_u32_u16 v{SA1}, v{LS1}, 32, v{cS} op_sel:[1,0,0,0]""")
    A(f"v_lshlrev_b32 v{EE+8}, 4, v{LANE}\nv_add_u32 v{EE+8}, {K2_W}, v{EE+8}")
    listreads(EE)
    A(f"""v_and_b32 v{EE+9}, 15, v{LANE}
    v_lshrrev_b32 v{EE+10}, 4, v{LANE}
    v_lshl_add_u32 v{EE+9}, v{EE+9}, 2, v{EE+10}
    v_lshlrev_b32 v{EE+9}, 2, v{EE+9}
    s_waitcnt lgkmcnt(4)""")
    edma()
    gathers(EE)
    stamp(3,1)
    A("s_waitcnt vmcnt(9)")
    for i in range(16): A(f"ds_bpermute_b32 v{XA+i}, v{EE+9}, v{XR+i}")
    A(f"v_mov_b32 v{TID}, v{EE+8}\ns_waitcnt lgkmcnt(0)\ns_barrier")
    BFR=32
    seq=[(mat,t,ks) for mat in range(2) for t in range(4) for ks in range(4)]
    def rd(n):
        mat,t,ks=seq[n]; b=BFR+4*(n%8)
        A(f"ds_read_b128 v[{b}:{b+3}], v{TID} offset:{n*1024}")
    PF=6
    for n in range(PF): rd(n)
    for n in range(32):
        mat,t,ks=seq[n]; b=BFR+4*(n%8); a=ACC+4*t
        if n==16:
            A(f"s_mov_b32 s45, {hex(LOG2E_NEG)}\ns_nop 6")
            for tt in range(4):
                for r in range(4): A(f"v_mul_f32 v{ACC+4*tt+r}, s45, v{ACC+4*tt+r}")
                A(f"v_cvt_pk_bf16_f32 v{GB+4*tt+2}, v{ACC+4*tt}, v{ACC+4*tt+1}\nv_cvt_pk_bf16_f32 v{GB+4*tt+3}, v{ACC+4*tt+2}, v{ACC+4*tt+3}")
        out=min(31-n,PF-1)
        A(f"s_waitcnt lgkmcnt({out})")
        A(f"v_mfma_f32_16x16x32_bf16 v[{a}:{a+3}], v[{XA+4*ks}:{XA+4*ks+3}], v[{b}:{b+3}], {'0' if ks==0 else f'v[{a}:{a+3}]'}")
        if n+PF<32: rd(n+PF)
    stamp(4,1)
    if STAMP: A('s_memtime s[100:101]\ns_waitcnt lgkmcnt(0)')
    if OPT.get('reg'):
        A('s_mov_b32 s92, s68\ns_mov_b32 s93, s94\ns_getreg_b32 s91, hwreg(HW_REG_HW_ID)')
    def gate(Ar):
        if OPT.get('nomfma'): return
        for t in range(4): A(f"v_mfma_f32_16x16x32_bf16 v[{D+4*t}:{D+4*t+3}], v[{Ar}:{Ar+3}], v[{GB+4*t}:{GB+4*t+3}], 0")
    def exps():
        if OPT.get('nocomp'): return
        for t in range(4):
            for r in range(4): A(f"v_exp_f32 v{EE+4*r+t}, v{D+4*t+r}")
    def rest(q):
        if OPT.get('nocomp'): return
        Lq=L+16*q
        order=[(r,t) for t in range(4) for r in range(4)]
        for r,t in order: A(f"v_fma_mix_f32 v{EE+4*r+t}, v{Lq+4*r+t}, v{EE+4*r+t}, 1.0 op_sel_hi:[1,0,0]")
        for r,t in order: A(f"v_rcp_f32 v{EE+4*r+t}, v{EE+4*r+t}")
        for t in (0,2):
            for r in range(4): A(f"v_pk_mul_f32 v[{EE+4*r+t}:{EE+4*r+t+1}], v[{EE+4*r+t}:{EE+4*r+t+1}], v[{Lq+4*r+t}:{Lq+4*r+t+1}]")
        for t in range(4):
            for p in range(2): A(f"v_cvt_pk_bf16_f32 v{L+4*t+2*q+p}, v{EE+8*p+t}, v{EE+8*p+4+t}")
    A("""s_cmp_le_i32 s68, 0
    s_cbranch_scc1 L_k2_done
.p2align 6
L_k2_loop:""")
    addrs()
    if OPT.get('prio','1')=='1':
        A("""s_cmp_ge_i32 s68, 11
        s_cbranch_scc1 L_k2_p3
        s_cmp_ge_i32 s68, 7
        s_cbranch_scc1 L_k2_p2
        s_cmp_ge_i32 s68, 3
        s_cbranch_scc1 L_k2_p1
        s_setprio 0
        s_branch L_k2_pd
L_k2_p3:
        s_setprio 3
        s_branch L_k2_pd
L_k2_p2:
        s_setprio 2
        s_branch L_k2_pd
L_k2_p1:
        s_setprio 1
L_k2_pd:""")
    A(f"""ds_read_b64 v[{A0+2}:{A0+3}], v{OA0}
    ds_read_b64 v[{A1+2}:{A1+3}], v{OA1}
    ds_read_b64_tr_b16 v[{S}:{S+1}], v{SA0}
    ds_read_b64_tr_b16 v[{S+2}:{S+3}], v{SA1}
    s_sub_u32 s68, s68, 2
    s_waitcnt vmcnt(8)
    ds_read_b64 v[{A0}:{A0+1}], v{cEA}
    ds_read_b64 v[{A1}:{A1+1}], v{cEA} offset:512
    s_waitcnt lgkmcnt(1)""")
    gate(A0)
    A("s_nop 4")
    exps()
    A("s_waitcnt lgkmcnt(0)")
    gate(A1)
    listreads(G)
    A("s_waitcnt vmcnt(4)")
    rest(0)
    A("s_waitcnt lgkmcnt(0)")
    edma()
    A("s_cmp_lt_i32 s68, 0\ns_cbranch_scc1 L_k2_half")
    exps()
    A("s_waitcnt vmcnt(1)")
    rest(1)
    A("s_nop 0\nL_k2_half:\ns_nop 0")
    for t in range(0 if OPT.get('nomfma') else 4): A(f"v_mfma_f32_16x16x32_bf16 v[{ACC+4*t}:{ACC+4*t+3}], v[{S}:{S+3}], v[{L+4*t}:{L+4*t+3}], v[{ACC+4*t}:{ACC+4*t+3}]")
    A("s_cmp_le_i32 s68, 0\ns_cbranch_scc1 L_k2_done")
    gathers(G)
    A("s_branch L_k2_loop")
    A("L_k2_done:\ns_waitcnt vmcnt(0)")
    stamp(5,1)
    if STAMP: A('s_memtime s[88:89]\ns_waitcnt lgkmcnt(0)\ns_sub_u32 s97, s88, s100')
    A(f"""v_lshrrev_b32 v0, 4, v{LANE}
    v_lshlrev_b32 v0, 2, v0
    v_add_u32 v1, s44, v0
    v_lshlrev_b32 v1, 8, v1
    v_lshrrev_b32 v2, 1, v{cJ16}
    s_lshl_b32 s45, s40, 7
    v_add3_u32 v1, v1, v2, s45
    v_mov_b32 v3, {hex(LOG2E_NEG)}
    v_mov_b32 v4, 0x80000000""")
    for r in range(4):
        for t in range(4): A(f"v_mul_f32 v{8+t}, v3, v{ACC+4*t+r}")
        for t in range(4): A(f"v_exp_f32 v{8+t}, v{8+t}")
        A(f"v_add_u32 v5, {r}, v0\nv_cmp_gt_u32 vcc, s43, v5")
        for t in range(4): A(f"v_add_f32 v{8+t}, 1.0, v{8+t}")
        for t in range(4): A(f"v_rcp_f32 v{8+t}, v{8+t}")
        A(f"v_cndmask_b32 v{16+r}, v4, v1, vcc")
        for t in range(4): A(f"v_mul_f32 v{8+t}, v{8+t}, v{ACC+4*t+r}")
        A(f"""v_cvt_pk_bf16_f32 v{20+2*r}, v8, v9
        v_cvt_pk_bf16_f32 v{21+2*r}, v10, v11
        buffer_store_dwordx2 v[{20+2*r}:{21+2*r}], v{16+r}, s[28:31], 0 offen offset:{r*256}""")
    if STAMP:
        A("s_waitcnt vmcnt(0)")
        stamp(6,1)
        stamp_flush(1)
    A("s_endpgm")
    fallback()
    A("L_k2_end:\ns_endpgm")

def fallback():
    LANE=121; TID=123
    A(f"""L_k2_fallback:
    s_mov_b64 exec, -1
    s_load_dwordx2 s[50:51], s[0:1], 8
    s_load_dwordx4 s[52:55], s[0:1], 16
    s_load_dwordx4 s[56:59], s[0:1], 32
    s_load_dwordx2 s[60:61], s[0:1], 48
    s_waitcnt vmcnt(0) lgkmcnt(0)
    s_barrier""")
    srd(8,50,51,0,E*32)
    srd(12,52,53,0,E*4)
    srd(16,54,55,0,E*4)
    srd(24,56,57,0,128*256)
    srd(32,58,59,0,128*256)
    srd(36,60,61,0,272*256)
    A(f"""v_mov_b32 v0, 0
    v_mov_b32 v1, 0
    v_mov_b32 v2, 0
    v_mov_b32 v3, 0
    v_lshlrev_b32 v4, 4, v{TID}
    ds_write_b128 v4, v[0:3]
    ds_write_b128 v4, v[0:3] offset:16384
    ds_write_b128 v4, v[0:3] offset:32768
    ds_write_b128 v4, v[0:3] offset:49152
    s_lshl_b32 s45, s40, 7
    v_lshl_add_u32 v5, v{LANE}, 1, s45
    v_lshlrev_b32 v6, 2, v{LANE}
    s_mul_i32 s46, s41, {BS}
    s_lshl_b32 s47, s3, 6
    s_waitcnt lgkmcnt(0)
    s_barrier
L_fb_chunk:
    s_cmp_ge_u32 s47, {E}
    s_cbranch_scc1 L_fb_fin
    s_lshl_b32 s48, s47, 2
    buffer_load_dword v7, v6, s[16:19], s48 offen
    buffer_load_dword v8, v6, s[12:15], s48 offen
    s_waitcnt vmcnt(0)
    v_subrev_u32 v9, s46, v7
    v_cmp_gt_u32 s[62:63], v10, v9
    """.replace("v_cmp_gt_u32 s[62:63], v10, v9",f"v_mov_b32 v10, {BS}\nv_cmp_gt_u32 s[62:63], v10, v9")+f"""
L_fb_edge:
    s_cmp_eq_u64 s[62:63], 0
    s_cbranch_scc1 L_fb_next
    s_ff1_i32_b64 s49, s[62:63]
    s_bitset0_b64 s[62:63], s49
    v_readlane_b32 s64, v7, s49
    v_readlane_b32 s65, v8, s49
    s_add_u32 s66, s47, s49
    s_lshl_b32 s67, s64, 8
    s_lshl_b32 s68, s65, 8
    s_lshl_b32 s66, s66, 5
    s_nop 2
    buffer_load_dword v11, v6, s[20:23], s67 offen
    buffer_load_dword v12, v6, s[20:23], s68 offen
    v_and_b32 v14, 28, v6
    buffer_load_dword v13, v14, s[8:11], s66 offen
    v_mov_b32 v15, 0
    v_mov_b32 v16, 0
    s_mov_b32 s69, 0
    s_waitcnt vmcnt(0)
L_fb_k:
    s_lshl_b32 s70, s69, 9
    s_add_u32 s71, s70, {128*256}
    buffer_load_ushort v17, v5, s[36:39], s70 offen
    buffer_load_ushort v18, v5, s[36:39], s70 offen offset:256
    buffer_load_ushort v19, v5, s[36:39], s71 offen
    buffer_load_ushort v20, v5, s[36:39], s71 offen offset:256
    buffer_load_ushort v21, v5, s[32:35], s70 offen
    buffer_load_ushort v22, v5, s[32:35], s70 offen offset:256
    v_readlane_b32 s72, v11, s69
    v_readlane_b32 s73, v12, s69
    s_lshl_b32 s74, s72, 16
    s_and_b32 s72, s72, 0xffff0000
    s_lshl_b32 s75, s73, 16
    s_and_b32 s73, s73, 0xffff0000
    s_waitcnt vmcnt(0)""")
    for i in range(17,23): A(f"v_lshlrev_b32 v{i}, 16, v{i}")
    A(f"""v_fmac_f32 v15, s74, v17
    v_fmac_f32 v15, s72, v18
    v_fmac_f32 v15, s75, v19
    v_fmac_f32 v15, s73, v20
    v_fmac_f32 v16, s75, v21
    v_fmac_f32 v16, s73, v22
    s_add_u32 s69, s69, 1
    s_cmp_lt_u32 s69, 64
    s_cbranch_scc1 L_fb_k
    s_mov_b32 s69, 0
L_fb_ke:
    s_lshl_b32 s70, s69, 9
    s_add_u32 s70, s70, {256*256}
    buffer_load_ushort v17, v5, s[36:39], s70 offen
    buffer_load_ushort v18, v5, s[36:39], s70 offen offset:256
    v_readlane_b32 s72, v13, s69
    s_lshl_b32 s74, s72, 16
    s_and_b32 s72, s72, 0xffff0000
    s_waitcnt vmcnt(0)
    v_lshlrev_b32 v17, 16, v17
    v_lshlrev_b32 v18, 16, v18
    v_fmac_f32 v15, s74, v17
    v_fmac_f32 v15, s72, v18
    s_add_u32 s69, s69, 1
    s_cmp_lt_u32 s69, 8
    s_cbranch_scc1 L_fb_ke
    v_mul_f32 v15, {hex(LOG2E_NEG)}, v15
    v_exp_f32 v15, v15
    s_sub_u32 s64, s64, s46
    s_lshl_b32 s64, s64, 8
    v_add_f32 v15, 1.0, v15
    v_rcp_f32 v15, v15
    v_add_u32 v17, s64, v6
    v_mul_f32 v15, v15, v16
    ds_add_f32 v17, v15
    s_branch L_fb_edge
L_fb_next:
    s_add_u32 s47, s47, 1024
    s_branch L_fb_chunk
L_fb_fin:
    s_waitcnt lgkmcnt(0)
    s_barrier
    s_mov_b32 s47, s3
L_fb_node:
    s_cmp_ge_u32 s47, {BS}
    s_cbranch_scc1 L_k2_end
    s_add_u32 s64, s46, s47
    s_lshl_b32 s67, s64, 8
    buffer_load_dword v11, v6, s[20:23], s67 offen
    s_lshl_b32 s48, s47, 8
    v_add_u32 v17, s48, v6
    ds_read_b32 v15, v17
    s_mov_b32 s69, 0
    s_waitcnt vmcnt(0) lgkmcnt(0)
L_fb_ku:
    s_lshl_b32 s70, s69, 9
    buffer_load_ushort v17, v5, s[24:27], s70 offen
    buffer_load_ushort v18, v5, s[24:27], s70 offen offset:256
    v_readlane_b32 s72, v11, s69
    s_lshl_b32 s74, s72, 16
    s_and_b32 s72, s72, 0xffff0000
    s_waitcnt vmcnt(0)
    v_lshlrev_b32 v17, 16, v17
    v_lshlrev_b32 v18, 16, v18
    v_fmac_f32 v15, s74, v17
    v_fmac_f32 v15, s72, v18
    s_add_u32 s69, s69, 1
    s_cmp_lt_u32 s69, 64
    s_cbranch_scc1 L_fb_ku
    v_mul_f32 v16, {hex(LOG2E_NEG)}, v15
    v_exp_f32 v16, v16
    s_nop 0
    v_add_f32 v16, 1.0, v16
    v_rcp_f32 v16, v16
    s_nop 0
    v_mul_f32 v15, v15, v16
    v_cvt_pk_bf16_f32 v15, v15, v15
    buffer_store_short v15, v5, s[28:31], s67 offen
    s_add_u32 s47, s47, 16
    s_branch L_fb_node""")

def desc(name, vg, sg=102):
    return f""".amdhsa_kernel {name}
  .amdhsa_next_free_vgpr {vg}
  .amdhsa_next_free_sgpr {sg}
  .amdhsa_accum_offset {vg}
  .amdhsa_group_segment_fixed_size 0
  .amdhsa_kernarg_size 80
  .amdhsa_user_sgpr_count 2
  .amdhsa_user_sgpr_kernarg_segment_ptr 1
  .amdhsa_system_sgpr_workgroup_id_x 1
.end_amdhsa_kernel
"""
k1(); k2()
errs=check(A.lines)
for e in errs: print(e, file=sys.stderr)
hdr=open('gather_scatter__edge_featured_mpnn_egc__graph.s.ref').read().split('; Override launch')[0]
out=hdr+f"""; Two launches: prep (edge partition + node tables), main (gated gather / aggregate / silu)
; @launch kernel=prep_kernel grid=(256,1,1) block=(1024,1,1) lds={K1_LDS}
; @launch kernel=main_kernel grid=(256,1,1) block=(1024,1,1) lds={K2_LDS}
.amdgcn_target "amdgcn-amd-amdhsa--gfx950"
.text
.globl prep_kernel
.type prep_kernel,@function
.globl main_kernel
.type main_kernel,@function
"""+A.text()+""".section .rodata,"a"
.p2align 6
"""+desc("prep_kernel",128)+".p2align 6\n"+desc("main_kernel",128)
open(sys.argv[1],'w').write(out)
print("written",sys.argv[1],len(A.lines),"lines; hazards:",len(errs))
```

```python
import sys
from dsl import *
OPT=dict(a.split('=') if '=' in a else (a,'1') for a in sys.argv[2:])
STAMP=int(OPT.get('stamp',0))
NT=OPT.get('nt','nt')
if NT=='none': NT=''
ST=OPT.get('st','sc0 sc1')
if ST=='none': ST=''
ST=ST.replace('+',' ')

N=25000; E=400000; BS=196; CH=3136
NROW=25088; HS=NROW*256
TAB_OFF=0; REC_OFF=0x0D00000; EP_OFF=0x1100000; MISC_OFF=0x3100000
WIMG=0; CIMG=0x10000; FLAGO=0x12000; MISC_SZ=0x13000
STAMP_OFF=0x3200000
LOG2E_NEG=0xbfb8aa3b
A=Asm()

def srd(s, base_lo, base_hi, off, size):
    if off:
        A(f"s_add_u32 s{s}, s{base_lo}, {hex(off)}\ns_addc_u32 s{s+1}, s{base_hi}, 0")
    else:
        A(f"s_mov_b32 s{s}, s{base_lo}\ns_mov_b32 s{s+1}, s{base_hi}")
    A(f"s_mov_b32 s{s+2}, {hex(size)}\ns_mov_b32 s{s+3}, 0x20000")

def stamp(idx, kern):
    if not STAMP: return
    A(f"""s_memrealtime s[88:89]
    s_waitcnt lgkmcnt(0)
    s_mov_b32 s{90+idx}, s88""")
def stamp_init(kern, wave_s, wsl, wsh):
    if not STAMP: return
    for i in range(8): A(f"s_mov_b32 s{90+i}, 0")
    A(f"s_add_u32 s98, s{wsl}, {hex(STAMP_OFF+kern*0x80000)}\ns_addc_u32 s99, s{wsh}, 0")
def stamp_flush(kern=0):
    if not STAMP: return
    if STAMP==2:
        sel=[0,1,2,5] if kern==0 else [0,2,3,6]
        if kern==0: A("s_and_b32 s4, s2, 15\ns_cmp_lg_u32 s4, 0\ns_cbranch_scc1 L_sf_0_3")
        A(f"""s_load_dwordx2 s[4:5], s[0:1], 64
        s_waitcnt lgkmcnt(0)
        s_add_u32 s4, s4, {512*(1-kern)}
        s_addc_u32 s5, s5, 0
        s_cmp_lg_u32 s3, {12 if kern==0 else 15}
        s_cbranch_scc1 L_sf_{kern}_3
        s_mov_b32 s6, 256
        s_mov_b32 s7, 0x20000
        s_mov_b64 exec, 1
        v_mov_b32 v8, 0""")
        for n,i in enumerate(sel):
            A(f"""v_mov_b32 v0, s{90+i}
            v_not_b32 v1, v0
            s_cmp_eq_u32 s{90+i}, 0
            s_cbranch_scc1 L_sf_{kern}_{n}
            buffer_atomic_umax v1, v8, s[4:7], 0 offen offset:{kern*32+n*8}
            buffer_atomic_umax v0, v8, s[4:7], 0 offen offset:{kern*32+n*8+4}
L_sf_{kern}_{n}:""")
        return
    A("""s_mov_b32 s4, s98
    s_mov_b32 s5, s99
    s_mov_b32 s6, 0x80000
    s_mov_b32 s7, 0x20000
    s_lshl_b32 s8, s2, 4
    s_add_u32 s8, s8, s3
    s_lshl_b32 s8, s8, 6
    s_mov_b64 exec, 1
    v_mov_b32 v8, 0""")
    for i in range(8): A(f"v_mov_b32 v{i}, s{90+i}")
    A("buffer_store_dwordx4 v[0:3], v8, s[4:7], s8 offen\nbuffer_store_dwordx4 v[4:7], v8, s[4:7], s8 offen offset:16")

K1_E=0; K1_REC=100352; K1_PERM=K1_REC+32768; K1_HIST=K1_PERM+16384; K1_OVF=K1_HIST+1024; K1_LDS=K1_OVF+256
WROW=544
def woff(k): return k*WROW+(k>>3)*128

def k1():
    A(".p2align 8\nprep_kernel:")
    A("""s_cmp_ge_u32 s2, 256
    s_cbranch_scc1 L_k1_end
    s_load_dwordx4 s[4:7], s[0:1], 0
    s_load_dwordx4 s[8:11], s[0:1], 16
    s_load_dwordx4 s[12:15], s[0:1], 32
    s_load_dwordx2 s[16:17], s[0:1], 48
    s_load_dwordx2 s[18:19], s[0:1], 72
    v_lshrrev_b32 v1, 6, v0
    v_and_b32 v2, 63, v0
    v_readfirstlane_b32 s3, v1
    v_lshlrev_b32 v3, 4, v2
    v_lshlrev_b32 v4, 4, v0
    s_waitcnt lgkmcnt(0)""")
    stamp_init(0,3,18,19)
    stamp(0,0)
    srd(44,18,19,MISC_OFF,MISC_SZ)
    A("""s_cmp_ge_u32 s2, 128
    s_cbranch_scc1 L_k1_gemm""")
    srd(20,10,11,0,E*4)
    srd(24,8,9,0,E*4)
    srd(28,6,7,0,E*32)
    srd(32,18,19,REC_OFF,0x400000)
    srd(36,18,19,EP_OFF,0x2000000)
    D=8; S=12
    A(f"""s_mul_i32 s50, s2, {CH}
    s_sub_u32 s51, {E}, s50
    s_lshr_b32 s51, s51, 2
    s_min_u32 s51, s51, {CH//4}
    s_lshl_b32 s52, s50, 2
    v_cmp_gt_u32 vcc, s51, v0
    s_mov_b64 s[54:55], vcc
    s_mov_b64 exec, vcc
    s_cbranch_execz L_k1_noidx
    buffer_load_dwordx4 v[{D}:{D+3}], v4, s[20:23], s52 offen {NT}
    buffer_load_dwordx4 v[{S}:{S+3}], v4, s[24:27], s52 offen {NT}
L_k1_noidx:
    s_mov_b64 exec, -1
    s_lshl_b32 s53, s3, 10
    s_lshl_b32 s56, s50, 5
    s_add_u32 s56, s56, s53
    v_mov_b32 v16, -1
    v_mov_b32 v17, -1
    v_mov_b32 v18, -1
    v_mov_b32 v19, -1
    v_mov_b32 v20, 0
    v_add_u32 v5, {K1_REC}, v4
    v_lshlrev_b32 v6, 2, v0
    v_add_u32 v6, {K1_HIST}, v6
    ds_write_b128 v5, v[16:19]
    ds_write_b128 v5, v[16:19] offset:16384
    v_cmp_gt_u32 vcc, 0x140, v0
    s_mov_b64 exec, vcc
    ds_write_b32 v6, v20
    s_mov_b64 exec, -1
    v_mov_b32 v20, 1
    v_mov_b32 v21, 0
    v_mov_b32 v22, 21400
    v_mov_b32 v23, -196
    v_mov_b32 v24, 5372
    v_mov_b32 v25, 208
    v_mov_b32 v26, 1342
    v_mov_b32 v27, {OPT.get('sbmask','7')}
    s_mov_b64 s[70:71], 0
    s_waitcnt lgkmcnt(0)
    s_barrier""")
    def edma():
        for i in range(7):
            if i==6: A("s_cmp_ge_u32 s3, 2\ns_cbranch_scc1 L_k1_dmadone")
            A(f"""s_mov_b32 m0, s53
            s_add_u32 s53, s53, 16384
            buffer_load_dwordx4 v3, s[28:31], s56 offen {NT} lds
            s_add_u32 s56, s56, 16384""")
        A("L_k1_dmadone:")
    if OPT.get('elate','1')=='1':
        A("s_waitcnt vmcnt(0)"); edma()
    else:
        edma(); A("s_waitcnt vmcnt(6)")
    stamp(1,0)
    A("""s_mov_b64 exec, s[54:55]
    s_cbranch_execz L_k1_b1""")
    B,RC,HA,SH,INC,OLD,T=28,32,36,40,44,52,60
    for j in range(4):
        A(f"""v_mul_u32_u24 v{T}, v{D+j}, v22
        v_mul_u32_u24 v{T+1}, v{S+j}, v26
        v_lshrrev_b32 v{B+j}, 22, v{T}
        v_lshrrev_b32 v{T+1}, 22, v{T+1}
        v_mad_i32_i24 v{T}, v{B+j}, v23, v{D+j}
        v_and_b32 v{T+1}, v27, v{T+1}
        v_lshlrev_b32 v{HA+j}, 3, v{B+j}
        v_lshlrev_b32 v{SH+j}, 3, v{T+1}
        v_add_u32 v{HA+j}, {K1_HIST}, v{HA+j}
        v_lshlrev_b64 v[{INC+2*j}:{INC+2*j+1}], v{SH+j}, v[20:21]
        v_mul_u32_u24 v{T+2}, v{T}, v24
        ds_add_rtn_u64 v[{OLD+2*j}:{OLD+2*j+1}], v{HA+j}, v[{INC+2*j}:{INC+2*j+1}]
        v_lshrrev_b32 v{T+2}, 16, v{T+2}
        v_mad_u32_u24 v{T+3}, v{T+2}, 52, 208
        v_mad_i32_i24 v{T}, v{T+2}, -12, v{T}
        v_lshrrev_b32 v{T+3}, 8, v{T+3}
        v_lshl_add_u32 v{T+2}, v{T+2}, 3, v{T+1}
        v_sub_u32 v{T}, v{T}, v{T+3}
        v_lshl_or_b32 v{T}, v{T}, 16, v{S+j}
        v_lshl_or_b32 v{RC+j}, v{T+2}, 24, v{T}""".replace("52, 208","52, v25"))
    A("""L_k1_b1:
    s_mov_b64 exec, -1
    s_waitcnt lgkmcnt(0)
    s_barrier""")
    stamp(2,0)
    FIN=8
    A(f"""s_mov_b64 exec, s[54:55]
    s_cbranch_execz L_k1_b2""")
    for j in range(4): A(f"ds_read_b64 v[{FIN+2*j}:{FIN+2*j+1}], v{HA+j}")
    A(f"v_lshlrev_b32 v{T+8}, 2, v0")
    for j in range(4):
        A(f"""v_lshrrev_b64 v[{OLD+2*j}:{OLD+2*j+1}], v{SH+j}, v[{OLD+2*j}:{OLD+2*j+1}]
        v_add_co_u32 v{INC+2*j}, vcc, -1, v{INC+2*j}
        v_and_b32 v{OLD+2*j}, 0xff, v{OLD+2*j}
        s_nop 0
        v_addc_co_u32 v{INC+2*j+1}, vcc, -1, v{INC+2*j+1}, vcc""")
    A("s_waitcnt lgkmcnt(0)")
    for j in range(4):
        A(f"""v_and_b32 v{T}, v{FIN+2*j}, v{INC+2*j}
        v_and_b32 v{T+1}, v{FIN+2*j+1}, v{INC+2*j+1}
        v_sad_u8 v{T}, v{T}, 0, v{OLD+2*j}
        v_sad_u8 v{T}, v{T+1}, 0, v{T}
        v_cmp_lt_u32 vcc, 63, v{T}
        v_min_u32 v{T}, 63, v{T}
        s_or_b64 s[70:71], s[70:71], vcc
        v_lshl_add_u32 v{T+1}, v{B+j}, 6, v{T}
        v_and_b32 v{T+2}, 15, v{T}
        v_lshrrev_b32 v{T+3}, 4, v{T}
        v_lshlrev_b32 v{T+1}, 1, v{T+1}
        v_lshl_add_u32 v{T+2}, v{T+2}, 2, v{T+3}
        v_add_u32 v{T+1}, {K1_PERM}, v{T+1}
        v_lshl_add_u32 v{T+2}, v{B+j}, 6, v{T+2}
        v_add_u32 v{T+9}, {j}, v{T+8}
        v_lshlrev_b32 v{T+2}, 2, v{T+2}
        ds_write_b16 v{T+1}, v{T+9}
        v_add_u32 v{T+2}, {K1_REC}, v{T+2}
        ds_write_b32 v{T+2}, v{RC+j}""")
    A(f"""s_mov_b64 exec, s[70:71]
    v_mov_b32 v{T}, {K1_OVF}
    ds_write_b32 v{T}, v20
L_k1_b2:
    s_mov_b64 exec, -1
    s_waitcnt lgkmcnt(0)
    s_barrier""")
    stamp(3,0)
    EI=8; EV=64
    A(f"""ds_read_b128 v[16:19], v5
    ds_read_b128 v[20:23], v5 offset:16384
    v_and_b32 v24, 7, v2
    s_lshl_b32 s57, s3, 6
    v_lshl_add_u32 v24, v24, 3, s57
    v_add_u32 v24, {K1_HIST}, v24
    ds_read_b64 v[26:27], v24
    v_lshrrev_b32 v28, 1, v2
    s_lshl_b32 s57, s3, 10
    s_add_u32 s57, s57, {K1_PERM}
    v_lshl_add_u32 v29, v28, 1, s57""")
    for i in range(8): A(f"ds_read_u16 v{EI+i}, v29 offset:{i*128}")
    A(f"""v_lshrrev_b32 v30, 4, v0
    v_and_b32 v31, 15, v0
    v_lshlrev_b32 v30, 15, v30
    v_lshl_or_b32 v30, v31, 4, v30
    s_lshl_b32 s58, s2, 8
    s_add_u32 s59, s58, 0x200000
    v_and_b32 v31, 1, v2
    v_lshlrev_b32 v31, 4, v31
    s_waitcnt lgkmcnt(0)
    buffer_store_dwordx4 v[16:19], v30, s[32:35], s58 offen {ST}
    buffer_store_dwordx4 v[20:23], v30, s[32:35], s59 offen {ST}
    v_sad_u8 v26, v26, 0, 0
    v_sad_u8 v26, v27, 0, v26
    v_add_u32 v26, {OPT.get('padrows','3')}, v26
    v_and_b32 v26, {~int(OPT.get('padrows','3'))}, v26
    v_min_u32 v26, 64, v26
    s_waitcnt vmcnt(2)
    s_barrier""")
    stamp(6,0)
    for i in range(8):
        A(f"v_lshl_add_u32 v{EI+i}, v{EI+i}, 5, v31\nds_read_b128 v[{EV+4*i}:{EV+4*i+3}], v{EI+i}\nv_readlane_b32 s{60+i}, v26, {i}")
    A(f"""s_lshl_b32 s57, s3, 21
    s_lshl_b32 s58, s2, 11
    s_add_u32 s57, s57, s58""")
    for i in range(8):
        A(f"""v_cmp_gt_u32 vcc, s{60+i}, v28
        s_mov_b64 exec, vcc
        s_waitcnt lgkmcnt({7-i})
        buffer_store_dwordx4 v[{EV+4*i}:{EV+4*i+3}], v3, s[36:39], s57 offen {ST}
        s_mov_b64 exec, -1
        s_add_u32 s57, s57, 0x40000""")
    A(f"s_sub_u32 s57, s57, 0x200000\nv_add_u32 v32, 32, v28")
    for i in range(8):
        L=A.label("k1long")
        A(f"""s_cmp_le_u32 s{60+i}, 32
        s_cbranch_scc1 {L}
        ds_read_u16 v33, v29 offset:{i*128+64}
        s_waitcnt lgkmcnt(0)
        v_lshl_add_u32 v33, v33, 5, v31
        ds_read_b128 v[36:39], v33
        v_cmp_gt_u32 vcc, s{60+i}, v32
        s_mov_b64 exec, vcc
        s_waitcnt lgkmcnt(0)
        buffer_store_dwordx4 v[36:39], v3, s[36:39], s57 offen offset:1024 {ST}
        s_mov_b64 exec, -1
        s_nop 0
{L}:
        s_add_u32 s57, s57, 0x40000""")
    A("s_branch L_k1_flag")
    A("L_k1_gemm:")
    srd(20,4,5,0,N*256)
    srd(24,16,17,0,272*256)
    srd(28,14,15,0,128*256)
    srd(32,12,13,0,128*256)
    srd(36,18,19,TAB_OFF,HS)
    srd(40,18,19,TAB_OFF+HS,HS)
    XR=8; WL=24; XA=40; ACC=56; BF=8
    A(f"""s_sub_u32 s50, s2, 128
    s_lshl_b32 s51, s3, 7
    s_add_u32 s51, s51, s50
    v_mov_b32 v6, 0
    v_mov_b32 v7, {K1_OVF}
    ds_write_b32 v7, v6
    s_cmp_ge_u32 s51, 1568
    s_cbranch_scc1 L_k1_nox
    s_lshl_b32 s52, s51, 12
    v_lshrrev_b32 v5, 2, v2
    v_and_b32 v6, 3, v2
    v_lshlrev_b32 v5, 8, v5
    v_lshl_or_b32 v5, v6, 4, v5""")
    for ks in range(4): A(f"buffer_load_dwordx4 v[{XR+4*ks}:{XR+4*ks+3}], v5, s[20:23], s52 offen offset:{ks*64} {NT}")
    A(f"""L_k1_nox:
    s_mov_b32 s53, {128*256}
    s_mov_b32 s54, {128*256+16384}
    s_mov_b32 s55, 16384
    buffer_load_dwordx4 v[{WL}:{WL+3}], v4, s[24:27], s53 offen
    buffer_load_dwordx4 v[{WL+4}:{WL+7}], v4, s[24:27], s54 offen
    buffer_load_dwordx4 v[{WL+8}:{WL+11}], v4, s[28:31], 0 offen
    buffer_load_dwordx4 v[{WL+12}:{WL+15}], v4, s[28:31], s55 offen
    v_lshrrev_b32 v5, 4, v0
    v_lshrrev_b32 v6, 7, v0
    v_mul_u32_u24 v5, {WROW}, v5
    v_lshl_add_u32 v5, v6, 7, v5
    v_bfe_u32 v6, v0, 3, 1
    v_lshl_add_u32 v5, v6, 7, v5
    v_and_b32 v6, 7, v0
    v_lshl_add_u32 v5, v6, 2, v5
    s_mov_b32 s56, 0x05040100
    s_mov_b32 s57, 0x07060302""")
    A(f"""s_cmp_lg_u32 s3, 15
    s_cbranch_scc1 L_k1_noimg
    s_cmp_ge_u32 s50, 72
    s_cbranch_scc1 L_k1_noimg
    v_and_b32 v6, 15, v2
    v_lshrrev_b32 v7, 4, v2
    v_lshlrev_b32 v6, 3, v6
    s_cmp_ge_u32 s50, 64
    s_cbranch_scc1 L_k1_cimg
    s_bfe_u32 s58, s50, 0x10005
    s_bfe_u32 s59, s50, 0x20002
    s_and_b32 s60, s50, 3
    s_lshl_b32 s58, s58, 7
    s_lshl_b32 s59, s59, 1
    s_lshl_b32 s60, s60, 13
    s_add_u32 s58, s58, s59
    s_add_u32 s58, s58, s60
    v_lshl_add_u32 v6, v7, 11, v6
    s_bitcmp1_b32 s50, 4
    s_cbranch_scc1 L_k1_uimg""")
    for i in range(8): A(f"buffer_load_ushort v{64+i}, v6, s[24:27], s58 offen offset:{i*256}")
    A("s_branch L_k1_imgst\nL_k1_uimg:")
    for i in range(8): A(f"buffer_load_ushort v{64+i}, v6, s[32:35], s58 offen offset:{i*256}")
    A(f"""L_k1_imgst:
    s_lshl_b32 s58, s50, 10
    s_waitcnt vmcnt(0)
    v_lshl_or_b32 v56, v65, 16, v64
    v_lshl_or_b32 v57, v67, 16, v66
    v_lshl_or_b32 v58, v69, 16, v68
    v_lshl_or_b32 v59, v71, 16, v70
    buffer_store_dwordx4 v[56:59], v3, s[44:47], s58 offen
    s_branch L_k1_noimg
L_k1_cimg:
    s_sub_u32 s61, s50, 64
    s_lshr_b32 s58, s61, 2
    s_and_b32 s59, s61, 3
    s_lshl_b32 s58, s58, 7
    s_lshl_b32 s59, s59, 1
    s_add_u32 s58, s58, s59
    s_add_u32 s58, s58, {256*256}
    v_lshl_add_u32 v6, v7, 10, v6""")
    for i in range(4): A(f"buffer_load_ushort v{56+i}, v6, s[24:27], s58 offen offset:{i*256}")
    A(f"""s_mov_b32 s59, {hex(LOG2E_NEG)}
    s_lshl_b32 s58, s61, 9
    s_add_u32 s58, s58, {CIMG}
    v_lshlrev_b32 v7, 3, v2
    s_waitcnt vmcnt(0)""")
    for i in range(4): A(f"v_lshlrev_b32 v{56+i}, 16, v{56+i}\nv_mul_f32 v{56+i}, s59, v{56+i}")
    A(f"""v_cvt_pk_bf16_f32 v56, v56, v57
    v_cvt_pk_bf16_f32 v57, v58, v59
    buffer_store_dwordx2 v[56:57], v7, s[44:47], s58 offen
L_k1_noimg:""")
    for u in range(4):
        w=WL+4*u; base=(u&1)*woff(64)+(u>>1)*256
        A(f"""s_waitcnt vmcnt({3-u})
        v_perm_b32 v60, v{w+2}, v{w}, s56
        v_perm_b32 v61, v{w+2}, v{w}, s57
        v_perm_b32 v62, v{w+3}, v{w+1}, s56
        v_perm_b32 v63, v{w+3}, v{w+1}, s57
        ds_write_b32 v5, v60 offset:{base}
        ds_write_b32 v5, v61 offset:{base+32}
        ds_write_b32 v5, v62 offset:{base+64}
        ds_write_b32 v5, v63 offset:{base+96}""")
    A(f"""v_and_b32 v6, 15, v2
    v_lshrrev_b32 v7, 4, v2
    v_lshl_add_u32 v60, v6, 2, v7
    v_lshlrev_b32 v60, 2, v60
    s_cmp_ge_u32 s51, 1568
    s_cbranch_scc1 L_k1_nobp""")
    for i in range(16): A(f"ds_bpermute_b32 v{XA+i}, v60, v{XR+i}")
    A(f"""L_k1_nobp:
    v_bfe_u32 v61, v2, 2, 2
    v_lshl_add_u32 v61, v7, 3, v61
    v_mul_u32_u24 v61, {WROW}, v61
    v_lshl_add_u32 v61, v7, 7, v61
    v_and_b32 v62, 3, v2
    v_lshl_add_u32 v5, v62, 3, v61
    s_waitcnt lgkmcnt(0)
    s_barrier""")
    stamp(1,0)
    A("""s_cmp_ge_u32 s51, 1568
    s_cbranch_scc1 L_k1_gdone""")
    seq=[(h,t,mat,ks) for h in range(2) for t in range(4) for mat in range(2) for ks in range(4)]
    def rd(n):
        h,t,mat,ks=seq[n]; o=woff(32*ks)+mat*256+h*128+t*32; b=BF+4*(n%8)
        A(f"ds_read_b64_tr_b16 v[{b}:{b+1}], v5 offset:{o}\nds_read_b64_tr_b16 v[{b+2}:{b+3}], v5 offset:{o+4*WROW}")
    def acc(h,t,mat): return ACC+((h*4+t)*2+mat)*4
    PF=6
    for n in range(PF): rd(n)
    for n in range(64):
        h,t,mat,ks=seq[n]; b=BF+4*(n%8); a=acc(h,t,mat)
        out=min(63-n,PF-1)
        A(f"s_waitcnt lgkmcnt({2*out})")
        A(f"v_mfma_f32_16x16x32_bf16 v[{a}:{a+3}], v[{XA+4*ks}:{XA+4*ks+3}], v[{b}:{b+3}], {'0' if ks==0 else f'v[{a}:{a+3}]'}")
        if n+PF<64: rd(n+PF)
    stamp(2,0)
    A(f"""v_mov_b32 v8, {hex(LOG2E_NEG)}
    v_mov_b32 v9, 0x7fff
    v_mov_b32 v10, 0xffff0000
    v_mov_b32 v11, 0
    v_lshlrev_b32 v12, 10, v7
    v_lshl_or_b32 v12, v6, 4, v12
    s_nop 3""")
    for h in range(2):
        for r in range(4):
            o=16+4*((h*4+r)%2); tt=24
            for t in range(4): A(f"v_mul_f32 v{tt+t}, v8, v{acc(h,t,0)+r}")
            A(f"v_max3_f32 v11, abs(v{tt}), abs(v{tt+1}), v11\nv_max3_f32 v11, abs(v{tt+2}), abs(v{tt+3}), v11")
            for t in range(4): A(f"v_exp_f32 v{tt+t}, v{tt+t}")
            A("s_nop 0")
            for t in range(4): A(f"v_cvt_pk_f16_f32 v{tt+t}, v{tt+t}, 0")
            for t in range(4): A(f"v_xad_u32 v{tt+4+t}, v{tt+t}, v9, v{acc(h,t,1)+r}")
            for t in range(4): A(f"v_bfi_b32 v{o+t}, v10, v{tt+4+t}, v{tt+t}")
            A(f"buffer_store_dwordx4 v[{o}:{o+3}], v12, s[{36+4*h}:{39+4*h}], s52 offen offset:{r*256} {ST}")
    A(f"""v_mov_b32 v13, 0x41600000
    v_mov_b32 v14, 1
    v_mov_b32 v15, {K1_OVF}
    v_cmp_nle_f32 vcc, v11, v13""")
    A(f"""s_mov_b64 exec, vcc
    ds_write_b32 v15, v14
    s_mov_b64 exec, -1
L_k1_gdone:
    s_waitcnt lgkmcnt(0)
    s_barrier
L_k1_flag:
    s_cmp_lg_u32 s3, 0
    s_cbranch_scc1 L_k1_fin
    v_mov_b32 v15, {K1_OVF}
    ds_read_b32 v14, v15
    s_lshl_b32 s58, s2, 2
    s_add_u32 s58, s58, {FLAGO}
    v_mov_b32 v15, 0
    s_mov_b64 exec, 1
    s_waitcnt lgkmcnt(0)
    buffer_store_dword v14, v15, s[44:47], s58 offen
    s_mov_b64 exec, -1
L_k1_fin:""")
    if STAMP:
        stamp(4,0)
        A("s_waitcnt vmcnt(0)")
        stamp(5,0)
        stamp_flush()
    if OPT.get('k1delay'):
        A(f"""s_memrealtime s[60:61]
        s_waitcnt lgkmcnt(0)
        s_add_u32 s62, s60, {int(OPT['k1delay'])*100}
L_k1_spin:
        s_memrealtime s[60:61]
        s_waitcnt lgkmcnt(0)
        s_cmp_lt_u32 s60, s62
        s_cbranch_scc1 L_k1_spin""")
    A("L_k1_end:\ns_endpgm")

K2_L1=0; K2_L2=32768; K2_W=65536; K2_ER=98304; K2_OH=K2_ER+16384; K2_HIST=K2_OH+1024; K2_LDS=K2_HIST+512

def k2():
    L=0; D=32; EE=48; ACC=64; GB=80; A0=96; A1=100; S=104; OA0,OA1,SA0,SA1=108,109,110,111
    cJ16,cEA,cG8O,cS,cH16,pL1,pLm,pLs,pLe,LANE=112,113,114,115,116,117,118,119,120,121
    LE,TID,LM0,LM1,LS0,LS1=122,123,124,125,126,127
    L16=LE
    A(".p2align 8\nmain_kernel:")
    A(f"""s_cmp_ge_u32 s2, 256
    s_cbranch_scc1 L_k2_end
    s_load_dwordx2 s[18:19], s[0:1], 72
    s_load_dwordx2 s[4:5], s[0:1], 0
    s_load_dwordx2 s[6:7], s[0:1], 56
    v_mov_b32 v{TID}, v0
    v_lshrrev_b32 v1, 6, v0
    v_and_b32 v{LANE}, 63, v0
    v_readfirstlane_b32 s3, v1
    v_lshlrev_b32 v{L16}, 4, v{LANE}
    v_lshlrev_b32 v4, 4, v0
    s_bfe_u32 s40, s2, 0x10002
    s_lshr_b32 s41, s2, 3
    s_and_b32 s42, s2, 3
    s_lshl_b32 s41, s41, 2
    s_add_u32 s41, s41, s42
    s_lshl_b32 s45, s41, 15
    s_add_u32 s46, s45, 16384
    s_mov_b32 s10, 0x400000
    s_mov_b32 s11, 0x20000
    s_waitcnt lgkmcnt(0)
    s_add_u32 s8, s18, {hex(REC_OFF)}
    s_addc_u32 s9, s19, 0""")
    R=0; RK=8; HA=16; XR=32
    A(f"""buffer_load_dwordx4 v[{R}:{R+3}], v4, s[8:11], s45 offen {NT}
    buffer_load_dwordx4 v[{R+4}:{R+7}], v4, s[8:11], s46 offen {NT}""")
    stamp_init(1,3,18,19)
    stamp(0,1)
    srd(24,18,19,MISC_OFF,MISC_SZ)
    A(f"""s_mov_b32 s45, {FLAGO}
    buffer_load_dwordx4 v[24:27], v{L16}, s[24:27], s45 offen""")
    A(f"""s_add_u32 s42, s3, 4
    s_mul_i32 s42, s42, 52
    s_lshr_b32 s42, s42, 8
    s_add_u32 s43, s3, 5
    s_mul_i32 s43, s43, 52
    s_lshr_b32 s43, s43, 8
    s_sub_u32 s43, s43, s42
    s_add_u32 s43, s43, 12
    s_mul_i32 s44, s3, 12
    s_add_u32 s42, s42, s44
    s_mul_i32 s44, s41, {BS}
    s_add_u32 s44, s44, s42""")
    srd(20,4,5,0,N*256)
    A(f"""s_lshl_b32 s45, s41, 18
    s_add_u32 s12, s18, s45
    s_addc_u32 s13, s19, 0
    s_add_u32 s12, s12, {hex(EP_OFF)}
    s_addc_u32 s13, s13, 0
    s_mov_b32 s14, 0x40000
    s_mov_b32 s15, 0x20000
    s_mul_i32 s45, s40, {HS}
    s_add_u32 s16, s18, s45
    s_addc_u32 s17, s19, 0
    s_mov_b32 s18, {HS}
    s_mov_b32 s19, 0x20000""")
    srd(28,6,7,0,N*256)
    A(f"""v_lshrrev_b32 v28, 3, v{TID}
    v_and_b32 v29, 7, v{TID}
    v_lshrrev_b32 v30, 1, v28
    v_and_b32 v28, 1, v28
    v_lshlrev_b32 v28, 4, v28
    v_mov_b32 v31, 0x3f80
    v_lshlrev_b32 v31, v28, v31
    v_cmp_eq_u32 vcc, v29, v30
    v_lshlrev_b32 v29, 2, v{TID}
    v_add_u32 v29, {K2_OH}, v29
    v_cndmask_b32 v31, 0, v31, vcc
    v_cmp_gt_u32 vcc, 0x180, v{TID}
    s_mov_b64 exec, vcc
    ds_write_b32 v29, v31
    s_mov_b64 exec, -1
    v_lshrrev_b32 v28, 2, v{LANE}
    v_and_b32 v29, 3, v{LANE}
    v_cmp_gt_u32 s[50:51], s43, v28
    v_lshlrev_b32 v28, 8, v28
    v_lshl_or_b32 v28, v29, 4, v28
    v_lshlrev_b32 v30, 3, v{LANE}
    s_lshl_b32 s45, s44, 8
    s_lshl_b32 s46, s40, 11
    s_add_u32 s46, s46, {CIMG}
    s_lshl_b32 s47, s3, 11
    s_add_u32 m0, s47, {K2_W}
    s_lshl_b32 s48, s40, 15
    s_add_u32 s47, s47, s48""")
    for i in range(16): A(f"v_mov_b32 v{XR+i}, 0")
    A(f"""s_waitcnt lgkmcnt(0)
    s_barrier
    s_mov_b64 exec, s[50:51]""")
    for ks in range(4): A(f"buffer_load_dwordx4 v[{XR+4*ks}:{XR+4*ks+3}], v28, s[20:23], s45 offen offset:{ks*64} {NT}")
    A("s_mov_b64 exec, -1")
    for t in range(4): A(f"buffer_load_dwordx2 v[{GB+4*t}:{GB+4*t+1}], v30, s[24:27], s46 offen offset:{t*512}")
    A(f"""buffer_load_dwordx4 v{L16}, s[24:27], s47 offen lds
    buffer_load_dwordx4 v{L16}, s[24:27], s47 offen offset:1024 lds
    v_and_b32 v28, 15, v{LANE}
    v_lshrrev_b32 v29, 4, v{LANE}
    v_lshlrev_b32 v{cJ16}, 4, v28
    v_lshlrev_b32 v30, 3, v29
    v_add_u32 v{cG8O}, {K2_OH}, v30
    v_lshl_add_u32 v30, v28, 5, v30
    s_lshl_b32 s47, s3, 10
    s_add_u32 s49, s47, {K2_ER}
    v_add_u32 v{cEA}, s49, v30
    v_and_b32 v30, 3, v{LANE}
    v_lshlrev_b32 v30, 3, v30
    v_add_u32 v{cS}, {K2_OH}, v30
    v_and_b32 v30, 1, v{LANE}
    v_lshlrev_b32 v{cH16}, 4, v30
    s_lshl_b32 s47, s3, 11
    v_lshl_add_u32 v{pL1}, v29, 4, s47
    s_add_u32 s48, s47, {K2_L2}
    v_lshl_add_u32 v{pLm}, v28, 2, s48
    v_and_b32 v30, -4, v{LANE}
    v_add_u32 v{pLs}, s48, v30
    v_lshrrev_b32 v30, 1, v{LANE}
    v_lshl_add_u32 v{pLe}, v30, 2, s48
    v_lshrrev_b32 v30, 4, v{TID}
    v_lshl_add_u32 v29, v30, 6, v28
    v_mov_b32 v31, 1
    v_mov_b32 v30, {OPT.get('srcmask','0x7fff')}
    v_mov_b32 v28, 0xf0000
    s_waitcnt vmcnt(10)""")
    stamp(1,1)
    A(f"""v_or_b32 v24, v24, v25
    v_or3_b32 v24, v24, v26, v27
    v_cmp_ne_u32 vcc, 0, v24
    s_cmp_lg_u64 vcc, 0
    s_cbranch_scc1 L_k2_fallback""")
    MK=52; O1=48; O2=56
    order=[0,4,1,5,2,6,3,7]
    for j in order:
        Lb=A.label("k2h")
        A(f"v_cmp_le_i32 s[{MK+2*j}:{MK+2*j+1}], 0, v{R+j}\ns_mov_b64 exec, s[{MK+2*j}:{MK+2*j+1}]")
        if j&3>=2: A(f"s_cbranch_execz {Lb}")
        A(f"""v_lshrrev_b32 v{HA+j}, 22, v{R+j}
        v_and_b32 v{HA+j}, 0x1fc, v{HA+j}
        v_add_u32 v24, {K2_HIST}, v{HA+j}
        ds_add_rtn_u32 v{RK+j}, v24, v31
        v_and_b32 v{O1+j}, v30, v{R+j}
        v_add_u32 v{O2+j}, {16*(j&3)+4096*(j>>2)}, v29
        v_lshlrev_b32 v{O1+j}, 8, v{O1+j}
        v_and_or_b32 v{O2+j}, v{R+j}, v28, v{O2+j}""")
        if j&3>=2: A(f"{Lb}:")
        A("s_mov_b64 exec, -1")
    A("s_waitcnt lgkmcnt(0)")
    for j in order:
        Lb=A.label("k2s")
        A(f"s_mov_b64 exec, s[{MK+2*j}:{MK+2*j+1}]")
        if j&3>=2: A(f"s_cbranch_execz {Lb}")
        A(f"""v_min_u32 v{RK+j}, 63, v{RK+j}
        v_lshlrev_b32 v{RK+j}, 2, v{RK+j}
        v_lshl_add_u32 v{RK+j}, v{HA+j}, 6, v{RK+j}
        ds_write2st64_b32 v{RK+j}, v{O1+j}, v{O2+j} offset0:0 offset1:128""")
        if j&3>=2: A(f"{Lb}:")
    A(f"""s_mov_b64 exec, -1
    v_lshlrev_b32 v25, 3, v{LANE}
    v_add_u32 v25, {K2_HIST}, v25
    v_lshl_add_u32 v26, v{LANE}, 2, s47
    s_lshl_b32 s45, s3, 2
    s_waitcnt lgkmcnt(0)
    s_barrier""")
    stamp(2,1)
    H0,H1=0,1; CP=2
    A(f"ds_read_b64 v[{H0}:{H1}], v25")
    for b in range(1,8): A(f"ds_read2st64_b32 v[{CP+2*b}:{CP+2*b+1}], v26 offset0:{b} offset1:{128+b}")
    A(f"""s_waitcnt lgkmcnt(7)
    v_max_u32 v24, v{H0}, v{H1}
    v_cmp_lt_u32 vcc, 64, v24""")
    for i in range(4):
        A(f"v_readlane_b32 s{72+2*i}, v{H0}, s45\nv_readlane_b32 s{73+2*i}, v{H1}, s45\ns_add_u32 s45, s45, 1")
    A(f"""s_cmp_lg_u64 vcc, 0
    s_cbranch_scc1 L_k2_fallback
    s_mov_b32 s68, s72
    s_waitcnt lgkmcnt(0)""")
    for b in range(1,8):
        A(f"""v_cmp_gt_u32 vcc, s{72+b}, v{LANE}
        v_lshl_add_u32 v24, s68, 2, v26
        s_add_u32 s68, s68, s{72+b}
        s_mov_b64 exec, vcc
        ds_write2st64_b32 v24, v{CP+2*b}, v{CP+2*b+1} offset0:0 offset1:128
        s_mov_b64 exec, -1""")
    A(f"""s_sub_u32 s46, 0, s68
    s_and_b32 s46, s46, 31
    v_cmp_gt_u32 vcc, s46, v{LANE}
    v_lshl_add_u32 v24, s68, 2, v26
    v_mov_b32 v28, {N<<8}
    v_mov_b32 v29, 0x10ffff
    s_mov_b64 exec, vcc
    ds_write2st64_b32 v24, v28, v29 offset0:0 offset1:128
    s_mov_b64 exec, -1
    s_add_u32 s68, s68, 15
    s_lshr_b32 s68, s68, 4
    s_mov_b32 m0, s49""")
    XA=96
    G=A0
    def listreads(G):
        A(f"""ds_read_b32 v{LE}, v{pLe}
        ds_read_b128 v[{G}:{G+3}], v{pL1}
        ds_read_b128 v[{G+4}:{G+7}], v{pL1} offset:64
        ds_read_b32 v{LM0}, v{pLm}
        ds_read_b32 v{LM1}, v{pLm} offset:64
        ds_read_b32 v{LS0}, v{pLs}
        ds_read_b32 v{LS1}, v{pLs} offset:64
        v_add_u32 v{pL1}, 128, v{pL1}
        v_add_u32 v{pLm}, 128, v{pLm}
        v_add_u32 v{pLs}, 128, v{pLs}
        v_add_u32 v{pLe}, 128, v{pLe}""")
    def edma():
        A(f"v_mad_u32_u16 v{LE}, v{LE}, 32, v{cH16}\nbuffer_load_dwordx4 v{LE}, s[12:15], 0 offen lds")
    def gathers(Gr, lo=0, hi=8):
        for i in range(lo,hi):
            A(f"v_or_b32 v{Gr+i}, v{Gr+i}, v{cJ16}")
            if not OPT.get('nogather'): A(f"buffer_load_dwordx4 v[{L+4*i}:{L+4*i+3}], v{Gr+i}, s[16:19], 0 offen")
    def addrs():
        A(f"""v_mad_u32_u16 v{OA0}, v{LM0}, 32, v{cG8O} op_sel:[1,0,0,0]
        v_mad_u32_u16 v{OA1}, v{LM1}, 32, v{cG8O} op_sel:[1,0,0,0]
        v_mad_u32_u16 v{SA0}, v{LS0}, 32, v{cS} op_sel:[1,0,0,0]
        v_mad_u32_u16 v{SA1}, v{LS1}, 32, v{cS} op_sel:[1,0,0,0]""")
    A(f"v_lshlrev_b32 v{EE+8}, 4, v{LANE}\nv_add_u32 v{EE+8}, {K2_W}, v{EE+8}")
    listreads(EE)
    A(f"""v_and_b32 v{EE+9}, 15, v{LANE}
    v_lshrrev_b32 v{EE+10}, 4, v{LANE}
    v_lshl_add_u32 v{EE+9}, v{EE+9}, 2, v{EE+10}
    v_lshlrev_b32 v{EE+9}, 2, v{EE+9}
    s_waitcnt lgkmcnt(4)""")
    edma()
    gathers(EE)
    stamp(3,1)
    A("s_waitcnt vmcnt(9)")
    for i in range(16): A(f"ds_bpermute_b32 v{XA+i}, v{EE+9}, v{XR+i}")
    A(f"v_mov_b32 v{TID}, v{EE+8}\ns_waitcnt lgkmcnt(0)\ns_barrier")
    BFR=32
    seq=[(mat,t,ks) for mat in range(2) for t in range(4) for ks in range(4)]
    def rd(n):
        mat,t,ks=seq[n]; b=BFR+4*(n%8)
        A(f"ds_read_b128 v[{b}:{b+3}], v{TID} offset:{n*1024}")
    PF=6
    for n in range(PF): rd(n)
    for n in range(32):
        mat,t,ks=seq[n]; b=BFR+4*(n%8); a=ACC+4*t
        if n==16:
            A(f"s_mov_b32 s45, {hex(LOG2E_NEG)}\ns_nop 6")
            for tt in range(4):
                for r in range(4): A(f"v_mul_f32 v{ACC+4*tt+r}, s45, v{ACC+4*tt+r}")
                A(f"v_cvt_pk_bf16_f32 v{GB+4*tt+2}, v{ACC+4*tt}, v{ACC+4*tt+1}\nv_cvt_pk_bf16_f32 v{GB+4*tt+3}, v{ACC+4*tt+2}, v{ACC+4*tt+3}")
        out=min(31-n,PF-1)
        A(f"s_waitcnt lgkmcnt({out})")
        A(f"v_mfma_f32_16x16x32_bf16 v[{a}:{a+3}], v[{XA+4*ks}:{XA+4*ks+3}], v[{b}:{b+3}], {'0' if ks==0 else f'v[{a}:{a+3}]'}")
        if n+PF<32: rd(n+PF)
    stamp(4,1)
    if STAMP: A('s_memtime s[100:101]\ns_waitcnt lgkmcnt(0)')
    if OPT.get('reg'):
        A('s_mov_b32 s92, s68\ns_mov_b32 s93, s94\ns_getreg_b32 s91, hwreg(HW_REG_HW_ID)')
    def gate(Ar):
        if OPT.get('nomfma'): return
        for t in range(4): A(f"v_mfma_f32_16x16x32_bf16 v[{D+4*t}:{D+4*t+3}], v[{Ar}:{Ar+3}], v[{GB+4*t}:{GB+4*t+3}], 0")
    def exps():
        if OPT.get('nocomp'): return
        for t in range(4):
            for r in range(4): A(f"v_exp_f32 v{EE+4*r+t}, v{D+4*t+r}")
    def rest(q):
        if OPT.get('nocomp'): return
        Lq=L+16*q
        order=[(r,t) for t in range(4) for r in range(4)]
        for r,t in order: A(f"v_fma_mix_f32 v{EE+4*r+t}, v{Lq+4*r+t}, v{EE+4*r+t}, 1.0 op_sel_hi:[1,0,0]")
        for r,t in order: A(f"v_rcp_f32 v{EE+4*r+t}, v{EE+4*r+t}")
        for t in (0,2):
            for r in range(4): A(f"v_pk_mul_f32 v[{EE+4*r+t}:{EE+4*r+t+1}], v[{EE+4*r+t}:{EE+4*r+t+1}], v[{Lq+4*r+t}:{Lq+4*r+t+1}]")
        for t in range(4):
            for p in range(2): A(f"v_cvt_pk_bf16_f32 v{L+4*t+2*q+p}, v{EE+8*p+t}, v{EE+8*p+4+t}")
    A("""s_cmp_le_i32 s68, 0
    s_cbranch_scc1 L_k2_done
.p2align 6
L_k2_loop:""")
    addrs()
    if OPT.get('prio','1')=='1':
        A("""s_cmp_ge_i32 s68, 11
        s_cbranch_scc1 L_k2_p3
        s_cmp_ge_i32 s68, 7
        s_cbranch_scc1 L_k2_p2
        s_cmp_ge_i32 s68, 3
        s_cbranch_scc1 L_k2_p1
        s_setprio 0
        s_branch L_k2_pd
L_k2_p3:
        s_setprio 3
        s_branch L_k2_pd
L_k2_p2:
        s_setprio 2
        s_branch L_k2_pd
L_k2_p1:
        s_setprio 1
L_k2_pd:""")
    A(f"""ds_read_b64 v[{A0+2}:{A0+3}], v{OA0}
    ds_read_b64 v[{A1+2}:{A1+3}], v{OA1}
    ds_read_b64_tr_b16 v[{S}:{S+1}], v{SA0}
    ds_read_b64_tr_b16 v[{S+2}:{S+3}], v{SA1}
    s_sub_u32 s68, s68, 2
    s_waitcnt vmcnt(8)
    ds_read_b64 v[{A0}:{A0+1}], v{cEA}
    ds_read_b64 v[{A1}:{A1+1}], v{cEA} offset:512
    s_waitcnt lgkmcnt(1)""")
    gate(A0)
    A("s_nop 4")
    exps()
    A("s_waitcnt lgkmcnt(0)")
    gate(A1)
    listreads(G)
    A("s_waitcnt vmcnt(4)")
    rest(0)
    A("s_waitcnt lgkmcnt(0)")
    edma()
    A("s_cmp_lt_i32 s68, 0\ns_cbranch_scc1 L_k2_half")
    exps()
    A("s_waitcnt vmcnt(1)")
    rest(1)
    A("s_nop 0\nL_k2_half:\ns_nop 0")
    for t in range(0 if OPT.get('nomfma') else 4): A(f"v_mfma_f32_16x16x32_bf16 v[{ACC+4*t}:{ACC+4*t+3}], v[{S}:{S+3}], v[{L+4*t}:{L+4*t+3}], v[{ACC+4*t}:{ACC+4*t+3}]")
    A("s_cmp_le_i32 s68, 0\ns_cbranch_scc1 L_k2_done")
    gathers(G)
    A("s_branch L_k2_loop")
    A("L_k2_done:\ns_waitcnt vmcnt(0)")
    stamp(5,1)
    if STAMP: A('s_memtime s[88:89]\ns_waitcnt lgkmcnt(0)\ns_sub_u32 s97, s88, s100')
    A(f"""v_lshrrev_b32 v0, 4, v{LANE}
    v_lshlrev_b32 v0, 2, v0
    v_add_u32 v1, s44, v0
    v_lshlrev_b32 v1, 8, v1
    v_lshrrev_b32 v2, 1, v{cJ16}
    s_lshl_b32 s45, s40, 7
    v_add3_u32 v1, v1, v2, s45
    v_mov_b32 v3, {hex(LOG2E_NEG)}
    v_mov_b32 v4, 0x80000000""")
    for r in range(4):
        for t in range(4): A(f"v_mul_f32 v{8+t}, v3, v{ACC+4*t+r}")
        for t in range(4): A(f"v_exp_f32 v{8+t}, v{8+t}")
        A(f"v_add_u32 v5, {r}, v0\nv_cmp_gt_u32 vcc, s43, v5")
        for t in range(4): A(f"v_add_f32 v{8+t}, 1.0, v{8+t}")
        for t in range(4): A(f"v_rcp_f32 v{8+t}, v{8+t}")
        A(f"v_cndmask_b32 v{16+r}, v4, v1, vcc")
        for t in range(4): A(f"v_mul_f32 v{8+t}, v{8+t}, v{ACC+4*t+r}")
        A(f"""v_cvt_pk_bf16_f32 v{20+2*r}, v8, v9
        v_cvt_pk_bf16_f32 v{21+2*r}, v10, v11
        buffer_store_dwordx2 v[{20+2*r}:{21+2*r}], v{16+r}, s[28:31], 0 offen offset:{r*256}""")
    if STAMP:
        A("s_waitcnt vmcnt(0)")
        stamp(6,1)
        stamp_flush(1)
    A("s_endpgm")
    fallback()
    A("L_k2_end:\ns_endpgm")

def fallback():
    LANE=121; TID=123
    A(f"""L_k2_fallback:
    s_mov_b64 exec, -1
    s_load_dwordx2 s[50:51], s[0:1], 8
    s_load_dwordx4 s[52:55], s[0:1], 16
    s_load_dwordx4 s[56:59], s[0:1], 32
    s_load_dwordx2 s[60:61], s[0:1], 48
    s_waitcnt vmcnt(0) lgkmcnt(0)
    s_barrier""")
    srd(8,50,51,0,E*32)
    srd(12,52,53,0,E*4)
    srd(16,54,55,0,E*4)
    srd(24,56,57,0,128*256)
    srd(32,58,59,0,128*256)
    srd(36,60,61,0,272*256)
    A(f"""v_mov_b32 v0, 0
    v_mov_b32 v1, 0
    v_mov_b32 v2, 0
    v_mov_b32 v3, 0
    v_lshlrev_b32 v4, 4, v{TID}
    ds_write_b128 v4, v[0:3]
    ds_write_b128 v4, v[0:3] offset:16384
    ds_write_b128 v4, v[0:3] offset:32768
    ds_write_b128 v4, v[0:3] offset:49152
    s_lshl_b32 s45, s40, 7
    v_lshl_add_u32 v5, v{LANE}, 1, s45
    v_lshlrev_b32 v6, 2, v{LANE}
    s_mul_i32 s46, s41, {BS}
    s_lshl_b32 s47, s3, 6
    s_waitcnt lgkmcnt(0)
    s_barrier
L_fb_chunk:
    s_cmp_ge_u32 s47, {E}
    s_cbranch_scc1 L_fb_fin
    s_lshl_b32 s48, s47, 2
    buffer_load_dword v7, v6, s[16:19], s48 offen
    buffer_load_dword v8, v6, s[12:15], s48 offen
    s_waitcnt vmcnt(0)
    v_subrev_u32 v9, s46, v7
    v_cmp_gt_u32 s[62:63], v10, v9
    """.replace("v_cmp_gt_u32 s[62:63], v10, v9",f"v_mov_b32 v10, {BS}\nv_cmp_gt_u32 s[62:63], v10, v9")+f"""
L_fb_edge:
    s_cmp_eq_u64 s[62:63], 0
    s_cbranch_scc1 L_fb_next
    s_ff1_i32_b64 s49, s[62:63]
    s_bitset0_b64 s[62:63], s49
    v_readlane_b32 s64, v7, s49
    v_readlane_b32 s65, v8, s49
    s_add_u32 s66, s47, s49
    s_lshl_b32 s67, s64, 8
    s_lshl_b32 s68, s65, 8
    s_lshl_b32 s66, s66, 5
    s_nop 2
    buffer_load_dword v11, v6, s[20:23], s67 offen
    buffer_load_dword v12, v6, s[20:23], s68 offen
    v_and_b32 v14, 28, v6
    buffer_load_dword v13, v14, s[8:11], s66 offen
    v_mov_b32 v15, 0
    v_mov_b32 v16, 0
    s_mov_b32 s69, 0
    s_waitcnt vmcnt(0)
L_fb_k:
    s_lshl_b32 s70, s69, 9
    s_add_u32 s71, s70, {128*256}
    buffer_load_ushort v17, v5, s[36:39], s70 offen
    buffer_load_ushort v18, v5, s[36:39], s70 offen offset:256
    buffer_load_ushort v19, v5, s[36:39], s71 offen
    buffer_load_ushort v20, v5, s[36:39], s71 offen offset:256
    buffer_load_ushort v21, v5, s[32:35], s70 offen
    buffer_load_ushort v22, v5, s[32:35], s70 offen offset:256
    v_readlane_b32 s72, v11, s69
    v_readlane_b32 s73, v12, s69
    s_lshl_b32 s74, s72, 16
    s_and_b32 s72, s72, 0xffff0000
    s_lshl_b32 s75, s73, 16
    s_and_b32 s73, s73, 0xffff0000
    s_waitcnt vmcnt(0)""")
    for i in range(17,23): A(f"v_lshlrev_b32 v{i}, 16, v{i}")
    A(f"""v_fmac_f32 v15, s74, v17
    v_fmac_f32 v15, s72, v18
    v_fmac_f32 v15, s75, v19
    v_fmac_f32 v15, s73, v20
    v_fmac_f32 v16, s75, v21
    v_fmac_f32 v16, s73, v22
    s_add_u32 s69, s69, 1
    s_cmp_lt_u32 s69, 64
    s_cbranch_scc1 L_fb_k
    s_mov_b32 s69, 0
L_fb_ke:
    s_lshl_b32 s70, s69, 9
    s_add_u32 s70, s70, {256*256}
    buffer_load_ushort v17, v5, s[36:39], s70 offen
    buffer_load_ushort v18, v5, s[36:39], s70 offen offset:256
    v_readlane_b32 s72, v13, s69
    s_lshl_b32 s74, s72, 16
    s_and_b32 s72, s72, 0xffff0000
    s_waitcnt vmcnt(0)
    v_lshlrev_b32 v17, 16, v17
    v_lshlrev_b32 v18, 16, v18
    v_fmac_f32 v15, s74, v17
    v_fmac_f32 v15, s72, v18
    s_add_u32 s69, s69, 1
    s_cmp_lt_u32 s69, 8
    s_cbranch_scc1 L_fb_ke
    v_mul_f32 v15, {hex(LOG2E_NEG)}, v15
    v_exp_f32 v15, v15
    s_sub_u32 s64, s64, s46
    s_lshl_b32 s64, s64, 8
    v_add_f32 v15, 1.0, v15
    v_rcp_f32 v15, v15
    v_add_u32 v17, s64, v6
    v_mul_f32 v15, v15, v16
    ds_add_f32 v17, v15
    s_branch L_fb_edge
L_fb_next:
    s_add_u32 s47, s47, 1024
    s_branch L_fb_chunk
L_fb_fin:
    s_waitcnt lgkmcnt(0)
    s_barrier
    s_mov_b32 s47, s3
L_fb_node:
    s_cmp_ge_u32 s47, {BS}
    s_cbranch_scc1 L_k2_end
    s_add_u32 s64, s46, s47
    s_lshl_b32 s67, s64, 8
    buffer_load_dword v11, v6, s[20:23], s67 offen
    s_lshl_b32 s48, s47, 8
    v_add_u32 v17, s48, v6
    ds_read_b32 v15, v17
    s_mov_b32 s69, 0
    s_waitcnt vmcnt(0) lgkmcnt(0)
L_fb_ku:
    s_lshl_b32 s70, s69, 9
    buffer_load_ushort v17, v5, s[24:27], s70 offen
    buffer_load_ushort v18, v5, s[24:27], s70 offen offset:256
    v_readlane_b32 s72, v11, s69
    s_lshl_b32 s74, s72, 16
    s_and_b32 s72, s72, 0xffff0000
    s_waitcnt vmcnt(0)
    v_lshlrev_b32 v17, 16, v17
    v_lshlrev_b32 v18, 16, v18
    v_fmac_f32 v15, s74, v17
    v_fmac_f32 v15, s72, v18
    s_add_u32 s69, s69, 1
    s_cmp_lt_u32 s69, 64
    s_cbranch_scc1 L_fb_ku
    v_mul_f32 v16, {hex(LOG2E_NEG)}, v15
    v_exp_f32 v16, v16
    s_nop 0
    v_add_f32 v16, 1.0, v16
    v_rcp_f32 v16, v16
    s_nop 0
    v_mul_f32 v15, v15, v16
    v_cvt_pk_bf16_f32 v15, v15, v15
    buffer_store_short v15, v5, s[28:31], s67 offen
    s_add_u32 s47, s47, 16
    s_branch L_fb_node""")

def desc(name, vg, sg=102):
    return f""".amdhsa_kernel {name}
  .amdhsa_next_free_vgpr {vg}
  .amdhsa_next_free_sgpr {sg}
  .amdhsa_accum_offset {vg}
  .amdhsa_group_segment_fixed_size 0
  .amdhsa_kernarg_size 80
  .amdhsa_user_sgpr_count 2
  .amdhsa_user_sgpr_kernarg_segment_ptr 1
  .amdhsa_system_sgpr_workgroup_id_x 1
.end_amdhsa_kernel
"""
k1(); k2()
errs=check(A.lines)
for e in errs: print(e, file=sys.stderr)
hdr=open('gather_scatter__edge_featured_mpnn_egc__graph.s.ref').read().split('; Override launch')[0]
xl="; @launch kernel=nop_kernel grid=(256,1,1) block=(64,1,1) lds=0\n"
pre=xl if OPT.get('nop')=='pre' else ''; post=xl if OPT.get('nop')=='post' else ''
if OPT.get('nop'): A(".p2align 8\nnop_kernel:\ns_endpgm")
out=hdr+pre+f"""; Two launches: prep (edge partition + node tables), main (gated gather / aggregate / silu)
; @launch kernel=prep_kernel grid=(256,1,1) block=(1024,1,1) lds={K1_LDS}
; @launch kernel=main_kernel grid=(256,1,1) block=(1024,1,1) lds={K2_LDS}
{post}.amdgcn_target "amdgcn-amd-amdhsa--gfx950"
.text
.globl prep_kernel
.type prep_kernel,@function
.globl main_kernel
.type main_kernel,@function
"""+A.text()+""".section .rodata,"a"
.p2align 6
"""+desc("prep_kernel",128)+".p2align 6\n"+desc("main_kernel",128)+((".p2align 6\n"+desc("nop_kernel",8,16)) if OPT.get('nop') else '')
open(sys.argv[1],'w').write(out)
print("written",sys.argv[1],len(A.lines),"lines; hazards:",len(errs))
```

```python
import sys
from dsl import *
OPT=dict(a.split('=') if '=' in a else (a,'1') for a in sys.argv[2:])
STAMP=int(OPT.get('stamp',0))
NT=OPT.get('nt','nt')
if NT=='none': NT=''
ST=OPT.get('st','sc0 sc1')
if ST=='none': ST=''
ST=ST.replace('+',' ')

N=25000; E=400000; BS=196; CH=3136
NROW=25088; HS=NROW*256
TAB_OFF=0; REC_OFF=0x0D00000; EP_OFF=0x1100000; MISC_OFF=0x3100000
WIMG=0; CIMG=0x10000; FLAGO=0x12000; MISC_SZ=0x13000
STAMP_OFF=0x3200000
LOG2E_NEG=0xbfb8aa3b
A=Asm()

def srd(s, base_lo, base_hi, off, size):
    if off:
        A(f"s_add_u32 s{s}, s{base_lo}, {hex(off)}\ns_addc_u32 s{s+1}, s{base_hi}, 0")
    else:
        A(f"s_mov_b32 s{s}, s{base_lo}\ns_mov_b32 s{s+1}, s{base_hi}")
    A(f"s_mov_b32 s{s+2}, {hex(size)}\ns_mov_b32 s{s+3}, 0x20000")

def stamp(idx, kern):
    if not STAMP: return
    A(f"""s_memrealtime s[88:89]
    s_waitcnt lgkmcnt(0)
    s_mov_b32 s{90+idx}, s88""")
def stamp_init(kern, wave_s, wsl, wsh):
    if not STAMP: return
    for i in range(8): A(f"s_mov_b32 s{90+i}, 0")
    A(f"s_add_u32 s98, s{wsl}, {hex(STAMP_OFF+kern*0x80000)}\ns_addc_u32 s99, s{wsh}, 0")
def stamp_flush(kern=0):
    if not STAMP: return
    if STAMP==2:
        sel=[0,1,2,5] if kern==0 else [0,2,3,6]
        if kern==0: A("s_and_b32 s4, s2, 15\ns_cmp_lg_u32 s4, 0\ns_cbranch_scc1 L_sf_0_3")
        A(f"""s_load_dwordx2 s[4:5], s[0:1], 64
        s_waitcnt lgkmcnt(0)
        s_add_u32 s4, s4, {512*(1-kern)}
        s_addc_u32 s5, s5, 0
        s_cmp_lg_u32 s3, {12 if kern==0 else 15}
        s_cbranch_scc1 L_sf_{kern}_3
        s_mov_b32 s6, 256
        s_mov_b32 s7, 0x20000
        s_mov_b64 exec, 1
        v_mov_b32 v8, 0""")
        for n,i in enumerate(sel):
            A(f"""v_mov_b32 v0, s{90+i}
            v_not_b32 v1, v0
            s_cmp_eq_u32 s{90+i}, 0
            s_cbranch_scc1 L_sf_{kern}_{n}
            buffer_atomic_umax v1, v8, s[4:7], 0 offen offset:{kern*32+n*8}
            buffer_atomic_umax v0, v8, s[4:7], 0 offen offset:{kern*32+n*8+4}
L_sf_{kern}_{n}:""")
        return
    A("""s_mov_b32 s4, s98
    s_mov_b32 s5, s99
    s_mov_b32 s6, 0x80000
    s_mov_b32 s7, 0x20000
    s_lshl_b32 s8, s2, 4
    s_add_u32 s8, s8, s3
    s_lshl_b32 s8, s8, 6
    s_mov_b64 exec, 1
    v_mov_b32 v8, 0""")
    for i in range(8): A(f"v_mov_b32 v{i}, s{90+i}")
    A("buffer_store_dwordx4 v[0:3], v8, s[4:7], s8 offen\nbuffer_store_dwordx4 v[4:7], v8, s[4:7], s8 offen offset:16")

K1_E=0; K1_REC=100352; K1_PERM=K1_REC+32768; K1_HIST=K1_PERM+16384; K1_OVF=K1_HIST+1024; K1_LDS=K1_OVF+256
WROW=544
def woff(k): return k*WROW+(k>>3)*128

def k1():
    A(".p2align 8\nprep_kernel:")
    A("""s_cmp_ge_u32 s2, 256
    s_cbranch_scc1 L_k1_end
    s_load_dwordx4 s[4:7], s[0:1], 0
    s_load_dwordx4 s[8:11], s[0:1], 16
    s_load_dwordx4 s[12:15], s[0:1], 32
    s_load_dwordx2 s[16:17], s[0:1], 48
    s_load_dwordx2 s[18:19], s[0:1], 72
    v_lshrrev_b32 v1, 6, v0
    v_and_b32 v2, 63, v0
    v_readfirstlane_b32 s3, v1
    v_lshlrev_b32 v3, 4, v2
    v_lshlrev_b32 v4, 4, v0
    s_waitcnt lgkmcnt(0)""")
    if OPT.get('cpf','1')!='0':
        A(f"""s_cmp_ge_u32 s3, 13
        s_cbranch_scc1 L_k1_nocpf
        s_getpc_b64 s[20:21]
L_k1_pc:
        s_sub_u32 s20, s20, L_k1_pc-prep_kernel
        s_subb_u32 s21, s21, 0
        global_load_dwordx4 v[120:123], v4, s[20:21]
L_k1_nocpf:""")
    stamp_init(0,3,18,19)
    stamp(0,0)
    srd(44,18,19,MISC_OFF,MISC_SZ)
    A("""s_cmp_ge_u32 s2, 128
    s_cbranch_scc1 L_k1_gemm""")
    srd(20,10,11,0,E*4)
    srd(24,8,9,0,E*4)
    srd(28,6,7,0,E*32)
    srd(32,18,19,REC_OFF,0x400000)
    srd(36,18,19,EP_OFF,0x2000000)
    D=8; S=12
    A(f"""s_mul_i32 s50, s2, {CH}
    s_sub_u32 s51, {E}, s50
    s_lshr_b32 s51, s51, 2
    s_min_u32 s51, s51, {CH//4}
    s_lshl_b32 s52, s50, 2
    v_cmp_gt_u32 vcc, s51, v0
    s_mov_b64 s[54:55], vcc
    s_mov_b64 exec, vcc
    s_cbranch_execz L_k1_noidx
    buffer_load_dwordx4 v[{D}:{D+3}], v4, s[20:23], s52 offen {NT}
    buffer_load_dwordx4 v[{S}:{S+3}], v4, s[24:27], s52 offen {NT}
L_k1_noidx:
    s_mov_b64 exec, -1
    s_lshl_b32 s53, s3, 10
    s_lshl_b32 s56, s50, 5
    s_add_u32 s56, s56, s53
    v_mov_b32 v16, -1
    v_mov_b32 v17, -1
    v_mov_b32 v18, -1
    v_mov_b32 v19, -1
    v_mov_b32 v20, 0
    v_add_u32 v5, {K1_REC}, v4
    v_lshlrev_b32 v6, 2, v0
    v_add_u32 v6, {K1_HIST}, v6
    ds_write_b128 v5, v[16:19]
    ds_write_b128 v5, v[16:19] offset:16384
    v_cmp_gt_u32 vcc, 0x140, v0
    s_mov_b64 exec, vcc
    ds_write_b32 v6, v20
    s_mov_b64 exec, -1
    v_mov_b32 v20, 1
    v_mov_b32 v21, 0
    v_mov_b32 v22, 21400
    v_mov_b32 v23, -196
    v_mov_b32 v24, 5372
    v_mov_b32 v25, 208
    v_mov_b32 v26, 1342
    v_mov_b32 v27, {OPT.get('sbmask','7')}
    s_mov_b64 s[70:71], 0
    s_waitcnt lgkmcnt(0)
    s_barrier""")
    def edma():
        for i in range(7):
            if i==6: A("s_cmp_ge_u32 s3, 2\ns_cbranch_scc1 L_k1_dmadone")
            A(f"""s_mov_b32 m0, s53
            s_add_u32 s53, s53, 16384
            buffer_load_dwordx4 v3, s[28:31], s56 offen {NT} lds
            s_add_u32 s56, s56, 16384""")
        A("L_k1_dmadone:")
    if OPT.get('elate','1')=='1':
        A("s_waitcnt vmcnt(0)"); edma()
    else:
        edma(); A("s_waitcnt vmcnt(6)")
    stamp(1,0)
    A("""s_mov_b64 exec, s[54:55]
    s_cbranch_execz L_k1_b1""")
    B,RC,HA,SH,INC,OLD,T=28,32,36,40,44,52,60
    for j in range(4):
        A(f"""v_mul_u32_u24 v{T}, v{D+j}, v22
        v_mul_u32_u24 v{T+1}, v{S+j}, v26
        v_lshrrev_b32 v{B+j}, 22, v{T}
        v_lshrrev_b32 v{T+1}, 22, v{T+1}
        v_mad_i32_i24 v{T}, v{B+j}, v23, v{D+j}
        v_and_b32 v{T+1}, v27, v{T+1}
        v_lshlrev_b32 v{HA+j}, 3, v{B+j}
        v_lshlrev_b32 v{SH+j}, 3, v{T+1}
        v_add_u32 v{HA+j}, {K1_HIST}, v{HA+j}
        v_lshlrev_b64 v[{INC+2*j}:{INC+2*j+1}], v{SH+j}, v[20:21]
        v_mul_u32_u24 v{T+2}, v{T}, v24
        ds_add_rtn_u64 v[{OLD+2*j}:{OLD+2*j+1}], v{HA+j}, v[{INC+2*j}:{INC+2*j+1}]
        v_lshrrev_b32 v{T+2}, 16, v{T+2}
        v_mad_u32_u24 v{T+3}, v{T+2}, 52, 208
        v_mad_i32_i24 v{T}, v{T+2}, -12, v{T}
        v_lshrrev_b32 v{T+3}, 8, v{T+3}
        v_lshl_add_u32 v{T+2}, v{T+2}, 3, v{T+1}
        v_sub_u32 v{T}, v{T}, v{T+3}
        v_lshl_or_b32 v{T}, v{T}, 16, v{S+j}
        v_lshl_or_b32 v{RC+j}, v{T+2}, 24, v{T}""".replace("52, 208","52, v25"))
    A("""L_k1_b1:
    s_mov_b64 exec, -1
    s_waitcnt lgkmcnt(0)
    s_barrier""")
    stamp(2,0)
    FIN=8
    A(f"""s_mov_b64 exec, s[54:55]
    s_cbranch_execz L_k1_b2""")
    for j in range(4): A(f"ds_read_b64 v[{FIN+2*j}:{FIN+2*j+1}], v{HA+j}")
    A(f"v_lshlrev_b32 v{T+8}, 2, v0")
    for j in range(4):
        A(f"""v_lshrrev_b64 v[{OLD+2*j}:{OLD+2*j+1}], v{SH+j}, v[{OLD+2*j}:{OLD+2*j+1}]
        v_add_co_u32 v{INC+2*j}, vcc, -1, v{INC+2*j}
        v_and_b32 v{OLD+2*j}, 0xff, v{OLD+2*j}
        s_nop 0
        v_addc_co_u32 v{INC+2*j+1}, vcc, -1, v{INC+2*j+1}, vcc""")
    A("s_waitcnt lgkmcnt(0)")
    for j in range(4):
        A(f"""v_and_b32 v{T}, v{FIN+2*j}, v{INC+2*j}
        v_and_b32 v{T+1}, v{FIN+2*j+1}, v{INC+2*j+1}
        v_sad_u8 v{T}, v{T}, 0, v{OLD+2*j}
        v_sad_u8 v{T}, v{T+1}, 0, v{T}
        v_cmp_lt_u32 vcc, 63, v{T}
        v_min_u32 v{T}, 63, v{T}
        s_or_b64 s[70:71], s[70:71], vcc
        v_lshl_add_u32 v{T+1}, v{B+j}, 6, v{T}
        v_and_b32 v{T+2}, 15, v{T}
        v_lshrrev_b32 v{T+3}, 4, v{T}
        v_lshlrev_b32 v{T+1}, 1, v{T+1}
        v_lshl_add_u32 v{T+2}, v{T+2}, 2, v{T+3}
        v_add_u32 v{T+1}, {K1_PERM}, v{T+1}
        v_lshl_add_u32 v{T+2}, v{B+j}, 6, v{T+2}
        v_add_u32 v{T+9}, {j}, v{T+8}
        v_lshlrev_b32 v{T+2}, 2, v{T+2}
        ds_write_b16 v{T+1}, v{T+9}
        v_add_u32 v{T+2}, {K1_REC}, v{T+2}
        ds_write_b32 v{T+2}, v{RC+j}""")
    A(f"""s_mov_b64 exec, s[70:71]
    v_mov_b32 v{T}, {K1_OVF}
    ds_write_b32 v{T}, v20
L_k1_b2:
    s_mov_b64 exec, -1
    s_waitcnt lgkmcnt(0)
    s_barrier""")
    stamp(3,0)
    EI=8; EV=64
    A(f"""ds_read_b128 v[16:19], v5
    ds_read_b128 v[20:23], v5 offset:16384
    v_and_b32 v24, 7, v2
    s_lshl_b32 s57, s3, 6
    v_lshl_add_u32 v24, v24, 3, s57
    v_add_u32 v24, {K1_HIST}, v24
    ds_read_b64 v[26:27], v24
    v_lshrrev_b32 v28, 1, v2
    s_lshl_b32 s57, s3, 10
    s_add_u32 s57, s57, {K1_PERM}
    v_lshl_add_u32 v29, v28, 1, s57""")
    for i in range(8): A(f"ds_read_u16 v{EI+i}, v29 offset:{i*128}")
    A(f"""v_lshrrev_b32 v30, 4, v0
    v_and_b32 v31, 15, v0
    v_lshlrev_b32 v30, 15, v30
    v_lshl_or_b32 v30, v31, 4, v30
    s_lshl_b32 s58, s2, 8
    s_add_u32 s59, s58, 0x200000
    v_and_b32 v31, 1, v2
    v_lshlrev_b32 v31, 4, v31
    s_waitcnt lgkmcnt(0)
    buffer_store_dwordx4 v[16:19], v30, s[32:35], s58 offen {ST}
    buffer_store_dwordx4 v[20:23], v30, s[32:35], s59 offen {ST}
    v_sad_u8 v26, v26, 0, 0
    v_sad_u8 v26, v27, 0, v26
    v_add_u32 v26, {OPT.get('padrows','3')}, v26
    v_and_b32 v26, {~int(OPT.get('padrows','3'))}, v26
    v_min_u32 v26, 64, v26
    s_waitcnt vmcnt(2)
    s_barrier""")
    stamp(6,0)
    for i in range(8):
        A(f"v_lshl_add_u32 v{EI+i}, v{EI+i}, 5, v31\nds_read_b128 v[{EV+4*i}:{EV+4*i+3}], v{EI+i}\nv_readlane_b32 s{60+i}, v26, {i}")
    A(f"""s_lshl_b32 s57, s3, 21
    s_lshl_b32 s58, s2, 11
    s_add_u32 s57, s57, s58""")
    for i in range(8):
        A(f"""v_cmp_gt_u32 vcc, s{60+i}, v28
        s_mov_b64 exec, vcc
        s_waitcnt lgkmcnt({7-i})
        buffer_store_dwordx4 v[{EV+4*i}:{EV+4*i+3}], v3, s[36:39], s57 offen {ST}
        s_mov_b64 exec, -1
        s_add_u32 s57, s57, 0x40000""")
    A(f"s_sub_u32 s57, s57, 0x200000\nv_add_u32 v32, 32, v28")
    for i in range(8):
        L=A.label("k1long")
        A(f"""s_cmp_le_u32 s{60+i}, 32
        s_cbranch_scc1 {L}
        ds_read_u16 v33, v29 offset:{i*128+64}
        s_waitcnt lgkmcnt(0)
        v_lshl_add_u32 v33, v33, 5, v31
        ds_read_b128 v[36:39], v33
        v_cmp_gt_u32 vcc, s{60+i}, v32
        s_mov_b64 exec, vcc
        s_waitcnt lgkmcnt(0)
        buffer_store_dwordx4 v[36:39], v3, s[36:39], s57 offen offset:1024 {ST}
        s_mov_b64 exec, -1
        s_nop 0
{L}:
        s_add_u32 s57, s57, 0x40000""")
    A("s_branch L_k1_flag")
    A("L_k1_gemm:")
    srd(20,4,5,0,N*256)
    srd(24,16,17,0,272*256)
    srd(28,14,15,0,128*256)
    srd(32,12,13,0,128*256)
    srd(36,18,19,TAB_OFF,HS)
    srd(40,18,19,TAB_OFF+HS,HS)
    XR=8; WL=24; XA=40; ACC=56; BF=8
    A(f"""s_sub_u32 s50, s2, 128
    s_lshl_b32 s51, s3, 7
    s_add_u32 s51, s51, s50
    v_mov_b32 v6, 0
    v_mov_b32 v7, {K1_OVF}
    ds_write_b32 v7, v6
    s_cmp_ge_u32 s51, 1568
    s_cbranch_scc1 L_k1_nox
    s_lshl_b32 s52, s51, 12
    v_lshrrev_b32 v5, 2, v2
    v_and_b32 v6, 3, v2
    v_lshlrev_b32 v5, 8, v5
    v_lshl_or_b32 v5, v6, 4, v5""")
    for ks in range(4): A(f"buffer_load_dwordx4 v[{XR+4*ks}:{XR+4*ks+3}], v5, s[20:23], s52 offen offset:{ks*64} {NT}")
    A(f"""L_k1_nox:
    s_mov_b32 s53, {128*256}
    s_mov_b32 s54, {128*256+16384}
    s_mov_b32 s55, 16384
    buffer_load_dwordx4 v[{WL}:{WL+3}], v4, s[24:27], s53 offen
    buffer_load_dwordx4 v[{WL+4}:{WL+7}], v4, s[24:27], s54 offen
    buffer_load_dwordx4 v[{WL+8}:{WL+11}], v4, s[28:31], 0 offen
    buffer_load_dwordx4 v[{WL+12}:{WL+15}], v4, s[28:31], s55 offen
    v_lshrrev_b32 v5, 4, v0
    v_lshrrev_b32 v6, 7, v0
    v_mul_u32_u24 v5, {WROW}, v5
    v_lshl_add_u32 v5, v6, 7, v5
    v_bfe_u32 v6, v0, 3, 1
    v_lshl_add_u32 v5, v6, 7, v5
    v_and_b32 v6, 7, v0
    v_lshl_add_u32 v5, v6, 2, v5
    s_mov_b32 s56, 0x05040100
    s_mov_b32 s57, 0x07060302""")
    A(f"""s_cmp_lg_u32 s3, 15
    s_cbranch_scc1 L_k1_noimg
    s_cmp_ge_u32 s50, 72
    s_cbranch_scc1 L_k1_noimg
    v_and_b32 v6, 15, v2
    v_lshrrev_b32 v7, 4, v2
    v_lshlrev_b32 v6, 3, v6
    s_cmp_ge_u32 s50, 64
    s_cbranch_scc1 L_k1_cimg
    s_bfe_u32 s58, s50, 0x10005
    s_bfe_u32 s59, s50, 0x20002
    s_and_b32 s60, s50, 3
    s_lshl_b32 s58, s58, 7
    s_lshl_b32 s59, s59, 1
    s_lshl_b32 s60, s60, 13
    s_add_u32 s58, s58, s59
    s_add_u32 s58, s58, s60
    v_lshl_add_u32 v6, v7, 11, v6
    s_bitcmp1_b32 s50, 4
    s_cbranch_scc1 L_k1_uimg""")
    for i in range(8): A(f"buffer_load_ushort v{64+i}, v6, s[24:27], s58 offen offset:{i*256}")
    A("s_branch L_k1_imgst\nL_k1_uimg:")
    for i in range(8): A(f"buffer_load_ushort v{64+i}, v6, s[32:35], s58 offen offset:{i*256}")
    A(f"""L_k1_imgst:
    s_lshl_b32 s58, s50, 10
    s_waitcnt vmcnt(0)
    v_lshl_or_b32 v56, v65, 16, v64
    v_lshl_or_b32 v57, v67, 16, v66
    v_lshl_or_b32 v58, v69, 16, v68
    v_lshl_or_b32 v59, v71, 16, v70
    buffer_store_dwordx4 v[56:59], v3, s[44:47], s58 offen
    s_branch L_k1_noimg
L_k1_cimg:
    s_sub_u32 s61, s50, 64
    s_lshr_b32 s58, s61, 2
    s_and_b32 s59, s61, 3
    s_lshl_b32 s58, s58, 7
    s_lshl_b32 s59, s59, 1
    s_add_u32 s58, s58, s59
    s_add_u32 s58, s58, {256*256}
    v_lshl_add_u32 v6, v7, 10, v6""")
    for i in range(4): A(f"buffer_load_ushort v{56+i}, v6, s[24:27], s58 offen offset:{i*256}")
    A(f"""s_mov_b32 s59, {hex(LOG2E_NEG)}
    s_lshl_b32 s58, s61, 9
    s_add_u32 s58, s58, {CIMG}
    v_lshlrev_b32 v7, 3, v2
    s_waitcnt vmcnt(0)""")
    for i in range(4): A(f"v_lshlrev_b32 v{56+i}, 16, v{56+i}\nv_mul_f32 v{56+i}, s59, v{56+i}")
    A(f"""v_cvt_pk_bf16_f32 v56, v56, v57
    v_cvt_pk_bf16_f32 v57, v58, v59
    buffer_store_dwordx2 v[56:57], v7, s[44:47], s58 offen
L_k1_noimg:""")
    for u in range(4):
        w=WL+4*u; base=(u&1)*woff(64)+(u>>1)*256
        A(f"""s_waitcnt vmcnt({3-u})
        v_perm_b32 v60, v{w+2}, v{w}, s56
        v_perm_b32 v61, v{w+2}, v{w}, s57
        v_perm_b32 v62, v{w+3}, v{w+1}, s56
        v_perm_b32 v63, v{w+3}, v{w+1}, s57
        ds_write_b32 v5, v60 offset:{base}
        ds_write_b32 v5, v61 offset:{base+32}
        ds_write_b32 v5, v62 offset:{base+64}
        ds_write_b32 v5, v63 offset:{base+96}""")
    A(f"""v_and_b32 v6, 15, v2
    v_lshrrev_b32 v7, 4, v2
    v_lshl_add_u32 v60, v6, 2, v7
    v_lshlrev_b32 v60, 2, v60
    s_cmp_ge_u32 s51, 1568
    s_cbranch_scc1 L_k1_nobp""")
    for i in range(16): A(f"ds_bpermute_b32 v{XA+i}, v60, v{XR+i}")
    A(f"""L_k1_nobp:
    v_bfe_u32 v61, v2, 2, 2
    v_lshl_add_u32 v61, v7, 3, v61
    v_mul_u32_u24 v61, {WROW}, v61
    v_lshl_add_u32 v61, v7, 7, v61
    v_and_b32 v62, 3, v2
    v_lshl_add_u32 v5, v62, 3, v61
    s_waitcnt lgkmcnt(0)
    s_barrier""")
    stamp(1,0)
    A("""s_cmp_ge_u32 s51, 1568
    s_cbranch_scc1 L_k1_gdone""")
    seq=[(h,t,mat,ks) for h in range(2) for t in range(4) for mat in range(2) for ks in range(4)]
    def rd(n):
        h,t,mat,ks=seq[n]; o=woff(32*ks)+mat*256+h*128+t*32; b=BF+4*(n%8)
        A(f"ds_read_b64_tr_b16 v[{b}:{b+1}], v5 offset:{o}\nds_read_b64_tr_b16 v[{b+2}:{b+3}], v5 offset:{o+4*WROW}")
    def acc(h,t,mat): return ACC+((h*4+t)*2+mat)*4
    PF=6
    for n in range(PF): rd(n)
    for n in range(64):
        h,t,mat,ks=seq[n]; b=BF+4*(n%8); a=acc(h,t,mat)
        out=min(63-n,PF-1)
        A(f"s_waitcnt lgkmcnt({2*out})")
        A(f"v_mfma_f32_16x16x32_bf16 v[{a}:{a+3}], v[{XA+4*ks}:{XA+4*ks+3}], v[{b}:{b+3}], {'0' if ks==0 else f'v[{a}:{a+3}]'}")
        if n+PF<64: rd(n+PF)
    stamp(2,0)
    A(f"""v_mov_b32 v8, {hex(LOG2E_NEG)}
    v_mov_b32 v9, 0x7fff
    v_mov_b32 v10, 0xffff0000
    v_mov_b32 v11, 0
    v_lshlrev_b32 v12, 10, v7
    v_lshl_or_b32 v12, v6, 4, v12
    s_nop 3""")
    for h in range(2):
        for r in range(4):
            o=16+4*((h*4+r)%2); tt=24
            for t in range(4): A(f"v_mul_f32 v{tt+t}, v8, v{acc(h,t,0)+r}")
            A(f"v_max3_f32 v11, abs(v{tt}), abs(v{tt+1}), v11\nv_max3_f32 v11, abs(v{tt+2}), abs(v{tt+3}), v11")
            for t in range(4): A(f"v_exp_f32 v{tt+t}, v{tt+t}")
            A("s_nop 0")
            for t in range(4): A(f"v_cvt_pk_f16_f32 v{tt+t}, v{tt+t}, 0")
            for t in range(4): A(f"v_xad_u32 v{tt+4+t}, v{tt+t}, v9, v{acc(h,t,1)+r}")
            for t in range(4): A(f"v_bfi_b32 v{o+t}, v10, v{tt+4+t}, v{tt+t}")
            A(f"buffer_store_dwordx4 v[{o}:{o+3}], v12, s[{36+4*h}:{39+4*h}], s52 offen offset:{r*256} {ST}")
    A(f"""v_mov_b32 v13, 0x41600000
    v_mov_b32 v14, 1
    v_mov_b32 v15, {K1_OVF}
    v_cmp_nle_f32 vcc, v11, v13""")
    A(f"""s_mov_b64 exec, vcc
    ds_write_b32 v15, v14
    s_mov_b64 exec, -1
L_k1_gdone:
    s_waitcnt lgkmcnt(0)
    s_barrier
L_k1_flag:
    s_cmp_lg_u32 s3, 0
    s_cbranch_scc1 L_k1_fin
    v_mov_b32 v15, {K1_OVF}
    ds_read_b32 v14, v15
    s_lshl_b32 s58, s2, 2
    s_add_u32 s58, s58, {FLAGO}
    v_mov_b32 v15, 0
    s_mov_b64 exec, 1
    s_waitcnt lgkmcnt(0)
    buffer_store_dword v14, v15, s[44:47], s58 offen
    s_mov_b64 exec, -1
L_k1_fin:""")
    if STAMP:
        stamp(4,0)
        A("s_waitcnt vmcnt(0)")
        stamp(5,0)
        stamp_flush()
    if OPT.get('k1delay'):
        A(f"""s_memrealtime s[60:61]
        s_waitcnt lgkmcnt(0)
        s_add_u32 s62, s60, {int(OPT['k1delay'])*100}
L_k1_spin:
        s_memrealtime s[60:61]
        s_waitcnt lgkmcnt(0)
        s_cmp_lt_u32 s60, s62
        s_cbranch_scc1 L_k1_spin""")
    A("L_k1_end:\ns_endpgm")

K2_L1=0; K2_L2=32768; K2_W=65536; K2_ER=98304; K2_OH=K2_ER+16384; K2_HIST=K2_OH+1024; K2_LDS=K2_HIST+512

def k2():
    L=0; D=32; EE=48; ACC=64; GB=80; A0=96; A1=100; S=104; OA0,OA1,SA0,SA1=108,109,110,111
    cJ16,cEA,cG8O,cS,cH16,pL1,pLm,pLs,pLe,LANE=112,113,114,115,116,117,118,119,120,121
    LE,TID,LM0,LM1,LS0,LS1=122,123,124,125,126,127
    L16=LE
    A(".p2align 8\nmain_kernel:")
    A(f"""s_cmp_ge_u32 s2, 256
    s_cbranch_scc1 L_k2_end
    s_load_dwordx2 s[18:19], s[0:1], 72
    s_load_dwordx2 s[4:5], s[0:1], 0
    s_load_dwordx2 s[6:7], s[0:1], 56
    v_mov_b32 v{TID}, v0
    v_lshrrev_b32 v1, 6, v0
    v_and_b32 v{LANE}, 63, v0
    v_readfirstlane_b32 s3, v1
    v_lshlrev_b32 v{L16}, 4, v{LANE}
    v_lshlrev_b32 v4, 4, v0
    s_bfe_u32 s40, s2, 0x10002
    s_lshr_b32 s41, s2, 3
    s_and_b32 s42, s2, 3
    s_lshl_b32 s41, s41, 2
    s_add_u32 s41, s41, s42
    s_lshl_b32 s45, s41, 15
    s_add_u32 s46, s45, 16384
    s_mov_b32 s10, 0x400000
    s_mov_b32 s11, 0x20000
    s_waitcnt lgkmcnt(0)
    s_add_u32 s8, s18, {hex(REC_OFF)}
    s_addc_u32 s9, s19, 0""")
    R=0; RK=8; HA=16; XR=32
    A(f"""buffer_load_dwordx4 v[{R}:{R+3}], v4, s[8:11], s45 offen {NT}
    buffer_load_dwordx4 v[{R+4}:{R+7}], v4, s[8:11], s46 offen {NT}""")
    stamp_init(1,3,18,19)
    stamp(0,1)
    srd(24,18,19,MISC_OFF,MISC_SZ)
    A(f"""s_mov_b32 s45, {FLAGO}
    buffer_load_dwordx4 v[24:27], v{L16}, s[24:27], s45 offen""")
    A(f"""s_add_u32 s42, s3, 4
    s_mul_i32 s42, s42, 52
    s_lshr_b32 s42, s42, 8
    s_add_u32 s43, s3, 5
    s_mul_i32 s43, s43, 52
    s_lshr_b32 s43, s43, 8
    s_sub_u32 s43, s43, s42
    s_add_u32 s43, s43, 12
    s_mul_i32 s44, s3, 12
    s_add_u32 s42, s42, s44
    s_mul_i32 s44, s41, {BS}
    s_add_u32 s44, s44, s42""")
    srd(20,4,5,0,N*256)
    A(f"""s_lshl_b32 s45, s41, 18
    s_add_u32 s12, s18, s45
    s_addc_u32 s13, s19, 0
    s_add_u32 s12, s12, {hex(EP_OFF)}
    s_addc_u32 s13, s13, 0
    s_mov_b32 s14, 0x40000
    s_mov_b32 s15, 0x20000
    s_mul_i32 s45, s40, {HS}
    s_add_u32 s16, s18, s45
    s_addc_u32 s17, s19, 0
    s_mov_b32 s18, {HS}
    s_mov_b32 s19, 0x20000""")
    srd(28,6,7,0,N*256)
    A(f"""v_lshrrev_b32 v28, 3, v{TID}
    v_and_b32 v29, 7, v{TID}
    v_lshrrev_b32 v30, 1, v28
    v_and_b32 v28, 1, v28
    v_lshlrev_b32 v28, 4, v28
    v_mov_b32 v31, 0x3f80
    v_lshlrev_b32 v31, v28, v31
    v_cmp_eq_u32 vcc, v29, v30
    v_lshlrev_b32 v29, 2, v{TID}
    v_add_u32 v29, {K2_OH}, v29
    v_cndmask_b32 v31, 0, v31, vcc
    v_cmp_gt_u32 vcc, 0x180, v{TID}
    s_mov_b64 exec, vcc
    ds_write_b32 v29, v31
    s_mov_b64 exec, -1
    v_lshrrev_b32 v28, 2, v{LANE}
    v_and_b32 v29, 3, v{LANE}
    v_cmp_gt_u32 s[50:51], s43, v28
    v_lshlrev_b32 v28, 8, v28
    v_lshl_or_b32 v28, v29, 4, v28
    v_lshlrev_b32 v30, 3, v{LANE}
    s_lshl_b32 s45, s44, 8
    s_lshl_b32 s46, s40, 11
    s_add_u32 s46, s46, {CIMG}
    s_lshl_b32 s47, s3, 11
    s_add_u32 m0, s47, {K2_W}
    s_lshl_b32 s48, s40, 15
    s_add_u32 s47, s47, s48""")
    for i in range(16): A(f"v_mov_b32 v{XR+i}, 0")
    A(f"""s_waitcnt lgkmcnt(0)
    s_barrier
    s_mov_b64 exec, s[50:51]""")
    for ks in range(4): A(f"buffer_load_dwordx4 v[{XR+4*ks}:{XR+4*ks+3}], v28, s[20:23], s45 offen offset:{ks*64} {NT}")
    A("s_mov_b64 exec, -1")
    for t in range(4): A(f"buffer_load_dwordx2 v[{GB+4*t}:{GB+4*t+1}], v30, s[24:27], s46 offen offset:{t*512}")
    A(f"""buffer_load_dwordx4 v{L16}, s[24:27], s47 offen lds
    buffer_load_dwordx4 v{L16}, s[24:27], s47 offen offset:1024 lds
    v_and_b32 v28, 15, v{LANE}
    v_lshrrev_b32 v29, 4, v{LANE}
    v_lshlrev_b32 v{cJ16}, 4, v28
    v_lshlrev_b32 v30, 3, v29
    v_add_u32 v{cG8O}, {K2_OH}, v30
    v_lshl_add_u32 v30, v28, 5, v30
    s_lshl_b32 s47, s3, 10
    s_add_u32 s49, s47, {K2_ER}
    v_add_u32 v{cEA}, s49, v30
    v_and_b32 v30, 3, v{LANE}
    v_lshlrev_b32 v30, 3, v30
    v_add_u32 v{cS}, {K2_OH}, v30
    v_and_b32 v30, 1, v{LANE}
    v_lshlrev_b32 v{cH16}, 4, v30
    s_lshl_b32 s47, s3, 11
    v_lshl_add_u32 v{pL1}, v29, 4, s47
    s_add_u32 s48, s47, {K2_L2}
    v_lshl_add_u32 v{pLm}, v28, 2, s48
    v_and_b32 v30, -4, v{LANE}
    v_add_u32 v{pLs}, s48, v30
    v_lshrrev_b32 v30, 1, v{LANE}
    v_lshl_add_u32 v{pLe}, v30, 2, s48
    v_lshrrev_b32 v30, 4, v{TID}
    v_lshl_add_u32 v29, v30, 6, v28
    v_mov_b32 v31, 1
    v_mov_b32 v30, {OPT.get('srcmask','0x7fff')}
    v_mov_b32 v28, 0xf0000
    s_waitcnt vmcnt(10)""")
    stamp(1,1)
    A(f"""v_or_b32 v24, v24, v25
    v_or3_b32 v24, v24, v26, v27
    v_cmp_ne_u32 vcc, 0, v24
    s_cmp_lg_u64 vcc, 0
    s_cbranch_scc1 L_k2_fallback""")
    MK=52; O1=48; O2=56
    order=[0,4,1,5,2,6,3,7]
    for j in order:
        Lb=A.label("k2h")
        A(f"v_cmp_le_i32 s[{MK+2*j}:{MK+2*j+1}], 0, v{R+j}\ns_mov_b64 exec, s[{MK+2*j}:{MK+2*j+1}]")
        if j&3>=2: A(f"s_cbranch_execz {Lb}")
        A(f"""v_lshrrev_b32 v{HA+j}, 22, v{R+j}
        v_and_b32 v{HA+j}, 0x1fc, v{HA+j}
        v_add_u32 v24, {K2_HIST}, v{HA+j}
        ds_add_rtn_u32 v{RK+j}, v24, v31
        v_and_b32 v{O1+j}, v30, v{R+j}
        v_add_u32 v{O2+j}, {16*(j&3)+4096*(j>>2)}, v29
        v_lshlrev_b32 v{O1+j}, 8, v{O1+j}
        v_and_or_b32 v{O2+j}, v{R+j}, v28, v{O2+j}""")
        if j&3>=2: A(f"{Lb}:")
        A("s_mov_b64 exec, -1")
    A("s_waitcnt lgkmcnt(0)")
    for j in order:
        Lb=A.label("k2s")
        A(f"s_mov_b64 exec, s[{MK+2*j}:{MK+2*j+1}]")
        if j&3>=2: A(f"s_cbranch_execz {Lb}")
        A(f"""v_min_u32 v{RK+j}, 63, v{RK+j}
        v_lshlrev_b32 v{RK+j}, 2, v{RK+j}
        v_lshl_add_u32 v{RK+j}, v{HA+j}, 6, v{RK+j}
        ds_write2st64_b32 v{RK+j}, v{O1+j}, v{O2+j} offset0:0 offset1:128""")
        if j&3>=2: A(f"{Lb}:")
    A(f"""s_mov_b64 exec, -1
    v_lshlrev_b32 v25, 3, v{LANE}
    v_add_u32 v25, {K2_HIST}, v25
    v_lshl_add_u32 v26, v{LANE}, 2, s47
    s_lshl_b32 s45, s3, 2
    s_waitcnt lgkmcnt(0)
    s_barrier""")
    stamp(2,1)
    H0,H1=0,1; CP=2
    A(f"ds_read_b64 v[{H0}:{H1}], v25")
    for b in range(1,8): A(f"ds_read2st64_b32 v[{CP+2*b}:{CP+2*b+1}], v26 offset0:{b} offset1:{128+b}")
    A(f"""s_waitcnt lgkmcnt(7)
    v_max_u32 v24, v{H0}, v{H1}
    v_cmp_lt_u32 vcc, 64, v24""")
    for i in range(4):
        A(f"v_readlane_b32 s{72+2*i}, v{H0}, s45\nv_readlane_b32 s{73+2*i}, v{H1}, s45\ns_add_u32 s45, s45, 1")
    A(f"""s_cmp_lg_u64 vcc, 0
    s_cbranch_scc1 L_k2_fallback
    s_mov_b32 s68, s72
    s_waitcnt lgkmcnt(0)""")
    for b in range(1,8):
        A(f"""v_cmp_gt_u32 vcc, s{72+b}, v{LANE}
        v_lshl_add_u32 v24, s68, 2, v26
        s_add_u32 s68, s68, s{72+b}
        s_mov_b64 exec, vcc
        ds_write2st64_b32 v24, v{CP+2*b}, v{CP+2*b+1} offset0:0 offset1:128
        s_mov_b64 exec, -1""")
    A(f"""s_sub_u32 s46, 0, s68
    s_and_b32 s46, s46, 31
    v_cmp_gt_u32 vcc, s46, v{LANE}
    v_lshl_add_u32 v24, s68, 2, v26
    v_mov_b32 v28, {N<<8}
    v_mov_b32 v29, 0x10ffff
    s_mov_b64 exec, vcc
    ds_write2st64_b32 v24, v28, v29 offset0:0 offset1:128
    s_mov_b64 exec, -1
    s_add_u32 s68, s68, 15
    s_lshr_b32 s68, s68, 4
    s_mov_b32 m0, s49""")
    XA=96
    G=A0
    def listreads(G):
        A(f"""ds_read_b32 v{LE}, v{pLe}
        ds_read_b128 v[{G}:{G+3}], v{pL1}
        ds_read_b128 v[{G+4}:{G+7}], v{pL1} offset:64
        ds_read_b32 v{LM0}, v{pLm}
        ds_read_b32 v{LM1}, v{pLm} offset:64
        ds_read_b32 v{LS0}, v{pLs}
        ds_read_b32 v{LS1}, v{pLs} offset:64
        v_add_u32 v{pL1}, 128, v{pL1}
        v_add_u32 v{pLm}, 128, v{pLm}
        v_add_u32 v{pLs}, 128, v{pLs}
        v_add_u32 v{pLe}, 128, v{pLe}""")
    def edma():
        A(f"v_mad_u32_u16 v{LE}, v{LE}, 32, v{cH16}\nbuffer_load_dwordx4 v{LE}, s[12:15], 0 offen lds")
    def gathers(Gr, lo=0, hi=8):
        for i in range(lo,hi):
            A(f"v_or_b32 v{Gr+i}, v{Gr+i}, v{cJ16}")
            if not OPT.get('nogather'): A(f"buffer_load_dwordx4 v[{L+4*i}:{L+4*i+3}], v{Gr+i}, s[16:19], 0 offen")
    def addrs():
        A(f"""v_mad_u32_u16 v{OA0}, v{LM0}, 32, v{cG8O} op_sel:[1,0,0,0]
        v_mad_u32_u16 v{OA1}, v{LM1}, 32, v{cG8O} op_sel:[1,0,0,0]
        v_mad_u32_u16 v{SA0}, v{LS0}, 32, v{cS} op_sel:[1,0,0,0]
        v_mad_u32_u16 v{SA1}, v{LS1}, 32, v{cS} op_sel:[1,0,0,0]""")
    A(f"v_lshlrev_b32 v{EE+8}, 4, v{LANE}\nv_add_u32 v{EE+8}, {K2_W}, v{EE+8}")
    listreads(EE)
    A(f"""v_and_b32 v{EE+9}, 15, v{LANE}
    v_lshrrev_b32 v{EE+10}, 4, v{LANE}
    v_lshl_add_u32 v{EE+9}, v{EE+9}, 2, v{EE+10}
    v_lshlrev_b32 v{EE+9}, 2, v{EE+9}
    s_waitcnt lgkmcnt(4)""")
    edma()
    gathers(EE)
    stamp(3,1)
    A("s_waitcnt vmcnt(9)")
    for i in range(16): A(f"ds_bpermute_b32 v{XA+i}, v{EE+9}, v{XR+i}")
    A(f"v_mov_b32 v{TID}, v{EE+8}\ns_waitcnt lgkmcnt(0)\ns_barrier")
    BFR=32
    seq=[(mat,t,ks) for mat in range(2) for t in range(4) for ks in range(4)]
    def rd(n):
        mat,t,ks=seq[n]; b=BFR+4*(n%8)
        A(f"ds_read_b128 v[{b}:{b+3}], v{TID} offset:{n*1024}")
    PF=6
    for n in range(PF): rd(n)
    for n in range(32):
        mat,t,ks=seq[n]; b=BFR+4*(n%8); a=ACC+4*t
        if n==16:
            A(f"s_mov_b32 s45, {hex(LOG2E_NEG)}\ns_nop 6")
            for tt in range(4):
                for r in range(4): A(f"v_mul_f32 v{ACC+4*tt+r}, s45, v{ACC+4*tt+r}")
                A(f"v_cvt_pk_bf16_f32 v{GB+4*tt+2}, v{ACC+4*tt}, v{ACC+4*tt+1}\nv_cvt_pk_bf16_f32 v{GB+4*tt+3}, v{ACC+4*tt+2}, v{ACC+4*tt+3}")
        out=min(31-n,PF-1)
        A(f"s_waitcnt lgkmcnt({out})")
        A(f"v_mfma_f32_16x16x32_bf16 v[{a}:{a+3}], v[{XA+4*ks}:{XA+4*ks+3}], v[{b}:{b+3}], {'0' if ks==0 else f'v[{a}:{a+3}]'}")
        if n+PF<32: rd(n+PF)
    stamp(4,1)
    if STAMP: A('s_memtime s[100:101]\ns_waitcnt lgkmcnt(0)')
    if OPT.get('reg'):
        A('s_mov_b32 s92, s68\ns_mov_b32 s93, s94\ns_getreg_b32 s91, hwreg(HW_REG_HW_ID)')
    def gate(Ar):
        if OPT.get('nomfma'): return
        for t in range(4): A(f"v_mfma_f32_16x16x32_bf16 v[{D+4*t}:{D+4*t+3}], v[{Ar}:{Ar+3}], v[{GB+4*t}:{GB+4*t+3}], 0")
    def exps():
        if OPT.get('nocomp'): return
        for t in range(4):
            for r in range(4): A(f"v_exp_f32 v{EE+4*r+t}, v{D+4*t+r}")
    def rest(q):
        if OPT.get('nocomp'): return
        Lq=L+16*q
        order=[(r,t) for t in range(4) for r in range(4)]
        for r,t in order: A(f"v_fma_mix_f32 v{EE+4*r+t}, v{Lq+4*r+t}, v{EE+4*r+t}, 1.0 op_sel_hi:[1,0,0]")
        for r,t in order: A(f"v_rcp_f32 v{EE+4*r+t}, v{EE+4*r+t}")
        for t in (0,2):
            for r in range(4): A(f"v_pk_mul_f32 v[{EE+4*r+t}:{EE+4*r+t+1}], v[{EE+4*r+t}:{EE+4*r+t+1}], v[{Lq+4*r+t}:{Lq+4*r+t+1}]")
        for t in range(4):
            for p in range(2): A(f"v_cvt_pk_bf16_f32 v{L+4*t+2*q+p}, v{EE+8*p+t}, v{EE+8*p+4+t}")
    A("""s_cmp_le_i32 s68, 0
    s_cbranch_scc1 L_k2_done
.p2align 6
L_k2_loop:""")
    addrs()
    if OPT.get('prio','1')=='1':
        A("""s_cmp_ge_i32 s68, 11
        s_cbranch_scc1 L_k2_p3
        s_cmp_ge_i32 s68, 7
        s_cbranch_scc1 L_k2_p2
        s_cmp_ge_i32 s68, 3
        s_cbranch_scc1 L_k2_p1
        s_setprio 0
        s_branch L_k2_pd
L_k2_p3:
        s_setprio 3
        s_branch L_k2_pd
L_k2_p2:
        s_setprio 2
        s_branch L_k2_pd
L_k2_p1:
        s_setprio 1
L_k2_pd:""")
    A(f"""ds_read_b64 v[{A0+2}:{A0+3}], v{OA0}
    ds_read_b64 v[{A1+2}:{A1+3}], v{OA1}
    ds_read_b64_tr_b16 v[{S}:{S+1}], v{SA0}
    ds_read_b64_tr_b16 v[{S+2}:{S+3}], v{SA1}
    s_sub_u32 s68, s68, 2
    s_waitcnt vmcnt(8)
    ds_read_b64 v[{A0}:{A0+1}], v{cEA}
    ds_read_b64 v[{A1}:{A1+1}], v{cEA} offset:512
    s_waitcnt lgkmcnt(1)""")
    gate(A0)
    A("s_nop 4")
    exps()
    A("s_waitcnt lgkmcnt(0)")
    gate(A1)
    listreads(G)
    A("s_waitcnt vmcnt(4)")
    rest(0)
    A("s_waitcnt lgkmcnt(0)")
    edma()
    A("s_cmp_lt_i32 s68, 0\ns_cbranch_scc1 L_k2_half")
    exps()
    A("s_waitcnt vmcnt(1)")
    rest(1)
    A("s_nop 0\nL_k2_half:\ns_nop 0")
    for t in range(0 if OPT.get('nomfma') else 4): A(f"v_mfma_f32_16x16x32_bf16 v[{ACC+4*t}:{ACC+4*t+3}], v[{S}:{S+3}], v[{L+4*t}:{L+4*t+3}], v[{ACC+4*t}:{ACC+4*t+3}]")
    A("s_cmp_le_i32 s68, 0\ns_cbranch_scc1 L_k2_done")
    gathers(G)
    A("s_branch L_k2_loop")
    A("L_k2_done:\ns_waitcnt vmcnt(0)")
    stamp(5,1)
    if STAMP: A('s_memtime s[88:89]\ns_waitcnt lgkmcnt(0)\ns_sub_u32 s97, s88, s100')
    A(f"""v_lshrrev_b32 v0, 4, v{LANE}
    v_lshlrev_b32 v0, 2, v0
    v_add_u32 v1, s44, v0
    v_lshlrev_b32 v1, 8, v1
    v_lshrrev_b32 v2, 1, v{cJ16}
    s_lshl_b32 s45, s40, 7
    v_add3_u32 v1, v1, v2, s45
    v_mov_b32 v3, {hex(LOG2E_NEG)}
    v_mov_b32 v4, 0x80000000""")
    for r in range(4):
        for t in range(4): A(f"v_mul_f32 v{8+t}, v3, v{ACC+4*t+r}")
        for t in range(4): A(f"v_exp_f32 v{8+t}, v{8+t}")
        A(f"v_add_u32 v5, {r}, v0\nv_cmp_gt_u32 vcc, s43, v5")
        for t in range(4): A(f"v_add_f32 v{8+t}, 1.0, v{8+t}")
        for t in range(4): A(f"v_rcp_f32 v{8+t}, v{8+t}")
        A(f"v_cndmask_b32 v{16+r}, v4, v1, vcc")
        for t in range(4): A(f"v_mul_f32 v{8+t}, v{8+t}, v{ACC+4*t+r}")
        A(f"""v_cvt_pk_bf16_f32 v{20+2*r}, v8, v9
        v_cvt_pk_bf16_f32 v{21+2*r}, v10, v11
        buffer_store_dwordx2 v[{20+2*r}:{21+2*r}], v{16+r}, s[28:31], 0 offen offset:{r*256}""")
    if STAMP:
        A("s_waitcnt vmcnt(0)")
        stamp(6,1)
        stamp_flush(1)
    A("s_endpgm")
    fallback()
    A("L_k2_end:\ns_endpgm")

def fallback():
    LANE=121; TID=123
    A(f"""L_k2_fallback:
    s_mov_b64 exec, -1
    s_load_dwordx2 s[50:51], s[0:1], 8
    s_load_dwordx4 s[52:55], s[0:1], 16
    s_load_dwordx4 s[56:59], s[0:1], 32
    s_load_dwordx2 s[60:61], s[0:1], 48
    s_waitcnt vmcnt(0) lgkmcnt(0)
    s_barrier""")
    srd(8,50,51,0,E*32)
    srd(12,52,53,0,E*4)
    srd(16,54,55,0,E*4)
    srd(24,56,57,0,128*256)
    srd(32,58,59,0,128*256)
    srd(36,60,61,0,272*256)
    A(f"""v_mov_b32 v0, 0
    v_mov_b32 v1, 0
    v_mov_b32 v2, 0
    v_mov_b32 v3, 0
    v_lshlrev_b32 v4, 4, v{TID}
    ds_write_b128 v4, v[0:3]
    ds_write_b128 v4, v[0:3] offset:16384
    ds_write_b128 v4, v[0:3] offset:32768
    ds_write_b128 v4, v[0:3] offset:49152
    s_lshl_b32 s45, s40, 7
    v_lshl_add_u32 v5, v{LANE}, 1, s45
    v_lshlrev_b32 v6, 2, v{LANE}
    s_mul_i32 s46, s41, {BS}
    s_lshl_b32 s47, s3, 6
    s_waitcnt lgkmcnt(0)
    s_barrier
L_fb_chunk:
    s_cmp_ge_u32 s47, {E}
    s_cbranch_scc1 L_fb_fin
    s_lshl_b32 s48, s47, 2
    buffer_load_dword v7, v6, s[16:19], s48 offen
    buffer_load_dword v8, v6, s[12:15], s48 offen
    s_waitcnt vmcnt(0)
    v_subrev_u32 v9, s46, v7
    v_cmp_gt_u32 s[62:63], v10, v9
    """.replace("v_cmp_gt_u32 s[62:63], v10, v9",f"v_mov_b32 v10, {BS}\nv_cmp_gt_u32 s[62:63], v10, v9")+f"""
L_fb_edge:
    s_cmp_eq_u64 s[62:63], 0
    s_cbranch_scc1 L_fb_next
    s_ff1_i32_b64 s49, s[62:63]
    s_bitset0_b64 s[62:63], s49
    v_readlane_b32 s64, v7, s49
    v_readlane_b32 s65, v8, s49
    s_add_u32 s66, s47, s49
    s_lshl_b32 s67, s64, 8
    s_lshl_b32 s68, s65, 8
    s_lshl_b32 s66, s66, 5
    s_nop 2
    buffer_load_dword v11, v6, s[20:23], s67 offen
    buffer_load_dword v12, v6, s[20:23], s68 offen
    v_and_b32 v14, 28, v6
    buffer_load_dword v13, v14, s[8:11], s66 offen
    v_mov_b32 v15, 0
    v_mov_b32 v16, 0
    s_mov_b32 s69, 0
    s_waitcnt vmcnt(0)
L_fb_k:
    s_lshl_b32 s70, s69, 9
    s_add_u32 s71, s70, {128*256}
    buffer_load_ushort v17, v5, s[36:39], s70 offen
    buffer_load_ushort v18, v5, s[36:39], s70 offen offset:256
    buffer_load_ushort v19, v5, s[36:39], s71 offen
    buffer_load_ushort v20, v5, s[36:39], s71 offen offset:256
    buffer_load_ushort v21, v5, s[32:35], s70 offen
    buffer_load_ushort v22, v5, s[32:35], s70 offen offset:256
    v_readlane_b32 s72, v11, s69
    v_readlane_b32 s73, v12, s69
    s_lshl_b32 s74, s72, 16
    s_and_b32 s72, s72, 0xffff0000
    s_lshl_b32 s75, s73, 16
    s_and_b32 s73, s73, 0xffff0000
    s_waitcnt vmcnt(0)""")
    for i in range(17,23): A(f"v_lshlrev_b32 v{i}, 16, v{i}")
    A(f"""v_fmac_f32 v15, s74, v17
    v_fmac_f32 v15, s72, v18
    v_fmac_f32 v15, s75, v19
    v_fmac_f32 v15, s73, v20
    v_fmac_f32 v16, s75, v21
    v_fmac_f32 v16, s73, v22
    s_add_u32 s69, s69, 1
    s_cmp_lt_u32 s69, 64
    s_cbranch_scc1 L_fb_k
    s_mov_b32 s69, 0
L_fb_ke:
    s_lshl_b32 s70, s69, 9
    s_add_u32 s70, s70, {256*256}
    buffer_load_ushort v17, v5, s[36:39], s70 offen
    buffer_load_ushort v18, v5, s[36:39], s70 offen offset:256
    v_readlane_b32 s72, v13, s69
    s_lshl_b32 s74, s72, 16
    s_and_b32 s72, s72, 0xffff0000
    s_waitcnt vmcnt(0)
    v_lshlrev_b32 v17, 16, v17
    v_lshlrev_b32 v18, 16, v18
    v_fmac_f32 v15, s74, v17
    v_fmac_f32 v15, s72, v18
    s_add_u32 s69, s69, 1
    s_cmp_lt_u32 s69, 8
    s_cbranch_scc1 L_fb_ke
    v_mul_f32 v15, {hex(LOG2E_NEG)}, v15
    v_exp_f32 v15, v15
    s_sub_u32 s64, s64, s46
    s_lshl_b32 s64, s64, 8
    v_add_f32 v15, 1.0, v15
    v_rcp_f32 v15, v15
    v_add_u32 v17, s64, v6
    v_mul_f32 v15, v15, v16
    ds_add_f32 v17, v15
    s_branch L_fb_edge
L_fb_next:
    s_add_u32 s47, s47, 1024
    s_branch L_fb_chunk
L_fb_fin:
    s_waitcnt lgkmcnt(0)
    s_barrier
    s_mov_b32 s47, s3
L_fb_node:
    s_cmp_ge_u32 s47, {BS}
    s_cbranch_scc1 L_k2_end
    s_add_u32 s64, s46, s47
    s_lshl_b32 s67, s64, 8
    buffer_load_dword v11, v6, s[20:23], s67 offen
    s_lshl_b32 s48, s47, 8
    v_add_u32 v17, s48, v6
    ds_read_b32 v15, v17
    s_mov_b32 s69, 0
    s_waitcnt vmcnt(0) lgkmcnt(0)
L_fb_ku:
    s_lshl_b32 s70, s69, 9
    buffer_load_ushort v17, v5, s[24:27], s70 offen
    buffer_load_ushort v18, v5, s[24:27], s70 offen offset:256
    v_readlane_b32 s72, v11, s69
    s_lshl_b32 s74, s72, 16
    s_and_b32 s72, s72, 0xffff0000
    s_waitcnt vmcnt(0)
    v_lshlrev_b32 v17, 16, v17
    v_lshlrev_b32 v18, 16, v18
    v_fmac_f32 v15, s74, v17
    v_fmac_f32 v15, s72, v18
    s_add_u32 s69, s69, 1
    s_cmp_lt_u32 s69, 64
    s_cbranch_scc1 L_fb_ku
    v_mul_f32 v16, {hex(LOG2E_NEG)}, v15
    v_exp_f32 v16, v16
    s_nop 0
    v_add_f32 v16, 1.0, v16
    v_rcp_f32 v16, v16
    s_nop 0
    v_mul_f32 v15, v15, v16
    v_cvt_pk_bf16_f32 v15, v15, v15
    buffer_store_short v15, v5, s[28:31], s67 offen
    s_add_u32 s47, s47, 16
    s_branch L_fb_node""")

def desc(name, vg, sg=102):
    return f""".amdhsa_kernel {name}
  .amdhsa_next_free_vgpr {vg}
  .amdhsa_next_free_sgpr {sg}
  .amdhsa_accum_offset {vg}
  .amdhsa_group_segment_fixed_size 0
  .amdhsa_kernarg_size 80
  .amdhsa_user_sgpr_count 2
  .amdhsa_user_sgpr_kernarg_segment_ptr 1
  .amdhsa_system_sgpr_workgroup_id_x 1
.end_amdhsa_kernel
"""
k1(); k2()
errs=check(A.lines)
for e in errs: print(e, file=sys.stderr)
hdr=open('gather_scatter__edge_featured_mpnn_egc__graph.s.ref').read().split('; Override launch')[0]
xl="; @launch kernel=nop_kernel grid=(256,1,1) block=(64,1,1) lds=0\n"
pre=xl if OPT.get('nop')=='pre' else ''; post=xl if OPT.get('nop')=='post' else ''
if OPT.get('nop'): A(".p2align 8\nnop_kernel:\ns_endpgm")
out=hdr+pre+f"""; Two launches: prep (edge partition + node tables), main (gated gather / aggregate / silu)
; @launch kernel=prep_kernel grid=(256,1,1) block=(1024,1,1) lds={K1_LDS}
; @launch kernel=main_kernel grid=(256,1,1) block=(1024,1,1) lds={K2_LDS}
{post}.amdgcn_target "amdgcn-amd-amdhsa--gfx950"
.text
.globl prep_kernel
.type prep_kernel,@function
.globl main_kernel
.type main_kernel,@function
"""+A.text()+""".section .rodata,"a"
.p2align 6
"""+desc("prep_kernel",128)+".p2align 6\n"+desc("main_kernel",128)+((".p2align 6\n"+desc("nop_kernel",8,16)) if OPT.get('nop') else '')
open(sys.argv[1],'w').write(out)
print("written",sys.argv[1],len(A.lines),"lines; hazards:",len(errs))
```

```python
import sys
from dsl import *
OPT=dict(a.split('=') if '=' in a else (a,'1') for a in sys.argv[2:])
STAMP=int(OPT.get('stamp',0))
def hint(k,d=''):
    v=OPT.get(k,d); return '' if v=='none' else v.replace('+',' ')
NTI=hint('nti'); NTE=hint('nte'); NTX=hint('ntx'); NT=hint('nt2'); OST=hint('ost','sc0+sc1')
ST=OPT.get('st','sc0 sc1')
if ST=='none': ST=''
ST=ST.replace('+',' ')

N=25000; E=400000; BS=196; CH=3136
NROW=25088; HS=NROW*256
TAB_OFF=0; REC_OFF=0x0D00000; EP_OFF=0x1100000; MISC_OFF=0x3100000
WH=0x9000; CIMG=0x8000; FLAGO=0x12000; MISC_SZ=0x13000
LOG2E=0x3fb8aa3b
STAMP_OFF=0x3200000
LOG2E_NEG=0xbfb8aa3b
A=Asm()

def srd(s, base_lo, base_hi, off, size):
    if off:
        A(f"s_add_u32 s{s}, s{base_lo}, {hex(off)}\ns_addc_u32 s{s+1}, s{base_hi}, 0")
    else:
        A(f"s_mov_b32 s{s}, s{base_lo}\ns_mov_b32 s{s+1}, s{base_hi}")
    A(f"s_mov_b32 s{s+2}, {hex(size)}\ns_mov_b32 s{s+3}, 0x20000")

def stamp(idx, kern):
    if not STAMP: return
    A(f"""s_memrealtime s[88:89]
    s_waitcnt lgkmcnt(0)
    s_mov_b32 s{90+idx}, s88""")
def stamp_init(kern, wave_s, wsl, wsh):
    if not STAMP: return
    for i in range(8): A(f"s_mov_b32 s{90+i}, 0")
    A(f"s_add_u32 s98, s{wsl}, {hex(STAMP_OFF+kern*0x80000)}\ns_addc_u32 s99, s{wsh}, 0")
def stamp_flush(kern=0):
    if not STAMP: return
    if STAMP==2:
        sel=[0,1,2,5] if kern==0 else [0,2,3,6]
        if kern==0: A("s_and_b32 s4, s2, 15\ns_cmp_lg_u32 s4, 0\ns_cbranch_scc1 L_sf_0_3")
        A(f"""s_load_dwordx2 s[4:5], s[0:1], 64
        s_waitcnt lgkmcnt(0)
        s_add_u32 s4, s4, {512*(1-kern)}
        s_addc_u32 s5, s5, 0
        s_cmp_lg_u32 s3, {12 if kern==0 else 15}
        s_cbranch_scc1 L_sf_{kern}_3
        s_mov_b32 s6, 256
        s_mov_b32 s7, 0x20000
        s_mov_b64 exec, 1
        v_mov_b32 v8, 0""")
        for n,i in enumerate(sel):
            A(f"""v_mov_b32 v0, s{90+i}
            v_not_b32 v1, v0
            s_cmp_eq_u32 s{90+i}, 0
            s_cbranch_scc1 L_sf_{kern}_{n}
            buffer_atomic_umax v1, v8, s[4:7], 0 offen offset:{kern*32+n*8}
            buffer_atomic_umax v0, v8, s[4:7], 0 offen offset:{kern*32+n*8+4}
L_sf_{kern}_{n}:""")
        return
    A("""s_mov_b32 s4, s98
    s_mov_b32 s5, s99
    s_mov_b32 s6, 0x80000
    s_mov_b32 s7, 0x20000
    s_lshl_b32 s8, s2, 4
    s_add_u32 s8, s8, s3
    s_lshl_b32 s8, s8, 6
    s_mov_b64 exec, 1
    v_mov_b32 v8, 0""")
    for i in range(8): A(f"v_mov_b32 v{i}, s{90+i}")
    A("buffer_store_dwordx4 v[0:3], v8, s[4:7], s8 offen\nbuffer_store_dwordx4 v[4:7], v8, s[4:7], s8 offen offset:16")

K1_E=0; K1_REC=100352; K1_PERM=K1_REC+32768; K1_HIST=K1_PERM+16384; K1_OVF=K1_HIST+1024; K1_LDS=K1_OVF+256
WROW=544
def woff(k): return k*WROW+(k>>3)*128

def k1():
    A(".p2align 8\nprep_kernel:")
    A("""s_cmp_ge_u32 s2, 256
    s_cbranch_scc1 L_k1_end
    s_load_dwordx4 s[4:7], s[0:1], 0
    s_load_dwordx4 s[8:11], s[0:1], 16
    s_load_dwordx4 s[12:15], s[0:1], 32
    s_load_dwordx2 s[16:17], s[0:1], 48
    s_load_dwordx2 s[18:19], s[0:1], 72
    v_lshrrev_b32 v1, 6, v0
    v_and_b32 v2, 63, v0
    v_readfirstlane_b32 s3, v1
    v_lshlrev_b32 v3, 4, v2
    v_lshlrev_b32 v4, 4, v0
    s_waitcnt lgkmcnt(0)""")
    if OPT.get('cpf','1')!='0':
        A(f"""s_cmp_ge_u32 s3, 13
        s_cbranch_scc1 L_k1_nocpf
        s_getpc_b64 s[20:21]
L_k1_pc:
        s_sub_u32 s20, s20, L_k1_pc-prep_kernel
        s_subb_u32 s21, s21, 0
        global_load_dwordx4 v[120:123], v4, s[20:21]
L_k1_nocpf:""")
    stamp_init(0,3,18,19)
    stamp(0,0)
    srd(44,18,19,MISC_OFF,MISC_SZ)
    if OPT.get('until') or OPT.get('until0') or OPT.get('until1'):
        A(f"""s_memrealtime s[60:61]
        s_waitcnt lgkmcnt(0)
        s_or_b32 s62, s2, s3
        s_cmp_lg_u32 s62, 0
        s_cbranch_scc1 L_k1_not0
        v_mov_b32 v100, s60
        v_mov_b32 v101, {FLAGO+2048}
        buffer_store_dword v100, v101, s[44:47], 0 offen sc0 sc1
L_k1_not0:""")
    A("""s_cmp_ge_u32 s2, 128
    s_cbranch_scc1 L_k1_gemm""")
    srd(20,10,11,0,E*4)
    srd(24,8,9,0,E*4)
    srd(28,6,7,0,E*32)
    srd(32,18,19,REC_OFF,0x400000)
    srd(36,18,19,EP_OFF,0x2000000)
    D=8; S=12
    A(f"""s_mul_i32 s50, s2, {CH}
    s_sub_u32 s51, {E}, s50
    s_lshr_b32 s51, s51, 2
    s_min_u32 s51, s51, {CH//4}
    s_lshl_b32 s52, s50, 2
    v_cmp_gt_u32 vcc, s51, v0
    s_mov_b64 s[54:55], vcc
    s_mov_b64 exec, vcc
    s_cbranch_execz L_k1_noidx
    buffer_load_dwordx4 v[{D}:{D+3}], v4, s[20:23], s52 offen {NTI}
    buffer_load_dwordx4 v[{S}:{S+3}], v4, s[24:27], s52 offen {NTI}
L_k1_noidx:
    s_mov_b64 exec, -1
    s_lshl_b32 s53, s3, 10
    s_lshl_b32 s56, s50, 5
    s_add_u32 s56, s56, s53
    v_mov_b32 v16, -1
    v_mov_b32 v17, -1
    v_mov_b32 v18, -1
    v_mov_b32 v19, -1
    v_mov_b32 v20, 0
    v_add_u32 v5, {K1_REC}, v4
    v_lshlrev_b32 v6, 2, v0
    v_add_u32 v6, {K1_HIST}, v6
    ds_write_b128 v5, v[16:19]
    ds_write_b128 v5, v[16:19] offset:16384
    v_cmp_gt_u32 vcc, 0x140, v0
    s_mov_b64 exec, vcc
    ds_write_b32 v6, v20
    s_mov_b64 exec, -1
    v_mov_b32 v20, 1
    v_mov_b32 v22, 21400
    v_mov_b32 v23, -196
    v_mov_b32 v24, 5372
    v_mov_b32 v25, 208
    v_mov_b32 v26, 669
    s_waitcnt lgkmcnt(0)
    s_barrier""")
    for i in range(7):
        if i==6: A("s_cmp_ge_u32 s3, 2\ns_cbranch_scc1 L_k1_dmadone")
        A(f"""s_mov_b32 m0, s53
        s_add_u32 s53, s53, 16384
        buffer_load_dwordx4 v3, s[28:31], s56 offen {NTE} lds
        s_add_u32 s56, s56, 16384""")
    A("L_k1_dmadone:\ns_waitcnt vmcnt(6)")
    stamp(1,0)
    A("""s_mov_b64 exec, s[54:55]
    s_cbranch_execz L_k1_b1""")
    B,RC,HA,SH,OLD,T=28,32,36,40,44,60
    for j in range(4):
        A(f"""v_mul_u32_u24 v{T}, v{D+j}, v22
        v_mul_u32_u24 v{T+1}, v{S+j}, v26
        v_lshrrev_b32 v{B+j}, 22, v{T}
        v_lshrrev_b32 v{T+1}, 22, v{T+1}
        v_lshlrev_b32 v{HA+j}, 2, v{B+j}
        v_and_b32 v{SH+j}, 2, v{T+1}
        v_add_u32 v{HA+j}, {K1_HIST}, v{HA+j}
        v_lshlrev_b32 v{SH+j}, 3, v{SH+j}
        v_mad_i32_i24 v{T}, v{B+j}, v23, v{D+j}
        v_lshlrev_b32 v{T+4}, v{SH+j}, v20
        v_mul_u32_u24 v{T+2}, v{T}, v24
        ds_add_rtn_u32 v{OLD+j}, v{HA+j}, v{T+4}
        v_lshrrev_b32 v{T+2}, 16, v{T+2}
        v_mad_u32_u24 v{T+3}, v{T+2}, 52, v25
        v_mad_i32_i24 v{T}, v{T+2}, -12, v{T}
        v_lshrrev_b32 v{T+3}, 8, v{T+3}
        v_lshl_add_u32 v{T+2}, v{T+2}, 2, v{T+1}
        v_sub_u32 v{T}, v{T}, v{T+3}
        v_lshl_or_b32 v{T}, v{T}, 16, v{S+j}
        v_lshl_or_b32 v{RC+j}, v{T+2}, 24, v{T}""")
    A("""L_k1_b1:
    s_mov_b64 exec, -1
    s_waitcnt lgkmcnt(0)
    s_barrier""")
    stamp(2,0)
    FIN=8
    A(f"""v_cmp_gt_u32 vcc, 128, v0
    s_mov_b64 exec, vcc
    s_cbranch_execz L_k1_nohdr
    ds_read_b32 v{T}, v6
    v_lshlrev_b32 v{T+1}, 8, v0
    v_add_u32 v{T+1}, {K1_REC+252}, v{T+1}
    v_mov_b32 v{T+3}, {K1_OVF}
    v_mov_b32 v{T+4}, 0x3f003f
    s_waitcnt lgkmcnt(0)
    v_pk_min_u16 v{T+4}, v{T}, v{T+4}
    ds_write_b32 v{T+1}, v{T+4}
    v_add_u32_sdwa v{T+2}, v{T}, v{T} dst_sel:DWORD dst_unused:UNUSED_PAD src0_sel:WORD_0 src1_sel:WORD_1
    v_cmp_lt_u32 vcc, 63, v{T+2}
    s_and_b64 exec, exec, vcc
    ds_write_b32 v{T+3}, v20
L_k1_nohdr:
    s_mov_b64 exec, s[54:55]
    s_cbranch_execz L_k1_b2""")
    for j in range(4): A(f"ds_read_u16 v{FIN+j}, v{HA+j}")
    A(f"v_lshlrev_b32 v{T+8}, 2, v0")
    for j in range(4):
        A(f"v_bfe_u32 v{OLD+j}, v{OLD+j}, v{SH+j}, 16\nv_lshrrev_b32 v{SH+j}, 4, v{SH+j}")
    A("s_waitcnt lgkmcnt(0)")
    for j in range(4):
        A(f"""v_mad_u32_u24 v{T}, v{SH+j}, v{FIN+j}, v{OLD+j}
        v_min_u32 v{T}, 62, v{T}
        v_lshl_add_u32 v{T+1}, v{B+j}, 6, v{T}
        v_and_b32 v{T+2}, 15, v{T}
        v_lshrrev_b32 v{T+3}, 4, v{T}
        v_lshlrev_b32 v{T+1}, 1, v{T+1}
        v_lshl_add_u32 v{T+2}, v{T+2}, 2, v{T+3}
        v_add_u32 v{T+1}, {K1_PERM}, v{T+1}
        v_lshl_add_u32 v{T+2}, v{B+j}, 6, v{T+2}
        v_add_u32 v{T+9}, {j}, v{T+8}
        v_lshlrev_b32 v{T+2}, 2, v{T+2}
        ds_write_b16 v{T+1}, v{T+9}
        v_add_u32 v{T+2}, {K1_REC}, v{T+2}
        ds_write_b32 v{T+2}, v{RC+j}""")
    A(f"""L_k1_b2:
    s_mov_b64 exec, -1
    s_waitcnt lgkmcnt(0)
    s_barrier""")
    stamp(3,0)
    EI=8; EV=64
    A(f"""ds_read_b128 v[16:19], v5
    ds_read_b128 v[20:23], v5 offset:16384
    v_and_b32 v24, 7, v2
    s_lshl_b32 s57, s3, 5
    v_lshl_add_u32 v24, v24, 2, s57
    v_add_u32 v24, {K1_HIST}, v24
    ds_read_b32 v26, v24
    v_lshrrev_b32 v28, 1, v2
    s_lshl_b32 s57, s3, 10
    s_add_u32 s57, s57, {K1_PERM}
    v_lshl_add_u32 v29, v28, 1, s57""")
    for i in range(8): A(f"ds_read_u16 v{EI+i}, v29 offset:{i*128}")
    A(f"""v_lshrrev_b32 v30, 4, v0
    v_and_b32 v31, 15, v0
    v_lshlrev_b32 v30, 15, v30
    v_lshl_or_b32 v30, v31, 4, v30
    s_lshl_b32 s58, s2, 8
    s_add_u32 s59, s58, 0x200000
    v_and_b32 v31, 1, v2
    v_lshlrev_b32 v31, 4, v31
    s_waitcnt lgkmcnt(0)
    buffer_store_dwordx4 v[16:19], v30, s[32:35], s58 offen {ST}
    buffer_store_dwordx4 v[20:23], v30, s[32:35], s59 offen {ST}
    v_add_u32_sdwa v26, v26, v26 dst_sel:DWORD dst_unused:UNUSED_PAD src0_sel:WORD_0 src1_sel:WORD_1
    v_min_u32 v26, 64, v26
    s_waitcnt vmcnt(2)
    s_barrier""")
    stamp(6,0)
    for i in range(8):
        A(f"v_lshl_add_u32 v{EI+i}, v{EI+i}, 5, v31\nds_read_b128 v[{EV+4*i}:{EV+4*i+3}], v{EI+i}\nv_readlane_b32 s{60+i}, v26, {i}")
    A(f"""s_lshl_b32 s57, s3, 21
    s_lshl_b32 s58, s2, 11
    s_add_u32 s57, s57, s58""")
    for i in range(8):
        A(f"""v_cmp_gt_u32 vcc, s{60+i}, v28
        s_mov_b64 exec, vcc
        s_waitcnt lgkmcnt({7-i})
        buffer_store_dwordx4 v[{EV+4*i}:{EV+4*i+3}], v3, s[36:39], s57 offen {ST}
        s_mov_b64 exec, -1
        s_add_u32 s57, s57, 0x40000""")
    A(f"s_sub_u32 s57, s57, 0x200000\nv_add_u32 v32, 32, v28")
    for i in range(8):
        L=A.label("k1long")
        A(f"""s_cmp_le_u32 s{60+i}, 32
        s_cbranch_scc1 {L}
        ds_read_u16 v33, v29 offset:{i*128+64}
        s_waitcnt lgkmcnt(0)
        v_lshl_add_u32 v33, v33, 5, v31
        ds_read_b128 v[36:39], v33
        v_cmp_gt_u32 vcc, s{60+i}, v32
        s_mov_b64 exec, vcc
        s_waitcnt lgkmcnt(0)
        buffer_store_dwordx4 v[36:39], v3, s[36:39], s57 offen offset:1024 {ST}
        s_mov_b64 exec, -1
        s_nop 0
{L}:
        s_add_u32 s57, s57, 0x40000""")
    A("s_branch L_k1_flag")
    A("L_k1_gemm:")
    srd(20,4,5,0,N*256)
    srd(24,16,17,0,272*256)
    srd(28,14,15,0,128*256)
    srd(32,12,13,0,128*256)
    srd(36,18,19,TAB_OFF,HS)
    srd(40,18,19,TAB_OFF+HS,HS)
    XR=8; WL=24; XA=40; ACC=56; BF=8
    A(f"""s_sub_u32 s50, s2, 128
    s_lshr_b32 s51, s50, 3
    s_lshl_b32 s52, s3, 4
    s_add_u32 s51, s51, s52
    s_cmp_lt_u32 s51, 196
    s_cselect_b32 s52, 0, 0x10000
    s_add_u32 s51, s51, s52
    s_and_b32 s52, s2, 3
    s_mul_i32 s52, s52, 392
    s_add_u32 s51, s51, s52
    s_bfe_u32 s52, s2, 0x10002
    s_mul_i32 s52, s52, 196
    s_add_u32 s51, s51, s52
    v_mov_b32 v6, 0
    v_mov_b32 v7, {K1_OVF}
    ds_write_b32 v7, v6
    s_cmp_ge_u32 s51, 1568
    s_cbranch_scc1 L_k1_nox
    s_lshl_b32 s52, s51, 12
    v_lshrrev_b32 v5, 2, v2
    v_and_b32 v6, 3, v2
    v_lshlrev_b32 v5, 8, v5
    v_lshl_or_b32 v5, v6, 4, v5""")
    for ks in range(4): A(f"buffer_load_dwordx4 v[{XR+4*ks}:{XR+4*ks+3}], v5, s[20:23], s52 offen offset:{ks*64} {NTX}")
    A(f"""L_k1_nox:
    s_mov_b32 s53, {128*256}
    s_mov_b32 s54, {128*256+16384}
    s_mov_b32 s55, 16384
    buffer_load_dwordx4 v[{WL}:{WL+3}], v4, s[24:27], s53 offen
    buffer_load_dwordx4 v[{WL+4}:{WL+7}], v4, s[24:27], s54 offen
    buffer_load_dwordx4 v[{WL+8}:{WL+11}], v4, s[28:31], 0 offen
    buffer_load_dwordx4 v[{WL+12}:{WL+15}], v4, s[28:31], s55 offen
    v_lshrrev_b32 v5, 4, v0
    v_lshrrev_b32 v6, 7, v0
    v_mul_u32_u24 v5, {WROW}, v5
    v_lshl_add_u32 v5, v6, 7, v5
    v_bfe_u32 v6, v0, 3, 1
    v_lshl_add_u32 v5, v6, 7, v5
    v_and_b32 v6, 7, v0
    v_lshl_add_u32 v5, v6, 2, v5
    s_mov_b32 s56, 0x05040100
    s_mov_b32 s57, 0x07060302""")
    A(f"""s_cmp_lg_u32 s3, 15
    s_cbranch_scc1 L_k1_noimg
    s_cmp_ge_u32 s50, 72
    s_cbranch_scc1 L_k1_noimg
    v_and_b32 v6, 15, v2
    v_lshrrev_b32 v7, 4, v2
    v_lshlrev_b32 v6, 3, v6
    s_cmp_ge_u32 s50, 64
    s_cbranch_scc1 L_k1_cimg
    s_bfe_u32 s58, s50, 0x10005
    s_bfe_u32 s59, s50, 0x20002
    s_and_b32 s60, s50, 3
    s_lshl_b32 s58, s58, 7
    s_lshl_b32 s59, s59, 1
    s_lshl_b32 s60, s60, 13
    s_add_u32 s58, s58, s59
    s_add_u32 s58, s58, s60
    v_lshl_add_u32 v6, v7, 11, v6
    s_bitcmp1_b32 s50, 4
    s_cbranch_scc1 L_k1_uimg""")
    for i in range(8): A(f"buffer_load_ushort v{64+i}, v6, s[24:27], s58 offen offset:{i*256}")
    A("s_branch L_k1_imgst\nL_k1_uimg:")
    for i in range(8): A(f"buffer_load_ushort v{64+i}, v6, s[32:35], s58 offen offset:{i*256}")
    A(f"""L_k1_imgst:
    s_and_b32 s58, s50, 31
    s_lshl_b32 s58, s58, 10
    s_lshr_b32 s59, s50, 5
    s_mul_i32 s59, s59, {WH}
    s_add_u32 s58, s58, s59
    s_waitcnt vmcnt(0)
    v_lshl_or_b32 v56, v65, 16, v64
    v_lshl_or_b32 v57, v67, 16, v66
    v_lshl_or_b32 v58, v69, 16, v68
    v_lshl_or_b32 v59, v71, 16, v70
    buffer_store_dwordx4 v[56:59], v3, s[44:47], s58 offen
    s_branch L_k1_noimg
L_k1_cimg:
    s_sub_u32 s61, s50, 64
    s_lshr_b32 s58, s61, 2
    s_and_b32 s59, s61, 3
    s_lshl_b32 s58, s58, 7
    s_lshl_b32 s59, s59, 1
    s_add_u32 s58, s58, s59
    s_add_u32 s58, s58, {256*256}
    v_lshl_add_u32 v6, v7, 10, v6""")
    for i in range(4): A(f"buffer_load_ushort v{56+i}, v6, s[24:27], s58 offen offset:{i*256}")
    A(f"""s_mov_b32 s59, {hex(LOG2E_NEG)}
    s_and_b32 s58, s61, 3
    s_lshl_b32 s58, s58, 9
    s_lshr_b32 s60, s61, 2
    s_mul_i32 s60, s60, {WH}
    s_add_u32 s58, s58, s60
    s_add_u32 s58, s58, {CIMG}
    v_lshlrev_b32 v7, 3, v2
    s_waitcnt vmcnt(0)""")
    for i in range(4): A(f"v_lshlrev_b32 v{56+i}, 16, v{56+i}\nv_mul_f32 v{56+i}, s59, v{56+i}")
    A(f"""v_cvt_pk_bf16_f32 v56, v56, v57
    v_cvt_pk_bf16_f32 v57, v58, v59
    buffer_store_dwordx2 v[56:57], v7, s[44:47], s58 offen
L_k1_noimg:""")
    for u in range(4):
        w=WL+4*u; base=(u&1)*woff(64)+(u>>1)*256
        A(f"""s_waitcnt vmcnt({3-u})
        v_perm_b32 v60, v{w+2}, v{w}, s56
        v_perm_b32 v61, v{w+2}, v{w}, s57
        v_perm_b32 v62, v{w+3}, v{w+1}, s56
        v_perm_b32 v63, v{w+3}, v{w+1}, s57
        ds_write_b32 v5, v60 offset:{base}
        ds_write_b32 v5, v61 offset:{base+32}
        ds_write_b32 v5, v62 offset:{base+64}
        ds_write_b32 v5, v63 offset:{base+96}""")
    A(f"""v_and_b32 v6, 15, v2
    v_lshrrev_b32 v7, 4, v2
    v_lshl_add_u32 v60, v6, 2, v7
    v_lshlrev_b32 v60, 2, v60
    s_cmp_ge_u32 s51, 1568
    s_cbranch_scc1 L_k1_nobp""")
    for i in range(16): A(f"ds_bpermute_b32 v{XA+i}, v60, v{XR+i}")
    A(f"""L_k1_nobp:
    v_bfe_u32 v61, v2, 2, 2
    v_lshl_add_u32 v61, v7, 3, v61
    v_mul_u32_u24 v61, {WROW}, v61
    v_lshl_add_u32 v61, v7, 7, v61
    v_and_b32 v62, 3, v2
    v_lshl_add_u32 v5, v62, 3, v61
    s_waitcnt lgkmcnt(0)
    s_barrier""")
    stamp(1,0)
    A("""s_cmp_ge_u32 s51, 1568
    s_cbranch_scc1 L_k1_gdone""")
    seq=[(h,t,mat,ks) for h in range(2) for t in range(4) for mat in range(2) for ks in range(4)]
    def rd(n):
        h,t,mat,ks=seq[n]; o=woff(32*ks)+mat*256+h*128+t*32; b=BF+4*(n%8)
        A(f"ds_read_b64_tr_b16 v[{b}:{b+1}], v5 offset:{o}\nds_read_b64_tr_b16 v[{b+2}:{b+3}], v5 offset:{o+4*WROW}")
    def acc(h,t,mat): return ACC+((h*4+t)*2+mat)*4
    PF=6
    for n in range(PF): rd(n)
    for n in range(64):
        h,t,mat,ks=seq[n]; b=BF+4*(n%8); a=acc(h,t,mat)
        out=min(63-n,PF-1)
        A(f"s_waitcnt lgkmcnt({2*out})")
        A(f"v_mfma_f32_16x16x32_bf16 v[{a}:{a+3}], v[{XA+4*ks}:{XA+4*ks+3}], v[{b}:{b+3}], {'0' if ks==0 else f'v[{a}:{a+3}]'}")
        if n+PF<64: rd(n+PF)
    stamp(2,0)
    A(f"""v_mov_b32 v8, {hex(LOG2E_NEG)}
    v_mov_b32 v9, 0x7fff
    v_mov_b32 v10, 0xffff0000
    v_mov_b32 v11, 0
    v_lshlrev_b32 v12, 10, v7
    v_lshl_or_b32 v12, v6, 4, v12
    s_nop 3""")
    for h in range(2):
        for r in range(4):
            o=16+4*((h*4+r)%2); tt=24
            for t in range(4): A(f"v_mul_f32 v{tt+t}, v8, v{acc(h,t,0)+r}")
            A(f"v_max3_f32 v11, abs(v{tt}), abs(v{tt+1}), v11\nv_max3_f32 v11, abs(v{tt+2}), abs(v{tt+3}), v11")
            for t in range(4): A(f"v_exp_f32 v{tt+t}, v{tt+t}")
            A("s_nop 0")
            for t in range(4): A(f"v_cvt_pk_f16_f32 v{tt+t}, v{tt+t}, 0")
            for t in range(4): A(f"v_xad_u32 v{tt+4+t}, v{tt+t}, v9, v{acc(h,t,1)+r}")
            for t in range(4): A(f"v_bfi_b32 v{o+t}, v10, v{tt+4+t}, v{tt+t}")
            A(f"buffer_store_dwordx4 v[{o}:{o+3}], v12, s[{36+4*h}:{39+4*h}], s52 offen offset:{r*256} {ST}")
    A(f"""v_mov_b32 v13, 0x41600000
    v_mov_b32 v14, 1
    v_mov_b32 v15, {K1_OVF}
    v_cmp_nle_f32 vcc, v11, v13""")
    A(f"""s_mov_b64 exec, vcc
    ds_write_b32 v15, v14
    s_mov_b64 exec, -1
L_k1_gdone:
    s_waitcnt lgkmcnt(0)
    s_barrier
L_k1_flag:
    s_cmp_lg_u32 s3, 0
    s_cbranch_scc1 L_k1_fin
    v_mov_b32 v15, {K1_OVF}
    ds_read_b32 v14, v15
    s_lshl_b32 s58, s2, 2
    s_add_u32 s58, s58, {FLAGO}
    v_mov_b32 v15, 0
    s_mov_b64 exec, 1
    s_waitcnt lgkmcnt(0)
    buffer_store_dword v14, v15, s[44:47], s58 offen
    s_mov_b64 exec, -1
L_k1_fin:""")
    if STAMP:
        stamp(4,0)
        A("s_waitcnt vmcnt(0)")
        stamp(5,0)
        stamp_flush()
    if OPT.get('k1delay'):
        A(f"""s_memrealtime s[60:61]
        s_waitcnt lgkmcnt(0)
        s_add_u32 s62, s60, {int(OPT['k1delay'])*100}
L_k1_spin:
        s_memrealtime s[60:61]
        s_waitcnt lgkmcnt(0)
        s_cmp_lt_u32 s60, s62
        s_cbranch_scc1 L_k1_spin""")
    A("L_k1_end:\ns_endpgm")

def spin(T,tag):
    A(f"""s_load_dwordx2 s[60:61], s[0:1], 72
    s_waitcnt lgkmcnt(0)
    s_add_u32 s60, s60, {MISC_OFF+FLAGO+2048}
    s_addc_u32 s61, s61, 0
    s_load_dword s62, s[60:61], 0
    s_waitcnt lgkmcnt(0)
    s_add_u32 s62, s62, {int(float(T)*100)}
L_spin_{tag}:
    s_memrealtime s[60:61]
    s_waitcnt lgkmcnt(0)
    s_cmp_lt_u32 s60, s62
    s_cbranch_scc1 L_spin_{tag}""")

PCAP=1728; BCAP=96; WCAP=4*BCAP
K2_E1=PCAP*32; K2_SRC=K2_E1; K2_W=K2_E1+20480; K2_L1=2*PCAP*32; K2_L2=K2_L1+16*WCAP*4
K2_OH=K2_L2+16*WCAP*4; K2_OF=K2_OH+544; K2_HIST=K2_OF+544; K2_FL=K2_HIST+256; K2_AL=K2_FL+4; K2_LDS=K2_HIST+512
assert K2_W+34816<=K2_L1 and K2_OH%32==0 and K2_LDS<=163840 and (K2_L2-K2_L1)%256==0
LST=(K2_L2-K2_L1)//256
ZIDX=(K2_OH+512)//32

def k2():
    L=0; D=32; EE=48; ACC=64; GB=80; AO=96; S=100; LM,LS=102,103; G=104; EA,OA,SA,LMX=108,109,110,111
    WP,CPt=112,113
    cJ16,cG8,cG8O,cS,pL1,pLm,pLs,LANE=114,115,116,117,118,119,120,121
    L16,TID=122,123
    A(".p2align 8\nmain_kernel:")
    A(f"""s_cmp_ge_u32 s2, 256
    s_cbranch_scc1 L_k2_end""")
    if OPT.get('until0'): spin(OPT['until0'],'a')
    A(f"""s_load_dwordx2 s[18:19], s[0:1], 72
    s_load_dwordx2 s[4:5], s[0:1], 0
    s_load_dwordx2 s[6:7], s[0:1], 56
    v_mov_b32 v{TID}, v0
    v_lshrrev_b32 v1, 6, v0
    v_and_b32 v{LANE}, 63, v0
    v_readfirstlane_b32 s3, v1
    v_lshlrev_b32 v{L16}, 4, v{LANE}
    v_lshlrev_b32 v4, 4, v0
    s_bfe_u32 s40, s2, 0x10002
    s_lshr_b32 s41, s2, 3
    s_and_b32 s42, s2, 3
    s_lshl_b32 s42, s42, 5
    s_add_u32 s41, s41, s42
    s_lshl_b32 s45, s41, 15
    s_add_u32 s46, s45, 16384
    s_mov_b32 s10, 0x400000
    s_mov_b32 s11, 0x20000
    s_setprio 3
    s_waitcnt lgkmcnt(0)
    s_add_u32 s8, s18, {hex(REC_OFF)}
    s_addc_u32 s9, s19, 0""")
    R=0; RK=8; HA=16; XR=32
    A(f"""buffer_load_dwordx4 v[{R}:{R+3}], v4, s[8:11], s45 offen {NT}
    buffer_load_dwordx4 v[{R+4}:{R+7}], v4, s[8:11], s46 offen {NT}""")
    stamp_init(1,3,18,19)
    stamp(0,1)
    srd(24,18,19,MISC_OFF,MISC_SZ)
    A(f"""s_lshl_b32 s45, s3, 6
    s_add_u32 s45, s45, {FLAGO}
    v_lshlrev_b32 v25, 2, v{LANE}
    s_mov_b64 exec, 0xffff
    buffer_load_dword v24, v25, s[24:27], s45 offen
    s_mov_b64 exec, -1""")
    A(f"""s_add_u32 s42, s3, 4
    s_mul_i32 s42, s42, 52
    s_lshr_b32 s42, s42, 8
    s_add_u32 s43, s3, 5
    s_mul_i32 s43, s43, 52
    s_lshr_b32 s43, s43, 8
    s_sub_u32 s43, s43, s42
    s_add_u32 s43, s43, 12
    s_mul_i32 s44, s3, 12
    s_add_u32 s42, s42, s44
    s_mul_i32 s44, s41, {BS}
    s_add_u32 s44, s44, s42""")
    srd(20,4,5,0,N*256)
    A(f"""s_lshl_b32 s45, s41, 18
    s_add_u32 s12, s18, s45
    s_addc_u32 s13, s19, 0
    s_add_u32 s12, s12, {hex(EP_OFF)}
    s_addc_u32 s13, s13, 0
    s_mov_b32 s14, 0x40000
    s_mov_b32 s15, 0x20000
    s_mul_i32 s45, s40, {HS}
    s_add_u32 s16, s18, s45
    s_addc_u32 s17, s19, 0
    s_mov_b32 s18, {HS}
    s_mov_b32 s19, 0x20000""")
    srd(28,6,7,0,N*256)
    A(f"""v_cmp_gt_u32 vcc, 136, v{TID}
    v_subrev_u32 v28, 136, v{TID}
    v_mov_b32 v31, 0x3c00
    v_mov_b32 v26, 0x3f80
    v_cndmask_b32 v28, v28, v{TID}, vcc
    v_cndmask_b32 v31, v31, v26, vcc
    v_and_b32 v29, 7, v28
    v_lshrrev_b32 v30, 4, v28
    v_and_b32 v28, 8, v28
    v_lshlrev_b32 v28, 1, v28
    v_cmp_eq_u32 vcc, v29, v30
    v_lshlrev_b32 v31, v28, v31
    v_lshlrev_b32 v29, 2, v{TID}
    v_cndmask_b32 v31, 0, v31, vcc
    v_add_u32 v29, {K2_OH}, v29
    v_cmp_gt_u32 vcc, 400, v{TID}
    s_mov_b64 exec, vcc
    ds_write_b32 v29, v31
    s_mov_b64 exec, -1
    v_lshrrev_b32 v28, 2, v{LANE}
    v_and_b32 v29, 3, v{LANE}
    v_cmp_gt_u32 s[50:51], s43, v28
    v_lshlrev_b32 v28, 8, v28
    v_lshl_or_b32 v28, v29, 4, v28
    s_lshl_b32 s45, s44, 8
    s_lshl_b32 s47, s3, 11
    s_add_u32 m0, s47, {K2_W}
    s_mul_i32 s48, s40, {WH}
    s_add_u32 s47, s47, s48""")
    for i in range(16): A(f"v_mov_b32 v{XR+i}, 0")
    A(f"""s_waitcnt lgkmcnt(0)
    s_barrier
    s_cmp_lg_u32 s3, 15
    s_cbranch_scc1 L_k2_noc
    buffer_load_dwordx4 v{L16}, s[24:27], s47 offen offset:2048 lds
    buffer_load_dwordx4 v{L16}, s[24:27], s47 offen offset:3072 lds
L_k2_noc:
    buffer_load_dwordx4 v{L16}, s[24:27], s47 offen lds
    buffer_load_dwordx4 v{L16}, s[24:27], s47 offen offset:1024 lds
    s_mov_b64 exec, s[50:51]""")
    for ks in range(4): A(f"buffer_load_dwordx4 v[{XR+4*ks}:{XR+4*ks+3}], v28, s[20:23], s45 offen offset:{ks*64} {NT}")
    A(f"""s_mov_b64 exec, -1
    v_and_b32 v28, 15, v{LANE}
    v_lshrrev_b32 v29, 4, v{LANE}
    v_lshlrev_b32 v{cJ16}, 4, v28
    v_lshlrev_b32 v{cG8}, 3, v29
    v_add_u32 v{cG8O}, {K2_OH}, v{cG8}
    v_and_b32 v30, 3, v{LANE}
    v_lshlrev_b32 v30, 3, v30
    v_add_u32 v{cS}, {K2_OH}, v30
    s_mul_i32 s47, s3, {WCAP*4}
    s_add_u32 s48, s47, {K2_L2}
    s_add_u32 s47, s47, {K2_L1}
    v_lshl_add_u32 v{pL1}, v29, 4, s47
    v_lshl_add_u32 v{pLm}, v28, 2, s48
    v_and_b32 v30, -4, v{LANE}
    v_add_u32 v{pLs}, s48, v30
    v_lshrrev_b32 v30, 4, v{TID}
    v_lshl_add_u32 v29, v30, 6, v28
    v_mov_b32 v31, 1
    v_mov_b32 v30, {OPT.get('srcmask','0x7fff')}
    v_mov_b32 v27, 0xf0000
    v_mov_b32 v25, {K2_FL}
    v_mov_b32 v26, {BCAP*4}
    v_mov_b32 v72, {K2_HIST}
    v_mov_b32 v73, {K2_L1}
    v_mov_b32 v74, {PCAP}
    v_mov_b32 v75, {K2_FL}
    s_mov_b32 s50, 0x80008000
    s_mov_b32 s51, 0x80008000
    s_waitcnt vmcnt(6)""")
    stamp(1,1)
    AL=64; HD=66; OF0=68; OF1=70
    A(f"""s_mov_b64 exec, s[50:51]
    ds_add_rtn_u32 v{AL}, v25, v{R+3} offset:4
    ds_add_rtn_u32 v{AL+1}, v25, v{R+7} offset:4
    s_mov_b64 exec, 0xffff
    ds_or_b32 v25, v24
    s_mov_b64 exec, -1
    v_mov_b32_dpp v{HD}, v{R+3} row_newbcast:15 row_mask:0xf bank_mask:0xf
    v_mov_b32_dpp v{HD+1}, v{R+7} row_newbcast:15 row_mask:0xf bank_mask:0xf""")
    MK=52; O1=48; O2=56
    order=[0,4,1,5,2,6,3,7]
    for j in order:
        Lb=A.label("k2h")
        A(f"v_cmp_le_i32 s[{MK+2*j}:{MK+2*j+1}], 0, v{R+j}")
        if j&3==3: A(f"s_andn2_b64 s[{MK+2*j}:{MK+2*j+1}], s[{MK+2*j}:{MK+2*j+1}], s[50:51]")
        A(f"s_mov_b64 exec, s[{MK+2*j}:{MK+2*j+1}]")
        if j&3>=2: A(f"s_cbranch_execz {Lb}")
        A(f"""v_lshrrev_b32 v{HA+j}, 24, v{R+j}
        v_lshl_add_u32 v24, v{HA+j}, 2, v{72}
        ds_add_rtn_u32 v{RK+j}, v24, v31
        v_and_b32 v{O1+j}, v30, v{R+j}
        v_mad_u32_u24 v{HA+j}, v{HA+j}, v26, v{73}
        v_lshlrev_b32 v{O1+j}, 8, v{O1+j}""")
        if j&3>=2: A(f"{Lb}:")
        A("s_mov_b64 exec, -1")
    A(f"""s_waitcnt lgkmcnt(0)
    v_mov_b32_dpp v{AL}, v{AL} row_newbcast:15 row_mask:0xf bank_mask:0xf
    v_mov_b32_dpp v{AL+1}, v{AL+1} row_newbcast:15 row_mask:0xf bank_mask:0xf""")
    for u in range(2):
        A(f"""v_and_b32 v{HD+u}, 0xffff, v{HD+u}
        v_lshrrev_b32 v{OF1+u}, 16, v{AL+u}
        v_and_b32 v{OF0+u}, 0xffff, v{AL+u}
        v_sub_u32 v{OF1+u}, v{OF1+u}, v{HD+u}
        v_add_u32 v{OF0+u}, v{OF0+u}, v28
        v_add3_u32 v{OF1+u}, v{OF1+u}, v28, v{74}""")
    for j in order:
        Lb=A.label("k2s"); u=j>>2
        A(f"s_mov_b64 exec, s[{MK+2*j}:{MK+2*j+1}]")
        if j&3>=2: A(f"s_cbranch_execz {Lb}")
        A(f"""v_and_b32 v24, 0x2000000, v{R+j}
        v_cmp_ne_u32 vcc, 0, v24
        v_min_u32 v{RK+j}, {BCAP-1}, v{RK+j}
        v_lshl_add_u32 v{RK+j}, v{RK+j}, 2, v{HA+j}
        v_cndmask_b32 v24, v{OF0+u}, v{OF1+u}, vcc
        v_add_u32 v{HA+j}, {16*(j&3)+4096*u}, v29""")
        if j&3: A(f"v_add_u32 v24, {16*(j&3)}, v24")
        A(f"""v_and_or_b32 v{O2+j}, v{R+j}, v27, v24
        v_lshlrev_b32 v24, 1, v24
        ds_write2st64_b32 v{RK+j}, v{O1+j}, v{O2+j} offset0:0 offset1:{LST}
        ds_write_b16 v24, v{HA+j} offset:{K2_SRC}""")
        if j&3>=2: A(f"{Lb}:")
    A(f"""s_mov_b64 exec, -1
    v_lshlrev_b32 v24, 2, v{LANE}
    v_add_u32 v25, {K2_HIST}, v24
    v_add_u32 v26, s47, v24
    v_and_b32 v27, -2, v{LANE}
    s_lshl_b32 s45, s3, 6
    s_add_u32 s45, s45, {K2_SRC}
    v_add_u32 v27, s45, v27
    v_and_b32 v28, 1, v{LANE}
    v_lshlrev_b32 v28, 4, v28
    s_lshl_b32 s45, s3, 2
    s_waitcnt vmcnt(4) lgkmcnt(0)
    s_barrier""")
    stamp(2,1)
    H0=0; FLr=2; SR=4; CP=8
    A(f"""ds_read_b32 v{H0}, v25
    ds_read_b64 v[{FLr}:{FLr+1}], v{75}""")
    for i in range(4): A(f"ds_read_u16 v{SR+i}, v27 offset:{i*1024}")
    for b in range(1,4):
        A(f"""ds_read_b32 v{CP+4*b}, v26 offset:{b*BCAP*4}
        ds_read_b32 v{CP+4*b+1}, v26 offset:{b*BCAP*4+LST*256}
        ds_read_b32 v{CP+4*b+2}, v26 offset:{b*BCAP*4+256}
        ds_read_b32 v{CP+4*b+3}, v26 offset:{b*BCAP*4+256+LST*256}""")
    A(f"""s_waitcnt lgkmcnt(12)
    v_cmp_lt_u32 vcc, {BCAP}, v{H0}
    v_readfirstlane_b32 s70, v{FLr}
    v_readfirstlane_b32 s71, v{FLr+1}""")
    for i in range(4):
        A(f"v_readlane_b32 s{72+i}, v{H0}, s45\ns_add_u32 s45, s45, 1")
    A(f"""s_cmp_lg_u64 vcc, 0
    s_cbranch_scc1 L_k2_fallback
    s_cmp_lg_u32 s70, 0
    s_cbranch_scc1 L_k2_fallback
    s_lshr_b32 s77, s71, 16
    s_and_b32 s76, s71, 0xffff
    s_max_u32 s70, s76, s77
    s_cmp_gt_u32 s70, {PCAP}
    s_cbranch_scc1 L_k2_fallback""")
    def dma(part, SR, H16):
        Lx=A.label("dma")
        A(f"s_lshl_b32 s45, s3, 5\ns_lshl_b32 s46, s3, 10\ns_add_u32 m0, s46, {part*K2_E1}")
        for i in range(4):
            A(f"""s_cmp_ge_u32 s45, s{76+part}
            s_cbranch_scc1 {Lx}
            v_lshl_add_u32 v{SR+i}, v{SR+i}, 5, v{H16}
            s_add_u32 s45, s45, 512
            buffer_load_dwordx4 v{SR+i}, s[12:15], 0 offen {NT} lds""")
            if i<3: A("s_add_u32 m0, m0, 16384")
        A(f"{Lx}:")
    dma(0,SR,28)
    A(f"s_mov_b32 s68, s72\nv_add_u32 v29, 64, v{LANE}\ns_waitcnt lgkmcnt(0)")
    for b in range(1,4):
        Lb=A.label("cp")
        A(f"""v_cmp_gt_u32 vcc, s{72+b}, v{LANE}
        v_lshl_add_u32 v24, s68, 2, v26
        s_add_u32 s68, s68, s{72+b}
        s_mov_b64 exec, vcc
        ds_write2st64_b32 v24, v{CP+4*b}, v{CP+4*b+1} offset0:0 offset1:{LST}
        s_cmp_le_u32 s{72+b}, 64
        s_cbranch_scc1 {Lb}
        v_cmp_gt_u32 vcc, s{72+b}, v29
        s_mov_b64 exec, vcc
        ds_write2st64_b32 v24, v{CP+4*b+2}, v{CP+4*b+3} offset0:1 offset1:{LST+1}
{Lb}:
        s_mov_b64 exec, -1""")
    A(f"""s_sub_u32 s46, 0, s68
    s_and_b32 s46, s46, 31
    v_cmp_gt_u32 vcc, s46, v{LANE}
    v_lshl_add_u32 v24, s68, 2, v26
    v_mov_b32 v30, {N<<8}
    v_mov_b32 v31, {hex(ZIDX|(16<<16))}
    s_mov_b64 exec, vcc
    ds_write2st64_b32 v24, v30, v31 offset0:0 offset1:{LST}
    s_mov_b64 exec, -1
    s_add_u32 s69, s72, s73
    s_lshr_b32 s69, s69, 4
    s_min_u32 s69, s69, {OPT.get('mbmax','6')}
    s_add_u32 s68, s68, 15
    s_lshr_b32 s68, s68, 4
    v_mov_b32 v{TID}, v27""")
    XA=96
    def gathers(Gr, q):
        for i in range(4):
            A(f"v_or_b32 v{Gr+i}, v{Gr+i}, v{cJ16}")
            if not OPT.get('nogather'): A(f"buffer_load_dwordx4 v[{L+16*q+4*i}:{L+16*q+4*i+3}], v{Gr+i}, s[16:19], 0 offen")
    def aread(lm):
        A(f"""v_mad_u32_u16 v{EA}, v{lm}, 32, v{cG8}
        v_mad_u32_u16 v{OA}, v{lm}, 32, v{cG8O} op_sel:[1,0,0,0]
        ds_read_b64 v[{AO}:{AO+1}], v{EA}
        ds_read_b64 v[{AO+2}:{AO+3}], v{OA}""")
    A(f"""ds_read_b128 v[{EE}:{EE+3}], v{pL1}
    v_lshrrev_b32 v{EE+10}, 4, v{LANE}
    v_lshrrev_b32 v{EE+9}, 2, v{cJ16}
    v_add_lshl_u32 v{EE+9}, v{EE+9}, v{EE+10}, 2
    v_add_u32 v{WP}, {K2_W}, v{L16}
    v_lshrrev_b32 v{CPt}, 1, v{L16}
    v_add_u32 v{CPt}, {K2_W+CIMG}, v{CPt}
    s_waitcnt lgkmcnt(0)""")
    gathers(EE,0)
    stamp(3,1)
    A(f"""s_lshl_b32 s45, s3, 5
    s_sub_u32 s45, s76, s45
    s_cmp_gt_i32 s45, 1024
    s_cbranch_scc1 L_k2_x3
    s_waitcnt vmcnt(4)
L_k2_x3:
    s_waitcnt vmcnt(7)""")
    for i in range(16): A(f"ds_bpermute_b32 v{XA+i}, v{EE+9}, v{XR+i}")
    for t in range(4): A(f"ds_read_b64 v[{GB+4*t}:{GB+4*t+1}], v{CPt} offset:{t*512}")
    A("s_waitcnt lgkmcnt(0)")
    BFR=32
    seq=[(mat,t,ks) for mat in range(2) for t in range(4) for ks in range(4)]
    def rd(n):
        mat,t,ks=seq[n]; b=BFR+4*(n%8)
        A(f"ds_read_b128 v[{b}:{b+3}], v{WP} offset:{n*1024}")
    PF=6
    for n in range(PF): rd(n)
    for n in range(32):
        mat,t,ks=seq[n]; b=BFR+4*(n%8); a=ACC+4*t
        if n==16:
            A(f"s_mov_b32 s45, {hex(LOG2E_NEG)}\ns_nop 6")
            for tt in range(4):
                for r in range(4): A(f"v_mul_f32 v{ACC+4*tt+r}, s45, v{ACC+4*tt+r}")
                A(f"v_cvt_pk_bf16_f32 v{GB+4*tt+2}, v{ACC+4*tt}, v{ACC+4*tt+1}\nv_cvt_pk_bf16_f32 v{GB+4*tt+3}, v{ACC+4*tt+2}, v{ACC+4*tt+3}")
        out=min(31-n,PF-1)
        A(f"s_waitcnt lgkmcnt({out})")
        A(f"v_mfma_f32_16x16x32_bf16 v[{a}:{a+3}], v[{XA+4*ks}:{XA+4*ks+3}], v[{b}:{b+3}], {'0' if ks==0 else f'v[{a}:{a+3}]'}")
        if n+PF<32: rd(n+PF)
    for i in range(4): A(f"ds_read_u16 v{EE+i}, v{TID} offset:{i*1024+PCAP*2}")
    A(f"""ds_read_b128 v[{G}:{G+3}], v{pL1} offset:64
    ds_read_b32 v{LM}, v{pLm}
    ds_read_b32 v{WP}, v{pLm} offset:64
    ds_read_b32 v{LS}, v{pLs}
    v_and_b32 v{EE+4}, 1, v{LANE}
    v_lshlrev_b32 v{EE+4}, 4, v{EE+4}
    s_lshl_b32 s45, s3, 5
    s_sub_u32 s45, s77, s45
    s_cmp_gt_i32 s45, 1024
    s_cselect_b32 s71, 1, 0
    s_waitcnt vmcnt(4) lgkmcnt(0)
    s_barrier""")
    stamp(4,1)
    if STAMP: A('s_memtime s[100:101]\ns_waitcnt lgkmcnt(0)')
    if OPT.get('tl'):
        A('s_mov_b32 s90, s94')
        for i in range(1,8): A(f's_mov_b32 s{90+i}, 0')
    if OPT.get('reg'):
        A('s_mov_b32 s92, s68\ns_mov_b32 s93, s94\ns_getreg_b32 s91, hwreg(HW_REG_HW_ID)')
    dma(1,EE,EE+4)
    gathers(G,1)
    def arrive():
        A(f"""s_mov_b64 exec, 1
        ds_add_u32 v{TID}, v{L16}
        s_mov_b64 exec, -1""")
    def check(tag):
        A(f"""L_k2_spin{tag}:
        ds_read_b32 v{SA}, v{TID}
        s_waitcnt lgkmcnt(0)
        v_readfirstlane_b32 s45, v{SA}
        s_cmp_eq_u32 s45, 16
        s_cbranch_scc1 L_k2_ok{tag}
        s_sleep 1
        s_branch L_k2_spin{tag}
L_k2_ok{tag}:""")
    A(f"""v_mov_b32 v{TID}, {K2_AL+4}
    v_mov_b32 v{L16}, 1
    s_mov_b32 s78, 3
    s_cmp_gt_u32 s69, 3
    s_cbranch_scc1 L_k2_nb0
    s_mov_b32 s78, 0
    s_waitcnt vmcnt(0)""")
    arrive()
    A("s_cmp_gt_u32 s69, 1\ns_cbranch_scc1 L_k2_nb0")
    check('p')
    A("L_k2_nb0:")
    def gate():
        if OPT.get('nomfma'): return
        for t in range(4): A(f"v_mfma_f32_16x16x32_bf16 v[{D+4*t}:{D+4*t+3}], v[{AO}:{AO+3}], v[{GB+4*t}:{GB+4*t+3}], 0")
    aread(LM)
    A("s_mov_b32 s70, 2\ns_waitcnt lgkmcnt(0)")
    gate()
    aread(WP)
    A("""s_cmp_eq_u32 s68, 0
    s_cbranch_scc1 L_k2_done""")
    def group(q):
        Lq=L+16*q; o=64*q
        A(f"""v_mad_u32_u16 v{SA}, v{LS}, 32, v{cS} op_sel:[1,0,0,0]
        ds_read_b128 v[{G}:{G+3}], v{pL1} offset:{128+o}
        ds_read_b32 v{LM}, v{pLm} offset:{128+o}
        ds_read_b64_tr_b16 v[{S}:{S+1}], v{SA}
        ds_read_b32 v{LS}, v{pLs} offset:{64+o}""")
        if q==1: A(f"v_add_u32 v{pL1}, 128, v{pL1}\nv_add_u32 v{pLm}, 128, v{pLm}\nv_add_u32 v{pLs}, 128, v{pLs}")
        if q==0 and OPT.get('prio','1')=='1':
            p3,p2,p1=[int(x) for x in OPT.get('pth','11,7,3').split(',')]
            A(f"""s_sub_u32 s45, s68, s70
            s_cmp_ge_i32 s45, {p3-2}
            s_cbranch_scc1 L_k2_pd
            s_cmp_ge_i32 s45, {p2-2}
            s_cbranch_scc1 L_k2_p2
            s_cmp_ge_i32 s45, {p1-2}
            s_cbranch_scc1 L_k2_p1
            s_setprio 0
            s_branch L_k2_pd
L_k2_p2:
            s_setprio 2
            s_branch L_k2_pd
L_k2_p1:
            s_setprio 1
L_k2_pd:""")
        if not OPT.get('nocomp'):
            for t in range(4):
                for r in range(4): A(f"v_exp_f32 v{EE+4*r+t}, v{D+4*t+r}")
        if OPT.get('tl') and q==0: A("s_memrealtime s[88:89]")
        A("s_waitcnt lgkmcnt(0)")
        if OPT.get('tl') and q==0: A("s_lshr_b32 s45, s70, 1\ns_min_u32 s45, s45, 7\ns_mov_b32 m0, s45\ns_nop 0\ns_movreld_b32 s90, s88")
        gate()
        A(f"""s_cmp_lg_u32 s70, s69
        s_cbranch_scc1 L_k2_nb_{q}""")
        check(q)
        A(f"L_k2_nb_{q}:")
        aread(LM)
        A(f"""s_add_u32 s45, s71, 2
        s_cmp_lt_u32 s70, s45
        s_cbranch_scc1 L_k2_w7_{q}
        s_waitcnt vmcnt(4)
L_k2_w7_{q}:
        s_cmp_le_u32 s70, s68
        s_cbranch_scc1 L_k2_w0_{q}
        s_waitcnt vmcnt(0)
L_k2_w0_{q}:
        s_waitcnt vmcnt(7)""")
        if q==1:
            A("s_cmp_lg_u32 s70, s78\ns_cbranch_scc1 L_k2_noarr")
            arrive()
            A("L_k2_noarr:")
        if not OPT.get('nocomp'):
            order=[(r,t) for tt in (0,2) for r in range(4) for t in (tt,tt+1)]
            fm=lambda r,t: A(f"v_fma_mix_f32 v{EE+4*r+t}, v{Lq+4*r+t}, v{EE+4*r+t}, 1.0 op_sel_hi:[1,0,0]")
            rc=lambda r,t: A(f"v_rcp_f32 v{EE+4*r+t}, v{EE+4*r+t}")
            lag=int(OPT.get('lag','2'))
            for i in range(16+lag):
                if i<16: fm(*order[i])
                if i>=lag: rc(*order[i-lag])
            for t in (0,2):
                for r in range(4): A(f"v_pk_mul_f32 v[{EE+4*r+t}:{EE+4*r+t+1}], v[{EE+4*r+t}:{EE+4*r+t+1}], v[{Lq+4*r+t}:{Lq+4*r+t+1}]")
            for t,p in [(0,0),(2,0),(1,0),(3,0),(0,1),(1,1),(2,1),(3,1)]:
                A(f"v_cvt_pk_bf16_f32 v{EE+2*t+p}, v{EE+8*p+t}, v{EE+8*p+4+t}")
        A("s_nop 1")
        for t in range(0 if OPT.get('nomfma') else 4): A(f"v_mfma_f32_16x16x16_bf16 v[{ACC+4*t}:{ACC+4*t+3}], v[{S}:{S+1}], v[{EE+2*t}:{EE+2*t+1}], v[{ACC+4*t}:{ACC+4*t+3}]")
        A(f"""s_cmp_ge_u32 s70, s68
        s_cbranch_scc1 L_k2_ng_{q}""")
        gathers(G,q)
        A(f"""L_k2_ng_{q}:
        s_cmp_gt_u32 s70, s68
        s_cbranch_scc1 L_k2_done
        s_add_u32 s70, s70, 1""")
    A(".p2align 6\nL_k2_loop:")
    group(0); group(1)
    A("s_branch L_k2_loop")
    A("L_k2_done:\ns_waitcnt vmcnt(0)")
    if not OPT.get('tl'): stamp(5,1)
    if STAMP and not OPT.get('tl'): A('s_memtime s[88:89]\ns_waitcnt lgkmcnt(0)\ns_sub_u32 s97, s88, s100')
    A(f"""v_lshrrev_b32 v0, 1, v{cG8}
    v_add_u32 v1, s44, v0
    v_lshlrev_b32 v1, 8, v1
    v_lshrrev_b32 v2, 1, v{cJ16}
    s_lshl_b32 s45, s40, 7
    v_add3_u32 v1, v1, v2, s45
    v_mov_b32 v3, {hex(LOG2E_NEG)}
    v_mov_b32 v4, 0x80000000""")
    for r in range(4):
        for t in range(4): A(f"v_mul_f32 v{8+t}, v3, v{ACC+4*t+r}")
        for t in range(4): A(f"v_exp_f32 v{8+t}, v{8+t}")
        A(f"v_add_u32 v5, {r}, v0\nv_cmp_gt_u32 vcc, s43, v5")
        for t in range(4): A(f"v_add_f32 v{8+t}, 1.0, v{8+t}")
        for t in range(4): A(f"v_rcp_f32 v{8+t}, v{8+t}")
        A(f"v_cndmask_b32 v{16+r}, v4, v1, vcc")
        for t in range(4): A(f"v_mul_f32 v{8+t}, v{8+t}, v{ACC+4*t+r}")
        A(f"""v_cvt_pk_bf16_f32 v{20+2*r}, v8, v9
        v_cvt_pk_bf16_f32 v{21+2*r}, v10, v11
        buffer_store_dwordx2 v[{20+2*r}:{21+2*r}], v{16+r}, s[28:31], 0 offen offset:{r*256} {OST}""")
    if STAMP:
        A("s_waitcnt vmcnt(0)")
        if not OPT.get('tl'): stamp(6,1)
        stamp_flush(1)
    if OPT.get('until'): spin(OPT['until'],'b')
    A("s_endpgm")
    fallback()
    A("L_k2_end:\ns_endpgm")

def fallback():
    LANE=121; TID=123
    A(f"""L_k2_fallback:
    s_mov_b64 exec, -1
    s_load_dwordx2 s[50:51], s[0:1], 8
    s_load_dwordx4 s[52:55], s[0:1], 16
    s_load_dwordx4 s[56:59], s[0:1], 32
    s_load_dwordx2 s[60:61], s[0:1], 48
    s_waitcnt vmcnt(0) lgkmcnt(0)
    s_barrier""")
    srd(8,50,51,0,E*32)
    srd(12,52,53,0,E*4)
    srd(16,54,55,0,E*4)
    srd(24,56,57,0,128*256)
    srd(32,58,59,0,128*256)
    srd(36,60,61,0,272*256)
    A(f"""v_mov_b32 v0, 0
    v_mov_b32 v1, 0
    v_mov_b32 v2, 0
    v_mov_b32 v3, 0
    v_lshlrev_b32 v4, 4, v{TID}
    ds_write_b128 v4, v[0:3]
    ds_write_b128 v4, v[0:3] offset:16384
    ds_write_b128 v4, v[0:3] offset:32768
    ds_write_b128 v4, v[0:3] offset:49152
    s_lshl_b32 s45, s40, 7
    v_lshl_add_u32 v5, v{LANE}, 1, s45
    v_lshlrev_b32 v6, 2, v{LANE}
    s_mul_i32 s46, s41, {BS}
    s_lshl_b32 s47, s3, 6
    s_waitcnt lgkmcnt(0)
    s_barrier
L_fb_chunk:
    s_cmp_ge_u32 s47, {E}
    s_cbranch_scc1 L_fb_fin
    s_lshl_b32 s48, s47, 2
    buffer_load_dword v7, v6, s[16:19], s48 offen
    buffer_load_dword v8, v6, s[12:15], s48 offen
    s_waitcnt vmcnt(0)
    v_subrev_u32 v9, s46, v7
    v_cmp_gt_u32 s[62:63], v10, v9
    """.replace("v_cmp_gt_u32 s[62:63], v10, v9",f"v_mov_b32 v10, {BS}\nv_cmp_gt_u32 s[62:63], v10, v9")+f"""
L_fb_edge:
    s_cmp_eq_u64 s[62:63], 0
    s_cbranch_scc1 L_fb_next
    s_ff1_i32_b64 s49, s[62:63]
    s_bitset0_b64 s[62:63], s49
    v_readlane_b32 s64, v7, s49
    v_readlane_b32 s65, v8, s49
    s_add_u32 s66, s47, s49
    s_lshl_b32 s67, s64, 8
    s_lshl_b32 s68, s65, 8
    s_lshl_b32 s66, s66, 5
    s_nop 2
    buffer_load_dword v11, v6, s[20:23], s67 offen
    buffer_load_dword v12, v6, s[20:23], s68 offen
    v_and_b32 v14, 28, v6
    buffer_load_dword v13, v14, s[8:11], s66 offen
    v_mov_b32 v15, 0
    v_mov_b32 v16, 0
    s_mov_b32 s69, 0
    s_waitcnt vmcnt(0)
L_fb_k:
    s_lshl_b32 s70, s69, 9
    s_add_u32 s71, s70, {128*256}
    buffer_load_ushort v17, v5, s[36:39], s70 offen
    buffer_load_ushort v18, v5, s[36:39], s70 offen offset:256
    buffer_load_ushort v19, v5, s[36:39], s71 offen
    buffer_load_ushort v20, v5, s[36:39], s71 offen offset:256
    buffer_load_ushort v21, v5, s[32:35], s70 offen
    buffer_load_ushort v22, v5, s[32:35], s70 offen offset:256
    v_readlane_b32 s72, v11, s69
    v_readlane_b32 s73, v12, s69
    s_lshl_b32 s74, s72, 16
    s_and_b32 s72, s72, 0xffff0000
    s_lshl_b32 s75, s73, 16
    s_and_b32 s73, s73, 0xffff0000
    s_waitcnt vmcnt(0)""")
    for i in range(17,23): A(f"v_lshlrev_b32 v{i}, 16, v{i}")
    A(f"""v_fmac_f32 v15, s74, v17
    v_fmac_f32 v15, s72, v18
    v_fmac_f32 v15, s75, v19
    v_fmac_f32 v15, s73, v20
    v_fmac_f32 v16, s75, v21
    v_fmac_f32 v16, s73, v22
    s_add_u32 s69, s69, 1
    s_cmp_lt_u32 s69, 64
    s_cbranch_scc1 L_fb_k
    s_mov_b32 s69, 0
L_fb_ke:
    s_lshl_b32 s70, s69, 9
    s_add_u32 s70, s70, {256*256}
    buffer_load_ushort v17, v5, s[36:39], s70 offen
    buffer_load_ushort v18, v5, s[36:39], s70 offen offset:256
    v_readlane_b32 s72, v13, s69
    s_lshl_b32 s74, s72, 16
    s_and_b32 s72, s72, 0xffff0000
    s_waitcnt vmcnt(0)
    v_lshlrev_b32 v17, 16, v17
    v_lshlrev_b32 v18, 16, v18
    v_fmac_f32 v15, s74, v17
    v_fmac_f32 v15, s72, v18
    s_add_u32 s69, s69, 1
    s_cmp_lt_u32 s69, 8
    s_cbranch_scc1 L_fb_ke
    v_mul_f32 v15, {hex(LOG2E_NEG)}, v15
    v_exp_f32 v15, v15
    s_sub_u32 s64, s64, s46
    s_lshl_b32 s64, s64, 8
    v_add_f32 v15, 1.0, v15
    v_rcp_f32 v15, v15
    v_add_u32 v17, s64, v6
    v_mul_f32 v15, v15, v16
    ds_add_f32 v17, v15
    s_branch L_fb_edge
L_fb_next:
    s_add_u32 s47, s47, 1024
    s_branch L_fb_chunk
L_fb_fin:
    s_waitcnt lgkmcnt(0)
    s_barrier
    s_mov_b32 s47, s3
L_fb_node:
    s_cmp_ge_u32 s47, {BS}
    s_cbranch_scc1 L_k2_end
    s_add_u32 s64, s46, s47
    s_lshl_b32 s67, s64, 8
    buffer_load_dword v11, v6, s[20:23], s67 offen
    s_lshl_b32 s48, s47, 8
    v_add_u32 v17, s48, v6
    ds_read_b32 v15, v17
    s_mov_b32 s69, 0
    s_waitcnt vmcnt(0) lgkmcnt(0)
L_fb_ku:
    s_lshl_b32 s70, s69, 9
    buffer_load_ushort v17, v5, s[24:27], s70 offen
    buffer_load_ushort v18, v5, s[24:27], s70 offen offset:256
    v_readlane_b32 s72, v11, s69
    s_lshl_b32 s74, s72, 16
    s_and_b32 s72, s72, 0xffff0000
    s_waitcnt vmcnt(0)
    v_lshlrev_b32 v17, 16, v17
    v_lshlrev_b32 v18, 16, v18
    v_fmac_f32 v15, s74, v17
    v_fmac_f32 v15, s72, v18
    s_add_u32 s69, s69, 1
    s_cmp_lt_u32 s69, 64
    s_cbranch_scc1 L_fb_ku
    v_mul_f32 v16, {hex(LOG2E_NEG)}, v15
    v_exp_f32 v16, v16
    s_nop 0
    v_add_f32 v16, 1.0, v16
    v_rcp_f32 v16, v16
    s_nop 0
    v_mul_f32 v15, v15, v16
    v_cvt_pk_bf16_f32 v15, v15, v15
    buffer_store_short v15, v5, s[28:31], s67 offen
    s_add_u32 s47, s47, 16
    s_branch L_fb_node""")

def desc(name, vg, sg=102):
    return f""".amdhsa_kernel {name}
  .amdhsa_next_free_vgpr {vg}
  .amdhsa_next_free_sgpr {sg}
  .amdhsa_accum_offset {vg}
  .amdhsa_group_segment_fixed_size 0
  .amdhsa_kernarg_size 80
  .amdhsa_user_sgpr_count 2
  .amdhsa_user_sgpr_kernarg_segment_ptr 1
  .amdhsa_system_sgpr_workgroup_id_x 1
.end_amdhsa_kernel
"""
k1(); k2()
errs=check(A.lines)
for e in errs: print(e, file=sys.stderr)
hdr=open('gather_scatter__edge_featured_mpnn_egc__graph.s.ref').read().split('; Override launch')[0]
xl="; @launch kernel=nop_kernel grid=(256,1,1) block=(64,1,1) lds=0\n"
pre=xl if OPT.get('nop')=='pre' else ''; post=xl if OPT.get('nop')=='post' else ''
if OPT.get('nop'): A(".p2align 8\nnop_kernel:\ns_endpgm")
out=hdr+pre+f"""; Two launches: prep (edge partition + node tables), main (gated gather / aggregate / silu)
; @launch kernel=prep_kernel grid=(256,1,1) block=(1024,1,1) lds={K1_LDS}
; @launch kernel=main_kernel grid=(256,1,1) block=(1024,1,1) lds={K2_LDS}
{post}.amdgcn_target "amdgcn-amd-amdhsa--gfx950"
.text
.globl prep_kernel
.type prep_kernel,@function
.globl main_kernel
.type main_kernel,@function
"""+A.text()+""".section .rodata,"a"
.p2align 6
"""+desc("prep_kernel",128)+".p2align 6\n"+desc("main_kernel",128)+((".p2align 6\n"+desc("nop_kernel",8,16)) if OPT.get('nop') else '')
open(sys.argv[1],'w').write(out)
print("written",sys.argv[1],len(A.lines),"lines; hazards:",len(errs))
```

```python
import sys
from dsl import *
OPT=dict(a.split('=') if '=' in a else (a,'1') for a in sys.argv[2:])
STAMP=int(OPT.get('stamp',0))
def hint(k,d=''):
    v=OPT.get(k,d); return '' if v=='none' else v.replace('+',' ')
NTI=hint('nti'); NTE=hint('nte'); NTX=hint('ntx'); NT=hint('nt2'); OST=hint('ost','sc0+sc1')
ST=OPT.get('st','sc0 sc1')
if ST=='none': ST=''
ST=ST.replace('+',' ')

N=25000; E=400000; BS=196; CH=3136
NROW=25088; HS=NROW*256
WSB=int(OPT.get('wsb','0'))<<20
TAB_OFF=WSB; REC_OFF=WSB+0x0D00000; EP_OFF=WSB+0x1100000; MISC_OFF=WSB+0x3100000
WH=0x9000; CIMG=0x8000; FLAGO=0x12000; MISC_SZ=0x13000
LOG2E=0x3fb8aa3b
STAMP_OFF=0x3200000
LOG2E_NEG=0xbfb8aa3b
A=Asm()

def srd(s, base_lo, base_hi, off, size):
    if off:
        A(f"s_add_u32 s{s}, s{base_lo}, {hex(off)}\ns_addc_u32 s{s+1}, s{base_hi}, 0")
    else:
        A(f"s_mov_b32 s{s}, s{base_lo}\ns_mov_b32 s{s+1}, s{base_hi}")
    A(f"s_mov_b32 s{s+2}, {hex(size)}\ns_mov_b32 s{s+3}, 0x20000")

def stamp(idx, kern):
    if not STAMP: return
    A(f"""s_memrealtime s[88:89]
    s_waitcnt lgkmcnt(0)
    s_mov_b32 s{90+idx}, s88""")
def stamp_init(kern, wave_s, wsl, wsh):
    if not STAMP: return
    for i in range(8): A(f"s_mov_b32 s{90+i}, 0")
    A(f"s_add_u32 s98, s{wsl}, {hex(STAMP_OFF+kern*0x80000)}\ns_addc_u32 s99, s{wsh}, 0")
def stamp_flush(kern=0):
    if not STAMP: return
    if STAMP==2:
        sel=[0,1,2,5] if kern==0 else [0,2,3,6]
        if kern==0: A("s_and_b32 s4, s2, 15\ns_cmp_lg_u32 s4, 0\ns_cbranch_scc1 L_sf_0_3")
        A(f"""s_load_dwordx2 s[4:5], s[0:1], 64
        s_waitcnt lgkmcnt(0)
        s_add_u32 s4, s4, {512*(1-kern)}
        s_addc_u32 s5, s5, 0
        s_cmp_lg_u32 s3, {12 if kern==0 else 15}
        s_cbranch_scc1 L_sf_{kern}_3
        s_mov_b32 s6, 256
        s_mov_b32 s7, 0x20000
        s_mov_b64 exec, 1
        v_mov_b32 v8, 0""")
        for n,i in enumerate(sel):
            A(f"""v_mov_b32 v0, s{90+i}
            v_not_b32 v1, v0
            s_cmp_eq_u32 s{90+i}, 0
            s_cbranch_scc1 L_sf_{kern}_{n}
            buffer_atomic_umax v1, v8, s[4:7], 0 offen offset:{kern*32+n*8}
            buffer_atomic_umax v0, v8, s[4:7], 0 offen offset:{kern*32+n*8+4}
L_sf_{kern}_{n}:""")
        return
    A("""s_mov_b32 s4, s98
    s_mov_b32 s5, s99
    s_mov_b32 s6, 0x80000
    s_mov_b32 s7, 0x20000
    s_lshl_b32 s8, s2, 4
    s_add_u32 s8, s8, s3
    s_lshl_b32 s8, s8, 6
    s_mov_b64 exec, 1
    v_mov_b32 v8, 0""")
    for i in range(8): A(f"v_mov_b32 v{i}, s{90+i}")
    A("buffer_store_dwordx4 v[0:3], v8, s[4:7], s8 offen\nbuffer_store_dwordx4 v[4:7], v8, s[4:7], s8 offen offset:16")

def qtranspose(X,P,Y):
    for st,(src,dst,pm,m0) in enumerate(((X,P,"[1,0,3,2]",0x55555555),(P,Y,"[2,3,0,1]",0x33333333))):
        bit=1<<st
        for half in range(2):
            m=m0 if half==0 else (~m0)&0xffffffff
            A(f"s_mov_b32 vcc_lo, {hex(m)}\ns_mov_b32 vcc_hi, {hex(m)}")
            for j in range(4):
                if ((j>>st)&1)!=half: continue
                for d in range(4):
                    A(f"v_cndmask_b32_dpp v{dst+4*j+d}, v{src+4*(j^bit)+d}, v{src+4*j+d}, vcc quad_perm:{pm} row_mask:0xf bank_mask:0xf")

K1_E=0; K1_REC=100352; K1_PERM=K1_REC+32768; K1_HIST=K1_PERM+16384; K1_OVF=K1_HIST+1024; K1_LDS=K1_OVF+256
WROW=544
def woff(k): return k*WROW+(k>>5)*128

def k1():
    A(".p2align 8\nprep_kernel:")
    A("""s_cmp_ge_u32 s2, 256
    s_cbranch_scc1 L_k1_end
    s_load_dwordx4 s[4:7], s[0:1], 0
    s_load_dwordx4 s[8:11], s[0:1], 16
    s_load_dwordx4 s[12:15], s[0:1], 32
    s_load_dwordx2 s[16:17], s[0:1], 48
    s_load_dwordx2 s[18:19], s[0:1], 72
    v_lshrrev_b32 v1, 6, v0
    v_and_b32 v2, 63, v0
    v_readfirstlane_b32 s3, v1
    v_lshlrev_b32 v3, 4, v2
    v_lshlrev_b32 v4, 4, v0
    s_waitcnt lgkmcnt(0)""")
    if OPT.get('cpf','1')!='0':
        A(f"""s_cmp_ge_u32 s3, 13
        s_cbranch_scc1 L_k1_nocpf
        s_getpc_b64 s[20:21]
L_k1_pc:
        s_sub_u32 s20, s20, L_k1_pc-prep_kernel
        s_subb_u32 s21, s21, 0
        global_load_dwordx4 v[120:123], v4, s[20:21]
L_k1_nocpf:""")
    stamp_init(0,3,18,19)
    stamp(0,0)
    srd(44,18,19,MISC_OFF,MISC_SZ)
    if OPT.get('until') or OPT.get('until0') or OPT.get('until1'):
        A(f"""s_memrealtime s[60:61]
        s_waitcnt lgkmcnt(0)
        s_or_b32 s62, s2, s3
        s_cmp_lg_u32 s62, 0
        s_cbranch_scc1 L_k1_not0
        v_mov_b32 v100, s60
        v_mov_b32 v101, {FLAGO+2048}
        buffer_store_dword v100, v101, s[44:47], 0 offen sc0 sc1
L_k1_not0:""")
    A("""s_cmp_ge_u32 s2, 128
    s_cbranch_scc1 L_k1_gemm""")
    srd(20,10,11,0,E*4)
    srd(24,8,9,0,E*4)
    srd(28,6,7,0,E*32)
    srd(32,18,19,REC_OFF,0x400000)
    srd(36,18,19,EP_OFF,0x2000000)
    D=8; S=12
    A(f"""s_mul_i32 s50, s2, {CH}
    s_sub_u32 s51, {E}, s50
    s_lshr_b32 s51, s51, 2
    s_min_u32 s51, s51, {CH//4}
    s_lshl_b32 s52, s50, 2
    v_cmp_gt_u32 vcc, s51, v0
    s_mov_b64 s[54:55], vcc
    s_mov_b64 exec, vcc
    s_cbranch_execz L_k1_noidx
    buffer_load_dwordx4 v[{D}:{D+3}], v4, s[20:23], s52 offen {NTI}
    buffer_load_dwordx4 v[{S}:{S+3}], v4, s[24:27], s52 offen {NTI}
L_k1_noidx:
    s_mov_b64 exec, -1
    s_lshl_b32 s53, s3, 10
    s_lshl_b32 s56, s50, 5
    s_add_u32 s56, s56, s53
    v_mov_b32 v16, -1
    v_mov_b32 v17, -1
    v_mov_b32 v18, -1
    v_mov_b32 v19, -1
    v_mov_b32 v20, 0
    v_add_u32 v5, {K1_REC}, v4
    v_lshlrev_b32 v6, 2, v0
    v_add_u32 v6, {K1_HIST}, v6
    ds_write_b128 v5, v[16:19]
    ds_write_b128 v5, v[16:19] offset:16384
    v_cmp_gt_u32 vcc, 0x140, v0
    s_mov_b64 exec, vcc
    ds_write_b32 v6, v20
    s_mov_b64 exec, -1
    v_mov_b32 v20, 1
    v_mov_b32 v22, 21400
    v_mov_b32 v23, -196
    v_mov_b32 v24, 5372
    v_mov_b32 v25, 208
    v_mov_b32 v26, 669
    s_waitcnt lgkmcnt(0)
    s_barrier""")
    for i in range(7):
        if i==6: A("s_cmp_ge_u32 s3, 2\ns_cbranch_scc1 L_k1_dmadone")
        A(f"""s_mov_b32 m0, s53
        s_add_u32 s53, s53, 16384
        buffer_load_dwordx4 v3, s[28:31], s56 offen {NTE} lds
        s_add_u32 s56, s56, 16384""")
    A("L_k1_dmadone:\ns_waitcnt vmcnt(6)")
    stamp(1,0)
    A("""s_mov_b64 exec, s[54:55]
    s_cbranch_execz L_k1_b1""")
    B,RC,HA,SH,OLD,INC,T=28,32,36,40,44,48,60
    for j in range(4):
        A(f"""v_mul_u32_u24 v{T}, v{D+j}, v22
        v_mul_u32_u24 v{T+1}, v{S+j}, v26
        v_lshrrev_b32 v{B+j}, 22, v{T}
        v_lshrrev_b32 v{T+1}, 22, v{T+1}
        v_lshlrev_b32 v{HA+j}, 2, v{B+j}
        v_sub_u32_e64 v{SH+j}, v{T+1}, 1 clamp
        v_add_u32 v{HA+j}, {K1_HIST}, v{HA+j}
        v_lshlrev_b32 v{SH+j}, 3, v{SH+j}
        v_mad_i32_i24 v{T}, v{B+j}, v23, v{D+j}
        v_lshlrev_b32 v{INC+j}, v{SH+j}, v20
        v_mul_u32_u24 v{T+2}, v{T}, v24
        ds_add_rtn_u32 v{OLD+j}, v{HA+j}, v{INC+j}
        v_lshl_or_b32 v{T}, v{S+j}, 8, v{T}
        v_lshrrev_b32 v{T+2}, 16, v{T+2}
        v_mad_u32_u24 v{T+3}, v{T+2}, 52, v25
        v_mad_i32_i24 v{T}, v{T+2}, -12, v{T}
        v_lshrrev_b32 v{T+3}, 8, v{T+3}
        v_lshl_add_u32 v{T+2}, v{T+2}, 2, v{T+1}
        v_sub_u32 v{T}, v{T}, v{T+3}
        v_lshl_or_b32 v{RC+j}, v{T+2}, 24, v{T}""")
    A("""L_k1_b1:
    s_mov_b64 exec, -1
    s_waitcnt lgkmcnt(0)
    s_barrier""")
    stamp(2,0)
    FIN=8
    A(f"""s_mov_b64 s[70:71], 0
    v_cmp_gt_u32 vcc, 128, v0
    s_mov_b64 exec, vcc
    s_cbranch_execz L_k1_nohdr
    ds_read_b32 v{T}, v6
    v_lshlrev_b32 v{T+1}, 8, v0
    v_add_u32 v{T+1}, {K1_REC+252}, v{T+1}
    s_waitcnt lgkmcnt(0)
    v_and_b32 v{T}, 0x3f3f3f, v{T}
    ds_write_b32 v{T+1}, v{T}
L_k1_nohdr:
    s_mov_b64 exec, s[54:55]
    s_cbranch_execz L_k1_b2""")
    for j in range(4): A(f"ds_read_b32 v{FIN+j}, v{HA+j}")
    A(f"v_lshlrev_b32 v{T+8}, 2, v0")
    for j in range(4):
        A(f"v_bfe_u32 v{OLD+j}, v{OLD+j}, v{SH+j}, 8\nv_add_u32 v{INC+j}, -1, v{INC+j}")
    A("s_waitcnt lgkmcnt(0)")
    for j in range(4):
        A(f"""v_and_b32 v{T}, v{FIN+j}, v{INC+j}
        v_sad_u8 v{T}, v{T}, 0, v{OLD+j}
        v_cmp_lt_u32 vcc, 62, v{T}
        v_min_u32 v{T}, 62, v{T}
        s_or_b64 s[70:71], s[70:71], vcc
        v_lshl_add_u32 v{T+1}, v{B+j}, 6, v{T}
        v_and_b32 v{T+2}, 15, v{T}
        v_lshrrev_b32 v{T+3}, 4, v{T}
        v_lshlrev_b32 v{T+1}, 1, v{T+1}
        v_lshl_add_u32 v{T+2}, v{T+2}, 2, v{T+3}
        v_add_u32 v{T+1}, {K1_PERM}, v{T+1}
        v_lshl_add_u32 v{T+2}, v{B+j}, 6, v{T+2}
        v_add_u32 v{T+9}, {j}, v{T+8}
        v_lshlrev_b32 v{T+2}, 2, v{T+2}
        ds_write_b16 v{T+1}, v{T+9}
        v_add_u32 v{T+2}, {K1_REC}, v{T+2}
        ds_write_b32 v{T+2}, v{RC+j}""")
    A(f"""s_mov_b64 exec, s[70:71]
    v_mov_b32 v{T}, {K1_OVF}
    ds_write_b32 v{T}, v20
L_k1_b2:
    s_mov_b64 exec, -1
    s_waitcnt lgkmcnt(0)
    s_barrier""")
    stamp(3,0)
    EI=8; EV=64
    A(f"""ds_read_b128 v[16:19], v5
    ds_read_b128 v[20:23], v5 offset:16384
    v_and_b32 v24, 7, v2
    s_lshl_b32 s57, s3, 5
    v_lshl_add_u32 v24, v24, 2, s57
    v_add_u32 v24, {K1_HIST}, v24
    ds_read_b32 v26, v24
    v_lshrrev_b32 v28, 1, v2
    s_lshl_b32 s57, s3, 10
    s_add_u32 s57, s57, {K1_PERM}
    v_lshl_add_u32 v29, v28, 1, s57""")
    for i in range(8): A(f"ds_read_u16 v{EI+i}, v29 offset:{i*128}")
    A(f"""v_lshrrev_b32 v30, 4, v0
    v_and_b32 v31, 15, v0
    v_lshlrev_b32 v30, 15, v30
    v_lshl_or_b32 v30, v31, 4, v30
    s_lshl_b32 s58, s2, 8
    s_add_u32 s59, s58, 0x200000
    v_and_b32 v31, 1, v2
    v_lshlrev_b32 v31, 4, v31
    s_waitcnt lgkmcnt(0)
    buffer_store_dwordx4 v[16:19], v30, s[32:35], s58 offen {ST}
    buffer_store_dwordx4 v[20:23], v30, s[32:35], s59 offen {ST}
    v_sad_u8 v26, v26, 0, 3
    v_and_b32 v26, -4, v26
    v_min_u32 v26, 64, v26
    s_waitcnt vmcnt(2)
    s_barrier""")
    stamp(6,0)
    for i in range(8):
        A(f"v_lshl_add_u32 v{EI+i}, v{EI+i}, 5, v31\nds_read_b128 v[{EV+4*i}:{EV+4*i+3}], v{EI+i}\nv_readlane_b32 s{60+i}, v26, {i}")
    A(f"""s_lshl_b32 s57, s3, 21
    s_lshl_b32 s58, s2, 11
    s_add_u32 s57, s57, s58""")
    for i in range(8):
        A(f"""v_cmp_gt_u32 vcc, s{60+i}, v28
        s_mov_b64 exec, vcc
        s_waitcnt lgkmcnt({7-i})
        buffer_store_dwordx4 v[{EV+4*i}:{EV+4*i+3}], v3, s[36:39], s57 offen {ST}
        s_mov_b64 exec, -1
        s_add_u32 s57, s57, 0x40000""")
    A(f"s_sub_u32 s57, s57, 0x200000\nv_add_u32 v32, 32, v28")
    for i in range(8):
        L=A.label("k1long")
        A(f"""s_cmp_le_u32 s{60+i}, 32
        s_cbranch_scc1 {L}
        ds_read_u16 v33, v29 offset:{i*128+64}
        s_waitcnt lgkmcnt(0)
        v_lshl_add_u32 v33, v33, 5, v31
        ds_read_b128 v[36:39], v33
        v_cmp_gt_u32 vcc, s{60+i}, v32
        s_mov_b64 exec, vcc
        s_waitcnt lgkmcnt(0)
        buffer_store_dwordx4 v[36:39], v3, s[36:39], s57 offen offset:1024 {ST}
        s_mov_b64 exec, -1
        s_nop 0
{L}:
        s_add_u32 s57, s57, 0x40000""")
    A("s_branch L_k1_flag")
    A("L_k1_gemm:")
    srd(20,4,5,0,N*256)
    srd(24,16,17,0,272*256)
    srd(28,14,15,0,128*256)
    srd(32,12,13,0,128*256)
    srd(36,18,19,TAB_OFF,HS)
    srd(40,18,19,TAB_OFF+HS,HS)
    XR=8; WL=24; XA=40; ACC=56; BF=8
    A(f"""s_sub_u32 s50, s2, 128
    s_lshr_b32 s51, s50, 3
    s_lshl_b32 s52, s3, 4
    s_add_u32 s51, s51, s52
    s_cmp_lt_u32 s51, 196
    s_cselect_b32 s52, 0, 0x10000
    s_add_u32 s51, s51, s52
    s_and_b32 s52, s2, 3
    s_mul_i32 s52, s52, 392
    s_add_u32 s51, s51, s52
    s_bfe_u32 s52, s2, 0x10002
    s_mul_i32 s52, s52, 196
    s_add_u32 s51, s51, s52
    v_mov_b32 v6, 0
    v_mov_b32 v7, {K1_OVF}
    ds_write_b32 v7, v6
    s_cmp_ge_u32 s51, 1568
    s_cbranch_scc1 L_k1_nox
    s_lshl_b32 s52, s51, 12
    v_bfe_u32 v5, v2, 2, 2
    v_and_b32 v6, 3, v2
    v_lshlrev_b32 v5, 10, v5
    v_lshl_or_b32 v5, v6, 4, v5
    v_lshrrev_b32 v6, 4, v2
    v_lshl_or_b32 v5, v6, 6, v5""")
    for ks in range(4): A(f"buffer_load_dwordx4 v[{XR+4*ks}:{XR+4*ks+3}], v5, s[20:23], s52 offen offset:{ks*256} {NTX}")
    A(f"""L_k1_nox:
    s_mov_b32 s53, {128*256}
    s_mov_b32 s54, {128*256+16384}
    s_mov_b32 s55, 16384
    buffer_load_dwordx4 v[{WL}:{WL+3}], v4, s[24:27], s53 offen
    buffer_load_dwordx4 v[{WL+4}:{WL+7}], v4, s[24:27], s54 offen
    buffer_load_dwordx4 v[{WL+8}:{WL+11}], v4, s[28:31], 0 offen
    buffer_load_dwordx4 v[{WL+12}:{WL+15}], v4, s[28:31], s55 offen
    v_lshrrev_b32 v5, 4, v0
    v_lshrrev_b32 v6, 9, v0
    v_mul_u32_u24 v5, {WROW}, v5
    v_lshl_add_u32 v5, v6, 7, v5
    v_bfe_u32 v6, v0, 3, 1
    v_lshl_add_u32 v5, v6, 7, v5
    v_and_b32 v6, 7, v0
    v_lshl_add_u32 v5, v6, 2, v5
    s_mov_b32 s56, 0x05040100
    s_mov_b32 s57, 0x07060302""")
    A(f"""s_cmp_lg_u32 s3, 15
    s_cbranch_scc1 L_k1_noimg
    s_cmp_ge_u32 s50, 72
    s_cbranch_scc1 L_k1_noimg
    v_and_b32 v6, 15, v2
    v_lshrrev_b32 v7, 4, v2
    v_lshlrev_b32 v6, 3, v6
    s_cmp_ge_u32 s50, 64
    s_cbranch_scc1 L_k1_cimg
    s_bfe_u32 s58, s50, 0x10005
    s_bfe_u32 s59, s50, 0x20002
    s_and_b32 s60, s50, 3
    s_lshl_b32 s58, s58, 7
    s_lshl_b32 s59, s59, 1
    s_lshl_b32 s60, s60, 11
    s_add_u32 s58, s58, s59
    s_add_u32 s58, s58, s60
    v_lshl_add_u32 v6, v7, 13, v6
    s_bitcmp1_b32 s50, 4
    s_cbranch_scc1 L_k1_uimg""")
    for i in range(8): A(f"buffer_load_ushort v{64+i}, v6, s[24:27], s58 offen offset:{i*256}")
    A("s_branch L_k1_imgst\nL_k1_uimg:")
    for i in range(8): A(f"buffer_load_ushort v{64+i}, v6, s[32:35], s58 offen offset:{i*256}")
    A(f"""L_k1_imgst:
    s_and_b32 s58, s50, 31
    s_lshl_b32 s58, s58, 10
    s_lshr_b32 s59, s50, 5
    s_mul_i32 s59, s59, {WH}
    s_add_u32 s58, s58, s59
    s_waitcnt vmcnt(0)
    v_lshl_or_b32 v56, v65, 16, v64
    v_lshl_or_b32 v57, v67, 16, v66
    v_lshl_or_b32 v58, v69, 16, v68
    v_lshl_or_b32 v59, v71, 16, v70
    buffer_store_dwordx4 v[56:59], v3, s[44:47], s58 offen
    s_branch L_k1_noimg
L_k1_cimg:
    s_sub_u32 s61, s50, 64
    s_lshr_b32 s58, s61, 2
    s_and_b32 s59, s61, 3
    s_lshl_b32 s58, s58, 7
    s_lshl_b32 s59, s59, 1
    s_add_u32 s58, s58, s59
    s_add_u32 s58, s58, {256*256}
    v_lshl_add_u32 v6, v7, 10, v6""")
    for i in range(4): A(f"buffer_load_ushort v{56+i}, v6, s[24:27], s58 offen offset:{i*256}")
    A(f"""s_mov_b32 s59, {hex(LOG2E_NEG)}
    s_and_b32 s58, s61, 3
    s_lshl_b32 s58, s58, 9
    s_lshr_b32 s60, s61, 2
    s_mul_i32 s60, s60, {WH}
    s_add_u32 s58, s58, s60
    s_add_u32 s58, s58, {CIMG}
    v_lshlrev_b32 v7, 3, v2
    s_waitcnt vmcnt(0)""")
    for i in range(4): A(f"v_lshlrev_b32 v{56+i}, 16, v{56+i}\nv_mul_f32 v{56+i}, s59, v{56+i}")
    A(f"""v_cvt_pk_bf16_f32 v56, v56, v57
    v_cvt_pk_bf16_f32 v57, v58, v59
    buffer_store_dwordx2 v[56:57], v7, s[44:47], s58 offen
L_k1_noimg:""")
    for u in range(4):
        w=WL+4*u; base=(u&1)*woff(64)+(u>>1)*256
        A(f"""s_waitcnt vmcnt({3-u})
        v_perm_b32 v60, v{w+2}, v{w}, s56
        v_perm_b32 v61, v{w+2}, v{w}, s57
        v_perm_b32 v62, v{w+3}, v{w+1}, s56
        v_perm_b32 v63, v{w+3}, v{w+1}, s57
        ds_write_b32 v5, v60 offset:{base}
        ds_write_b32 v5, v61 offset:{base+32}
        ds_write_b32 v5, v62 offset:{base+64}
        ds_write_b32 v5, v63 offset:{base+96}""")
    A(f"""v_and_b32 v6, 15, v2
    v_lshrrev_b32 v7, 4, v2
    s_cmp_ge_u32 s51, 1568
    s_cbranch_scc1 L_k1_nobp""")
    qtranspose(XR,WL,XA)
    A(f"""L_k1_nobp:
    v_bfe_u32 v61, v2, 2, 2
    v_lshl_add_u32 v61, v7, 5, v61
    v_mul_u32_u24 v61, {WROW}, v61
    v_lshl_add_u32 v61, v7, 7, v61
    v_and_b32 v62, 3, v2
    v_lshl_add_u32 v5, v62, 3, v61
    s_waitcnt lgkmcnt(0)
    s_barrier""")
    stamp(1,0)
    A("""s_cmp_ge_u32 s51, 1568
    s_cbranch_scc1 L_k1_gdone""")
    seq=[(h,t,mat,ks) for h in range(2) for t in range(4) for mat in range(2) for ks in range(4)]
    def rd(n):
        h,t,mat,ks=seq[n]; o=woff(8*ks)+mat*256+h*128+t*32; b=BF+4*(n%8)
        A(f"ds_read_b64_tr_b16 v[{b}:{b+1}], v5 offset:{o}\nds_read_b64_tr_b16 v[{b+2}:{b+3}], v5 offset:{o+4*WROW}")
    def acc(h,t,mat): return ACC+((h*4+t)*2+mat)*4
    PF=6
    for n in range(PF): rd(n)
    for n in range(64):
        h,t,mat,ks=seq[n]; b=BF+4*(n%8); a=acc(h,t,mat)
        out=min(63-n,PF-1)
        A(f"s_waitcnt lgkmcnt({2*out})")
        A(f"v_mfma_f32_16x16x32_bf16 v[{a}:{a+3}], v[{XA+4*ks}:{XA+4*ks+3}], v[{b}:{b+3}], {'0' if ks==0 else f'v[{a}:{a+3}]'}")
        if n+PF<64: rd(n+PF)
    stamp(2,0)
    A(f"""v_mov_b32 v8, {hex(LOG2E_NEG)}
    v_mov_b32 v9, 0x7fff
    v_mov_b32 v10, 0xffff0000
    v_mov_b32 v11, 0
    v_lshlrev_b32 v12, 10, v7
    v_lshl_or_b32 v12, v6, 4, v12
    s_nop 3""")
    for h in range(2):
        for r in range(4):
            o=16+4*((h*4+r)%2); tt=24
            for t in range(4): A(f"v_mul_f32 v{tt+t}, v8, v{acc(h,t,0)+r}")
            A(f"v_max3_f32 v11, abs(v{tt}), abs(v{tt+1}), v11\nv_max3_f32 v11, abs(v{tt+2}), abs(v{tt+3}), v11")
            for t in range(4): A(f"v_exp_f32 v{tt+t}, v{tt+t}")
            A("s_nop 0")
            for t in range(4): A(f"v_cvt_pk_f16_f32 v{tt+t}, v{tt+t}, 0")
            for t in range(4): A(f"v_xad_u32 v{tt+4+t}, v{tt+t}, v9, v{acc(h,t,1)+r}")
            for t in range(4): A(f"v_bfi_b32 v{o+t}, v10, v{tt+4+t}, v{tt+t}")
            A(f"buffer_store_dwordx4 v[{o}:{o+3}], v12, s[{36+4*h}:{39+4*h}], s52 offen offset:{r*256} {ST}")
    A(f"""v_mov_b32 v13, 0x41600000
    v_mov_b32 v14, 1
    v_mov_b32 v15, {K1_OVF}
    v_cmp_nle_f32 vcc, v11, v13""")
    A(f"""s_mov_b64 exec, vcc
    ds_write_b32 v15, v14
    s_mov_b64 exec, -1
L_k1_gdone:
    s_waitcnt lgkmcnt(0)
    s_barrier
L_k1_flag:
    s_cmp_lg_u32 s3, 0
    s_cbranch_scc1 L_k1_fin
    v_mov_b32 v15, {K1_OVF}
    ds_read_b32 v14, v15
    s_lshl_b32 s58, s2, 2
    s_add_u32 s58, s58, {FLAGO}
    v_mov_b32 v15, 0
    s_mov_b64 exec, 1
    s_waitcnt lgkmcnt(0)
    buffer_store_dword v14, v15, s[44:47], s58 offen
    s_mov_b64 exec, -1
L_k1_fin:""")
    if STAMP:
        stamp(4,0)
        A("s_waitcnt vmcnt(0)")
        stamp(5,0)
        stamp_flush()
    if OPT.get('k1delay'):
        A(f"""s_memrealtime s[60:61]
        s_waitcnt lgkmcnt(0)
        s_add_u32 s62, s60, {int(OPT['k1delay'])*100}
L_k1_spin:
        s_memrealtime s[60:61]
        s_waitcnt lgkmcnt(0)
        s_cmp_lt_u32 s60, s62
        s_cbranch_scc1 L_k1_spin""")
    A("L_k1_end:\ns_endpgm")

def spin(T,tag):
    A(f"""s_load_dwordx2 s[60:61], s[0:1], 72
    s_waitcnt lgkmcnt(0)
    s_add_u32 s60, s60, {MISC_OFF+FLAGO+2048}
    s_addc_u32 s61, s61, 0
    s_load_dword s62, s[60:61], 0
    s_waitcnt lgkmcnt(0)
    s_add_u32 s62, s62, {int(float(T)*100)}
L_spin_{tag}:
    s_memrealtime s[60:61]
    s_waitcnt lgkmcnt(0)
    s_cmp_lt_u32 s60, s62
    s_cbranch_scc1 L_spin_{tag}""")

ECAP=3456; BCAP=96; WCAP=4*BCAP
K2_HIST=0; K2_FL=256; K2_C1=260; K2_C2=264; K2_AL=272; K2_OH=288; K2_L1=1024; K2_L2=K2_L1+16*WCAP*4; K2_E=K2_L2+16*WCAP*4
K2_Z=K2_E+ECAP*32; K2_W=K2_Z-34816; K2_SRC=K2_W-8192; K2_LDS=K2_Z+32
assert K2_LDS<=163840 and K2_L1%256==0 and K2_L2%256==0 and K2_SRC-K2_E>=2048*32
O0=K2_L1//256; O1o=K2_L2//256; LST=O1o-O0

def k2():
    L=0; D=32; EE=48; ACC=64; GB=80; AO=96; S=100; LM,LS=102,103; G=104; EA,OA,SA,LMX=108,109,110,111
    WP,CPt=112,113
    cJ16,cG8,cG8O,cS,pL1,pLm,pLs,LANE=114,115,116,117,118,119,120,121
    L16,TID=122,123
    A(".p2align 8\nmain_kernel:")
    A(f"""s_cmp_ge_u32 s2, 256
    s_cbranch_scc1 L_k2_end""")
    if OPT.get('until0'): spin(OPT['until0'],'a')
    A(f"""s_load_dwordx2 s[18:19], s[0:1], 72
    s_load_dwordx2 s[4:5], s[0:1], 0
    s_load_dwordx2 s[6:7], s[0:1], 56
    v_mov_b32 v{TID}, v0
    v_lshrrev_b32 v1, 6, v0
    v_and_b32 v{LANE}, 63, v0
    v_readfirstlane_b32 s3, v1
    v_lshlrev_b32 v{L16}, 4, v{LANE}
    v_lshlrev_b32 v4, 4, v0
    s_bfe_u32 s40, s2, 0x10002
    s_lshr_b32 s41, s2, 3
    s_and_b32 s42, s2, 3
    s_lshl_b32 s42, s42, 5
    s_add_u32 s41, s41, s42
    s_lshl_b32 s45, s41, 15
    s_add_u32 s46, s45, 16384
    s_mov_b32 s10, 0x400000
    s_mov_b32 s11, 0x20000
    s_setprio 3
    s_waitcnt lgkmcnt(0)
    s_add_u32 s8, s18, {hex(REC_OFF)}
    s_addc_u32 s9, s19, 0""")
    R=0; RK=8; HA=16; XR=32
    A(f"""buffer_load_dwordx4 v[{R}:{R+3}], v4, s[8:11], s45 offen {NT}
    buffer_load_dwordx4 v[{R+4}:{R+7}], v4, s[8:11], s46 offen {NT}""")
    stamp_init(1,3,18,19)
    stamp(0,1)
    srd(24,18,19,MISC_OFF,MISC_SZ)
    A(f"""s_lshl_b32 s45, s3, 6
    s_add_u32 s45, s45, {FLAGO}
    v_lshlrev_b32 v25, 2, v{LANE}
    s_mov_b64 exec, 0xffff
    buffer_load_dword v24, v25, s[24:27], s45 offen
    s_mov_b64 exec, -1""")
    A(f"""s_add_u32 s42, s3, 4
    s_mul_i32 s42, s42, 52
    s_lshr_b32 s42, s42, 8
    s_add_u32 s43, s3, 5
    s_mul_i32 s43, s43, 52
    s_lshr_b32 s43, s43, 8
    s_sub_u32 s43, s43, s42
    s_add_u32 s43, s43, 12
    s_mul_i32 s44, s3, 12
    s_add_u32 s42, s42, s44
    s_mul_i32 s44, s41, {BS}
    s_add_u32 s44, s44, s42""")
    srd(20,4,5,0,N*256)
    A(f"""s_lshl_b32 s45, s41, 18
    s_add_u32 s12, s18, s45
    s_addc_u32 s13, s19, 0
    s_add_u32 s12, s12, {hex(EP_OFF)}
    s_addc_u32 s13, s13, 0
    s_mov_b32 s14, 0x40000
    s_mov_b32 s15, 0x20000
    s_mul_i32 s45, s40, {HS}
    s_add_u32 s45, s45, {WSB}
    s_add_u32 s16, s18, s45
    s_addc_u32 s17, s19, 0
    s_mov_b32 s18, {HS}
    s_mov_b32 s19, 0x20000""")
    srd(28,6,7,0,N*256)
    A(f"""v_subrev_u32 v28, 72, v{TID}
    v_and_b32 v29, 7, v28
    v_lshrrev_b32 v30, 4, v28
    v_and_b32 v28, 8, v28
    v_lshlrev_b32 v28, 1, v28
    v_mov_b32 v31, 0x3f80
    v_cmp_eq_u32 vcc, v29, v30
    v_lshlrev_b32 v31, v28, v31
    v_lshlrev_b32 v29, 2, v{TID}
    v_cndmask_b32 v31, 0, v31, vcc
    s_cmp_lg_u32 s3, 1
    s_cbranch_scc1 L_k2_noal
    s_mov_b32 s45, {2048<<16}
    s_mov_b32 s46, 3072
    v_writelane_b32 v31, s45, 4
    v_writelane_b32 v31, s46, 5
L_k2_noal:
    v_cmp_gt_u32 vcc, 208, v{TID}
    s_mov_b64 exec, vcc
    ds_write_b32 v29, v31
    s_cmp_lg_u32 s3, 0
    s_cbranch_scc1 L_k2_noz
    s_mov_b64 exec, 0xff
    v_add_u32 v29, {K2_Z}, v29
    ds_write_b32 v29, v31
L_k2_noz:
    s_mov_b64 exec, -1
    v_bfe_u32 v28, v{LANE}, 2, 2
    v_and_b32 v29, 3, v{LANE}
    v_lshlrev_b32 v28, 10, v28
    v_lshl_or_b32 v28, v29, 4, v28
    v_lshrrev_b32 v29, 4, v{LANE}
    v_lshl_or_b32 v28, v29, 6, v28
    s_cmp_eq_u32 s43, 13
    s_cselect_b32 s50, -1, 0x0fff0fff
    s_lshl_b32 s45, s44, 8
    s_lshl_b32 s47, s3, 11
    s_add_u32 m0, s47, {K2_W}
    s_mul_i32 s48, s40, {WH}
    s_add_u32 s47, s47, s48""")
    for i in range(16): A(f"v_mov_b32 v{XR+i}, 0")
    A(f"""s_waitcnt lgkmcnt(0)
    s_barrier
    s_cmp_lg_u32 s3, 15
    s_cbranch_scc1 L_k2_noc
    buffer_load_dwordx4 v{L16}, s[24:27], s47 offen offset:2048 lds
    buffer_load_dwordx4 v{L16}, s[24:27], s47 offen offset:3072 lds
L_k2_noc:
    buffer_load_dwordx4 v{L16}, s[24:27], s47 offen lds
    buffer_load_dwordx4 v{L16}, s[24:27], s47 offen offset:1024 lds
    v_mov_b32 v78, v28
    s_mov_b32 s84, s50
    s_mov_b32 s85, 0x0fff0fff
    s_mov_b32 s86, s45""")
    XL=int(OPT.get('xlate',16))
    def xload(tag, early):
        A(f"s_cmp_{'ge' if early else 'lt'}_u32 s3, {XL}\ns_cbranch_scc1 L_k2_x{tag}\ns_mov_b32 exec_lo, s84\ns_mov_b32 exec_hi, s84")
        for ks in range(4):
            A(f"buffer_load_dwordx4 v[{XR+4*ks}:{XR+4*ks+3}], v78, s[20:23], s86 offen offset:{ks*256} {NT}")
            if ks==0: A("s_mov_b32 exec_lo, s85\ns_mov_b32 exec_hi, s85")
        A(f"s_mov_b64 exec, -1\nL_k2_x{tag}:")
    xload('e',True)
    A(f"""    v_and_b32 v28, 15, v{LANE}
    v_lshrrev_b32 v29, 4, v{LANE}
    v_lshlrev_b32 v{cJ16}, 4, v28
    v_lshlrev_b32 v30, 3, v29
    v_add_u32 v{cG8}, {K2_E}, v30
    v_add_u32 v{cG8O}, {K2_OH}, v30
    v_and_b32 v30, 3, v{LANE}
    v_lshlrev_b32 v30, 3, v30
    v_add_u32 v{cS}, {K2_OH}, v30
    s_mul_i32 s47, s3, {WCAP*4}
    s_add_u32 s48, s47, {K2_L2}
    s_add_u32 s47, s47, {K2_L1}
    v_lshl_add_u32 v{pL1}, v29, 4, s47
    v_lshl_add_u32 v{pLm}, v28, 2, s48
    v_and_b32 v30, -4, v{LANE}
    v_add_u32 v{pLs}, s48, v30
    v_lshrrev_b32 v30, 4, v{TID}
    v_lshl_add_u32 v29, v30, 6, v28
    v_lshl_or_b32 v28, v28, 16, v28
    v_mov_b32 v31, 1
    v_mov_b32 v30, {OPT.get('srcmask','0x7fff00')}
    v_mov_b32 v25, 0
    v_mov_b32 v72, 0x0c0c0100
    v_mov_b32 v73, 0x202
    v_mov_b32 v74, 0x05040c00
    v_mov_b32 v75, {K2_SRC}
    s_mov_b32 s50, 0x80008000
    s_mov_b32 s51, 0x80008000
    s_mov_b32 s68, 0x0c010c00
    s_mov_b32 s69, 0x0c0c0c02
    s_mov_b32 s70, 0x01000100
    s_mov_b32 s71, 0x05040302
    s_mov_b32 s72, 0x0c010c00
    s_cmp_lt_u32 s3, {XL}
    s_cbranch_scc1 L_k2_rw
    s_waitcnt vmcnt(2)
L_k2_rw:
    s_waitcnt vmcnt(6)""")
    stamp(1,1)
    AL=64; DD=68; PR=76
    A(f"""v_perm_b32 v{AL}, v{R+3}, v{R+3}, s68
    v_perm_b32 v{AL+1}, v{R+3}, v{R+3}, s69
    v_perm_b32 v{AL+2}, v{R+7}, v{R+7}, s68
    v_perm_b32 v{AL+3}, v{R+7}, v{R+7}, s69
    s_mov_b64 exec, s[50:51]
    ds_add_rtn_u64 v[{AL}:{AL+1}], v25, v[{AL}:{AL+1}] offset:{K2_AL}
    ds_add_rtn_u64 v[{AL+2}:{AL+3}], v25, v[{AL+2}:{AL+3}] offset:{K2_AL}
    s_mov_b64 exec, 0xffff
    ds_or_b32 v25, v24 offset:{K2_FL}
    s_mov_b64 exec, -1""")
    MK=52; O1=48
    order=[0,4,1,5,2,6,3,7]
    for j in order:
        Lb=A.label("k2h")
        A(f"v_cmp_le_i32 s[{MK+2*j}:{MK+2*j+1}], 0, v{R+j}")
        if j&3==3: A(f"s_andn2_b64 s[{MK+2*j}:{MK+2*j+1}], s[{MK+2*j}:{MK+2*j+1}], s[50:51]")
        A(f"s_mov_b64 exec, s[{MK+2*j}:{MK+2*j+1}]")
        if j&3>=2: A(f"s_cbranch_execz {Lb}")
        A(f"""v_lshlrev_b32_sdwa v{HA+j}, 2, v{R+j} dst_sel:DWORD dst_unused:UNUSED_PAD src0_sel:DWORD src1_sel:BYTE_3
        v_bfe_u32 v{56+j}, v{R+j}, 24, 2
        ds_add_rtn_u32 v{RK+j}, v{HA+j}, v31 offset:{K2_HIST}
        v_and_b32 v{O1+j}, v30, v{R+j}
        v_mad_u32_u24 v{56+j}, v{56+j}, v73, v72""")
        if j&3>=2: A(f"{Lb}:")
        A("s_mov_b64 exec, -1")
    for u in range(2):
        h=R+3+4*u
        A(f"v_lshl_add_u32 v{PR+u}, v{h}, 8, v{h}\nv_perm_b32 v{PR+u}, v{PR+u}, v{PR+u}, s72")
    A("s_waitcnt lgkmcnt(0)")
    for u in range(2):
        A(f"""v_perm_b32 v{DD+2*u}, v{AL+2*u}, v{AL+2*u}, s70
        v_perm_b32 v{DD+2*u+1}, v{AL+2*u+1}, v{AL+2*u}, s71
        v_pk_sub_u16 v{DD+2*u+1}, v{DD+2*u+1}, v{PR+u}""")
    A("s_nop 0")
    for k in (0,2,1,3): A(f"v_mov_b32_dpp v{DD+k}, v{DD+k} row_newbcast:15 row_mask:0xf bank_mask:0xf")
    for k in (0,2,1,3): A(f"v_pk_add_u16 v{DD+k}, v{DD+k}, v28")
    for j in order:
        Lb=A.label("k2s"); u=j>>2
        A(f"s_mov_b64 exec, s[{MK+2*j}:{MK+2*j+1}]")
        if j&3>=2: A(f"s_cbranch_execz {Lb}")
        A(f"""v_perm_b32 v24, v{DD+2*u+1}, v{DD+2*u}, v{56+j}
        v_mad_u32_u24 v{RK+j}, v{HA+j}, 24, v{RK+j}""")
        if j&3: A(f"v_add_u32 v24, {16*(j&3)}, v24")
        A(f"v_lshlrev_b32 v{RK+j}, 2, v{RK+j}")
        if j: A(f"v_add_u32 v{HA+j}, {16*(j&3)+4096*u}, v29")
        A(f"""v_perm_b32 v{R+j}, v24, v{R+j}, v74
        v_lshl_add_u32 v24, v24, 1, v75
        ds_write2st64_b32 v{RK+j}, v{O1+j}, v{R+j} offset0:{O0} offset1:{O1o}
        ds_write_b16 v24, v{HA+j if j else 29}""")
        if j&3>=2: A(f"{Lb}:")
    A("s_mov_b64 exec, -1")
    xload('l',False)
    A(f"""v_lshlrev_b32 v24, 2, v{LANE}
    v_add_u32 v26, s47, v24
    v_and_b32 v27, -2, v{LANE}
    s_lshl_b32 s45, s3, 6
    s_add_u32 s45, s45, {K2_SRC}
    v_add_u32 v27, s45, v27
    v_and_b32 v28, 1, v{LANE}
    v_lshlrev_b32 v28, 4, v28
    s_lshl_b32 s45, s3, 2
    s_waitcnt vmcnt(4) lgkmcnt(0)
    s_barrier""")
    stamp(2,1)
    H0=0; FLr=1; ALr=2; SR=4; CP=8; S1=124; S2=126
    A(f"""ds_read_b32 v{H0}, v24 offset:{K2_HIST}
    ds_read_b32 v{FLr}, v25 offset:{K2_FL}
    ds_read_b64 v[{ALr}:{ALr+1}], v25 offset:{K2_AL}""")
    for i in range(4): A(f"ds_read_u16 v{SR+i}, v27 offset:{i*1024}")
    for b in range(1,4):
        A(f"""ds_read_b32 v{CP+4*b}, v26 offset:{b*BCAP*4}
        ds_read_b32 v{CP+4*b+1}, v26 offset:{b*BCAP*4+LST*256}""")
    A(f"""s_waitcnt lgkmcnt(6)
    v_cmp_lt_u32 vcc, {BCAP}, v{H0}
    v_readfirstlane_b32 s70, v{FLr}
    v_readfirstlane_b32 s76, v{ALr}
    v_readfirstlane_b32 s78, v{ALr+1}""")
    for i in range(4):
        A(f"v_readlane_b32 s{72+i}, v{H0}, s45\ns_add_u32 s45, s45, 1")
    A(f"""s_cmp_lg_u64 vcc, 0
    s_cbranch_scc1 L_k2_fallback
    s_cmp_lg_u32 s70, 0
    s_cbranch_scc1 L_k2_fallback
    s_lshr_b32 s77, s76, 16
    s_and_b32 s76, s76, 0xffff
    s_sub_u32 s77, s77, 2048
    s_sub_u32 s78, s78, 3072
    s_max_u32 s70, s77, s78
    s_cmp_gt_u32 s70, 1024
    s_cbranch_scc1 L_k2_fallback
    s_cmp_gt_u32 s76, 2048
    s_cbranch_scc1 L_k2_fallback
    s_add_u32 s79, s76, s77
    s_add_u32 s70, s79, s78
    s_cmp_gt_u32 s70, {ECAP-32}
    s_cbranch_scc1 L_k2_fallback""")
    def dma(cnt, n, base, SR, tag):
        A(f"s_lshl_b32 s45, s3, 5")
        if base is None: A(f"s_lshl_b32 s46, s3, 10\ns_add_u32 m0, s46, {K2_E}")
        else: A(f"s_add_u32 s46, s45, s{base}\ns_lshl_b32 s46, s46, 5\ns_add_u32 m0, s46, {K2_E}")
        for i in range(cnt):
            A(f"""s_cmp_ge_u32 s45, s{n}
            s_cbranch_scc1 L_dma_{tag}
            buffer_load_dwordx4 v{SR+i}, s[12:15], 0 offen {NT} lds""")
            if i<cnt-1: A("s_add_u32 s45, s45, 512\ns_add_u32 m0, m0, 16384")
        A(f"L_dma_{tag}:")
    for i in range(4): A(f"v_lshl_add_u32 v{SR+i}, v{SR+i}, 5, v28")
    dma(4,76,None,SR,'p0')
    if OPT.get('fine'): stamp(5,1)
    A("s_max_u32 s45, s73, s74\ns_max_u32 s45, s45, s75\ns_cmp_le_u32 s45, 64\ns_cbranch_scc1 L_k2_nolong")
    for b in range(1,4):
        A(f"""ds_read_b32 v{CP+4*b+2}, v26 offset:{b*BCAP*4+256}
        ds_read_b32 v{CP+4*b+3}, v26 offset:{b*BCAP*4+256+LST*256}""")
    A("L_k2_nolong:")
    for i in range(2): A(f"ds_read_u16 v{S1+i}, v27 offset:{4096+i*1024}\nds_read_u16 v{S2+i}, v27 offset:{6144+i*1024}")
    A(f"""s_mov_b32 s68, s72
    v_add_u32 v29, 64, v{LANE}
    s_sub_u32 s48, s76, 2048
    s_sub_u32 s49, s79, 3072
    s_lshl_b32 s48, s48, 16
    s_lshl_b32 s49, s49, 16
    s_waitcnt lgkmcnt(0)""")
    for i in range(4): A(f"v_lshl_add_u32 v{S1+i}, v{S1+i}, 5, v28")
    for b in range(1,4):
        Lb=A.label("cp")
        if b>=2: A(f"v_add_u32 v{CP+4*b+1}, s{46+b}, v{CP+4*b+1}")
        A(f"""v_cmp_gt_u32 vcc, s{72+b}, v{LANE}
        v_lshl_add_u32 v24, s68, 2, v26
        s_add_u32 s68, s68, s{72+b}
        s_mov_b64 exec, vcc
        ds_write2st64_b32 v24, v{CP+4*b}, v{CP+4*b+1} offset0:0 offset1:{LST}
        s_cmp_le_u32 s{72+b}, 64
        s_cbranch_scc1 {Lb}""")
        if b>=2: A(f"v_add_u32 v{CP+4*b+3}, s{46+b}, v{CP+4*b+3}")
        A(f"""v_cmp_gt_u32 vcc, s{72+b}, v29
        s_mov_b64 exec, vcc
        ds_write2st64_b32 v24, v{CP+4*b+2}, v{CP+4*b+3} offset0:1 offset1:{LST+1}
{Lb}:
        s_mov_b64 exec, -1""")
    A(f"""s_sub_u32 s46, 0, s68
    s_and_b32 s46, s46, 31
    v_cmp_gt_u32 vcc, s46, v{LANE}
    v_lshl_add_u32 v24, s68, 2, v26
    v_mov_b32 v30, {N<<8}
    v_mov_b32 v31, {hex((ECAP<<16)|16)}
    s_mov_b64 exec, vcc
    ds_write2st64_b32 v24, v30, v31 offset0:0 offset1:{LST}
    s_mov_b64 exec, -1
    s_add_u32 s69, s72, s73
    s_add_u32 s80, s69, s74
    s_lshr_b32 s69, s69, 4
    s_lshr_b32 s80, s80, 4
    s_add_u32 s68, s68, 15
    s_lshr_b32 s68, s68, 4""")
    XA=96
    def gathers(Gr, q):
        for i in range(4):
            A(f"v_or_b32 v{Gr+i}, v{Gr+i}, v{cJ16}")
            if not OPT.get('nogather'): A(f"buffer_load_dwordx4 v[{L+16*q+4*i}:{L+16*q+4*i+3}], v{Gr+i}, s[16:19], 0 offen")
    def aread(lm):
        A(f"""v_mad_u32_u16 v{EA}, v{lm}, 32, v{cG8} op_sel:[1,0,0,0]
        v_mad_u32_u16 v{OA}, v{lm}, 32, v{cG8O}
        ds_read_b64 v[{AO}:{AO+1}], v{EA}
        ds_read_b64 v[{AO+2}:{AO+3}], v{OA}""")
    A(f"""v_add_u32 v{WP}, {K2_W}, v{L16}
    v_lshrrev_b32 v{CPt}, 1, v{L16}
    v_add_u32 v{CPt}, {K2_W+CIMG}, v{CPt}
    s_lshl_b32 s45, s3, 5
    s_sub_u32 s45, s76, s45
    s_cmp_gt_i32 s45, 1024
    s_cbranch_scc1 L_k2_x3
    s_waitcnt vmcnt(0)
L_k2_x3:
    s_waitcnt vmcnt(3)""")
    if OPT.get('fine'): stamp(6,1)
    for t in range(4): A(f"ds_read_b64 v[{GB+4*t}:{GB+4*t+1}], v{CPt} offset:{t*512}")
    qtranspose(XR,EE,XA)
    BFR=32
    seq=[(mat,t,ks) for mat in range(2) for t in range(4) for ks in range(4)]
    def rd(n):
        mat,t,ks=seq[n]; b=BFR+4*(n%8)
        A(f"ds_read_b128 v[{b}:{b+3}], v{WP} offset:{n*1024}")
    PF=6
    for n in range(PF): rd(n)
    for n in range(32):
        mat,t,ks=seq[n]; b=BFR+4*(n%8); a=ACC+4*t
        if n==16:
            A(f"s_mov_b32 s45, {hex(LOG2E_NEG)}\ns_nop 6")
            for tt in range(4):
                for r in range(4): A(f"v_mul_f32 v{ACC+4*tt+r}, s45, v{ACC+4*tt+r}")
                A(f"v_cvt_pk_bf16_f32 v{GB+4*tt+2}, v{ACC+4*tt}, v{ACC+4*tt+1}\nv_cvt_pk_bf16_f32 v{GB+4*tt+3}, v{ACC+4*tt+2}, v{ACC+4*tt+3}")
        out=min(31-n,PF-1)
        A(f"s_waitcnt lgkmcnt({out})")
        A(f"v_mfma_f32_16x16x32_bf16 v[{a}:{a+3}], v[{XA+4*ks}:{XA+4*ks+3}], v[{b}:{b+3}], {'0' if ks==0 else f'v[{a}:{a+3}]'}")
        if n+PF<32: rd(n+PF)
    if OPT.get('fine'): stamp(7,1)
    A(f"""ds_read_b128 v[{EE}:{EE+3}], v{pL1}
    ds_read_b128 v[{G}:{G+3}], v{pL1} offset:64
    ds_read_b32 v{LM}, v{pLm}
    ds_read_b32 v{WP}, v{pLm} offset:64
    ds_read_b32 v{LS}, v{pLs}
    v_mov_b32 v{TID}, {K2_C1}
    v_mov_b32 v{L16}, 1
    s_lshl_b32 s45, s3, 5
    s_cmp_lt_u32 s45, s77
    s_cselect_b32 s71, 1, 0
    s_waitcnt vmcnt(0) lgkmcnt(0)""")
    def arrive(k):
        A(f"""s_mov_b64 exec, 1
        ds_add_u32 v{TID}, v{L16} offset:{4*k}
        s_mov_b64 exec, -1""")
    def check(k,tag):
        A(f"""L_k2_spin{tag}:
        ds_read_b32 v{SA}, v{TID} offset:{4*k}
        s_waitcnt lgkmcnt(0)
        v_readfirstlane_b32 s45, v{SA}
        s_cmp_eq_u32 s45, 16
        s_cbranch_scc1 L_k2_ok{tag}
        s_sleep 1
        s_branch L_k2_spin{tag}
L_k2_ok{tag}:""")
    def ensure2(tag):
        A(f"s_cmp_eq_u32 s81, -1\ns_cbranch_scc1 L_k2_iss{tag}")
        dma(2,78,79,S2,'e'+tag)
        A(f"""s_mov_b32 s81, -1
L_k2_iss{tag}:
        s_cmp_eq_u32 s82, -1
        s_cbranch_scc1 L_k2_arr{tag}
        s_mov_b32 s82, -1
        s_waitcnt vmcnt(0)""")
        arrive(1)
        A(f"L_k2_arr{tag}:")
        check(1,'c'+tag)
    arrive(2)
    gathers(EE,0)
    gathers(G,1)
    stamp(3,1)
    check(2,'w')
    stamp(4,1)
    if STAMP: A('s_memtime s[100:101]\ns_waitcnt lgkmcnt(0)')
    if OPT.get('tl'):
        A('s_mov_b32 s90, s94')
        for i in range(1,8): A(f's_mov_b32 s{90+i}, 0')
    if OPT.get('reg'):
        A('s_mov_b32 s92, s68\ns_mov_b32 s93, s94\ns_getreg_b32 s91, hwreg(HW_REG_HW_ID)')
    dma(2,77,76,S1,'p1')
    A(f"""s_max_u32 s81, s69, 2
    s_add_u32 s82, s81, 1
    s_mov_b32 s83, 3
    s_cmp_gt_u32 s69, 3
    s_cbranch_scc1 L_k2_nb0
    s_mov_b32 s83, 0
    s_waitcnt vmcnt(0)""")
    arrive(0)
    A("s_cmp_gt_u32 s69, 1\ns_cbranch_scc1 L_k2_nb0")
    check(0,'p')
    A("s_cmp_gt_u32 s80, 1\ns_cbranch_scc1 L_k2_nb0")
    ensure2('p')
    A("L_k2_nb0:")
    def gate():
        if OPT.get('nomfma'): return
        for t in range(4): A(f"v_mfma_f32_16x16x32_bf16 v[{D+4*t}:{D+4*t+3}], v[{AO}:{AO+3}], v[{GB+4*t}:{GB+4*t+3}], 0")
    aread(LM)
    A("s_mov_b32 s70, 2\ns_waitcnt lgkmcnt(0)")
    gate()
    aread(WP)
    A("""s_cmp_eq_u32 s68, 0
    s_cbranch_scc1 L_k2_done""")
    def group(q):
        Lq=L+16*q; o=64*q
        A(f"""v_mad_u32_u16 v{SA}, v{LS}, 32, v{cS}
        ds_read_b128 v[{G}:{G+3}], v{pL1} offset:{128+o}
        ds_read_b32 v{LM}, v{pLm} offset:{128+o}
        ds_read_b64_tr_b16 v[{S}:{S+1}], v{SA}
        ds_read_b32 v{LS}, v{pLs} offset:{64+o}""")
        if q==1: A(f"v_add_u32 v{pL1}, 128, v{pL1}\nv_add_u32 v{pLm}, 128, v{pLm}\nv_add_u32 v{pLs}, 128, v{pLs}")
        def setp(tag, lv):
            p3,p2,p1=[int(x) for x in OPT.get('pth','11,7,4').split(',')]
            A(f"""s_sub_u32 s45, s68, s70
            s_cmp_ge_i32 s45, {p3-2}
            s_cbranch_scc1 L_k2_p3{tag}
            s_cmp_ge_i32 s45, {p2-2}
            s_cbranch_scc1 L_k2_p2{tag}
            s_cmp_ge_i32 s45, {p1-2}
            s_cbranch_scc1 L_k2_p1{tag}
            s_setprio {lv[3]}
            s_branch L_k2_pd{tag}
L_k2_p3{tag}:
            s_setprio {lv[0]}
            s_branch L_k2_pd{tag}
L_k2_p2{tag}:
            s_setprio {lv[1]}
            s_branch L_k2_pd{tag}
L_k2_p1{tag}:
            s_setprio {lv[2]}
L_k2_pd{tag}:""")
        YL=OPT.get('yield')
        if q==0 and not YL: setp('a',[int(x) for x in OPT.get('plv','2,1,1,0').split(',')])
        if not OPT.get('nocomp'):
            for t in range(4):
                for r in range(4): A(f"v_exp_f32 v{EE+4*r+t}, v{D+4*t+r}")
        if OPT.get('tl') and q==0: A("s_memrealtime s[88:89]")
        A("s_waitcnt lgkmcnt(0)")
        if OPT.get('tl') and q==0: A("s_lshr_b32 s45, s70, 1\ns_min_u32 s45, s45, 7\ns_mov_b32 m0, s45\ns_nop 0\ns_movreld_b32 s90, s88")
        gate()
        A(f"""s_cmp_lg_u32 s70, s69
        s_cbranch_scc1 L_k2_nb_{q}""")
        check(0,q)
        A(f"""L_k2_nb_{q}:
        s_cmp_lg_u32 s70, s80
        s_cbranch_scc1 L_k2_nc_{q}""")
        ensure2(str(q))
        A(f"L_k2_nc_{q}:")
        aread(LM)
        A(f"""s_add_u32 s45, s71, 2
        s_cmp_lt_u32 s70, s45
        s_cbranch_scc1 L_k2_w7_{q}
        s_waitcnt vmcnt(4)
L_k2_w7_{q}:
        s_cmp_le_u32 s70, s68
        s_cbranch_scc1 L_k2_w0_{q}
        s_waitcnt vmcnt(0)
L_k2_w0_{q}:
        s_waitcnt vmcnt(5)""")
        if q==1:
            A("s_cmp_lg_u32 s70, s83\ns_cbranch_scc1 L_k2_noarr")
            arrive(0)
            A("L_k2_noarr:")
        A(f"s_cmp_lg_u32 s70, s82\ns_cbranch_scc1 L_k2_noa2_{q}\ns_mov_b32 s82, -1")
        arrive(1)
        A(f"L_k2_noa2_{q}:")
        if not OPT.get('nocomp'):
            order=[(r,t) for tt in (0,2) for r in range(4) for t in (tt,tt+1)]
            fm=lambda r,t: A(f"v_fma_mix_f32 v{EE+4*r+t}, v{Lq+4*r+t}, v{EE+4*r+t}, 1.0 op_sel_hi:[1,0,0]")
            rc=lambda r,t: A(f"v_rcp_f32 v{EE+4*r+t}, v{EE+4*r+t}")
            lag=int(OPT.get('lag','2'))
            for i in range(16+lag):
                if i<16: fm(*order[i])
                if i>=lag: rc(*order[i-lag])
            if YL: A("s_setprio 0")
            if OPT.get('nopk'):
                for r,t in order: A(f"v_mul_f32 v{EE+4*r+t}, v{EE+4*r+t}, v{Lq+4*r+t}")
            else:
              for t in (0,2):
                for r in range(4): A(f"v_pk_mul_f32 v[{EE+4*r+t}:{EE+4*r+t+1}], v[{EE+4*r+t}:{EE+4*r+t+1}], v[{Lq+4*r+t}:{Lq+4*r+t+1}]")
            if YL: setp(f'y{q}',[3,2,1,1])
            for t,p in [(0,0),(2,0),(1,0),(3,0),(0,1),(1,1),(2,1),(3,1)]:
                A(f"v_cvt_pk_bf16_f32 v{EE+2*t+p}, v{EE+8*p+t}, v{EE+8*p+4+t}")
        A("s_nop 1")
        for t in range(0 if OPT.get('nomfma') else 4): A(f"v_mfma_f32_16x16x16_bf16 v[{ACC+4*t}:{ACC+4*t+3}], v[{S}:{S+1}], v[{EE+2*t}:{EE+2*t+1}], v[{ACC+4*t}:{ACC+4*t+3}]")
        A(f"s_cmp_lg_u32 s70, s81\ns_cbranch_scc1 L_k2_ni_{q}\ns_mov_b32 s81, -1")
        dma(2,78,79,S2,f'i{q}')
        A(f"""L_k2_ni_{q}:
        s_cmp_ge_u32 s70, s68
        s_cbranch_scc1 L_k2_ng_{q}""")
        gathers(G,q)
        A(f"""L_k2_ng_{q}:
        s_cmp_gt_u32 s70, s68
        s_cbranch_scc1 L_k2_done
        s_add_u32 s70, s70, 1""")
    A(".p2align 6\nL_k2_loop:")
    group(0); group(1)
    A("s_branch L_k2_loop")
    A("L_k2_done:\ns_waitcnt vmcnt(0)")
    if not OPT.get('tl') and not OPT.get('fine'): stamp(5,1)
    if STAMP and not OPT.get('tl') and not OPT.get('fine'): A('s_memtime s[88:89]\ns_waitcnt lgkmcnt(0)\ns_sub_u32 s97, s88, s100')
    A(f"""v_lshrrev_b32 v0, 4, v{LANE}
    v_lshlrev_b32 v0, 2, v0
    v_add_u32 v1, s44, v0
    v_lshlrev_b32 v1, 8, v1
    v_lshrrev_b32 v2, 1, v{cJ16}
    s_lshl_b32 s45, s40, 7
    v_add3_u32 v1, v1, v2, s45
    v_mov_b32 v3, {hex(LOG2E_NEG)}
    v_mov_b32 v4, 0x80000000""")
    for r in range(4):
        for t in range(4): A(f"v_mul_f32 v{8+t}, v3, v{ACC+4*t+r}")
        for t in range(4): A(f"v_exp_f32 v{8+t}, v{8+t}")
        A(f"v_add_u32 v5, {r}, v0\nv_cmp_gt_u32 vcc, s43, v5")
        for t in range(4): A(f"v_add_f32 v{8+t}, 1.0, v{8+t}")
        for t in range(4): A(f"v_rcp_f32 v{8+t}, v{8+t}")
        A(f"v_cndmask_b32 v{16+r}, v4, v1, vcc")
        for t in range(4): A(f"v_mul_f32 v{8+t}, v{8+t}, v{ACC+4*t+r}")
        A(f"""v_cvt_pk_bf16_f32 v{20+2*r}, v8, v9
        v_cvt_pk_bf16_f32 v{21+2*r}, v10, v11
        buffer_store_dwordx2 v[{20+2*r}:{21+2*r}], v{16+r}, s[28:31], 0 offen offset:{r*256} {OST}""")
    if STAMP:
        A("s_waitcnt vmcnt(0)")
        if not OPT.get('tl') and not OPT.get('fine'): stamp(6,1)
        stamp_flush(1)
    if OPT.get('until'): spin(OPT['until'],'b')
    A("s_endpgm")
    fallback()
    A("L_k2_end:\ns_endpgm")

def fallback():
    LANE=121; TID=123
    A(f"""L_k2_fallback:
    s_mov_b64 exec, -1
    s_load_dwordx2 s[50:51], s[0:1], 8
    s_load_dwordx4 s[52:55], s[0:1], 16
    s_load_dwordx4 s[56:59], s[0:1], 32
    s_load_dwordx2 s[60:61], s[0:1], 48
    s_waitcnt vmcnt(0) lgkmcnt(0)
    s_barrier""")
    srd(8,50,51,0,E*32)
    srd(12,52,53,0,E*4)
    srd(16,54,55,0,E*4)
    srd(24,56,57,0,128*256)
    srd(32,58,59,0,128*256)
    srd(36,60,61,0,272*256)
    A(f"""v_mov_b32 v0, 0
    v_mov_b32 v1, 0
    v_mov_b32 v2, 0
    v_mov_b32 v3, 0
    v_lshlrev_b32 v4, 4, v{TID}
    ds_write_b128 v4, v[0:3]
    ds_write_b128 v4, v[0:3] offset:16384
    ds_write_b128 v4, v[0:3] offset:32768
    ds_write_b128 v4, v[0:3] offset:49152
    s_lshl_b32 s45, s40, 7
    v_lshl_add_u32 v5, v{LANE}, 1, s45
    v_lshlrev_b32 v6, 2, v{LANE}
    s_mul_i32 s46, s41, {BS}
    s_lshl_b32 s47, s3, 6
    s_waitcnt lgkmcnt(0)
    s_barrier
L_fb_chunk:
    s_cmp_ge_u32 s47, {E}
    s_cbranch_scc1 L_fb_fin
    s_lshl_b32 s48, s47, 2
    buffer_load_dword v7, v6, s[16:19], s48 offen
    buffer_load_dword v8, v6, s[12:15], s48 offen
    s_waitcnt vmcnt(0)
    v_subrev_u32 v9, s46, v7
    v_cmp_gt_u32 s[62:63], v10, v9
    """.replace("v_cmp_gt_u32 s[62:63], v10, v9",f"v_mov_b32 v10, {BS}\nv_cmp_gt_u32 s[62:63], v10, v9")+f"""
L_fb_edge:
    s_cmp_eq_u64 s[62:63], 0
    s_cbranch_scc1 L_fb_next
    s_ff1_i32_b64 s49, s[62:63]
    s_bitset0_b64 s[62:63], s49
    v_readlane_b32 s64, v7, s49
    v_readlane_b32 s65, v8, s49
    s_add_u32 s66, s47, s49
    s_lshl_b32 s67, s64, 8
    s_lshl_b32 s68, s65, 8
    s_lshl_b32 s66, s66, 5
    s_nop 2
    buffer_load_dword v11, v6, s[20:23], s67 offen
    buffer_load_dword v12, v6, s[20:23], s68 offen
    v_and_b32 v14, 28, v6
    buffer_load_dword v13, v14, s[8:11], s66 offen
    v_mov_b32 v15, 0
    v_mov_b32 v16, 0
    s_mov_b32 s69, 0
    s_waitcnt vmcnt(0)
L_fb_k:
    s_lshl_b32 s70, s69, 9
    s_add_u32 s71, s70, {128*256}
    buffer_load_ushort v17, v5, s[36:39], s70 offen
    buffer_load_ushort v18, v5, s[36:39], s70 offen offset:256
    buffer_load_ushort v19, v5, s[36:39], s71 offen
    buffer_load_ushort v20, v5, s[36:39], s71 offen offset:256
    buffer_load_ushort v21, v5, s[32:35], s70 offen
    buffer_load_ushort v22, v5, s[32:35], s70 offen offset:256
    v_readlane_b32 s72, v11, s69
    v_readlane_b32 s73, v12, s69
    s_lshl_b32 s74, s72, 16
    s_and_b32 s72, s72, 0xffff0000
    s_lshl_b32 s75, s73, 16
    s_and_b32 s73, s73, 0xffff0000
    s_waitcnt vmcnt(0)""")
    for i in range(17,23): A(f"v_lshlrev_b32 v{i}, 16, v{i}")
    A(f"""v_fmac_f32 v15, s74, v17
    v_fmac_f32 v15, s72, v18
    v_fmac_f32 v15, s75, v19
    v_fmac_f32 v15, s73, v20
    v_fmac_f32 v16, s75, v21
    v_fmac_f32 v16, s73, v22
    s_add_u32 s69, s69, 1
    s_cmp_lt_u32 s69, 64
    s_cbranch_scc1 L_fb_k
    s_mov_b32 s69, 0
L_fb_ke:
    s_lshl_b32 s70, s69, 9
    s_add_u32 s70, s70, {256*256}
    buffer_load_ushort v17, v5, s[36:39], s70 offen
    buffer_load_ushort v18, v5, s[36:39], s70 offen offset:256
    v_readlane_b32 s72, v13, s69
    s_lshl_b32 s74, s72, 16
    s_and_b32 s72, s72, 0xffff0000
    s_waitcnt vmcnt(0)
    v_lshlrev_b32 v17, 16, v17
    v_lshlrev_b32 v18, 16, v18
    v_fmac_f32 v15, s74, v17
    v_fmac_f32 v15, s72, v18
    s_add_u32 s69, s69, 1
    s_cmp_lt_u32 s69, 8
    s_cbranch_scc1 L_fb_ke
    v_mul_f32 v15, {hex(LOG2E_NEG)}, v15
    v_exp_f32 v15, v15
    s_sub_u32 s64, s64, s46
    s_lshl_b32 s64, s64, 8
    v_add_f32 v15, 1.0, v15
    v_rcp_f32 v15, v15
    v_add_u32 v17, s64, v6
    v_mul_f32 v15, v15, v16
    ds_add_f32 v17, v15
    s_branch L_fb_edge
L_fb_next:
    s_add_u32 s47, s47, 1024
    s_branch L_fb_chunk
L_fb_fin:
    s_waitcnt lgkmcnt(0)
    s_barrier
    s_mov_b32 s47, s3
L_fb_node:
    s_cmp_ge_u32 s47, {BS}
    s_cbranch_scc1 L_k2_end
    s_add_u32 s64, s46, s47
    s_lshl_b32 s67, s64, 8
    buffer_load_dword v11, v6, s[20:23], s67 offen
    s_lshl_b32 s48, s47, 8
    v_add_u32 v17, s48, v6
    ds_read_b32 v15, v17
    s_mov_b32 s69, 0
    s_waitcnt vmcnt(0) lgkmcnt(0)
L_fb_ku:
    s_lshl_b32 s70, s69, 9
    buffer_load_ushort v17, v5, s[24:27], s70 offen
    buffer_load_ushort v18, v5, s[24:27], s70 offen offset:256
    v_readlane_b32 s72, v11, s69
    s_lshl_b32 s74, s72, 16
    s_and_b32 s72, s72, 0xffff0000
    s_waitcnt vmcnt(0)
    v_lshlrev_b32 v17, 16, v17
    v_lshlrev_b32 v18, 16, v18
    v_fmac_f32 v15, s74, v17
    v_fmac_f32 v15, s72, v18
    s_add_u32 s69, s69, 1
    s_cmp_lt_u32 s69, 64
    s_cbranch_scc1 L_fb_ku
    v_mul_f32 v16, {hex(LOG2E_NEG)}, v15
    v_exp_f32 v16, v16
    s_nop 0
    v_add_f32 v16, 1.0, v16
    v_rcp_f32 v16, v16
    s_nop 0
    v_mul_f32 v15, v15, v16
    v_cvt_pk_bf16_f32 v15, v15, v15
    buffer_store_short v15, v5, s[28:31], s67 offen
    s_add_u32 s47, s47, 16
    s_branch L_fb_node""")

def desc(name, vg, sg=102):
    return f""".amdhsa_kernel {name}
  .amdhsa_next_free_vgpr {vg}
  .amdhsa_next_free_sgpr {sg}
  .amdhsa_accum_offset {vg}
  .amdhsa_group_segment_fixed_size 0
  .amdhsa_kernarg_size 80
  .amdhsa_user_sgpr_count 2
  .amdhsa_user_sgpr_kernarg_segment_ptr 1
  .amdhsa_system_sgpr_workgroup_id_x 1
.end_amdhsa_kernel
"""
k1(); k2()
errs=check(A.lines)
for e in errs: print(e, file=sys.stderr)
hdr=open('gather_scatter__edge_featured_mpnn_egc__graph.s.ref').read().split('; Override launch')[0]
xl="; @launch kernel=nop_kernel grid=(256,1,1) block=(64,1,1) lds=0\n"
pre=xl if OPT.get('nop')=='pre' else ''; post=xl if OPT.get('nop')=='post' else ''
if OPT.get('nop'): A(".p2align 8\nnop_kernel:\ns_endpgm")
out=hdr+pre+f"""; Two launches: prep (edge partition + node tables), main (gated gather / aggregate / silu)
; @launch kernel=prep_kernel grid=(256,1,1) block=(1024,1,1) lds={K1_LDS}
; @launch kernel=main_kernel grid=(256,1,1) block=(1024,1,1) lds={K2_LDS}
{post}.amdgcn_target "amdgcn-amd-amdhsa--gfx950"
.text
.globl prep_kernel
.type prep_kernel,@function
.globl main_kernel
.type main_kernel,@function
"""+A.text()+""".section .rodata,"a"
.p2align 6
"""+desc("prep_kernel",128)+".p2align 6\n"+desc("main_kernel",128)+((".p2align 6\n"+desc("nop_kernel",8,16)) if OPT.get('nop') else '')
open(sys.argv[1],'w').write(out)
print("written",sys.argv[1],len(A.lines),"lines; hazards:",len(errs))
```

```python
import sys
from dsl import *
OPT=dict(a.split('=') if '=' in a else (a,'1') for a in sys.argv[2:])
STAMP=int(OPT.get('stamp',0))
def hint(k,d=''):
    v=OPT.get(k,d); return '' if v=='none' else v.replace('+',' ')
NTI=hint('nti'); NTE=hint('nte'); NTX=hint('ntx'); NT=hint('nt2'); OST=hint('ost','sc0+sc1')
ST=OPT.get('st','sc0 sc1')
if ST=='none': ST=''
ST=ST.replace('+',' ')

N=25000; E=400000; BS=196; CH=3136
NROW=25088; HS=NROW*256
WSB=int(OPT.get('wsb','0'))<<20
TAB_OFF=WSB; REC_OFF=WSB+0x0D00000; EP_OFF=WSB+0x1100000; MISC_OFF=WSB+0x3100000
WH=0x9000; CIMG=0x8000; FLAGO=0x12000; MISC_SZ=0x13000
LOG2E=0x3fb8aa3b
STAMP_OFF=0x3200000
LOG2E_NEG=0xbfb8aa3b
A=Asm()

def srd(s, base_lo, base_hi, off, size):
    if off:
        A(f"s_add_u32 s{s}, s{base_lo}, {hex(off)}\ns_addc_u32 s{s+1}, s{base_hi}, 0")
    else:
        A(f"s_mov_b32 s{s}, s{base_lo}\ns_mov_b32 s{s+1}, s{base_hi}")
    A(f"s_mov_b32 s{s+2}, {hex(size)}\ns_mov_b32 s{s+3}, 0x20000")

def stamp(idx, kern):
    if not STAMP: return
    A(f"""s_memrealtime s[88:89]
    s_waitcnt lgkmcnt(0)
    s_mov_b32 s{90+idx}, s88""")
def stamp_init(kern, wave_s, wsl, wsh):
    if not STAMP: return
    for i in range(8): A(f"s_mov_b32 s{90+i}, 0")
    A(f"s_add_u32 s98, s{wsl}, {hex(STAMP_OFF+kern*0x80000)}\ns_addc_u32 s99, s{wsh}, 0")
def stamp_flush(kern=0):
    if not STAMP: return
    if STAMP==2:
        sel=[0,1,2,5] if kern==0 else [0,2,3,6]
        if kern==0: A("s_and_b32 s4, s2, 15\ns_cmp_lg_u32 s4, 0\ns_cbranch_scc1 L_sf_0_3")
        A(f"""s_load_dwordx2 s[4:5], s[0:1], 64
        s_waitcnt lgkmcnt(0)
        s_add_u32 s4, s4, {512*(1-kern)}
        s_addc_u32 s5, s5, 0
        s_cmp_lg_u32 s3, {12 if kern==0 else 15}
        s_cbranch_scc1 L_sf_{kern}_3
        s_mov_b32 s6, 256
        s_mov_b32 s7, 0x20000
        s_mov_b64 exec, 1
        v_mov_b32 v8, 0""")
        for n,i in enumerate(sel):
            A(f"""v_mov_b32 v0, s{90+i}
            v_not_b32 v1, v0
            s_cmp_eq_u32 s{90+i}, 0
            s_cbranch_scc1 L_sf_{kern}_{n}
            buffer_atomic_umax v1, v8, s[4:7], 0 offen offset:{kern*32+n*8}
            buffer_atomic_umax v0, v8, s[4:7], 0 offen offset:{kern*32+n*8+4}
L_sf_{kern}_{n}:""")
        return
    A("""s_mov_b32 s4, s98
    s_mov_b32 s5, s99
    s_mov_b32 s6, 0x80000
    s_mov_b32 s7, 0x20000
    s_lshl_b32 s8, s2, 4
    s_add_u32 s8, s8, s3
    s_lshl_b32 s8, s8, 6
    s_mov_b64 exec, 1
    v_mov_b32 v8, 0""")
    for i in range(8): A(f"v_mov_b32 v{i}, s{90+i}")
    A("buffer_store_dwordx4 v[0:3], v8, s[4:7], s8 offen\nbuffer_store_dwordx4 v[4:7], v8, s[4:7], s8 offen offset:16")

def qtranspose(X,P,Y):
    for st,(src,dst,pm,m0) in enumerate(((X,P,"[1,0,3,2]",0x55555555),(P,Y,"[2,3,0,1]",0x33333333))):
        bit=1<<st
        for half in range(2):
            m=m0 if half==0 else (~m0)&0xffffffff
            A(f"s_mov_b32 vcc_lo, {hex(m)}\ns_mov_b32 vcc_hi, {hex(m)}")
            for j in range(4):
                if ((j>>st)&1)!=half: continue
                for d in range(4):
                    A(f"v_cndmask_b32_dpp v{dst+4*j+d}, v{src+4*(j^bit)+d}, v{src+4*j+d}, vcc quad_perm:{pm} row_mask:0xf bank_mask:0xf")

K1_E=0; K1_REC=100352; K1_PERM=K1_REC+32768; K1_HIST=K1_PERM+16384; K1_OVF=K1_HIST+1024; K1_LDS=K1_OVF+256
WROW=544
def woff(k): return k*WROW+(k>>5)*128

def k1():
    A(".p2align 8\nprep_kernel:")
    A("""s_cmp_ge_u32 s2, 256
    s_cbranch_scc1 L_k1_end
    s_load_dwordx4 s[4:7], s[0:1], 0
    s_load_dwordx4 s[8:11], s[0:1], 16
    s_load_dwordx4 s[12:15], s[0:1], 32
    s_load_dwordx2 s[16:17], s[0:1], 48
    s_load_dwordx2 s[18:19], s[0:1], 72
    v_lshrrev_b32 v1, 6, v0
    v_and_b32 v2, 63, v0
    v_readfirstlane_b32 s3, v1
    v_lshlrev_b32 v3, 4, v2
    v_lshlrev_b32 v4, 4, v0
    s_waitcnt lgkmcnt(0)""")
    if OPT.get('cpf','1')!='0':
        A(f"""s_cmp_ge_u32 s3, 13
        s_cbranch_scc1 L_k1_nocpf
        s_getpc_b64 s[20:21]
L_k1_pc:
        s_sub_u32 s20, s20, L_k1_pc-prep_kernel
        s_subb_u32 s21, s21, 0
        global_load_dwordx4 v[120:123], v4, s[20:21]
L_k1_nocpf:""")
    stamp_init(0,3,18,19)
    stamp(0,0)
    srd(44,18,19,MISC_OFF,MISC_SZ)
    if (OPT.get('until') or OPT.get('until0') or OPT.get('untilL')) and not OPT.get('nopt0'):
        A(f"""s_memrealtime s[60:61]
        s_waitcnt lgkmcnt(0)
        s_or_b32 s62, s2, s3
        s_cmp_lg_u32 s62, 0
        s_cbranch_scc1 L_k1_not0
        v_mov_b32 v100, s60
        v_mov_b32 v101, {FLAGO+2048}
        buffer_store_dword v100, v101, s[44:47], 0 offen sc0 sc1
L_k1_not0:""")
    A("""s_cmp_ge_u32 s2, 128
    s_cbranch_scc1 L_k1_gemm""")
    srd(20,10,11,0,E*4)
    srd(24,8,9,0,E*4)
    srd(28,6,7,0,E*32)
    srd(32,18,19,REC_OFF,0x400000)
    srd(36,18,19,EP_OFF,0x2000000)
    D=8; S=12
    A(f"""s_mul_i32 s50, s2, {CH}
    s_sub_u32 s51, {E}, s50
    s_lshr_b32 s51, s51, 2
    s_min_u32 s51, s51, {CH//4}
    s_lshl_b32 s52, s50, 2
    v_cmp_gt_u32 vcc, s51, v0
    s_mov_b64 s[54:55], vcc
    s_mov_b64 exec, vcc
    s_cbranch_execz L_k1_noidx
    buffer_load_dwordx4 v[{D}:{D+3}], v4, s[20:23], s52 offen {NTI}
    buffer_load_dwordx4 v[{S}:{S+3}], v4, s[24:27], s52 offen {NTI}
L_k1_noidx:
    s_mov_b64 exec, -1
    s_lshl_b32 s53, s3, 10
    s_lshl_b32 s56, s50, 5
    s_add_u32 s56, s56, s53
    v_mov_b32 v16, -1
    v_mov_b32 v17, -1
    v_mov_b32 v18, -1
    v_mov_b32 v19, -1
    v_mov_b32 v20, 0
    v_add_u32 v5, {K1_REC}, v4
    v_lshlrev_b32 v6, 2, v0
    v_add_u32 v6, {K1_HIST}, v6
    ds_write_b128 v5, v[16:19]
    ds_write_b128 v5, v[16:19] offset:16384
    v_cmp_gt_u32 vcc, 0x140, v0
    s_mov_b64 exec, vcc
    ds_write_b32 v6, v20
    s_mov_b64 exec, -1
    v_mov_b32 v20, 1
    v_mov_b32 v22, 21400
    v_mov_b32 v23, -196
    v_mov_b32 v24, 5372
    v_mov_b32 v25, 208
    v_mov_b32 v26, 669
    s_waitcnt lgkmcnt(0)
    s_barrier""")
    for i in range(7):
        if i==6: A("s_cmp_ge_u32 s3, 2\ns_cbranch_scc1 L_k1_dmadone")
        A(f"""s_mov_b32 m0, s53
        s_add_u32 s53, s53, 16384
        buffer_load_dwordx4 v3, s[28:31], s56 offen {NTE} lds
        s_add_u32 s56, s56, 16384""")
    A("L_k1_dmadone:\ns_waitcnt vmcnt(6)")
    stamp(1,0)
    A("""s_mov_b64 exec, s[54:55]
    s_cbranch_execz L_k1_b1""")
    B,RC,HA,SH,OLD,INC,T=28,32,36,40,44,48,60
    for j in range(4):
        A(f"""v_mul_u32_u24 v{T}, v{D+j}, v22
        v_mul_u32_u24 v{T+1}, v{S+j}, v26
        v_lshrrev_b32 v{B+j}, 22, v{T}
        v_lshrrev_b32 v{T+1}, 22, v{T+1}
        v_lshlrev_b32 v{HA+j}, 2, v{B+j}
        v_sub_u32_e64 v{SH+j}, v{T+1}, 1 clamp
        v_add_u32 v{HA+j}, {K1_HIST}, v{HA+j}
        v_lshlrev_b32 v{SH+j}, 3, v{SH+j}
        v_mad_i32_i24 v{T}, v{B+j}, v23, v{D+j}
        v_lshlrev_b32 v{INC+j}, v{SH+j}, v20
        v_mul_u32_u24 v{T+2}, v{T}, v24
        ds_add_rtn_u32 v{OLD+j}, v{HA+j}, v{INC+j}
        v_lshl_or_b32 v{T}, v{S+j}, 8, v{T}
        v_lshrrev_b32 v{T+2}, 16, v{T+2}
        v_mad_u32_u24 v{T+3}, v{T+2}, 52, v25
        v_mad_i32_i24 v{T}, v{T+2}, -12, v{T}
        v_lshrrev_b32 v{T+3}, 8, v{T+3}
        v_lshl_add_u32 v{T+2}, v{T+2}, 2, v{T+1}
        v_sub_u32 v{T}, v{T}, v{T+3}
        v_lshl_or_b32 v{RC+j}, v{T+2}, 24, v{T}""")
    A("""L_k1_b1:
    s_mov_b64 exec, -1
    s_waitcnt lgkmcnt(0)
    s_barrier""")
    stamp(2,0)
    FIN=8
    A(f"""s_mov_b64 s[70:71], 0
    v_cmp_gt_u32 vcc, 128, v0
    s_mov_b64 exec, vcc
    s_cbranch_execz L_k1_nohdr
    ds_read_b32 v{T}, v6
    v_lshlrev_b32 v{T+1}, 8, v0
    v_add_u32 v{T+1}, {K1_REC+252}, v{T+1}
    s_waitcnt lgkmcnt(0)
    v_and_b32 v{T}, 0x3f3f3f, v{T}
    ds_write_b32 v{T+1}, v{T}
L_k1_nohdr:
    s_mov_b64 exec, s[54:55]
    s_cbranch_execz L_k1_b2""")
    for j in range(4): A(f"ds_read_b32 v{FIN+j}, v{HA+j}")
    A(f"v_lshlrev_b32 v{T+8}, 2, v0")
    for j in range(4):
        A(f"v_bfe_u32 v{OLD+j}, v{OLD+j}, v{SH+j}, 8\nv_add_u32 v{INC+j}, -1, v{INC+j}")
    A("s_waitcnt lgkmcnt(0)")
    for j in range(4):
        A(f"""v_and_b32 v{T}, v{FIN+j}, v{INC+j}
        v_sad_u8 v{T}, v{T}, 0, v{OLD+j}
        v_cmp_lt_u32 vcc, 62, v{T}
        v_min_u32 v{T}, 62, v{T}
        s_or_b64 s[70:71], s[70:71], vcc
        v_lshl_add_u32 v{T+1}, v{B+j}, 6, v{T}
        v_and_b32 v{T+2}, 15, v{T}
        v_lshrrev_b32 v{T+3}, 4, v{T}
        v_lshlrev_b32 v{T+1}, 1, v{T+1}
        v_lshl_add_u32 v{T+2}, v{T+2}, 2, v{T+3}
        v_add_u32 v{T+1}, {K1_PERM}, v{T+1}
        v_lshl_add_u32 v{T+2}, v{B+j}, 6, v{T+2}
        v_add_u32 v{T+9}, {j}, v{T+8}
        v_lshlrev_b32 v{T+2}, 2, v{T+2}
        ds_write_b16 v{T+1}, v{T+9}
        v_add_u32 v{T+2}, {K1_REC}, v{T+2}
        ds_write_b32 v{T+2}, v{RC+j}""")
    A(f"""s_mov_b64 exec, s[70:71]
    v_mov_b32 v{T}, {K1_OVF}
    ds_write_b32 v{T}, v20
L_k1_b2:
    s_mov_b64 exec, -1
    s_waitcnt lgkmcnt(0)
    s_barrier""")
    stamp(3,0)
    EI=8; EV=64
    A(f"""ds_read_b128 v[16:19], v5
    ds_read_b128 v[20:23], v5 offset:16384
    v_and_b32 v24, 7, v2
    s_lshl_b32 s57, s3, 5
    v_lshl_add_u32 v24, v24, 2, s57
    v_add_u32 v24, {K1_HIST}, v24
    ds_read_b32 v26, v24
    v_lshrrev_b32 v28, 1, v2
    s_lshl_b32 s57, s3, 10
    s_add_u32 s57, s57, {K1_PERM}
    v_lshl_add_u32 v29, v28, 1, s57""")
    for i in range(8): A(f"ds_read_u16 v{EI+i}, v29 offset:{i*128}")
    A(f"""v_lshrrev_b32 v30, 4, v0
    v_and_b32 v31, 15, v0
    v_lshlrev_b32 v30, 15, v30
    v_lshl_or_b32 v30, v31, 4, v30
    s_lshl_b32 s58, s2, 8
    s_add_u32 s59, s58, 0x200000
    v_and_b32 v31, 1, v2
    v_lshlrev_b32 v31, 4, v31
    s_waitcnt lgkmcnt(0)
    buffer_store_dwordx4 v[16:19], v30, s[32:35], s58 offen {ST}
    buffer_store_dwordx4 v[20:23], v30, s[32:35], s59 offen {ST}
    v_sad_u8 v26, v26, 0, 3
    v_and_b32 v26, -4, v26
    v_min_u32 v26, 64, v26
    s_waitcnt vmcnt(2)
    s_barrier""")
    stamp(6,0)
    for i in range(8):
        A(f"v_lshl_add_u32 v{EI+i}, v{EI+i}, 5, v31\nds_read_b128 v[{EV+4*i}:{EV+4*i+3}], v{EI+i}\nv_readlane_b32 s{60+i}, v26, {i}")
    A(f"""s_lshl_b32 s57, s3, 21
    s_lshl_b32 s58, s2, 11
    s_add_u32 s57, s57, s58""")
    for i in range(8):
        A(f"""v_cmp_gt_u32 vcc, s{60+i}, v28
        s_mov_b64 exec, vcc
        s_waitcnt lgkmcnt({7-i})
        buffer_store_dwordx4 v[{EV+4*i}:{EV+4*i+3}], v3, s[36:39], s57 offen {ST}
        s_mov_b64 exec, -1
        s_add_u32 s57, s57, 0x40000""")
    A(f"s_sub_u32 s57, s57, 0x200000\nv_add_u32 v32, 32, v28")
    for i in range(8):
        L=A.label("k1long")
        A(f"""s_cmp_le_u32 s{60+i}, 32
        s_cbranch_scc1 {L}
        ds_read_u16 v33, v29 offset:{i*128+64}
        s_waitcnt lgkmcnt(0)
        v_lshl_add_u32 v33, v33, 5, v31
        ds_read_b128 v[36:39], v33
        v_cmp_gt_u32 vcc, s{60+i}, v32
        s_mov_b64 exec, vcc
        s_waitcnt lgkmcnt(0)
        buffer_store_dwordx4 v[36:39], v3, s[36:39], s57 offen offset:1024 {ST}
        s_mov_b64 exec, -1
        s_nop 0
{L}:
        s_add_u32 s57, s57, 0x40000""")
    A("s_branch L_k1_flag")
    A("L_k1_gemm:")
    srd(20,4,5,0,N*256)
    srd(24,16,17,0,272*256)
    srd(28,14,15,0,128*256)
    srd(32,12,13,0,128*256)
    srd(36,18,19,TAB_OFF,HS)
    srd(40,18,19,TAB_OFF+HS,HS)
    XR=8; WL=24; XA=40; ACC=56; BF=8
    A(f"""s_sub_u32 s50, s2, 128
    s_lshr_b32 s51, s50, 3
    s_lshl_b32 s52, s3, 4
    s_add_u32 s51, s51, s52
    s_cmp_lt_u32 s51, 196
    s_cselect_b32 s52, 0, 0x10000
    s_add_u32 s51, s51, s52
    s_and_b32 s52, s2, 3
    s_mul_i32 s52, s52, 392
    s_add_u32 s51, s51, s52
    s_bfe_u32 s52, s2, 0x10002
    s_mul_i32 s52, s52, 196
    s_add_u32 s51, s51, s52
    v_mov_b32 v6, 0
    v_mov_b32 v7, {K1_OVF}
    ds_write_b32 v7, v6
    s_cmp_ge_u32 s51, 1568
    s_cbranch_scc1 L_k1_nox
    s_lshl_b32 s52, s51, 12
    v_bfe_u32 v5, v2, 2, 2
    v_and_b32 v6, 3, v2
    v_lshlrev_b32 v5, 10, v5
    v_lshl_or_b32 v5, v6, 4, v5
    v_lshrrev_b32 v6, 4, v2
    v_lshl_or_b32 v5, v6, 6, v5""")
    for ks in range(4): A(f"buffer_load_dwordx4 v[{XR+4*ks}:{XR+4*ks+3}], v5, s[20:23], s52 offen offset:{ks*256} {NTX}")
    A(f"""L_k1_nox:
    s_mov_b32 s53, {128*256}
    s_mov_b32 s54, {128*256+16384}
    s_mov_b32 s55, 16384
    buffer_load_dwordx4 v[{WL}:{WL+3}], v4, s[24:27], s53 offen
    buffer_load_dwordx4 v[{WL+4}:{WL+7}], v4, s[24:27], s54 offen
    buffer_load_dwordx4 v[{WL+8}:{WL+11}], v4, s[28:31], 0 offen
    buffer_load_dwordx4 v[{WL+12}:{WL+15}], v4, s[28:31], s55 offen
    v_lshrrev_b32 v5, 4, v0
    v_lshrrev_b32 v6, 9, v0
    v_mul_u32_u24 v5, {WROW}, v5
    v_lshl_add_u32 v5, v6, 7, v5
    v_bfe_u32 v6, v0, 3, 1
    v_lshl_add_u32 v5, v6, 7, v5
    v_and_b32 v6, 7, v0
    v_lshl_add_u32 v5, v6, 2, v5
    s_mov_b32 s56, 0x05040100
    s_mov_b32 s57, 0x07060302""")
    A(f"""s_cmp_lg_u32 s3, 15
    s_cbranch_scc1 L_k1_noimg
    s_cmp_ge_u32 s50, 72
    s_cbranch_scc1 L_k1_noimg
    v_and_b32 v6, 15, v2
    v_lshrrev_b32 v7, 4, v2
    v_lshlrev_b32 v6, 3, v6
    s_cmp_ge_u32 s50, 64
    s_cbranch_scc1 L_k1_cimg
    s_bfe_u32 s58, s50, 0x10005
    s_bfe_u32 s59, s50, 0x20002
    s_and_b32 s60, s50, 3
    s_lshl_b32 s58, s58, 7
    s_lshl_b32 s59, s59, 1
    s_lshl_b32 s60, s60, 11
    s_add_u32 s58, s58, s59
    s_add_u32 s58, s58, s60
    v_lshl_add_u32 v6, v7, 13, v6
    s_bitcmp1_b32 s50, 4
    s_cbranch_scc1 L_k1_uimg""")
    for i in range(8): A(f"buffer_load_ushort v{64+i}, v6, s[24:27], s58 offen offset:{i*256}")
    A("s_branch L_k1_imgst\nL_k1_uimg:")
    for i in range(8): A(f"buffer_load_ushort v{64+i}, v6, s[32:35], s58 offen offset:{i*256}")
    A(f"""L_k1_imgst:
    s_and_b32 s58, s50, 31
    s_lshl_b32 s58, s58, 10
    s_lshr_b32 s59, s50, 5
    s_mul_i32 s59, s59, {WH}
    s_add_u32 s58, s58, s59
    s_waitcnt vmcnt(0)
    v_lshl_or_b32 v56, v65, 16, v64
    v_lshl_or_b32 v57, v67, 16, v66
    v_lshl_or_b32 v58, v69, 16, v68
    v_lshl_or_b32 v59, v71, 16, v70
    buffer_store_dwordx4 v[56:59], v3, s[44:47], s58 offen
    s_branch L_k1_noimg
L_k1_cimg:
    s_sub_u32 s61, s50, 64
    s_lshr_b32 s58, s61, 2
    s_and_b32 s59, s61, 3
    s_lshl_b32 s58, s58, 7
    s_lshl_b32 s59, s59, 1
    s_add_u32 s58, s58, s59
    s_add_u32 s58, s58, {256*256}
    v_lshl_add_u32 v6, v7, 10, v6""")
    for i in range(4): A(f"buffer_load_ushort v{56+i}, v6, s[24:27], s58 offen offset:{i*256}")
    A(f"""s_mov_b32 s59, {hex(LOG2E_NEG)}
    s_and_b32 s58, s61, 3
    s_lshl_b32 s58, s58, 9
    s_lshr_b32 s60, s61, 2
    s_mul_i32 s60, s60, {WH}
    s_add_u32 s58, s58, s60
    s_add_u32 s58, s58, {CIMG}
    v_lshlrev_b32 v7, 3, v2
    s_waitcnt vmcnt(0)""")
    for i in range(4): A(f"v_lshlrev_b32 v{56+i}, 16, v{56+i}\nv_mul_f32 v{56+i}, s59, v{56+i}")
    A(f"""v_cvt_pk_bf16_f32 v56, v56, v57
    v_cvt_pk_bf16_f32 v57, v58, v59
    buffer_store_dwordx2 v[56:57], v7, s[44:47], s58 offen
L_k1_noimg:""")
    for u in range(4):
        w=WL+4*u; base=(u&1)*woff(64)+(u>>1)*256
        A(f"""s_waitcnt vmcnt({3-u})
        v_perm_b32 v60, v{w+2}, v{w}, s56
        v_perm_b32 v61, v{w+2}, v{w}, s57
        v_perm_b32 v62, v{w+3}, v{w+1}, s56
        v_perm_b32 v63, v{w+3}, v{w+1}, s57
        ds_write_b32 v5, v60 offset:{base}
        ds_write_b32 v5, v61 offset:{base+32}
        ds_write_b32 v5, v62 offset:{base+64}
        ds_write_b32 v5, v63 offset:{base+96}""")
    A(f"""v_and_b32 v6, 15, v2
    v_lshrrev_b32 v7, 4, v2
    s_cmp_ge_u32 s51, 1568
    s_cbranch_scc1 L_k1_nobp""")
    qtranspose(XR,WL,XA)
    A(f"""L_k1_nobp:
    v_bfe_u32 v61, v2, 2, 2
    v_lshl_add_u32 v61, v7, 5, v61
    v_mul_u32_u24 v61, {WROW}, v61
    v_lshl_add_u32 v61, v7, 7, v61
    v_and_b32 v62, 3, v2
    v_lshl_add_u32 v5, v62, 3, v61
    s_waitcnt lgkmcnt(0)
    s_barrier""")
    stamp(1,0)
    A("""s_cmp_ge_u32 s51, 1568
    s_cbranch_scc1 L_k1_gdone""")
    seq=[(h,t,mat,ks) for h in range(2) for t in range(4) for mat in range(2) for ks in range(4)]
    def rd(n):
        h,t,mat,ks=seq[n]; o=woff(8*ks)+mat*256+h*128+t*32; b=BF+4*(n%8)
        A(f"ds_read_b64_tr_b16 v[{b}:{b+1}], v5 offset:{o}\nds_read_b64_tr_b16 v[{b+2}:{b+3}], v5 offset:{o+4*WROW}")
    def acc(h,t,mat): return ACC+((h*4+t)*2+mat)*4
    PF=6
    for n in range(PF): rd(n)
    for n in range(64):
        h,t,mat,ks=seq[n]; b=BF+4*(n%8); a=acc(h,t,mat)
        out=min(63-n,PF-1)
        A(f"s_waitcnt lgkmcnt({2*out})")
        A(f"v_mfma_f32_16x16x32_bf16 v[{a}:{a+3}], v[{XA+4*ks}:{XA+4*ks+3}], v[{b}:{b+3}], {'0' if ks==0 else f'v[{a}:{a+3}]'}")
        if n+PF<64: rd(n+PF)
    stamp(2,0)
    A(f"""v_mov_b32 v8, {hex(LOG2E_NEG)}
    v_mov_b32 v9, 0x7fff
    v_mov_b32 v10, 0xffff0000
    v_mov_b32 v11, 0
    v_lshlrev_b32 v12, 10, v7
    v_lshl_or_b32 v12, v6, 4, v12
    s_nop 3""")
    for h in range(2):
        for r in range(4):
            o=16+4*((h*4+r)%2); tt=24
            for t in range(4): A(f"v_mul_f32 v{tt+t}, v8, v{acc(h,t,0)+r}")
            A(f"v_max3_f32 v11, abs(v{tt}), abs(v{tt+1}), v11\nv_max3_f32 v11, abs(v{tt+2}), abs(v{tt+3}), v11")
            for t in range(4): A(f"v_exp_f32 v{tt+t}, v{tt+t}")
            A("s_nop 0")
            for t in range(4): A(f"v_cvt_pk_f16_f32 v{tt+t}, v{tt+t}, 0")
            for t in range(4): A(f"v_xad_u32 v{tt+4+t}, v{tt+t}, v9, v{acc(h,t,1)+r}")
            for t in range(4): A(f"v_bfi_b32 v{o+t}, v10, v{tt+4+t}, v{tt+t}")
            A(f"buffer_store_dwordx4 v[{o}:{o+3}], v12, s[{36+4*h}:{39+4*h}], s52 offen offset:{r*256} {ST}")
    A(f"""v_mov_b32 v13, 0x41600000
    v_mov_b32 v14, 1
    v_mov_b32 v15, {K1_OVF}
    v_cmp_nle_f32 vcc, v11, v13""")
    A(f"""s_mov_b64 exec, vcc
    ds_write_b32 v15, v14
    s_mov_b64 exec, -1
L_k1_gdone:
    s_waitcnt lgkmcnt(0)
    s_barrier
L_k1_flag:
    s_cmp_lg_u32 s3, 0
    s_cbranch_scc1 L_k1_fin
    v_mov_b32 v15, {K1_OVF}
    ds_read_b32 v14, v15
    s_lshl_b32 s58, s2, 2
    s_add_u32 s58, s58, {FLAGO}
    v_mov_b32 v15, 0
    s_mov_b64 exec, 1
    s_waitcnt lgkmcnt(0)
    buffer_store_dword v14, v15, s[44:47], s58 offen
    s_mov_b64 exec, -1
L_k1_fin:""")
    if STAMP:
        stamp(4,0)
        A("s_waitcnt vmcnt(0)")
        stamp(5,0)
        stamp_flush()
    if OPT.get('k1delay'):
        A(f"""s_memrealtime s[60:61]
        s_waitcnt lgkmcnt(0)
        s_add_u32 s62, s60, {int(OPT['k1delay'])*100}
L_k1_spin:
        s_memrealtime s[60:61]
        s_waitcnt lgkmcnt(0)
        s_cmp_lt_u32 s60, s62
        s_cbranch_scc1 L_k1_spin""")
    A("L_k1_end:\ns_endpgm")

def spin(T,tag):
    A(f"""s_load_dwordx2 s[60:61], s[0:1], 72
    s_waitcnt lgkmcnt(0)
    s_add_u32 s60, s60, {MISC_OFF+FLAGO+2048}
    s_addc_u32 s61, s61, 0
    s_load_dword s62, s[60:61], 0
    s_waitcnt lgkmcnt(0)
    s_add_u32 s62, s62, {int(float(T)*100)}
L_spin_{tag}:
    s_memrealtime s[60:61]
    s_waitcnt lgkmcnt(0)
    s_cmp_lt_u32 s60, s62
    s_cbranch_scc1 L_spin_{tag}""")

ECAP=3456; BCAP=96; WCAP=4*BCAP
K2_HIST=0; K2_FL=256; K2_C1=260; K2_C2=264; K2_AL=272; K2_OH=288; K2_L1=1024; K2_L2=K2_L1+16*WCAP*4; K2_E=K2_L2+16*WCAP*4
K2_Z=K2_E+ECAP*32; K2_W=K2_Z-34816; K2_SRC=K2_W-8192; K2_LDS=K2_Z+32
assert K2_LDS<=163840 and K2_L1%256==0 and K2_L2%256==0 and K2_SRC-K2_E>=2048*32
O0=K2_L1//256; O1o=K2_L2//256; LST=O1o-O0

def k2():
    L=0; D=32; EE=48; ACC=64; GB=80; AO=96; S=100; LM,LS=102,103; G=104; EA,OA,SA,LMX=108,109,110,111
    WP,CPt=112,113
    cJ16,cG8,cG8O,cS,pL1,pLm,pLs,LANE=114,115,116,117,118,119,120,121
    L16,TID=122,123
    A(".p2align 8\nmain_kernel:")
    A(f"""s_cmp_ge_u32 s2, 256
    s_cbranch_scc1 L_k2_end""")
    if OPT.get('until0'): spin(OPT['until0'],'a')
    A(f"""s_load_dwordx2 s[18:19], s[0:1], 72
    s_load_dwordx2 s[4:5], s[0:1], 0
    s_load_dwordx2 s[6:7], s[0:1], 56
    v_mov_b32 v{TID}, v0
    v_lshrrev_b32 v1, 6, v0
    v_and_b32 v{LANE}, 63, v0
    v_readfirstlane_b32 s3, v1
    v_lshlrev_b32 v{L16}, 4, v{LANE}
    v_lshlrev_b32 v4, 4, v0
    s_bfe_u32 s40, s2, 0x10002
    s_lshr_b32 s41, s2, 3
    s_and_b32 s42, s2, 3
    s_lshl_b32 s42, s42, 5
    s_add_u32 s41, s41, s42
    s_lshl_b32 s45, s41, 15
    s_add_u32 s46, s45, 16384
    s_mov_b32 s10, 0x400000
    s_mov_b32 s11, 0x20000
    s_setprio 3
    s_waitcnt lgkmcnt(0)
    s_add_u32 s8, s18, {hex(REC_OFF)}
    s_addc_u32 s9, s19, 0""")
    R=0; RK=8; HA=16; XR=32
    A(f"""buffer_load_dwordx4 v[{R}:{R+3}], v4, s[8:11], s45 offen {NT}
    buffer_load_dwordx4 v[{R+4}:{R+7}], v4, s[8:11], s46 offen {NT}""")
    stamp_init(1,3,18,19)
    stamp(0,1)
    srd(24,18,19,MISC_OFF,MISC_SZ)
    A(f"""s_lshl_b32 s45, s3, 6
    s_add_u32 s45, s45, {FLAGO}
    v_lshlrev_b32 v25, 2, v{LANE}
    s_mov_b64 exec, 0xffff
    buffer_load_dword v24, v25, s[24:27], s45 offen
    s_mov_b64 exec, -1""")
    A(f"""s_add_u32 s42, s3, 4
    s_mul_i32 s42, s42, 52
    s_lshr_b32 s42, s42, 8
    s_add_u32 s43, s3, 5
    s_mul_i32 s43, s43, 52
    s_lshr_b32 s43, s43, 8
    s_sub_u32 s43, s43, s42
    s_add_u32 s43, s43, 12
    s_mul_i32 s44, s3, 12
    s_add_u32 s42, s42, s44
    s_mul_i32 s44, s41, {BS}
    s_add_u32 s44, s44, s42""")
    srd(20,4,5,0,N*256)
    A(f"""s_lshl_b32 s45, s41, 18
    s_add_u32 s12, s18, s45
    s_addc_u32 s13, s19, 0
    s_add_u32 s12, s12, {hex(EP_OFF)}
    s_addc_u32 s13, s13, 0
    s_mov_b32 s14, 0x40000
    s_mov_b32 s15, 0x20000
    s_mul_i32 s45, s40, {HS}
    s_add_u32 s45, s45, {WSB}
    s_add_u32 s16, s18, s45
    s_addc_u32 s17, s19, 0
    s_mov_b32 s18, {HS}
    s_mov_b32 s19, 0x20000""")
    srd(28,6,7,0,N*256)
    A(f"""v_subrev_u32 v28, 72, v{TID}
    v_and_b32 v29, 7, v28
    v_lshrrev_b32 v30, 4, v28
    v_and_b32 v28, 8, v28
    v_lshlrev_b32 v28, 1, v28
    v_mov_b32 v31, 0x3f80
    v_cmp_eq_u32 vcc, v29, v30
    v_lshlrev_b32 v31, v28, v31
    v_lshlrev_b32 v29, 2, v{TID}
    v_cndmask_b32 v31, 0, v31, vcc
    s_cmp_lg_u32 s3, 1
    s_cbranch_scc1 L_k2_noal
    s_mov_b32 s45, {2048<<16}
    s_mov_b32 s46, 3072
    v_writelane_b32 v31, s45, 4
    v_writelane_b32 v31, s46, 5
L_k2_noal:
    v_cmp_gt_u32 vcc, 208, v{TID}
    s_mov_b64 exec, vcc
    ds_write_b32 v29, v31
    s_cmp_lg_u32 s3, 0
    s_cbranch_scc1 L_k2_noz
    s_mov_b64 exec, 0xff
    v_add_u32 v29, {K2_Z}, v29
    ds_write_b32 v29, v31
L_k2_noz:
    s_mov_b64 exec, -1
    v_bfe_u32 v28, v{LANE}, 2, 2
    v_and_b32 v29, 3, v{LANE}
    v_lshlrev_b32 v28, 10, v28
    v_lshl_or_b32 v28, v29, 4, v28
    v_lshrrev_b32 v29, 4, v{LANE}
    v_lshl_or_b32 v28, v29, 6, v28
    s_cmp_eq_u32 s43, 13
    s_cselect_b32 s50, -1, 0x0fff0fff
    s_lshl_b32 s45, s44, 8
    s_lshl_b32 s47, s3, 11
    s_add_u32 m0, s47, {K2_W}
    s_mul_i32 s48, s40, {WH}
    s_add_u32 s47, s47, s48""")
    for i in range(16): A(f"v_mov_b32 v{XR+i}, 0")
    A(f"""s_waitcnt lgkmcnt(0)
    s_barrier
    s_cmp_lg_u32 s3, 15
    s_cbranch_scc1 L_k2_noc
    buffer_load_dwordx4 v{L16}, s[24:27], s47 offen offset:2048 lds
    buffer_load_dwordx4 v{L16}, s[24:27], s47 offen offset:3072 lds
L_k2_noc:
    buffer_load_dwordx4 v{L16}, s[24:27], s47 offen lds
    buffer_load_dwordx4 v{L16}, s[24:27], s47 offen offset:1024 lds
    v_mov_b32 v78, v28
    s_mov_b32 s84, s50
    s_mov_b32 s85, 0x0fff0fff
    s_mov_b32 s86, s45""")
    XL=int(OPT.get('xlate',16))
    def xload(tag, early):
        A(f"s_cmp_{'ge' if early else 'lt'}_u32 s3, {XL}\ns_cbranch_scc1 L_k2_x{tag}\ns_mov_b32 exec_lo, s84\ns_mov_b32 exec_hi, s84")
        for ks in range(4):
            A(f"buffer_load_dwordx4 v[{XR+4*ks}:{XR+4*ks+3}], v78, s[20:23], s86 offen offset:{ks*256} {NT}")
            if ks==0: A("s_mov_b32 exec_lo, s85\ns_mov_b32 exec_hi, s85")
        A(f"s_mov_b64 exec, -1\nL_k2_x{tag}:")
    xload('e',True)
    A(f"""    v_and_b32 v28, 15, v{LANE}
    v_lshrrev_b32 v29, 4, v{LANE}
    v_lshlrev_b32 v{cJ16}, 4, v28
    v_lshlrev_b32 v30, 3, v29
    v_add_u32 v{cG8}, {K2_E}, v30
    v_add_u32 v{cG8O}, {K2_OH}, v30
    v_and_b32 v30, 3, v{LANE}
    v_lshlrev_b32 v30, 3, v30
    v_add_u32 v{cS}, {K2_OH}, v30
    s_mul_i32 s47, s3, {WCAP*4}
    s_add_u32 s48, s47, {K2_L2}
    s_add_u32 s47, s47, {K2_L1}
    v_lshl_add_u32 v{pL1}, v29, 4, s47
    v_lshl_add_u32 v{pLm}, v28, 2, s48
    v_and_b32 v30, -4, v{LANE}
    v_add_u32 v{pLs}, s48, v30
    v_lshrrev_b32 v30, 4, v{TID}
    v_lshl_add_u32 v29, v30, 6, v28
    v_lshl_or_b32 v28, v28, 16, v28
    v_mov_b32 v31, 1
    v_mov_b32 v30, {OPT.get('srcmask','0x7fff00')}
    v_mov_b32 v25, 0
    v_mov_b32 v72, 0x0c0c0100
    v_mov_b32 v73, 0x202
    v_mov_b32 v74, 0x05040c00
    v_mov_b32 v75, {K2_SRC}
    s_mov_b32 s50, 0x80008000
    s_mov_b32 s51, 0x80008000
    s_mov_b32 s68, 0x0c010c00
    s_mov_b32 s69, 0x0c0c0c02
    s_mov_b32 s70, 0x01000100
    s_mov_b32 s71, 0x05040302
    s_mov_b32 s72, 0x0c010c00
    s_cmp_lt_u32 s3, {XL}
    s_cbranch_scc1 L_k2_rw
    s_waitcnt vmcnt(2)
L_k2_rw:
    s_waitcnt vmcnt(6)""")
    stamp(1,1)
    AL=64; DD=68; PR=76
    A(f"""v_perm_b32 v{AL}, v{R+3}, v{R+3}, s68
    v_perm_b32 v{AL+1}, v{R+3}, v{R+3}, s69
    v_perm_b32 v{AL+2}, v{R+7}, v{R+7}, s68
    v_perm_b32 v{AL+3}, v{R+7}, v{R+7}, s69
    s_mov_b64 exec, s[50:51]
    ds_add_rtn_u64 v[{AL}:{AL+1}], v25, v[{AL}:{AL+1}] offset:{K2_AL}
    ds_add_rtn_u64 v[{AL+2}:{AL+3}], v25, v[{AL+2}:{AL+3}] offset:{K2_AL}
    s_mov_b64 exec, 0xffff
    ds_or_b32 v25, v24 offset:{K2_FL}
    s_mov_b64 exec, -1""")
    MK=52; O1=48
    order=[0,4,1,5,2,6,3,7]
    for j in order:
        Lb=A.label("k2h")
        A(f"v_cmp_le_i32 s[{MK+2*j}:{MK+2*j+1}], 0, v{R+j}")
        if j&3==3: A(f"s_andn2_b64 s[{MK+2*j}:{MK+2*j+1}], s[{MK+2*j}:{MK+2*j+1}], s[50:51]")
        A(f"s_mov_b64 exec, s[{MK+2*j}:{MK+2*j+1}]")
        if j&3>=2: A(f"s_cbranch_execz {Lb}")
        A(f"""v_lshlrev_b32_sdwa v{HA+j}, 2, v{R+j} dst_sel:DWORD dst_unused:UNUSED_PAD src0_sel:DWORD src1_sel:BYTE_3
        v_bfe_u32 v{56+j}, v{R+j}, 24, 2
        ds_add_rtn_u32 v{RK+j}, v{HA+j}, v31 offset:{K2_HIST}
        v_and_b32 v{O1+j}, v30, v{R+j}
        v_mad_u32_u24 v{56+j}, v{56+j}, v73, v72""")
        if j&3>=2: A(f"{Lb}:")
        A("s_mov_b64 exec, -1")
    for u in range(2):
        h=R+3+4*u
        A(f"v_lshl_add_u32 v{PR+u}, v{h}, 8, v{h}\nv_perm_b32 v{PR+u}, v{PR+u}, v{PR+u}, s72")
    A("s_waitcnt lgkmcnt(0)")
    for u in range(2):
        A(f"""v_perm_b32 v{DD+2*u}, v{AL+2*u}, v{AL+2*u}, s70
        v_perm_b32 v{DD+2*u+1}, v{AL+2*u+1}, v{AL+2*u}, s71
        v_pk_sub_u16 v{DD+2*u+1}, v{DD+2*u+1}, v{PR+u}""")
    A("s_nop 0")
    for k in (0,2,1,3): A(f"v_mov_b32_dpp v{DD+k}, v{DD+k} row_newbcast:15 row_mask:0xf bank_mask:0xf")
    for k in (0,2,1,3): A(f"v_pk_add_u16 v{DD+k}, v{DD+k}, v28")
    for j in order:
        Lb=A.label("k2s"); u=j>>2
        A(f"s_mov_b64 exec, s[{MK+2*j}:{MK+2*j+1}]")
        if j&3>=2: A(f"s_cbranch_execz {Lb}")
        A(f"""v_perm_b32 v24, v{DD+2*u+1}, v{DD+2*u}, v{56+j}
        v_mad_u32_u24 v{RK+j}, v{HA+j}, 24, v{RK+j}""")
        if j&3: A(f"v_add_u32 v24, {16*(j&3)}, v24")
        A(f"v_lshlrev_b32 v{RK+j}, 2, v{RK+j}")
        if j: A(f"v_add_u32 v{HA+j}, {16*(j&3)+4096*u}, v29")
        A(f"""v_perm_b32 v{R+j}, v24, v{R+j}, v74
        v_lshl_add_u32 v24, v24, 1, v75
        ds_write2st64_b32 v{RK+j}, v{O1+j}, v{R+j} offset0:{O0} offset1:{O1o}
        ds_write_b16 v24, v{HA+j if j else 29}""")
        if j&3>=2: A(f"{Lb}:")
    A("s_mov_b64 exec, -1")
    xload('l',False)
    A(f"""v_lshlrev_b32 v24, 2, v{LANE}
    v_add_u32 v26, s47, v24
    v_and_b32 v27, -2, v{LANE}
    s_lshl_b32 s45, s3, 6
    s_add_u32 s45, s45, {K2_SRC}
    v_add_u32 v27, s45, v27
    v_and_b32 v28, 1, v{LANE}
    v_lshlrev_b32 v28, 4, v28
    s_lshl_b32 s45, s3, 2
    s_waitcnt vmcnt(4) lgkmcnt(0)
    s_barrier""")
    stamp(2,1)
    H0=0; FLr=1; ALr=2; SR=4; CP=8; S1=124; S2=126
    A(f"""ds_read_b32 v{H0}, v24 offset:{K2_HIST}
    ds_read_b32 v{FLr}, v25 offset:{K2_FL}
    ds_read_b64 v[{ALr}:{ALr+1}], v25 offset:{K2_AL}""")
    for i in range(4): A(f"ds_read_u16 v{SR+i}, v27 offset:{i*1024}")
    for b in range(1,4):
        A(f"""ds_read_b32 v{CP+4*b}, v26 offset:{b*BCAP*4}
        ds_read_b32 v{CP+4*b+1}, v26 offset:{b*BCAP*4+LST*256}""")
    A(f"""s_waitcnt lgkmcnt(6)
    v_cmp_lt_u32 vcc, {BCAP}, v{H0}
    v_readfirstlane_b32 s70, v{FLr}
    v_readfirstlane_b32 s76, v{ALr}
    v_readfirstlane_b32 s78, v{ALr+1}""")
    for i in range(4):
        A(f"v_readlane_b32 s{72+i}, v{H0}, s45\ns_add_u32 s45, s45, 1")
    A(f"""s_cmp_lg_u64 vcc, 0
    s_cbranch_scc1 L_k2_fallback
    s_cmp_lg_u32 s70, 0
    s_cbranch_scc1 L_k2_fallback
    s_lshr_b32 s77, s76, 16
    s_and_b32 s76, s76, 0xffff
    s_sub_u32 s77, s77, 2048
    s_sub_u32 s78, s78, 3072
    s_max_u32 s70, s77, s78
    s_cmp_gt_u32 s70, 1024
    s_cbranch_scc1 L_k2_fallback
    s_cmp_gt_u32 s76, 2048
    s_cbranch_scc1 L_k2_fallback
    s_add_u32 s79, s76, s77
    s_add_u32 s70, s79, s78
    s_cmp_gt_u32 s70, {ECAP-32}
    s_cbranch_scc1 L_k2_fallback""")
    def dma(cnt, n, base, SR, tag):
        A(f"s_lshl_b32 s45, s3, 5")
        if base is None: A(f"s_lshl_b32 s46, s3, 10\ns_add_u32 m0, s46, {K2_E}")
        else: A(f"s_add_u32 s46, s45, s{base}\ns_lshl_b32 s46, s46, 5\ns_add_u32 m0, s46, {K2_E}")
        for i in range(cnt):
            A(f"""s_cmp_ge_u32 s45, s{n}
            s_cbranch_scc1 L_dma_{tag}
            buffer_load_dwordx4 v{SR+i}, s[12:15], 0 offen {NT} lds""")
            if i<cnt-1: A("s_add_u32 s45, s45, 512\ns_add_u32 m0, m0, 16384")
        A(f"L_dma_{tag}:")
    for i in range(4): A(f"v_lshl_add_u32 v{SR+i}, v{SR+i}, 5, v28")
    dma(4,76,None,SR,'p0')
    if OPT.get('fine'): stamp(5,1)
    A("s_max_u32 s45, s73, s74\ns_max_u32 s45, s45, s75\ns_cmp_le_u32 s45, 64\ns_cbranch_scc1 L_k2_nolong")
    for b in range(1,4):
        A(f"""ds_read_b32 v{CP+4*b+2}, v26 offset:{b*BCAP*4+256}
        ds_read_b32 v{CP+4*b+3}, v26 offset:{b*BCAP*4+256+LST*256}""")
    A("L_k2_nolong:")
    for i in range(2): A(f"ds_read_u16 v{S1+i}, v27 offset:{4096+i*1024}\nds_read_u16 v{S2+i}, v27 offset:{6144+i*1024}")
    A(f"""s_mov_b32 s68, s72
    v_add_u32 v29, 64, v{LANE}
    s_sub_u32 s48, s76, 2048
    s_sub_u32 s49, s79, 3072
    s_lshl_b32 s48, s48, 16
    s_lshl_b32 s49, s49, 16
    s_waitcnt lgkmcnt(0)""")
    for i in range(4): A(f"v_lshl_add_u32 v{S1+i}, v{S1+i}, 5, v28")
    for b in range(1,4):
        Lb=A.label("cp")
        if b>=2: A(f"v_add_u32 v{CP+4*b+1}, s{46+b}, v{CP+4*b+1}")
        A(f"""v_cmp_gt_u32 vcc, s{72+b}, v{LANE}
        v_lshl_add_u32 v24, s68, 2, v26
        s_add_u32 s68, s68, s{72+b}
        s_mov_b64 exec, vcc
        ds_write2st64_b32 v24, v{CP+4*b}, v{CP+4*b+1} offset0:0 offset1:{LST}
        s_cmp_le_u32 s{72+b}, 64
        s_cbranch_scc1 {Lb}""")
        if b>=2: A(f"v_add_u32 v{CP+4*b+3}, s{46+b}, v{CP+4*b+3}")
        A(f"""v_cmp_gt_u32 vcc, s{72+b}, v29
        s_mov_b64 exec, vcc
        ds_write2st64_b32 v24, v{CP+4*b+2}, v{CP+4*b+3} offset0:1 offset1:{LST+1}
{Lb}:
        s_mov_b64 exec, -1""")
    A(f"""s_sub_u32 s46, 0, s68
    s_and_b32 s46, s46, 31
    v_cmp_gt_u32 vcc, s46, v{LANE}
    v_lshl_add_u32 v24, s68, 2, v26
    v_mov_b32 v30, {N<<8}
    v_mov_b32 v31, {hex((ECAP<<16)|16)}
    s_mov_b64 exec, vcc
    ds_write2st64_b32 v24, v30, v31 offset0:0 offset1:{LST}
    s_mov_b64 exec, -1
    s_add_u32 s69, s72, s73
    s_add_u32 s80, s69, s74
    s_lshr_b32 s69, s69, 4
    s_lshr_b32 s80, s80, 4
    s_add_u32 s68, s68, 15
    s_lshr_b32 s68, s68, 4""")
    XA=96
    def gathers(Gr, q):
        for i in range(4):
            A(f"v_or_b32 v{Gr+i}, v{Gr+i}, v{cJ16}")
            if not OPT.get('nogather'): A(f"buffer_load_dwordx4 v[{L+16*q+4*i}:{L+16*q+4*i+3}], v{Gr+i}, s[16:19], 0 offen")
    def aread(lm):
        A(f"""v_mad_u32_u16 v{EA}, v{lm}, 32, v{cG8} op_sel:[1,0,0,0]
        v_mad_u32_u16 v{OA}, v{lm}, 32, v{cG8O}
        ds_read_b64 v[{AO}:{AO+1}], v{EA}
        ds_read_b64 v[{AO+2}:{AO+3}], v{OA}""")
    A(f"""v_add_u32 v{WP}, {K2_W}, v{L16}
    v_lshrrev_b32 v{CPt}, 1, v{L16}
    v_add_u32 v{CPt}, {K2_W+CIMG}, v{CPt}
    s_lshl_b32 s45, s3, 5
    s_sub_u32 s45, s76, s45
    s_cmp_gt_i32 s45, 1024
    s_cbranch_scc1 L_k2_x3
    s_waitcnt vmcnt(0)
L_k2_x3:
    s_waitcnt vmcnt(3)""")
    if OPT.get('fine'): stamp(6,1)
    for t in range(4): A(f"ds_read_b64 v[{GB+4*t}:{GB+4*t+1}], v{CPt} offset:{t*512}")
    qtranspose(XR,EE,XA)
    BFR=32
    seq=[(mat,t,ks) for mat in range(2) for t in range(4) for ks in range(4)]
    def rd(n):
        mat,t,ks=seq[n]; b=BFR+4*(n%8)
        A(f"ds_read_b128 v[{b}:{b+3}], v{WP} offset:{n*1024}")
    PF=6
    for n in range(PF): rd(n)
    for n in range(32):
        mat,t,ks=seq[n]; b=BFR+4*(n%8); a=ACC+4*t
        if n==16:
            A(f"s_mov_b32 s45, {hex(LOG2E_NEG)}\ns_nop 6")
            for tt in range(4):
                for r in range(4): A(f"v_mul_f32 v{ACC+4*tt+r}, s45, v{ACC+4*tt+r}")
                A(f"v_cvt_pk_bf16_f32 v{GB+4*tt+2}, v{ACC+4*tt}, v{ACC+4*tt+1}\nv_cvt_pk_bf16_f32 v{GB+4*tt+3}, v{ACC+4*tt+2}, v{ACC+4*tt+3}")
        out=min(31-n,PF-1)
        A(f"s_waitcnt lgkmcnt({out})")
        A(f"v_mfma_f32_16x16x32_bf16 v[{a}:{a+3}], v[{XA+4*ks}:{XA+4*ks+3}], v[{b}:{b+3}], {'0' if ks==0 else f'v[{a}:{a+3}]'}")
        if n+PF<32: rd(n+PF)
    if OPT.get('fine'): stamp(7,1)
    A(f"""ds_read_b128 v[{EE}:{EE+3}], v{pL1}
    ds_read_b128 v[{G}:{G+3}], v{pL1} offset:64
    ds_read_b32 v{LM}, v{pLm}
    ds_read_b32 v{WP}, v{pLm} offset:64
    ds_read_b32 v{LS}, v{pLs}
    v_mov_b32 v{TID}, {K2_C1}
    v_mov_b32 v{L16}, 1
    s_lshl_b32 s45, s3, 5
    s_cmp_lt_u32 s45, s77
    s_cselect_b32 s71, 1, 0
    s_waitcnt vmcnt(0) lgkmcnt(0)""")
    def arrive(k):
        A(f"""s_mov_b64 exec, 1
        ds_add_u32 v{TID}, v{L16} offset:{4*k}
        s_mov_b64 exec, -1""")
    def check(k,tag):
        A(f"""L_k2_spin{tag}:
        ds_read_b32 v{SA}, v{TID} offset:{4*k}
        s_waitcnt lgkmcnt(0)
        v_readfirstlane_b32 s45, v{SA}
        s_cmp_eq_u32 s45, 16
        s_cbranch_scc1 L_k2_ok{tag}
        s_sleep 1
        s_branch L_k2_spin{tag}
L_k2_ok{tag}:""")
    def ensure2(tag):
        A(f"s_cmp_eq_u32 s81, -1\ns_cbranch_scc1 L_k2_iss{tag}")
        dma(2,78,79,S2,'e'+tag)
        A(f"""s_mov_b32 s81, -1
L_k2_iss{tag}:
        s_cmp_eq_u32 s82, -1
        s_cbranch_scc1 L_k2_arr{tag}
        s_mov_b32 s82, -1
        s_waitcnt vmcnt(0)""")
        arrive(1)
        A(f"L_k2_arr{tag}:")
        check(1,'c'+tag)
    arrive(2)
    gathers(EE,0)
    gathers(G,1)
    stamp(3,1)
    check(2,'w')
    if OPT.get('untilL'): spin(OPT['untilL'],'c')
    stamp(4,1)
    if STAMP: A('s_memtime s[100:101]\ns_waitcnt lgkmcnt(0)')
    if OPT.get('tl'):
        A('s_mov_b32 s90, s94')
        for i in range(1,8): A(f's_mov_b32 s{90+i}, 0')
    if OPT.get('reg'):
        A('s_mov_b32 s92, s68\ns_mov_b32 s93, s94\ns_getreg_b32 s91, hwreg(HW_REG_HW_ID)')
    dma(2,77,76,S1,'p1')
    A(f"""s_max_u32 s81, s69, 2
    s_add_u32 s82, s81, 1
    s_mov_b32 s83, 3
    s_cmp_gt_u32 s69, 3
    s_cbranch_scc1 L_k2_nb0
    s_mov_b32 s83, 0
    s_waitcnt vmcnt(0)""")
    arrive(0)
    A("s_cmp_gt_u32 s69, 1\ns_cbranch_scc1 L_k2_nb0")
    check(0,'p')
    A("s_cmp_gt_u32 s80, 1\ns_cbranch_scc1 L_k2_nb0")
    ensure2('p')
    A("L_k2_nb0:")
    def gate():
        if OPT.get('nomfma'): return
        for t in range(4): A(f"v_mfma_f32_16x16x32_bf16 v[{D+4*t}:{D+4*t+3}], v[{AO}:{AO+3}], v[{GB+4*t}:{GB+4*t+3}], 0")
    aread(LM)
    A("s_mov_b32 s70, 2\ns_waitcnt lgkmcnt(0)")
    gate()
    aread(WP)
    A("""s_cmp_eq_u32 s68, 0
    s_cbranch_scc1 L_k2_done""")
    def group(q):
        Lq=L+16*q; o=64*q
        A(f"""v_mad_u32_u16 v{SA}, v{LS}, 32, v{cS}
        ds_read_b128 v[{G}:{G+3}], v{pL1} offset:{128+o}
        ds_read_b32 v{LM}, v{pLm} offset:{128+o}
        ds_read_b64_tr_b16 v[{S}:{S+1}], v{SA}
        ds_read_b32 v{LS}, v{pLs} offset:{64+o}""")
        if q==1: A(f"v_add_u32 v{pL1}, 128, v{pL1}\nv_add_u32 v{pLm}, 128, v{pLm}\nv_add_u32 v{pLs}, 128, v{pLs}")
        def setp(tag, lv):
            p3,p2,p1=[int(x) for x in OPT.get('pth','11,7,4').split(',')]
            A(f"""s_sub_u32 s45, s68, s70
            s_cmp_ge_i32 s45, {p3-2}
            s_cbranch_scc1 L_k2_p3{tag}
            s_cmp_ge_i32 s45, {p2-2}
            s_cbranch_scc1 L_k2_p2{tag}
            s_cmp_ge_i32 s45, {p1-2}
            s_cbranch_scc1 L_k2_p1{tag}
            s_setprio {lv[3]}
            s_branch L_k2_pd{tag}
L_k2_p3{tag}:
            s_setprio {lv[0]}
            s_branch L_k2_pd{tag}
L_k2_p2{tag}:
            s_setprio {lv[1]}
            s_branch L_k2_pd{tag}
L_k2_p1{tag}:
            s_setprio {lv[2]}
L_k2_pd{tag}:""")
        YL=OPT.get('yield')
        if q==0 and not YL: setp('a',[int(x) for x in OPT.get('plv','2,1,1,0').split(',')])
        if not OPT.get('nocomp'):
            for t in range(4):
                for r in range(4): A(f"v_exp_f32 v{EE+4*r+t}, v{D+4*t+r}")
        if OPT.get('tl') and q==0: A("s_memrealtime s[88:89]")
        A("s_waitcnt lgkmcnt(0)")
        if OPT.get('tl') and q==0: A("s_lshr_b32 s45, s70, 1\ns_min_u32 s45, s45, 7\ns_mov_b32 m0, s45\ns_nop 0\ns_movreld_b32 s90, s88")
        gate()
        A(f"""s_cmp_lg_u32 s70, s69
        s_cbranch_scc1 L_k2_nb_{q}""")
        check(0,q)
        A(f"""L_k2_nb_{q}:
        s_cmp_lg_u32 s70, s80
        s_cbranch_scc1 L_k2_nc_{q}""")
        ensure2(str(q))
        A(f"L_k2_nc_{q}:")
        aread(LM)
        A(f"""s_add_u32 s45, s71, 2
        s_cmp_lt_u32 s70, s45
        s_cbranch_scc1 L_k2_w7_{q}
        s_waitcnt vmcnt(4)
L_k2_w7_{q}:
        s_cmp_le_u32 s70, s68
        s_cbranch_scc1 L_k2_w0_{q}
        s_waitcnt vmcnt(0)
L_k2_w0_{q}:
        s_waitcnt vmcnt(5)""")
        if q==1:
            A("s_cmp_lg_u32 s70, s83\ns_cbranch_scc1 L_k2_noarr")
            arrive(0)
            A("L_k2_noarr:")
        A(f"s_cmp_lg_u32 s70, s82\ns_cbranch_scc1 L_k2_noa2_{q}\ns_mov_b32 s82, -1")
        arrive(1)
        A(f"L_k2_noa2_{q}:")
        if not OPT.get('nocomp'):
            order=[(r,t) for tt in (0,2) for r in range(4) for t in (tt,tt+1)]
            fm=lambda r,t: A(f"v_fma_mix_f32 v{EE+4*r+t}, v{Lq+4*r+t}, v{EE+4*r+t}, 1.0 op_sel_hi:[1,0,0]")
            rc=lambda r,t: A(f"v_rcp_f32 v{EE+4*r+t}, v{EE+4*r+t}")
            lag=int(OPT.get('lag','2'))
            for i in range(16+lag):
                if i<16: fm(*order[i])
                if i>=lag: rc(*order[i-lag])
            if YL: A("s_setprio 0")
            if OPT.get('nopk'):
                for r,t in order: A(f"v_mul_f32 v{EE+4*r+t}, v{EE+4*r+t}, v{Lq+4*r+t}")
            else:
              for t in (0,2):
                for r in range(4): A(f"v_pk_mul_f32 v[{EE+4*r+t}:{EE+4*r+t+1}], v[{EE+4*r+t}:{EE+4*r+t+1}], v[{Lq+4*r+t}:{Lq+4*r+t+1}]")
            if YL: setp(f'y{q}',[3,2,1,1])
            for t,p in [(0,0),(2,0),(1,0),(3,0),(0,1),(1,1),(2,1),(3,1)]:
                A(f"v_cvt_pk_bf16_f32 v{EE+2*t+p}, v{EE+8*p+t}, v{EE+8*p+4+t}")
        A("s_nop 1")
        for t in range(0 if OPT.get('nomfma') else 4): A(f"v_mfma_f32_16x16x16_bf16 v[{ACC+4*t}:{ACC+4*t+3}], v[{S}:{S+1}], v[{EE+2*t}:{EE+2*t+1}], v[{ACC+4*t}:{ACC+4*t+3}]")
        A(f"s_cmp_lg_u32 s70, s81\ns_cbranch_scc1 L_k2_ni_{q}\ns_mov_b32 s81, -1")
        dma(2,78,79,S2,f'i{q}')
        A(f"""L_k2_ni_{q}:
        s_cmp_ge_u32 s70, s68
        s_cbranch_scc1 L_k2_ng_{q}""")
        gathers(G,q)
        A(f"""L_k2_ng_{q}:
        s_cmp_gt_u32 s70, s68
        s_cbranch_scc1 L_k2_done
        s_add_u32 s70, s70, 1""")
    A(".p2align 6\nL_k2_loop:")
    group(0); group(1)
    A("s_branch L_k2_loop")
    A("L_k2_done:\ns_waitcnt vmcnt(0)")
    if not OPT.get('tl') and not OPT.get('fine'): stamp(5,1)
    if STAMP and not OPT.get('tl') and not OPT.get('fine'): A('s_memtime s[88:89]\ns_waitcnt lgkmcnt(0)\ns_sub_u32 s97, s88, s100')
    A(f"""v_lshrrev_b32 v0, 4, v{LANE}
    v_lshlrev_b32 v0, 2, v0
    v_add_u32 v1, s44, v0
    v_lshlrev_b32 v1, 8, v1
    v_lshrrev_b32 v2, 1, v{cJ16}
    s_lshl_b32 s45, s40, 7
    v_add3_u32 v1, v1, v2, s45
    v_mov_b32 v3, {hex(LOG2E_NEG)}
    v_mov_b32 v4, 0x80000000""")
    for r in range(4):
        for t in range(4): A(f"v_mul_f32 v{8+t}, v3, v{ACC+4*t+r}")
        for t in range(4): A(f"v_exp_f32 v{8+t}, v{8+t}")
        A(f"v_add_u32 v5, {r}, v0\nv_cmp_gt_u32 vcc, s43, v5")
        for t in range(4): A(f"v_add_f32 v{8+t}, 1.0, v{8+t}")
        for t in range(4): A(f"v_rcp_f32 v{8+t}, v{8+t}")
        A(f"v_cndmask_b32 v{16+r}, v4, v1, vcc")
        for t in range(4): A(f"v_mul_f32 v{8+t}, v{8+t}, v{ACC+4*t+r}")
        A(f"""v_cvt_pk_bf16_f32 v{20+2*r}, v8, v9
        v_cvt_pk_bf16_f32 v{21+2*r}, v10, v11
        buffer_store_dwordx2 v[{20+2*r}:{21+2*r}], v{16+r}, s[28:31], 0 offen offset:{r*256} {OST}""")
    if STAMP:
        A("s_waitcnt vmcnt(0)")
        if not OPT.get('tl') and not OPT.get('fine'): stamp(6,1)
        stamp_flush(1)
    if OPT.get('until'): spin(OPT['until'],'b')
    A("s_endpgm")
    fallback()
    A("L_k2_end:\ns_endpgm")

def fallback():
    LANE=121; TID=123
    A(f"""L_k2_fallback:
    s_mov_b64 exec, -1
    s_load_dwordx2 s[50:51], s[0:1], 8
    s_load_dwordx4 s[52:55], s[0:1], 16
    s_load_dwordx4 s[56:59], s[0:1], 32
    s_load_dwordx2 s[60:61], s[0:1], 48
    s_waitcnt vmcnt(0) lgkmcnt(0)
    s_barrier""")
    srd(8,50,51,0,E*32)
    srd(12,52,53,0,E*4)
    srd(16,54,55,0,E*4)
    srd(24,56,57,0,128*256)
    srd(32,58,59,0,128*256)
    srd(36,60,61,0,272*256)
    A(f"""v_mov_b32 v0, 0
    v_mov_b32 v1, 0
    v_mov_b32 v2, 0
    v_mov_b32 v3, 0
    v_lshlrev_b32 v4, 4, v{TID}
    ds_write_b128 v4, v[0:3]
    ds_write_b128 v4, v[0:3] offset:16384
    ds_write_b128 v4, v[0:3] offset:32768
    ds_write_b128 v4, v[0:3] offset:49152
    s_lshl_b32 s45, s40, 7
    v_lshl_add_u32 v5, v{LANE}, 1, s45
    v_lshlrev_b32 v6, 2, v{LANE}
    s_mul_i32 s46, s41, {BS}
    s_lshl_b32 s47, s3, 6
    s_waitcnt lgkmcnt(0)
    s_barrier
L_fb_chunk:
    s_cmp_ge_u32 s47, {E}
    s_cbranch_scc1 L_fb_fin
    s_lshl_b32 s48, s47, 2
    buffer_load_dword v7, v6, s[16:19], s48 offen
    buffer_load_dword v8, v6, s[12:15], s48 offen
    s_waitcnt vmcnt(0)
    v_subrev_u32 v9, s46, v7
    v_cmp_gt_u32 s[62:63], v10, v9
    """.replace("v_cmp_gt_u32 s[62:63], v10, v9",f"v_mov_b32 v10, {BS}\nv_cmp_gt_u32 s[62:63], v10, v9")+f"""
L_fb_edge:
    s_cmp_eq_u64 s[62:63], 0
    s_cbranch_scc1 L_fb_next
    s_ff1_i32_b64 s49, s[62:63]
    s_bitset0_b64 s[62:63], s49
    v_readlane_b32 s64, v7, s49
    v_readlane_b32 s65, v8, s49
    s_add_u32 s66, s47, s49
    s_lshl_b32 s67, s64, 8
    s_lshl_b32 s68, s65, 8
    s_lshl_b32 s66, s66, 5
    s_nop 2
    buffer_load_dword v11, v6, s[20:23], s67 offen
    buffer_load_dword v12, v6, s[20:23], s68 offen
    v_and_b32 v14, 28, v6
    buffer_load_dword v13, v14, s[8:11], s66 offen
    v_mov_b32 v15, 0
    v_mov_b32 v16, 0
    s_mov_b32 s69, 0
    s_waitcnt vmcnt(0)
L_fb_k:
    s_lshl_b32 s70, s69, 9
    s_add_u32 s71, s70, {128*256}
    buffer_load_ushort v17, v5, s[36:39], s70 offen
    buffer_load_ushort v18, v5, s[36:39], s70 offen offset:256
    buffer_load_ushort v19, v5, s[36:39], s71 offen
    buffer_load_ushort v20, v5, s[36:39], s71 offen offset:256
    buffer_load_ushort v21, v5, s[32:35], s70 offen
    buffer_load_ushort v22, v5, s[32:35], s70 offen offset:256
    v_readlane_b32 s72, v11, s69
    v_readlane_b32 s73, v12, s69
    s_lshl_b32 s74, s72, 16
    s_and_b32 s72, s72, 0xffff0000
    s_lshl_b32 s75, s73, 16
    s_and_b32 s73, s73, 0xffff0000
    s_waitcnt vmcnt(0)""")
    for i in range(17,23): A(f"v_lshlrev_b32 v{i}, 16, v{i}")
    A(f"""v_fmac_f32 v15, s74, v17
    v_fmac_f32 v15, s72, v18
    v_fmac_f32 v15, s75, v19
    v_fmac_f32 v15, s73, v20
    v_fmac_f32 v16, s75, v21
    v_fmac_f32 v16, s73, v22
    s_add_u32 s69, s69, 1
    s_cmp_lt_u32 s69, 64
    s_cbranch_scc1 L_fb_k
    s_mov_b32 s69, 0
L_fb_ke:
    s_lshl_b32 s70, s69, 9
    s_add_u32 s70, s70, {256*256}
    buffer_load_ushort v17, v5, s[36:39], s70 offen
    buffer_load_ushort v18, v5, s[36:39], s70 offen offset:256
    v_readlane_b32 s72, v13, s69
    s_lshl_b32 s74, s72, 16
    s_and_b32 s72, s72, 0xffff0000
    s_waitcnt vmcnt(0)
    v_lshlrev_b32 v17, 16, v17
    v_lshlrev_b32 v18, 16, v18
    v_fmac_f32 v15, s74, v17
    v_fmac_f32 v15, s72, v18
    s_add_u32 s69, s69, 1
    s_cmp_lt_u32 s69, 8
    s_cbranch_scc1 L_fb_ke
    v_mul_f32 v15, {hex(LOG2E_NEG)}, v15
    v_exp_f32 v15, v15
    s_sub_u32 s64, s64, s46
    s_lshl_b32 s64, s64, 8
    v_add_f32 v15, 1.0, v15
    v_rcp_f32 v15, v15
    v_add_u32 v17, s64, v6
    v_mul_f32 v15, v15, v16
    ds_add_f32 v17, v15
    s_branch L_fb_edge
L_fb_next:
    s_add_u32 s47, s47, 1024
    s_branch L_fb_chunk
L_fb_fin:
    s_waitcnt lgkmcnt(0)
    s_barrier
    s_mov_b32 s47, s3
L_fb_node:
    s_cmp_ge_u32 s47, {BS}
    s_cbranch_scc1 L_k2_end
    s_add_u32 s64, s46, s47
    s_lshl_b32 s67, s64, 8
    buffer_load_dword v11, v6, s[20:23], s67 offen
    s_lshl_b32 s48, s47, 8
    v_add_u32 v17, s48, v6
    ds_read_b32 v15, v17
    s_mov_b32 s69, 0
    s_waitcnt vmcnt(0) lgkmcnt(0)
L_fb_ku:
    s_lshl_b32 s70, s69, 9
    buffer_load_ushort v17, v5, s[24:27], s70 offen
    buffer_load_ushort v18, v5, s[24:27], s70 offen offset:256
    v_readlane_b32 s72, v11, s69
    s_lshl_b32 s74, s72, 16
    s_and_b32 s72, s72, 0xffff0000
    s_waitcnt vmcnt(0)
    v_lshlrev_b32 v17, 16, v17
    v_lshlrev_b32 v18, 16, v18
    v_fmac_f32 v15, s74, v17
    v_fmac_f32 v15, s72, v18
    s_add_u32 s69, s69, 1
    s_cmp_lt_u32 s69, 64
    s_cbranch_scc1 L_fb_ku
    v_mul_f32 v16, {hex(LOG2E_NEG)}, v15
    v_exp_f32 v16, v16
    s_nop 0
    v_add_f32 v16, 1.0, v16
    v_rcp_f32 v16, v16
    s_nop 0
    v_mul_f32 v15, v15, v16
    v_cvt_pk_bf16_f32 v15, v15, v15
    buffer_store_short v15, v5, s[28:31], s67 offen
    s_add_u32 s47, s47, 16
    s_branch L_fb_node""")

def desc(name, vg, sg=102):
    return f""".amdhsa_kernel {name}
  .amdhsa_next_free_vgpr {vg}
  .amdhsa_next_free_sgpr {sg}
  .amdhsa_accum_offset {vg}
  .amdhsa_group_segment_fixed_size 0
  .amdhsa_kernarg_size 80
  .amdhsa_user_sgpr_count 2
  .amdhsa_user_sgpr_kernarg_segment_ptr 1
  .amdhsa_system_sgpr_workgroup_id_x 1
.end_amdhsa_kernel
"""
k1(); k2()
errs=check(A.lines)
for e in errs: print(e, file=sys.stderr)
hdr=open('gather_scatter__edge_featured_mpnn_egc__graph.s.ref').read().split('; Override launch')[0]
xl=f"; @launch kernel=nop_kernel grid=({OPT.get('nopg',256)},1,1) block=({OPT.get('nopb',64)},1,1) lds={OPT.get('nopl',0)}\n"
pre=xl if OPT.get('nop')=='pre' else ''; post=xl if OPT.get('nop')=='post' else ''
if OPT.get('nop'):
    A(".p2align 8\nnop_kernel:")
    if OPT.get('nopt0'):
        A(f"""s_memrealtime s[6:7]
        s_load_dwordx2 s[4:5], s[0:1], 72
        s_cmp_lg_u32 s2, 0
        s_cbranch_scc1 L_nop_end
        s_waitcnt lgkmcnt(0)
        s_add_u32 s8, s4, {MISC_OFF}
        s_addc_u32 s9, s5, 0
        s_mov_b32 s10, {MISC_SZ}
        s_mov_b32 s11, 0x20000
        v_mov_b32 v1, s6
        v_mov_b32 v2, {FLAGO+2048}
        buffer_store_dword v1, v2, s[8:11], 0 offen sc0 sc1
L_nop_end:""")
    A("s_endpgm")
out=hdr+pre+f"""; Two launches: prep (edge partition + node tables), main (gated gather / aggregate / silu)
; @launch kernel=prep_kernel grid=(256,1,1) block=(1024,1,1) lds={K1_LDS}
; @launch kernel=main_kernel grid=(256,1,1) block=(1024,1,1) lds={K2_LDS}
{post}.amdgcn_target "amdgcn-amd-amdhsa--gfx950"
.text
.globl prep_kernel
.type prep_kernel,@function
.globl main_kernel
.type main_kernel,@function
"""+A.text()+""".section .rodata,"a"
.p2align 6
"""+desc("prep_kernel",128)+".p2align 6\n"+desc("main_kernel",128)+((".p2align 6\n"+desc("nop_kernel",8,16)) if OPT.get('nop') else '')
open(sys.argv[1],'w').write(out)
print("written",sys.argv[1],len(A.lines),"lines; hazards:",len(errs))
```

```python
import sys
from dsl import *
OPT=dict(a.split('=') if '=' in a else (a,'1') for a in sys.argv[2:])
STAMP=int(OPT.get('stamp',0))
def hint(k,d=''):
    v=OPT.get(k,d); return '' if v=='none' else v.replace('+',' ')
NTI=hint('nti'); NTE=hint('nte'); NTX=hint('ntx'); NT=hint('nt2'); OST=hint('ost','sc0+sc1')
ST=OPT.get('st','sc0 sc1')
if ST=='none': ST=''
ST=ST.replace('+',' ')

MST=hint('mst','sc0+sc1')
N=25000; E=400000; BS=196; CH=3136
NROW=25088; HS=NROW*256
WSB=int(OPT.get('wsb','0'))<<20
TAB_OFF=WSB; REC_OFF=WSB+0x0D00000; EP_OFF=WSB+0x1100000; MISC_OFF=WSB+0x3100000
WH=0x9000; CIMG=0x8000; FLAGO=0x12000; MISC_SZ=0x13000
LOG2E=0x3fb8aa3b
STAMP_OFF=0x3200000
LOG2E_NEG=0xbfb8aa3b
A=Asm()

def srd(s, base_lo, base_hi, off, size):
    if off:
        A(f"s_add_u32 s{s}, s{base_lo}, {hex(off)}\ns_addc_u32 s{s+1}, s{base_hi}, 0")
    else:
        A(f"s_mov_b32 s{s}, s{base_lo}\ns_mov_b32 s{s+1}, s{base_hi}")
    A(f"s_mov_b32 s{s+2}, {hex(size)}\ns_mov_b32 s{s+3}, 0x20000")

def stamp(idx, kern):
    if not STAMP: return
    A(f"""s_memrealtime s[88:89]
    s_waitcnt lgkmcnt(0)
    s_mov_b32 s{90+idx}, s88""")
def stamp_init(kern, wave_s, wsl, wsh):
    if not STAMP: return
    for i in range(8): A(f"s_mov_b32 s{90+i}, 0")
    A(f"s_add_u32 s98, s{wsl}, {hex(STAMP_OFF+kern*0x80000)}\ns_addc_u32 s99, s{wsh}, 0")
def stamp_flush(kern=0):
    if not STAMP: return
    if STAMP==2:
        sel=[0,1,2,5] if kern==0 else [0,2,3,6]
        if kern==0: A("s_and_b32 s4, s2, 15\ns_cmp_lg_u32 s4, 0\ns_cbranch_scc1 L_sf_0_3")
        A(f"""s_load_dwordx2 s[4:5], s[0:1], 64
        s_waitcnt lgkmcnt(0)
        s_add_u32 s4, s4, {512*(1-kern)}
        s_addc_u32 s5, s5, 0
        s_cmp_lg_u32 s3, {12 if kern==0 else 15}
        s_cbranch_scc1 L_sf_{kern}_3
        s_mov_b32 s6, 256
        s_mov_b32 s7, 0x20000
        s_mov_b64 exec, 1
        v_mov_b32 v8, 0""")
        for n,i in enumerate(sel):
            A(f"""v_mov_b32 v0, s{90+i}
            v_not_b32 v1, v0
            s_cmp_eq_u32 s{90+i}, 0
            s_cbranch_scc1 L_sf_{kern}_{n}
            buffer_atomic_umax v1, v8, s[4:7], 0 offen offset:{kern*32+n*8}
            buffer_atomic_umax v0, v8, s[4:7], 0 offen offset:{kern*32+n*8+4}
L_sf_{kern}_{n}:""")
        return
    A("""s_mov_b32 s4, s98
    s_mov_b32 s5, s99
    s_mov_b32 s6, 0x80000
    s_mov_b32 s7, 0x20000
    s_lshl_b32 s8, s2, 4
    s_add_u32 s8, s8, s3
    s_lshl_b32 s8, s8, 6
    s_mov_b64 exec, 1
    v_mov_b32 v8, 0""")
    for i in range(8): A(f"v_mov_b32 v{i}, s{90+i}")
    A("buffer_store_dwordx4 v[0:3], v8, s[4:7], s8 offen\nbuffer_store_dwordx4 v[4:7], v8, s[4:7], s8 offen offset:16")

def qtranspose(X,P,Y):
    for st,(src,dst,pm,m0) in enumerate(((X,P,"[1,0,3,2]",0x55555555),(P,Y,"[2,3,0,1]",0x33333333))):
        bit=1<<st
        for half in range(2):
            m=m0 if half==0 else (~m0)&0xffffffff
            A(f"s_mov_b32 vcc_lo, {hex(m)}\ns_mov_b32 vcc_hi, {hex(m)}")
            for j in range(4):
                if ((j>>st)&1)!=half: continue
                for d in range(4):
                    A(f"v_cndmask_b32_dpp v{dst+4*j+d}, v{src+4*(j^bit)+d}, v{src+4*j+d}, vcc quad_perm:{pm} row_mask:0xf bank_mask:0xf")

K1_E=0; K1_REC=100352; K1_PERM=K1_REC+32768; K1_HIST=K1_PERM+16384; K1_OVF=K1_HIST+1024; K1_LDS=K1_OVF+256
WROW=544
def woff(k): return k*WROW+(k>>5)*128

def k1():
    A(".p2align 8\nprep_kernel:")
    A("""s_cmp_ge_u32 s2, 256
    s_cbranch_scc1 L_k1_end
    s_load_dwordx4 s[4:7], s[0:1], 0
    s_load_dwordx4 s[8:11], s[0:1], 16
    s_load_dwordx4 s[12:15], s[0:1], 32
    s_load_dwordx2 s[16:17], s[0:1], 48
    s_load_dwordx2 s[18:19], s[0:1], 72
    v_lshrrev_b32 v1, 6, v0
    v_and_b32 v2, 63, v0
    v_readfirstlane_b32 s3, v1
    v_lshlrev_b32 v3, 4, v2
    v_lshlrev_b32 v4, 4, v0
    s_waitcnt lgkmcnt(0)""")
    if OPT.get('cpf','1')!='0':
        A(f"""s_cmp_ge_u32 s3, 13
        s_cbranch_scc1 L_k1_nocpf
        s_getpc_b64 s[20:21]
L_k1_pc:
        s_sub_u32 s20, s20, L_k1_pc-prep_kernel
        s_subb_u32 s21, s21, 0
        global_load_dwordx4 v[120:123], v4, s[20:21]
L_k1_nocpf:""")
    stamp_init(0,3,18,19)
    stamp(0,0)
    srd(44,18,19,MISC_OFF,MISC_SZ)
    if (OPT.get('until') or OPT.get('until0') or OPT.get('untilL')) and not OPT.get('nopt0'):
        A(f"""s_memrealtime s[60:61]
        s_waitcnt lgkmcnt(0)
        s_or_b32 s62, s2, s3
        s_cmp_lg_u32 s62, 0
        s_cbranch_scc1 L_k1_not0
        v_mov_b32 v100, s60
        v_mov_b32 v101, {FLAGO+2048}
        buffer_store_dword v100, v101, s[44:47], 0 offen sc0 sc1
L_k1_not0:""")
    A("""s_cmp_ge_u32 s2, 128
    s_cbranch_scc1 L_k1_gemm""")
    srd(20,10,11,0,E*4)
    srd(24,8,9,0,E*4)
    srd(28,6,7,0,E*32)
    srd(32,18,19,REC_OFF,0x400000)
    srd(36,18,19,EP_OFF,0x2000000)
    D=8; S=12
    A(f"""s_mul_i32 s50, s2, {CH}
    s_sub_u32 s51, {E}, s50
    s_lshr_b32 s51, s51, 2
    s_min_u32 s51, s51, {CH//4}
    s_lshl_b32 s52, s50, 2
    v_cmp_gt_u32 vcc, s51, v0
    s_mov_b64 s[54:55], vcc
    s_mov_b64 exec, vcc
    s_cbranch_execz L_k1_noidx
    buffer_load_dwordx4 v[{D}:{D+3}], v4, s[20:23], s52 offen {NTI}
    buffer_load_dwordx4 v[{S}:{S+3}], v4, s[24:27], s52 offen {NTI}
L_k1_noidx:
    s_mov_b64 exec, -1
    s_lshl_b32 s53, s3, 10
    s_lshl_b32 s56, s50, 5
    s_add_u32 s56, s56, s53
    v_mov_b32 v16, -1
    v_mov_b32 v17, -1
    v_mov_b32 v18, -1
    v_mov_b32 v19, -1
    v_mov_b32 v20, 0
    v_add_u32 v5, {K1_REC}, v4
    v_lshlrev_b32 v6, 2, v0
    v_add_u32 v6, {K1_HIST}, v6
    ds_write_b128 v5, v[16:19]
    ds_write_b128 v5, v[16:19] offset:16384
    v_cmp_gt_u32 vcc, 0x140, v0
    s_mov_b64 exec, vcc
    ds_write_b32 v6, v20
    s_mov_b64 exec, -1
    v_mov_b32 v20, 1
    v_mov_b32 v22, 21400
    v_mov_b32 v23, -196
    v_mov_b32 v24, 5372
    v_mov_b32 v25, 208
    v_mov_b32 v26, 669
    s_waitcnt lgkmcnt(0)
    s_barrier""")
    for i in range(7):
        if i==6: A("s_cmp_ge_u32 s3, 2\ns_cbranch_scc1 L_k1_dmadone")
        A(f"""s_mov_b32 m0, s53
        s_add_u32 s53, s53, 16384
        buffer_load_dwordx4 v3, s[28:31], s56 offen {NTE} lds
        s_add_u32 s56, s56, 16384""")
    A("L_k1_dmadone:\ns_waitcnt vmcnt(6)")
    stamp(1,0)
    A("""s_mov_b64 exec, s[54:55]
    s_cbranch_execz L_k1_b1""")
    B,RC,HA,SH,OLD,INC,T=28,32,36,40,44,48,60
    for j in range(4):
        A(f"""v_mul_u32_u24 v{T}, v{D+j}, v22
        v_mul_u32_u24 v{T+1}, v{S+j}, v26
        v_lshrrev_b32 v{B+j}, 22, v{T}
        v_lshrrev_b32 v{T+1}, 22, v{T+1}
        v_lshlrev_b32 v{HA+j}, 2, v{B+j}
        v_sub_u32_e64 v{SH+j}, v{T+1}, 1 clamp
        v_add_u32 v{HA+j}, {K1_HIST}, v{HA+j}
        v_lshlrev_b32 v{SH+j}, 3, v{SH+j}
        v_mad_i32_i24 v{T}, v{B+j}, v23, v{D+j}
        v_lshlrev_b32 v{INC+j}, v{SH+j}, v20
        v_mul_u32_u24 v{T+2}, v{T}, v24
        ds_add_rtn_u32 v{OLD+j}, v{HA+j}, v{INC+j}
        v_lshl_or_b32 v{T}, v{S+j}, 8, v{T}
        v_lshrrev_b32 v{T+2}, 16, v{T+2}
        v_mad_u32_u24 v{T+3}, v{T+2}, 52, v25
        v_mad_i32_i24 v{T}, v{T+2}, -12, v{T}
        v_lshrrev_b32 v{T+3}, 8, v{T+3}
        v_lshl_add_u32 v{T+2}, v{T+2}, 2, v{T+1}
        v_sub_u32 v{T}, v{T}, v{T+3}
        v_lshl_or_b32 v{RC+j}, v{T+2}, 24, v{T}""")
    A("""L_k1_b1:
    s_mov_b64 exec, -1
    s_waitcnt lgkmcnt(0)
    s_barrier""")
    stamp(2,0)
    FIN=8
    A(f"""s_mov_b64 s[70:71], 0
    v_cmp_gt_u32 vcc, 128, v0
    s_mov_b64 exec, vcc
    s_cbranch_execz L_k1_nohdr
    ds_read_b32 v{T}, v6
    v_lshlrev_b32 v{T+1}, 8, v0
    v_add_u32 v{T+1}, {K1_REC+252}, v{T+1}
    s_waitcnt lgkmcnt(0)
    v_and_b32 v{T}, 0x3f3f3f, v{T}
    ds_write_b32 v{T+1}, v{T}
L_k1_nohdr:
    s_mov_b64 exec, s[54:55]
    s_cbranch_execz L_k1_b2""")
    for j in range(4): A(f"ds_read_b32 v{FIN+j}, v{HA+j}")
    A(f"v_lshlrev_b32 v{T+8}, 2, v0")
    for j in range(4):
        A(f"v_bfe_u32 v{OLD+j}, v{OLD+j}, v{SH+j}, 8\nv_add_u32 v{INC+j}, -1, v{INC+j}")
    A("s_waitcnt lgkmcnt(0)")
    for j in range(4):
        A(f"""v_and_b32 v{T}, v{FIN+j}, v{INC+j}
        v_sad_u8 v{T}, v{T}, 0, v{OLD+j}
        v_cmp_lt_u32 vcc, 62, v{T}
        v_min_u32 v{T}, 62, v{T}
        s_or_b64 s[70:71], s[70:71], vcc
        v_lshl_add_u32 v{T+1}, v{B+j}, 6, v{T}
        v_and_b32 v{T+2}, 15, v{T}
        v_lshrrev_b32 v{T+3}, 4, v{T}
        v_lshlrev_b32 v{T+1}, 1, v{T+1}
        v_lshl_add_u32 v{T+2}, v{T+2}, 2, v{T+3}
        v_add_u32 v{T+1}, {K1_PERM}, v{T+1}
        v_lshl_add_u32 v{T+2}, v{B+j}, 6, v{T+2}
        v_add_u32 v{T+9}, {j}, v{T+8}
        v_lshlrev_b32 v{T+2}, 2, v{T+2}
        ds_write_b16 v{T+1}, v{T+9}
        v_add_u32 v{T+2}, {K1_REC}, v{T+2}
        ds_write_b32 v{T+2}, v{RC+j}""")
    A(f"""s_mov_b64 exec, s[70:71]
    v_mov_b32 v{T}, {K1_OVF}
    ds_write_b32 v{T}, v20
L_k1_b2:
    s_mov_b64 exec, -1
    s_waitcnt lgkmcnt(0)
    s_barrier""")
    stamp(3,0)
    EI=8; EV=64
    A(f"""ds_read_b128 v[16:19], v5
    ds_read_b128 v[20:23], v5 offset:16384
    v_and_b32 v24, 7, v2
    s_lshl_b32 s57, s3, 5
    v_lshl_add_u32 v24, v24, 2, s57
    v_add_u32 v24, {K1_HIST}, v24
    ds_read_b32 v26, v24
    v_lshrrev_b32 v28, 1, v2
    s_lshl_b32 s57, s3, 10
    s_add_u32 s57, s57, {K1_PERM}
    v_lshl_add_u32 v29, v28, 1, s57""")
    for i in range(8): A(f"ds_read_u16 v{EI+i}, v29 offset:{i*128}")
    A(f"""v_lshrrev_b32 v30, 4, v0
    v_and_b32 v31, 15, v0
    v_lshlrev_b32 v30, 15, v30
    v_lshl_or_b32 v30, v31, 4, v30
    s_lshl_b32 s58, s2, 8
    s_add_u32 s59, s58, 0x200000
    v_and_b32 v31, 1, v2
    v_lshlrev_b32 v31, 4, v31
    s_waitcnt lgkmcnt(0)
    buffer_store_dwordx4 v[16:19], v30, s[32:35], s58 offen {ST}
    buffer_store_dwordx4 v[20:23], v30, s[32:35], s59 offen {ST}
    v_sad_u8 v26, v26, 0, 3
    v_and_b32 v26, -4, v26
    v_min_u32 v26, 64, v26
    s_waitcnt vmcnt(2)
    s_barrier""")
    stamp(6,0)
    for i in range(8):
        A(f"v_lshl_add_u32 v{EI+i}, v{EI+i}, 5, v31\nds_read_b128 v[{EV+4*i}:{EV+4*i+3}], v{EI+i}\nv_readlane_b32 s{60+i}, v26, {i}")
    A(f"""s_lshl_b32 s57, s3, 21
    s_lshl_b32 s58, s2, 11
    s_add_u32 s57, s57, s58""")
    for i in range(8):
        A(f"""v_cmp_gt_u32 vcc, s{60+i}, v28
        s_mov_b64 exec, vcc
        s_waitcnt lgkmcnt({7-i})
        buffer_store_dwordx4 v[{EV+4*i}:{EV+4*i+3}], v3, s[36:39], s57 offen {ST}
        s_mov_b64 exec, -1
        s_add_u32 s57, s57, 0x40000""")
    A(f"s_sub_u32 s57, s57, 0x200000\nv_add_u32 v32, 32, v28")
    for i in range(8):
        L=A.label("k1long")
        A(f"""s_cmp_le_u32 s{60+i}, 32
        s_cbranch_scc1 {L}
        ds_read_u16 v33, v29 offset:{i*128+64}
        s_waitcnt lgkmcnt(0)
        v_lshl_add_u32 v33, v33, 5, v31
        ds_read_b128 v[36:39], v33
        v_cmp_gt_u32 vcc, s{60+i}, v32
        s_mov_b64 exec, vcc
        s_waitcnt lgkmcnt(0)
        buffer_store_dwordx4 v[36:39], v3, s[36:39], s57 offen offset:1024 {ST}
        s_mov_b64 exec, -1
        s_nop 0
{L}:
        s_add_u32 s57, s57, 0x40000""")
    A("s_branch L_k1_flag")
    A("L_k1_gemm:")
    srd(20,4,5,0,N*256)
    srd(24,16,17,0,272*256)
    srd(28,14,15,0,128*256)
    srd(32,12,13,0,128*256)
    srd(36,18,19,TAB_OFF,HS)
    srd(40,18,19,TAB_OFF+HS,HS)
    XR=8; WL=24; XA=40; ACC=56; BF=8
    A(f"""s_sub_u32 s50, s2, 128
    s_lshr_b32 s51, s50, 3
    s_lshl_b32 s52, s3, 4
    s_add_u32 s51, s51, s52
    s_cmp_lt_u32 s51, 196
    s_cselect_b32 s52, 0, 0x10000
    s_add_u32 s51, s51, s52
    s_and_b32 s52, s2, 3
    s_mul_i32 s52, s52, 392
    s_add_u32 s51, s51, s52
    s_bfe_u32 s52, s2, 0x10002
    s_mul_i32 s52, s52, 196
    s_add_u32 s51, s51, s52
    v_mov_b32 v6, 0
    v_mov_b32 v7, {K1_OVF}
    ds_write_b32 v7, v6
    s_cmp_ge_u32 s51, 1568
    s_cbranch_scc1 L_k1_nox
    s_lshl_b32 s52, s51, 12
    v_bfe_u32 v5, v2, 2, 2
    v_and_b32 v6, 3, v2
    v_lshlrev_b32 v5, 10, v5
    v_lshl_or_b32 v5, v6, 4, v5
    v_lshrrev_b32 v6, 4, v2
    v_lshl_or_b32 v5, v6, 6, v5""")
    for ks in range(4): A(f"buffer_load_dwordx4 v[{XR+4*ks}:{XR+4*ks+3}], v5, s[20:23], s52 offen offset:{ks*256} {NTX}")
    A(f"""L_k1_nox:
    s_mov_b32 s53, {128*256}
    s_mov_b32 s54, {128*256+16384}
    s_mov_b32 s55, 16384
    buffer_load_dwordx4 v[{WL}:{WL+3}], v4, s[24:27], s53 offen
    buffer_load_dwordx4 v[{WL+4}:{WL+7}], v4, s[24:27], s54 offen
    buffer_load_dwordx4 v[{WL+8}:{WL+11}], v4, s[28:31], 0 offen
    buffer_load_dwordx4 v[{WL+12}:{WL+15}], v4, s[28:31], s55 offen
    v_lshrrev_b32 v5, 4, v0
    v_lshrrev_b32 v6, 9, v0
    v_mul_u32_u24 v5, {WROW}, v5
    v_lshl_add_u32 v5, v6, 7, v5
    v_bfe_u32 v6, v0, 3, 1
    v_lshl_add_u32 v5, v6, 7, v5
    v_and_b32 v6, 7, v0
    v_lshl_add_u32 v5, v6, 2, v5
    s_mov_b32 s56, 0x05040100
    s_mov_b32 s57, 0x07060302""")
    A(f"""s_cmp_lg_u32 s3, 15
    s_cbranch_scc1 L_k1_noimg
    s_cmp_ge_u32 s50, 72
    s_cbranch_scc1 L_k1_noimg
    v_and_b32 v6, 15, v2
    v_lshrrev_b32 v7, 4, v2
    v_lshlrev_b32 v6, 3, v6
    s_cmp_ge_u32 s50, 64
    s_cbranch_scc1 L_k1_cimg
    s_bfe_u32 s58, s50, 0x10005
    s_bfe_u32 s59, s50, 0x20002
    s_and_b32 s60, s50, 3
    s_lshl_b32 s58, s58, 7
    s_lshl_b32 s59, s59, 1
    s_lshl_b32 s60, s60, 11
    s_add_u32 s58, s58, s59
    s_add_u32 s58, s58, s60
    v_lshl_add_u32 v6, v7, 13, v6
    s_bitcmp1_b32 s50, 4
    s_cbranch_scc1 L_k1_uimg""")
    for i in range(8): A(f"buffer_load_ushort v{64+i}, v6, s[24:27], s58 offen offset:{i*256}")
    A("s_branch L_k1_imgst\nL_k1_uimg:")
    for i in range(8): A(f"buffer_load_ushort v{64+i}, v6, s[32:35], s58 offen offset:{i*256}")
    A(f"""L_k1_imgst:
    s_and_b32 s58, s50, 31
    s_lshl_b32 s58, s58, 10
    s_lshr_b32 s59, s50, 5
    s_mul_i32 s59, s59, {WH}
    s_add_u32 s58, s58, s59
    s_waitcnt vmcnt(0)
    v_lshl_or_b32 v56, v65, 16, v64
    v_lshl_or_b32 v57, v67, 16, v66
    v_lshl_or_b32 v58, v69, 16, v68
    v_lshl_or_b32 v59, v71, 16, v70
    buffer_store_dwordx4 v[56:59], v3, s[44:47], s58 offen {MST}
    s_branch L_k1_noimg
L_k1_cimg:
    s_sub_u32 s61, s50, 64
    s_lshr_b32 s58, s61, 2
    s_and_b32 s59, s61, 3
    s_lshl_b32 s58, s58, 7
    s_lshl_b32 s59, s59, 1
    s_add_u32 s58, s58, s59
    s_add_u32 s58, s58, {256*256}
    v_lshl_add_u32 v6, v7, 10, v6""")
    for i in range(4): A(f"buffer_load_ushort v{56+i}, v6, s[24:27], s58 offen offset:{i*256}")
    A(f"""s_mov_b32 s59, {hex(LOG2E_NEG)}
    s_and_b32 s58, s61, 3
    s_lshl_b32 s58, s58, 9
    s_lshr_b32 s60, s61, 2
    s_mul_i32 s60, s60, {WH}
    s_add_u32 s58, s58, s60
    s_add_u32 s58, s58, {CIMG}
    v_lshlrev_b32 v7, 3, v2
    s_waitcnt vmcnt(0)""")
    for i in range(4): A(f"v_lshlrev_b32 v{56+i}, 16, v{56+i}\nv_mul_f32 v{56+i}, s59, v{56+i}")
    A(f"""v_cvt_pk_bf16_f32 v56, v56, v57
    v_cvt_pk_bf16_f32 v57, v58, v59
    buffer_store_dwordx2 v[56:57], v7, s[44:47], s58 offen {MST}
L_k1_noimg:""")
    for u in range(4):
        w=WL+4*u; base=(u&1)*woff(64)+(u>>1)*256
        A(f"""s_waitcnt vmcnt({3-u})
        v_perm_b32 v60, v{w+2}, v{w}, s56
        v_perm_b32 v61, v{w+2}, v{w}, s57
        v_perm_b32 v62, v{w+3}, v{w+1}, s56
        v_perm_b32 v63, v{w+3}, v{w+1}, s57
        ds_write_b32 v5, v60 offset:{base}
        ds_write_b32 v5, v61 offset:{base+32}
        ds_write_b32 v5, v62 offset:{base+64}
        ds_write_b32 v5, v63 offset:{base+96}""")
    A(f"""v_and_b32 v6, 15, v2
    v_lshrrev_b32 v7, 4, v2
    s_cmp_ge_u32 s51, 1568
    s_cbranch_scc1 L_k1_nobp""")
    qtranspose(XR,WL,XA)
    A(f"""L_k1_nobp:
    v_bfe_u32 v61, v2, 2, 2
    v_lshl_add_u32 v61, v7, 5, v61
    v_mul_u32_u24 v61, {WROW}, v61
    v_lshl_add_u32 v61, v7, 7, v61
    v_and_b32 v62, 3, v2
    v_lshl_add_u32 v5, v62, 3, v61
    s_waitcnt lgkmcnt(0)
    s_barrier""")
    stamp(1,0)
    A("""s_cmp_ge_u32 s51, 1568
    s_cbranch_scc1 L_k1_gdone""")
    seq=[(h,t,mat,ks) for h in range(2) for t in range(4) for mat in range(2) for ks in range(4)]
    def rd(n):
        h,t,mat,ks=seq[n]; o=woff(8*ks)+mat*256+h*128+t*32; b=BF+4*(n%8)
        A(f"ds_read_b64_tr_b16 v[{b}:{b+1}], v5 offset:{o}\nds_read_b64_tr_b16 v[{b+2}:{b+3}], v5 offset:{o+4*WROW}")
    def acc(h,t,mat): return ACC+((h*4+t)*2+mat)*4
    PF=6
    for n in range(PF): rd(n)
    for n in range(64):
        h,t,mat,ks=seq[n]; b=BF+4*(n%8); a=acc(h,t,mat)
        out=min(63-n,PF-1)
        A(f"s_waitcnt lgkmcnt({2*out})")
        A(f"v_mfma_f32_16x16x32_bf16 v[{a}:{a+3}], v[{XA+4*ks}:{XA+4*ks+3}], v[{b}:{b+3}], {'0' if ks==0 else f'v[{a}:{a+3}]'}")
        if n+PF<64: rd(n+PF)
    stamp(2,0)
    A(f"""v_mov_b32 v8, {hex(LOG2E_NEG)}
    v_mov_b32 v9, 0x7fff
    v_mov_b32 v10, 0xffff0000
    v_mov_b32 v11, 0
    v_lshlrev_b32 v12, 10, v7
    v_lshl_or_b32 v12, v6, 4, v12
    s_nop 3""")
    for h in range(2):
        for r in range(4):
            o=16+4*((h*4+r)%2); tt=24
            for t in range(4): A(f"v_mul_f32 v{tt+t}, v8, v{acc(h,t,0)+r}")
            A(f"v_max3_f32 v11, abs(v{tt}), abs(v{tt+1}), v11\nv_max3_f32 v11, abs(v{tt+2}), abs(v{tt+3}), v11")
            for t in range(4): A(f"v_exp_f32 v{tt+t}, v{tt+t}")
            A("s_nop 0")
            for t in range(4): A(f"v_cvt_pk_f16_f32 v{tt+t}, v{tt+t}, 0")
            for t in range(4): A(f"v_xad_u32 v{tt+4+t}, v{tt+t}, v9, v{acc(h,t,1)+r}")
            for t in range(4): A(f"v_bfi_b32 v{o+t}, v10, v{tt+4+t}, v{tt+t}")
            A(f"buffer_store_dwordx4 v[{o}:{o+3}], v12, s[{36+4*h}:{39+4*h}], s52 offen offset:{r*256} {ST}")
    A(f"""v_mov_b32 v13, 0x41600000
    v_mov_b32 v14, 1
    v_mov_b32 v15, {K1_OVF}
    v_cmp_nle_f32 vcc, v11, v13""")
    A(f"""s_mov_b64 exec, vcc
    ds_write_b32 v15, v14
    s_mov_b64 exec, -1
L_k1_gdone:
    s_waitcnt lgkmcnt(0)
    s_barrier
L_k1_flag:
    s_cmp_lg_u32 s3, 0
    s_cbranch_scc1 L_k1_fin
    v_mov_b32 v15, {K1_OVF}
    ds_read_b32 v14, v15
    s_lshl_b32 s58, s2, 2
    s_add_u32 s58, s58, {FLAGO}
    v_mov_b32 v15, 0
    s_mov_b64 exec, 1
    s_waitcnt lgkmcnt(0)
    buffer_store_dword v14, v15, s[44:47], s58 offen {MST}
    s_mov_b64 exec, -1
L_k1_fin:""")
    if STAMP:
        stamp(4,0)
        A("s_waitcnt vmcnt(0)")
        stamp(5,0)
        stamp_flush()
    if OPT.get('k1delay'):
        A(f"""s_memrealtime s[60:61]
        s_waitcnt lgkmcnt(0)
        s_add_u32 s62, s60, {int(OPT['k1delay'])*100}
L_k1_spin:
        s_memrealtime s[60:61]
        s_waitcnt lgkmcnt(0)
        s_cmp_lt_u32 s60, s62
        s_cbranch_scc1 L_k1_spin""")
    A("L_k1_end:\ns_endpgm")

def spin(T,tag):
    A(f"""s_load_dwordx2 s[60:61], s[0:1], 72
    s_waitcnt lgkmcnt(0)
    s_add_u32 s60, s60, {MISC_OFF+FLAGO+2048}
    s_addc_u32 s61, s61, 0
    s_load_dword s62, s[60:61], 0
    s_waitcnt lgkmcnt(0)
    s_add_u32 s62, s62, {int(float(T)*100)}
L_spin_{tag}:
    s_memrealtime s[60:61]
    s_waitcnt lgkmcnt(0)
    s_cmp_lt_u32 s60, s62
    s_cbranch_scc1 L_spin_{tag}""")

ECAP=3456; BCAP=96; WCAP=4*BCAP
K2_HIST=0; K2_FL=256; K2_C1=260; K2_C2=264; K2_AL=272; K2_OH=288; K2_L1=1024; K2_L2=K2_L1+16*WCAP*4; K2_E=K2_L2+16*WCAP*4
K2_Z=K2_E+ECAP*32; K2_W=K2_Z-34816; K2_SRC=K2_W-8192; K2_LDS=K2_Z+32
assert K2_LDS<=163840 and K2_L1%256==0 and K2_L2%256==0 and K2_SRC-K2_E>=2048*32
O0=K2_L1//256; O1o=K2_L2//256; LST=O1o-O0

def k2():
    L=0; D=32; EE=48; ACC=64; GB=80; AO=96; S=100; LM,LS=102,103; G=104; EA,OA,SA,LMX=108,109,110,111
    WP,CPt=112,113
    cJ16,cG8,cG8O,cS,pL1,pLm,pLs,LANE=114,115,116,117,118,119,120,121
    L16,TID=122,123
    A(".p2align 8\nmain_kernel:")
    A(f"""s_cmp_ge_u32 s2, 256
    s_cbranch_scc1 L_k2_end""")
    if OPT.get('until0'): spin(OPT['until0'],'a')
    A(f"""s_load_dwordx2 s[18:19], s[0:1], 72
    s_load_dwordx2 s[4:5], s[0:1], 0
    s_load_dwordx2 s[6:7], s[0:1], 56
    v_mov_b32 v{TID}, v0
    v_lshrrev_b32 v1, 6, v0
    v_and_b32 v{LANE}, 63, v0
    v_readfirstlane_b32 s3, v1
    v_lshlrev_b32 v{L16}, 4, v{LANE}
    v_lshlrev_b32 v4, 4, v0
    s_bfe_u32 s40, s2, 0x10002
    s_lshr_b32 s41, s2, 3
    s_and_b32 s42, s2, 3
    s_lshl_b32 s42, s42, 5
    s_add_u32 s41, s41, s42
    s_lshl_b32 s45, s41, 15
    s_add_u32 s46, s45, 16384
    s_mov_b32 s10, 0x400000
    s_mov_b32 s11, 0x20000
    s_setprio 3
    s_waitcnt lgkmcnt(0)
    s_add_u32 s8, s18, {hex(REC_OFF)}
    s_addc_u32 s9, s19, 0""")
    R=0; RK=8; HA=16; XR=32
    A(f"""buffer_load_dwordx4 v[{R}:{R+3}], v4, s[8:11], s45 offen {NT}
    buffer_load_dwordx4 v[{R+4}:{R+7}], v4, s[8:11], s46 offen {NT}""")
    stamp_init(1,3,18,19)
    stamp(0,1)
    srd(24,18,19,MISC_OFF,MISC_SZ)
    A(f"""s_lshl_b32 s45, s3, 6
    s_add_u32 s45, s45, {FLAGO}
    v_lshlrev_b32 v25, 2, v{LANE}
    s_mov_b64 exec, 0xffff
    buffer_load_dword v24, v25, s[24:27], s45 offen
    s_mov_b64 exec, -1""")
    A(f"""s_add_u32 s42, s3, 4
    s_mul_i32 s42, s42, 52
    s_lshr_b32 s42, s42, 8
    s_add_u32 s43, s3, 5
    s_mul_i32 s43, s43, 52
    s_lshr_b32 s43, s43, 8
    s_sub_u32 s43, s43, s42
    s_add_u32 s43, s43, 12
    s_mul_i32 s44, s3, 12
    s_add_u32 s42, s42, s44
    s_mul_i32 s44, s41, {BS}
    s_add_u32 s44, s44, s42""")
    srd(20,4,5,0,N*256)
    A(f"""s_lshl_b32 s45, s41, 18
    s_add_u32 s12, s18, s45
    s_addc_u32 s13, s19, 0
    s_add_u32 s12, s12, {hex(EP_OFF)}
    s_addc_u32 s13, s13, 0
    s_mov_b32 s14, 0x40000
    s_mov_b32 s15, 0x20000
    s_mul_i32 s45, s40, {HS}
    s_add_u32 s45, s45, {WSB}
    s_add_u32 s16, s18, s45
    s_addc_u32 s17, s19, 0
    s_mov_b32 s18, {HS}
    s_mov_b32 s19, 0x20000""")
    srd(28,6,7,0,N*256)
    A(f"""v_subrev_u32 v28, 72, v{TID}
    v_and_b32 v29, 7, v28
    v_lshrrev_b32 v30, 4, v28
    v_and_b32 v28, 8, v28
    v_lshlrev_b32 v28, 1, v28
    v_mov_b32 v31, 0x3f80
    v_cmp_eq_u32 vcc, v29, v30
    v_lshlrev_b32 v31, v28, v31
    v_lshlrev_b32 v29, 2, v{TID}
    v_cndmask_b32 v31, 0, v31, vcc
    s_cmp_lg_u32 s3, 1
    s_cbranch_scc1 L_k2_noal
    s_mov_b32 s45, {2048<<16}
    s_mov_b32 s46, 3072
    v_writelane_b32 v31, s45, 4
    v_writelane_b32 v31, s46, 5
L_k2_noal:
    v_cmp_gt_u32 vcc, 208, v{TID}
    s_mov_b64 exec, vcc
    ds_write_b32 v29, v31
    s_cmp_lg_u32 s3, 0
    s_cbranch_scc1 L_k2_noz
    s_mov_b64 exec, 0xff
    v_add_u32 v29, {K2_Z}, v29
    ds_write_b32 v29, v31
L_k2_noz:
    s_mov_b64 exec, -1
    v_bfe_u32 v28, v{LANE}, 2, 2
    v_and_b32 v29, 3, v{LANE}
    v_lshlrev_b32 v28, 10, v28
    v_lshl_or_b32 v28, v29, 4, v28
    v_lshrrev_b32 v29, 4, v{LANE}
    v_lshl_or_b32 v28, v29, 6, v28
    s_cmp_eq_u32 s43, 13
    s_cselect_b32 s50, -1, 0x0fff0fff
    s_lshl_b32 s45, s44, 8
    s_lshl_b32 s47, s3, 11
    s_add_u32 m0, s47, {K2_W}
    s_mul_i32 s48, s40, {WH}
    s_add_u32 s47, s47, s48""")
    for i in range(16): A(f"v_mov_b32 v{XR+i}, 0")
    A(f"""s_waitcnt lgkmcnt(0)
    s_barrier
    s_cmp_lg_u32 s3, 15
    s_cbranch_scc1 L_k2_noc
    buffer_load_dwordx4 v{L16}, s[24:27], s47 offen offset:2048 lds
    buffer_load_dwordx4 v{L16}, s[24:27], s47 offen offset:3072 lds
L_k2_noc:
    buffer_load_dwordx4 v{L16}, s[24:27], s47 offen lds
    buffer_load_dwordx4 v{L16}, s[24:27], s47 offen offset:1024 lds
    v_mov_b32 v78, v28
    s_mov_b32 s84, s50
    s_mov_b32 s85, 0x0fff0fff
    s_mov_b32 s86, s45""")
    XL=int(OPT.get('xlate',16))
    def xload(tag, early):
        A(f"s_cmp_{'ge' if early else 'lt'}_u32 s3, {XL}\ns_cbranch_scc1 L_k2_x{tag}\ns_mov_b32 exec_lo, s84\ns_mov_b32 exec_hi, s84")
        for ks in range(4):
            A(f"buffer_load_dwordx4 v[{XR+4*ks}:{XR+4*ks+3}], v78, s[20:23], s86 offen offset:{ks*256} {NT}")
            if ks==0: A("s_mov_b32 exec_lo, s85\ns_mov_b32 exec_hi, s85")
        A(f"s_mov_b64 exec, -1\nL_k2_x{tag}:")
    xload('e',True)
    A(f"""    v_and_b32 v28, 15, v{LANE}
    v_lshrrev_b32 v29, 4, v{LANE}
    v_lshlrev_b32 v{cJ16}, 4, v28
    v_lshlrev_b32 v30, 3, v29
    v_add_u32 v{cG8}, {K2_E}, v30
    v_add_u32 v{cG8O}, {K2_OH}, v30
    v_and_b32 v30, 3, v{LANE}
    v_lshlrev_b32 v30, 3, v30
    v_add_u32 v{cS}, {K2_OH}, v30
    s_mul_i32 s47, s3, {WCAP*4}
    s_add_u32 s48, s47, {K2_L2}
    s_add_u32 s47, s47, {K2_L1}
    v_lshl_add_u32 v{pL1}, v29, 4, s47
    v_lshl_add_u32 v{pLm}, v28, 2, s48
    v_and_b32 v30, -4, v{LANE}
    v_add_u32 v{pLs}, s48, v30
    v_lshrrev_b32 v30, 4, v{TID}
    v_lshl_add_u32 v29, v30, 6, v28
    v_lshl_or_b32 v28, v28, 16, v28
    v_mov_b32 v31, 1
    v_mov_b32 v30, {OPT.get('srcmask','0x7fff00')}
    v_mov_b32 v25, 0
    v_mov_b32 v72, 0x0c0c0100
    v_mov_b32 v73, 0x202
    v_mov_b32 v74, 0x05040c00
    v_mov_b32 v75, {K2_SRC}
    s_mov_b32 s50, 0x80008000
    s_mov_b32 s51, 0x80008000
    s_mov_b32 s68, 0x0c010c00
    s_mov_b32 s69, 0x0c0c0c02
    s_mov_b32 s70, 0x01000100
    s_mov_b32 s71, 0x05040302
    s_mov_b32 s72, 0x0c010c00
    s_cmp_lt_u32 s3, {XL}
    s_cbranch_scc1 L_k2_rw
    s_waitcnt vmcnt(2)
L_k2_rw:
    s_waitcnt vmcnt(6)""")
    stamp(1,1)
    AL=64; DD=68; PR=76
    A(f"""v_perm_b32 v{AL}, v{R+3}, v{R+3}, s68
    v_perm_b32 v{AL+1}, v{R+3}, v{R+3}, s69
    v_perm_b32 v{AL+2}, v{R+7}, v{R+7}, s68
    v_perm_b32 v{AL+3}, v{R+7}, v{R+7}, s69
    s_mov_b64 exec, s[50:51]
    ds_add_rtn_u64 v[{AL}:{AL+1}], v25, v[{AL}:{AL+1}] offset:{K2_AL}
    ds_add_rtn_u64 v[{AL+2}:{AL+3}], v25, v[{AL+2}:{AL+3}] offset:{K2_AL}
    s_mov_b64 exec, 0xffff
    ds_or_b32 v25, v24 offset:{K2_FL}
    s_mov_b64 exec, -1""")
    MK=52; O1=48
    order=[0,4,1,5,2,6,3,7]
    for j in order:
        Lb=A.label("k2h")
        A(f"v_cmp_le_i32 s[{MK+2*j}:{MK+2*j+1}], 0, v{R+j}")
        if j&3==3: A(f"s_andn2_b64 s[{MK+2*j}:{MK+2*j+1}], s[{MK+2*j}:{MK+2*j+1}], s[50:51]")
        A(f"s_mov_b64 exec, s[{MK+2*j}:{MK+2*j+1}]")
        if j&3>=2: A(f"s_cbranch_execz {Lb}")
        A(f"""v_lshlrev_b32_sdwa v{HA+j}, 2, v{R+j} dst_sel:DWORD dst_unused:UNUSED_PAD src0_sel:DWORD src1_sel:BYTE_3
        v_bfe_u32 v{56+j}, v{R+j}, 24, 2
        ds_add_rtn_u32 v{RK+j}, v{HA+j}, v31 offset:{K2_HIST}
        v_and_b32 v{O1+j}, v30, v{R+j}
        v_mad_u32_u24 v{56+j}, v{56+j}, v73, v72""")
        if j&3>=2: A(f"{Lb}:")
        A("s_mov_b64 exec, -1")
    for u in range(2):
        h=R+3+4*u
        A(f"v_lshl_add_u32 v{PR+u}, v{h}, 8, v{h}\nv_perm_b32 v{PR+u}, v{PR+u}, v{PR+u}, s72")
    A("s_waitcnt lgkmcnt(0)")
    for u in range(2):
        A(f"""v_perm_b32 v{DD+2*u}, v{AL+2*u}, v{AL+2*u}, s70
        v_perm_b32 v{DD+2*u+1}, v{AL+2*u+1}, v{AL+2*u}, s71
        v_pk_sub_u16 v{DD+2*u+1}, v{DD+2*u+1}, v{PR+u}""")
    A("s_nop 0")
    for k in (0,2,1,3): A(f"v_mov_b32_dpp v{DD+k}, v{DD+k} row_newbcast:15 row_mask:0xf bank_mask:0xf")
    for k in (0,2,1,3): A(f"v_pk_add_u16 v{DD+k}, v{DD+k}, v28")
    for j in order:
        Lb=A.label("k2s"); u=j>>2
        A(f"s_mov_b64 exec, s[{MK+2*j}:{MK+2*j+1}]")
        if j&3>=2: A(f"s_cbranch_execz {Lb}")
        A(f"""v_perm_b32 v24, v{DD+2*u+1}, v{DD+2*u}, v{56+j}
        v_mad_u32_u24 v{RK+j}, v{HA+j}, 24, v{RK+j}""")
        if j&3: A(f"v_add_u32 v24, {16*(j&3)}, v24")
        A(f"v_lshlrev_b32 v{RK+j}, 2, v{RK+j}")
        if j: A(f"v_add_u32 v{HA+j}, {16*(j&3)+4096*u}, v29")
        A(f"""v_perm_b32 v{R+j}, v24, v{R+j}, v74
        v_lshl_add_u32 v24, v24, 1, v75
        ds_write2st64_b32 v{RK+j}, v{O1+j}, v{R+j} offset0:{O0} offset1:{O1o}
        ds_write_b16 v24, v{HA+j if j else 29}""")
        if j&3>=2: A(f"{Lb}:")
    A("s_mov_b64 exec, -1")
    xload('l',False)
    A(f"""v_lshlrev_b32 v24, 2, v{LANE}
    v_add_u32 v26, s47, v24
    v_and_b32 v27, -2, v{LANE}
    s_lshl_b32 s45, s3, 6
    s_add_u32 s45, s45, {K2_SRC}
    v_add_u32 v27, s45, v27
    v_and_b32 v28, 1, v{LANE}
    v_lshlrev_b32 v28, 4, v28
    s_lshl_b32 s45, s3, 2
    s_waitcnt vmcnt(4) lgkmcnt(0)
    s_barrier""")
    stamp(2,1)
    H0=0; FLr=1; ALr=2; SR=4; CP=8; S1=124; S2=126
    A(f"""ds_read_b32 v{H0}, v24 offset:{K2_HIST}
    ds_read_b32 v{FLr}, v25 offset:{K2_FL}
    ds_read_b64 v[{ALr}:{ALr+1}], v25 offset:{K2_AL}""")
    for i in range(4): A(f"ds_read_u16 v{SR+i}, v27 offset:{i*1024}")
    for b in range(1,4):
        A(f"""ds_read_b32 v{CP+4*b}, v26 offset:{b*BCAP*4}
        ds_read_b32 v{CP+4*b+1}, v26 offset:{b*BCAP*4+LST*256}""")
    A(f"""s_waitcnt lgkmcnt(6)
    v_cmp_lt_u32 vcc, {BCAP}, v{H0}
    v_readfirstlane_b32 s70, v{FLr}
    v_readfirstlane_b32 s76, v{ALr}
    v_readfirstlane_b32 s78, v{ALr+1}""")
    for i in range(4):
        A(f"v_readlane_b32 s{72+i}, v{H0}, s45\ns_add_u32 s45, s45, 1")
    A(f"""s_cmp_lg_u64 vcc, 0
    s_cbranch_scc1 L_k2_fallback
    s_cmp_lg_u32 s70, 0
    s_cbranch_scc1 L_k2_fallback
    s_lshr_b32 s77, s76, 16
    s_and_b32 s76, s76, 0xffff
    s_sub_u32 s77, s77, 2048
    s_sub_u32 s78, s78, 3072
    s_max_u32 s70, s77, s78
    s_cmp_gt_u32 s70, 1024
    s_cbranch_scc1 L_k2_fallback
    s_cmp_gt_u32 s76, 2048
    s_cbranch_scc1 L_k2_fallback
    s_add_u32 s79, s76, s77
    s_add_u32 s70, s79, s78
    s_cmp_gt_u32 s70, {ECAP-32}
    s_cbranch_scc1 L_k2_fallback""")
    def dma(cnt, n, base, SR, tag):
        A(f"s_lshl_b32 s45, s3, 5")
        if base is None: A(f"s_lshl_b32 s46, s3, 10\ns_add_u32 m0, s46, {K2_E}")
        else: A(f"s_add_u32 s46, s45, s{base}\ns_lshl_b32 s46, s46, 5\ns_add_u32 m0, s46, {K2_E}")
        for i in range(cnt):
            A(f"""s_cmp_ge_u32 s45, s{n}
            s_cbranch_scc1 L_dma_{tag}
            buffer_load_dwordx4 v{SR+i}, s[12:15], 0 offen {NT} lds""")
            if i<cnt-1: A("s_add_u32 s45, s45, 512\ns_add_u32 m0, m0, 16384")
        A(f"L_dma_{tag}:")
    for i in range(4): A(f"v_lshl_add_u32 v{SR+i}, v{SR+i}, 5, v28")
    dma(4,76,None,SR,'p0')
    if OPT.get('fine'): stamp(5,1)
    A("s_max_u32 s45, s73, s74\ns_max_u32 s45, s45, s75\ns_cmp_le_u32 s45, 64\ns_cbranch_scc1 L_k2_nolong")
    for b in range(1,4):
        A(f"""ds_read_b32 v{CP+4*b+2}, v26 offset:{b*BCAP*4+256}
        ds_read_b32 v{CP+4*b+3}, v26 offset:{b*BCAP*4+256+LST*256}""")
    A("L_k2_nolong:")
    for i in range(2): A(f"ds_read_u16 v{S1+i}, v27 offset:{4096+i*1024}\nds_read_u16 v{S2+i}, v27 offset:{6144+i*1024}")
    A(f"""s_mov_b32 s68, s72
    v_add_u32 v29, 64, v{LANE}
    s_sub_u32 s48, s76, 2048
    s_sub_u32 s49, s79, 3072
    s_lshl_b32 s48, s48, 16
    s_lshl_b32 s49, s49, 16
    s_waitcnt lgkmcnt(0)""")
    for i in range(4): A(f"v_lshl_add_u32 v{S1+i}, v{S1+i}, 5, v28")
    for b in range(1,4):
        Lb=A.label("cp")
        if b>=2: A(f"v_add_u32 v{CP+4*b+1}, s{46+b}, v{CP+4*b+1}")
        A(f"""v_cmp_gt_u32 vcc, s{72+b}, v{LANE}
        v_lshl_add_u32 v24, s68, 2, v26
        s_add_u32 s68, s68, s{72+b}
        s_mov_b64 exec, vcc
        ds_write2st64_b32 v24, v{CP+4*b}, v{CP+4*b+1} offset0:0 offset1:{LST}
        s_cmp_le_u32 s{72+b}, 64
        s_cbranch_scc1 {Lb}""")
        if b>=2: A(f"v_add_u32 v{CP+4*b+3}, s{46+b}, v{CP+4*b+3}")
        A(f"""v_cmp_gt_u32 vcc, s{72+b}, v29
        s_mov_b64 exec, vcc
        ds_write2st64_b32 v24, v{CP+4*b+2}, v{CP+4*b+3} offset0:1 offset1:{LST+1}
{Lb}:
        s_mov_b64 exec, -1""")
    A(f"""s_sub_u32 s46, 0, s68
    s_and_b32 s46, s46, 31
    v_cmp_gt_u32 vcc, s46, v{LANE}
    v_lshl_add_u32 v24, s68, 2, v26
    v_mov_b32 v30, {N<<8}
    v_mov_b32 v31, {hex((ECAP<<16)|16)}
    s_mov_b64 exec, vcc
    ds_write2st64_b32 v24, v30, v31 offset0:0 offset1:{LST}
    s_mov_b64 exec, -1
    s_add_u32 s69, s72, s73
    s_add_u32 s80, s69, s74
    s_lshr_b32 s69, s69, 4
    s_lshr_b32 s80, s80, 4
    s_add_u32 s68, s68, 15
    s_lshr_b32 s68, s68, 4""")
    XA=96
    def gathers(Gr, q):
        for i in range(4):
            A(f"v_or_b32 v{Gr+i}, v{Gr+i}, v{cJ16}")
            if not OPT.get('nogather'): A(f"buffer_load_dwordx4 v[{L+16*q+4*i}:{L+16*q+4*i+3}], v{Gr+i}, s[16:19], 0 offen")
    def aread(lm):
        A(f"""v_mad_u32_u16 v{EA}, v{lm}, 32, v{cG8} op_sel:[1,0,0,0]
        v_mad_u32_u16 v{OA}, v{lm}, 32, v{cG8O}
        ds_read_b64 v[{AO}:{AO+1}], v{EA}
        ds_read_b64 v[{AO+2}:{AO+3}], v{OA}""")
    A(f"""v_add_u32 v{WP}, {K2_W}, v{L16}
    v_lshrrev_b32 v{CPt}, 1, v{L16}
    v_add_u32 v{CPt}, {K2_W+CIMG}, v{CPt}
    s_lshl_b32 s45, s3, 5
    s_sub_u32 s45, s76, s45
    s_cmp_gt_i32 s45, 1024
    s_cbranch_scc1 L_k2_x3
    s_waitcnt vmcnt(0)
L_k2_x3:
    s_waitcnt vmcnt(3)""")
    if OPT.get('fine'): stamp(6,1)
    for t in range(4): A(f"ds_read_b64 v[{GB+4*t}:{GB+4*t+1}], v{CPt} offset:{t*512}")
    qtranspose(XR,EE,XA)
    BFR=32
    seq=[(mat,t,ks) for mat in range(2) for t in range(4) for ks in range(4)]
    def rd(n):
        mat,t,ks=seq[n]; b=BFR+4*(n%8)
        A(f"ds_read_b128 v[{b}:{b+3}], v{WP} offset:{n*1024}")
    PF=6
    for n in range(PF): rd(n)
    for n in range(32):
        mat,t,ks=seq[n]; b=BFR+4*(n%8); a=ACC+4*t
        if n==16:
            A(f"s_mov_b32 s45, {hex(LOG2E_NEG)}\ns_nop 6")
            for tt in range(4):
                for r in range(4): A(f"v_mul_f32 v{ACC+4*tt+r}, s45, v{ACC+4*tt+r}")
                A(f"v_cvt_pk_bf16_f32 v{GB+4*tt+2}, v{ACC+4*tt}, v{ACC+4*tt+1}\nv_cvt_pk_bf16_f32 v{GB+4*tt+3}, v{ACC+4*tt+2}, v{ACC+4*tt+3}")
        out=min(31-n,PF-1)
        A(f"s_waitcnt lgkmcnt({out})")
        A(f"v_mfma_f32_16x16x32_bf16 v[{a}:{a+3}], v[{XA+4*ks}:{XA+4*ks+3}], v[{b}:{b+3}], {'0' if ks==0 else f'v[{a}:{a+3}]'}")
        if n+PF<32: rd(n+PF)
    if OPT.get('fine'): stamp(7,1)
    A(f"""ds_read_b128 v[{EE}:{EE+3}], v{pL1}
    ds_read_b128 v[{G}:{G+3}], v{pL1} offset:64
    ds_read_b32 v{LM}, v{pLm}
    ds_read_b32 v{WP}, v{pLm} offset:64
    ds_read_b32 v{LS}, v{pLs}
    v_mov_b32 v{TID}, {K2_C1}
    v_mov_b32 v{L16}, 1
    s_lshl_b32 s45, s3, 5
    s_cmp_lt_u32 s45, s77
    s_cselect_b32 s71, 1, 0
    s_waitcnt vmcnt(0) lgkmcnt(0)""")
    def arrive(k):
        A(f"""s_mov_b64 exec, 1
        ds_add_u32 v{TID}, v{L16} offset:{4*k}
        s_mov_b64 exec, -1""")
    def check(k,tag):
        A(f"""L_k2_spin{tag}:
        ds_read_b32 v{SA}, v{TID} offset:{4*k}
        s_waitcnt lgkmcnt(0)
        v_readfirstlane_b32 s45, v{SA}
        s_cmp_eq_u32 s45, 16
        s_cbranch_scc1 L_k2_ok{tag}
        s_sleep 1
        s_branch L_k2_spin{tag}
L_k2_ok{tag}:""")
    def ensure2(tag):
        A(f"s_cmp_eq_u32 s81, -1\ns_cbranch_scc1 L_k2_iss{tag}")
        dma(2,78,79,S2,'e'+tag)
        A(f"""s_mov_b32 s81, -1
L_k2_iss{tag}:
        s_cmp_eq_u32 s82, -1
        s_cbranch_scc1 L_k2_arr{tag}
        s_mov_b32 s82, -1
        s_waitcnt vmcnt(0)""")
        arrive(1)
        A(f"L_k2_arr{tag}:")
        check(1,'c'+tag)
    arrive(2)
    gathers(EE,0)
    gathers(G,1)
    stamp(3,1)
    check(2,'w')
    if OPT.get('untilL'): spin(OPT['untilL'],'c')
    stamp(4,1)
    if STAMP: A('s_memtime s[100:101]\ns_waitcnt lgkmcnt(0)')
    if OPT.get('tl'):
        A('s_mov_b32 s90, s94')
        for i in range(1,8): A(f's_mov_b32 s{90+i}, 0')
    if OPT.get('reg'):
        A('s_mov_b32 s92, s68\ns_mov_b32 s93, s94\ns_getreg_b32 s91, hwreg(HW_REG_HW_ID)')
    dma(2,77,76,S1,'p1')
    A(f"""s_max_u32 s81, s69, 2
    s_add_u32 s82, s81, 1
    s_mov_b32 s83, 3
    s_cmp_gt_u32 s69, 3
    s_cbranch_scc1 L_k2_nb0
    s_mov_b32 s83, 0
    s_waitcnt vmcnt(0)""")
    arrive(0)
    A("s_cmp_gt_u32 s69, 1\ns_cbranch_scc1 L_k2_nb0")
    check(0,'p')
    A("s_cmp_gt_u32 s80, 1\ns_cbranch_scc1 L_k2_nb0")
    ensure2('p')
    A("L_k2_nb0:")
    def gate():
        if OPT.get('nomfma'): return
        for t in range(4): A(f"v_mfma_f32_16x16x32_bf16 v[{D+4*t}:{D+4*t+3}], v[{AO}:{AO+3}], v[{GB+4*t}:{GB+4*t+3}], 0")
    aread(LM)
    A("s_mov_b32 s70, 2\ns_waitcnt lgkmcnt(0)")
    gate()
    aread(WP)
    A("""s_cmp_eq_u32 s68, 0
    s_cbranch_scc1 L_k2_done""")
    def group(q):
        Lq=L+16*q; o=64*q
        A(f"""v_mad_u32_u16 v{SA}, v{LS}, 32, v{cS}
        ds_read_b128 v[{G}:{G+3}], v{pL1} offset:{128+o}
        ds_read_b32 v{LM}, v{pLm} offset:{128+o}
        ds_read_b64_tr_b16 v[{S}:{S+1}], v{SA}
        ds_read_b32 v{LS}, v{pLs} offset:{64+o}""")
        if q==1: A(f"v_add_u32 v{pL1}, 128, v{pL1}\nv_add_u32 v{pLm}, 128, v{pLm}\nv_add_u32 v{pLs}, 128, v{pLs}")
        def setp(tag, lv):
            p3,p2,p1=[int(x) for x in OPT.get('pth','11,7,4').split(',')]
            A(f"""s_sub_u32 s45, s68, s70
            s_cmp_ge_i32 s45, {p3-2}
            s_cbranch_scc1 L_k2_p3{tag}
            s_cmp_ge_i32 s45, {p2-2}
            s_cbranch_scc1 L_k2_p2{tag}
            s_cmp_ge_i32 s45, {p1-2}
            s_cbranch_scc1 L_k2_p1{tag}
            s_setprio {lv[3]}
            s_branch L_k2_pd{tag}
L_k2_p3{tag}:
            s_setprio {lv[0]}
            s_branch L_k2_pd{tag}
L_k2_p2{tag}:
            s_setprio {lv[1]}
            s_branch L_k2_pd{tag}
L_k2_p1{tag}:
            s_setprio {lv[2]}
L_k2_pd{tag}:""")
        YL=OPT.get('yield')
        if q==0 and not YL: setp('a',[int(x) for x in OPT.get('plv','2,1,1,0').split(',')])
        if not OPT.get('nocomp'):
            for t in range(4):
                for r in range(4): A(f"v_exp_f32 v{EE+4*r+t}, v{D+4*t+r}")
        if OPT.get('tl') and q==0: A("s_memrealtime s[88:89]")
        A("s_waitcnt lgkmcnt(0)")
        if OPT.get('tl') and q==0: A("s_lshr_b32 s45, s70, 1\ns_min_u32 s45, s45, 7\ns_mov_b32 m0, s45\ns_nop 0\ns_movreld_b32 s90, s88")
        gate()
        A(f"""s_cmp_lg_u32 s70, s69
        s_cbranch_scc1 L_k2_nb_{q}""")
        check(0,q)
        A(f"""L_k2_nb_{q}:
        s_cmp_lg_u32 s70, s80
        s_cbranch_scc1 L_k2_nc_{q}""")
        ensure2(str(q))
        A(f"L_k2_nc_{q}:")
        aread(LM)
        A(f"""s_add_u32 s45, s71, 2
        s_cmp_lt_u32 s70, s45
        s_cbranch_scc1 L_k2_w7_{q}
        s_waitcnt vmcnt(4)
L_k2_w7_{q}:
        s_cmp_le_u32 s70, s68
        s_cbranch_scc1 L_k2_w0_{q}
        s_waitcnt vmcnt(0)
L_k2_w0_{q}:
        s_waitcnt vmcnt(5)""")
        if q==1:
            A("s_cmp_lg_u32 s70, s83\ns_cbranch_scc1 L_k2_noarr")
            arrive(0)
            A("L_k2_noarr:")
        A(f"s_cmp_lg_u32 s70, s82\ns_cbranch_scc1 L_k2_noa2_{q}\ns_mov_b32 s82, -1")
        arrive(1)
        A(f"L_k2_noa2_{q}:")
        if not OPT.get('nocomp'):
            order=[(r,t) for tt in (0,2) for r in range(4) for t in (tt,tt+1)]
            fm=lambda r,t: A(f"v_fma_mix_f32 v{EE+4*r+t}, v{Lq+4*r+t}, v{EE+4*r+t}, 1.0 op_sel_hi:[1,0,0]")
            rc=lambda r,t: A(f"v_rcp_f32 v{EE+4*r+t}, v{EE+4*r+t}")
            lag=int(OPT.get('lag','2'))
            for i in range(16+lag):
                if i<16: fm(*order[i])
                if i>=lag: rc(*order[i-lag])
            if YL: A("s_setprio 0")
            if OPT.get('nopk'):
                for r,t in order: A(f"v_mul_f32 v{EE+4*r+t}, v{EE+4*r+t}, v{Lq+4*r+t}")
            else:
              for t in (0,2):
                for r in range(4): A(f"v_pk_mul_f32 v[{EE+4*r+t}:{EE+4*r+t+1}], v[{EE+4*r+t}:{EE+4*r+t+1}], v[{Lq+4*r+t}:{Lq+4*r+t+1}]")
            if YL: setp(f'y{q}',[3,2,1,1])
            for t,p in [(0,0),(2,0),(1,0),(3,0),(0,1),(1,1),(2,1),(3,1)]:
                A(f"v_cvt_pk_bf16_f32 v{EE+2*t+p}, v{EE+8*p+t}, v{EE+8*p+4+t}")
        A("s_nop 1")
        for t in range(0 if OPT.get('nomfma') else 4): A(f"v_mfma_f32_16x16x16_bf16 v[{ACC+4*t}:{ACC+4*t+3}], v[{S}:{S+1}], v[{EE+2*t}:{EE+2*t+1}], v[{ACC+4*t}:{ACC+4*t+3}]")
        A(f"s_cmp_lg_u32 s70, s81\ns_cbranch_scc1 L_k2_ni_{q}\ns_mov_b32 s81, -1")
        dma(2,78,79,S2,f'i{q}')
        A(f"""L_k2_ni_{q}:
        s_cmp_ge_u32 s70, s68
        s_cbranch_scc1 L_k2_ng_{q}""")
        gathers(G,q)
        A(f"""L_k2_ng_{q}:
        s_cmp_gt_u32 s70, s68
        s_cbranch_scc1 L_k2_done
        s_add_u32 s70, s70, 1""")
    A(".p2align 6\nL_k2_loop:")
    group(0); group(1)
    A("s_branch L_k2_loop")
    A("L_k2_done:\ns_waitcnt vmcnt(0)")
    if not OPT.get('tl') and not OPT.get('fine'): stamp(5,1)
    if STAMP and not OPT.get('tl') and not OPT.get('fine'): A('s_memtime s[88:89]\ns_waitcnt lgkmcnt(0)\ns_sub_u32 s97, s88, s100')
    A(f"""v_lshrrev_b32 v0, 4, v{LANE}
    v_lshlrev_b32 v0, 2, v0
    v_add_u32 v1, s44, v0
    v_lshlrev_b32 v1, 8, v1
    v_lshrrev_b32 v2, 1, v{cJ16}
    s_lshl_b32 s45, s40, 7
    v_add3_u32 v1, v1, v2, s45
    v_mov_b32 v3, {hex(LOG2E_NEG)}
    v_mov_b32 v4, 0x80000000""")
    for r in range(4):
        for t in range(4): A(f"v_mul_f32 v{8+t}, v3, v{ACC+4*t+r}")
        for t in range(4): A(f"v_exp_f32 v{8+t}, v{8+t}")
        A(f"v_add_u32 v5, {r}, v0\nv_cmp_gt_u32 vcc, s43, v5")
        for t in range(4): A(f"v_add_f32 v{8+t}, 1.0, v{8+t}")
        for t in range(4): A(f"v_rcp_f32 v{8+t}, v{8+t}")
        A(f"v_cndmask_b32 v{16+r}, v4, v1, vcc")
        for t in range(4): A(f"v_mul_f32 v{8+t}, v{8+t}, v{ACC+4*t+r}")
        A(f"""v_cvt_pk_bf16_f32 v{20+2*r}, v8, v9
        v_cvt_pk_bf16_f32 v{21+2*r}, v10, v11
        buffer_store_dwordx2 v[{20+2*r}:{21+2*r}], v{16+r}, s[28:31], 0 offen offset:{r*256} {OST}""")
    if STAMP:
        A("s_waitcnt vmcnt(0)")
        if not OPT.get('tl') and not OPT.get('fine'): stamp(6,1)
        stamp_flush(1)
    if OPT.get('until'): spin(OPT['until'],'b')
    A("s_endpgm")
    fallback()
    A("L_k2_end:\ns_endpgm")

def fallback():
    LANE=121; TID=123
    A(f"""L_k2_fallback:
    s_mov_b64 exec, -1
    s_load_dwordx2 s[50:51], s[0:1], 8
    s_load_dwordx4 s[52:55], s[0:1], 16
    s_load_dwordx4 s[56:59], s[0:1], 32
    s_load_dwordx2 s[60:61], s[0:1], 48
    s_waitcnt vmcnt(0) lgkmcnt(0)
    s_barrier""")
    srd(8,50,51,0,E*32)
    srd(12,52,53,0,E*4)
    srd(16,54,55,0,E*4)
    srd(24,56,57,0,128*256)
    srd(32,58,59,0,128*256)
    srd(36,60,61,0,272*256)
    A(f"""v_mov_b32 v0, 0
    v_mov_b32 v1, 0
    v_mov_b32 v2, 0
    v_mov_b32 v3, 0
    v_lshlrev_b32 v4, 4, v{TID}
    ds_write_b128 v4, v[0:3]
    ds_write_b128 v4, v[0:3] offset:16384
    ds_write_b128 v4, v[0:3] offset:32768
    ds_write_b128 v4, v[0:3] offset:49152
    s_lshl_b32 s45, s40, 7
    v_lshl_add_u32 v5, v{LANE}, 1, s45
    v_lshlrev_b32 v6, 2, v{LANE}
    s_mul_i32 s46, s41, {BS}
    s_lshl_b32 s47, s3, 6
    s_waitcnt lgkmcnt(0)
    s_barrier
L_fb_chunk:
    s_cmp_ge_u32 s47, {E}
    s_cbranch_scc1 L_fb_fin
    s_lshl_b32 s48, s47, 2
    buffer_load_dword v7, v6, s[16:19], s48 offen
    buffer_load_dword v8, v6, s[12:15], s48 offen
    s_waitcnt vmcnt(0)
    v_subrev_u32 v9, s46, v7
    v_cmp_gt_u32 s[62:63], v10, v9
    """.replace("v_cmp_gt_u32 s[62:63], v10, v9",f"v_mov_b32 v10, {BS}\nv_cmp_gt_u32 s[62:63], v10, v9")+f"""
L_fb_edge:
    s_cmp_eq_u64 s[62:63], 0
    s_cbranch_scc1 L_fb_next
    s_ff1_i32_b64 s49, s[62:63]
    s_bitset0_b64 s[62:63], s49
    v_readlane_b32 s64, v7, s49
    v_readlane_b32 s65, v8, s49
    s_add_u32 s66, s47, s49
    s_lshl_b32 s67, s64, 8
    s_lshl_b32 s68, s65, 8
    s_lshl_b32 s66, s66, 5
    s_nop 2
    buffer_load_dword v11, v6, s[20:23], s67 offen
    buffer_load_dword v12, v6, s[20:23], s68 offen
    v_and_b32 v14, 28, v6
    buffer_load_dword v13, v14, s[8:11], s66 offen
    v_mov_b32 v15, 0
    v_mov_b32 v16, 0
    s_mov_b32 s69, 0
    s_waitcnt vmcnt(0)
L_fb_k:
    s_lshl_b32 s70, s69, 9
    s_add_u32 s71, s70, {128*256}
    buffer_load_ushort v17, v5, s[36:39], s70 offen
    buffer_load_ushort v18, v5, s[36:39], s70 offen offset:256
    buffer_load_ushort v19, v5, s[36:39], s71 offen
    buffer_load_ushort v20, v5, s[36:39], s71 offen offset:256
    buffer_load_ushort v21, v5, s[32:35], s70 offen
    buffer_load_ushort v22, v5, s[32:35], s70 offen offset:256
    v_readlane_b32 s72, v11, s69
    v_readlane_b32 s73, v12, s69
    s_lshl_b32 s74, s72, 16
    s_and_b32 s72, s72, 0xffff0000
    s_lshl_b32 s75, s73, 16
    s_and_b32 s73, s73, 0xffff0000
    s_waitcnt vmcnt(0)""")
    for i in range(17,23): A(f"v_lshlrev_b32 v{i}, 16, v{i}")
    A(f"""v_fmac_f32 v15, s74, v17
    v_fmac_f32 v15, s72, v18
    v_fmac_f32 v15, s75, v19
    v_fmac_f32 v15, s73, v20
    v_fmac_f32 v16, s75, v21
    v_fmac_f32 v16, s73, v22
    s_add_u32 s69, s69, 1
    s_cmp_lt_u32 s69, 64
    s_cbranch_scc1 L_fb_k
    s_mov_b32 s69, 0
L_fb_ke:
    s_lshl_b32 s70, s69, 9
    s_add_u32 s70, s70, {256*256}
    buffer_load_ushort v17, v5, s[36:39], s70 offen
    buffer_load_ushort v18, v5, s[36:39], s70 offen offset:256
    v_readlane_b32 s72, v13, s69
    s_lshl_b32 s74, s72, 16
    s_and_b32 s72, s72, 0xffff0000
    s_waitcnt vmcnt(0)
    v_lshlrev_b32 v17, 16, v17
    v_lshlrev_b32 v18, 16, v18
    v_fmac_f32 v15, s74, v17
    v_fmac_f32 v15, s72, v18
    s_add_u32 s69, s69, 1
    s_cmp_lt_u32 s69, 8
    s_cbranch_scc1 L_fb_ke
    v_mul_f32 v15, {hex(LOG2E_NEG)}, v15
    v_exp_f32 v15, v15
    s_sub_u32 s64, s64, s46
    s_lshl_b32 s64, s64, 8
    v_add_f32 v15, 1.0, v15
    v_rcp_f32 v15, v15
    v_add_u32 v17, s64, v6
    v_mul_f32 v15, v15, v16
    ds_add_f32 v17, v15
    s_branch L_fb_edge
L_fb_next:
    s_add_u32 s47, s47, 1024
    s_branch L_fb_chunk
L_fb_fin:
    s_waitcnt lgkmcnt(0)
    s_barrier
    s_mov_b32 s47, s3
L_fb_node:
    s_cmp_ge_u32 s47, {BS}
    s_cbranch_scc1 L_k2_end
    s_add_u32 s64, s46, s47
    s_lshl_b32 s67, s64, 8
    buffer_load_dword v11, v6, s[20:23], s67 offen
    s_lshl_b32 s48, s47, 8
    v_add_u32 v17, s48, v6
    ds_read_b32 v15, v17
    s_mov_b32 s69, 0
    s_waitcnt vmcnt(0) lgkmcnt(0)
L_fb_ku:
    s_lshl_b32 s70, s69, 9
    buffer_load_ushort v17, v5, s[24:27], s70 offen
    buffer_load_ushort v18, v5, s[24:27], s70 offen offset:256
    v_readlane_b32 s72, v11, s69
    s_lshl_b32 s74, s72, 16
    s_and_b32 s72, s72, 0xffff0000
    s_waitcnt vmcnt(0)
    v_lshlrev_b32 v17, 16, v17
    v_lshlrev_b32 v18, 16, v18
    v_fmac_f32 v15, s74, v17
    v_fmac_f32 v15, s72, v18
    s_add_u32 s69, s69, 1
    s_cmp_lt_u32 s69, 64
    s_cbranch_scc1 L_fb_ku
    v_mul_f32 v16, {hex(LOG2E_NEG)}, v15
    v_exp_f32 v16, v16
    s_nop 0
    v_add_f32 v16, 1.0, v16
    v_rcp_f32 v16, v16
    s_nop 0
    v_mul_f32 v15, v15, v16
    v_cvt_pk_bf16_f32 v15, v15, v15
    buffer_store_short v15, v5, s[28:31], s67 offen
    s_add_u32 s47, s47, 16
    s_branch L_fb_node""")

def desc(name, vg, sg=102):
    return f""".amdhsa_kernel {name}
  .amdhsa_next_free_vgpr {vg}
  .amdhsa_next_free_sgpr {sg}
  .amdhsa_accum_offset {vg}
  .amdhsa_group_segment_fixed_size 0
  .amdhsa_kernarg_size 80
  .amdhsa_user_sgpr_count 2
  .amdhsa_user_sgpr_kernarg_segment_ptr 1
  .amdhsa_system_sgpr_workgroup_id_x 1
.end_amdhsa_kernel
"""
k1(); k2()
errs=check(A.lines)
for e in errs: print(e, file=sys.stderr)
hdr=open('gather_scatter__edge_featured_mpnn_egc__graph.s.ref').read().split('; Override launch')[0]
xl=f"; @launch kernel=nop_kernel grid=({OPT.get('nopg',256)},1,1) block=({OPT.get('nopb',64)},1,1) lds={OPT.get('nopl',0)}\n"
pre=xl if OPT.get('nop')=='pre' else ''; post=xl if OPT.get('nop')=='post' else ''
if OPT.get('nop'):
    A(".p2align 8\nnop_kernel:")
    if OPT.get('nopt0'):
        A(f"""s_memrealtime s[6:7]
        s_load_dwordx2 s[4:5], s[0:1], 72
        s_cmp_lg_u32 s2, 0
        s_cbranch_scc1 L_nop_end
        s_waitcnt lgkmcnt(0)
        s_add_u32 s8, s4, {MISC_OFF}
        s_addc_u32 s9, s5, 0
        s_mov_b32 s10, {MISC_SZ}
        s_mov_b32 s11, 0x20000
        v_mov_b32 v1, s6
        v_mov_b32 v2, {FLAGO+2048}
        buffer_store_dword v1, v2, s[8:11], 0 offen sc0 sc1
L_nop_end:""")
    A("s_endpgm")
out=hdr+pre+f"""; Two launches: prep (edge partition + node tables), main (gated gather / aggregate / silu)
; @launch kernel=prep_kernel grid=(256,1,1) block=(1024,1,1) lds={K1_LDS}
; @launch kernel=main_kernel grid=(256,1,1) block=(1024,1,1) lds={K2_LDS}
{post}.amdgcn_target "amdgcn-amd-amdhsa--gfx950"
.text
.globl prep_kernel
.type prep_kernel,@function
.globl main_kernel
.type main_kernel,@function
"""+A.text()+""".section .rodata,"a"
.p2align 6
"""+desc("prep_kernel",128)+".p2align 6\n"+desc("main_kernel",128)+((".p2align 6\n"+desc("nop_kernel",8,16)) if OPT.get('nop') else '')
open(sys.argv[1],'w').write(out)
print("written",sys.argv[1],len(A.lines),"lines; hazards:",len(errs))
```

```python
import sys
from dsl import *
OPT=dict(a.split('=') if '=' in a else (a,'1') for a in sys.argv[2:])
STAMP=int(OPT.get('stamp',0))
def hint(k,d=''):
    v=OPT.get(k,d); return '' if v=='none' else v.replace('+',' ')
NTI=hint('nti'); NTE=hint('nte'); NTX=hint('ntx'); NT=hint('nt2'); OST=hint('ost','sc0+sc1')
ST=OPT.get('st','sc0 sc1')
if ST=='none': ST=''
ST=ST.replace('+',' ')

MST=hint('mst','none')
N=25000; E=400000; BS=196; CH=3136
NROW=25088; HS=NROW*256
WSB=int(OPT.get('wsb','0'))<<20
TAB_OFF=WSB; REC_OFF=WSB+0x0D00000; EP_OFF=WSB+0x1100000; MISC_OFF=WSB+0x3100000
WH=0x9000; CIMG=0x8000; FLAGO=0x12000; MISC_SZ=0x13000
LOG2E=0x3fb8aa3b
STAMP_OFF=0x3200000
LOG2E_NEG=0xbfb8aa3b
A=Asm()

def srd(s, base_lo, base_hi, off, size):
    if off:
        A(f"s_add_u32 s{s}, s{base_lo}, {hex(off)}\ns_addc_u32 s{s+1}, s{base_hi}, 0")
    else:
        A(f"s_mov_b32 s{s}, s{base_lo}\ns_mov_b32 s{s+1}, s{base_hi}")
    A(f"s_mov_b32 s{s+2}, {hex(size)}\ns_mov_b32 s{s+3}, 0x20000")

def stamp(idx, kern):
    if not STAMP: return
    A(f"""s_memrealtime s[88:89]
    s_waitcnt lgkmcnt(0)
    s_mov_b32 s{90+idx}, s88""")
def stamp_init(kern, wave_s, wsl, wsh):
    if not STAMP: return
    for i in range(8): A(f"s_mov_b32 s{90+i}, 0")
    A(f"s_add_u32 s98, s{wsl}, {hex(STAMP_OFF+kern*0x80000)}\ns_addc_u32 s99, s{wsh}, 0")
def stamp_flush(kern=0):
    if not STAMP: return
    if STAMP==2:
        sel=[0,1,2,5] if kern==0 else [0,2,3,6]
        if kern==0: A("s_and_b32 s4, s2, 15\ns_cmp_lg_u32 s4, 0\ns_cbranch_scc1 L_sf_0_3")
        A(f"""s_load_dwordx2 s[4:5], s[0:1], 64
        s_waitcnt lgkmcnt(0)
        s_add_u32 s4, s4, {512*(1-kern)}
        s_addc_u32 s5, s5, 0
        s_cmp_lg_u32 s3, {12 if kern==0 else 15}
        s_cbranch_scc1 L_sf_{kern}_3
        s_mov_b32 s6, 256
        s_mov_b32 s7, 0x20000
        s_mov_b64 exec, 1
        v_mov_b32 v8, 0""")
        for n,i in enumerate(sel):
            A(f"""v_mov_b32 v0, s{90+i}
            v_not_b32 v1, v0
            s_cmp_eq_u32 s{90+i}, 0
            s_cbranch_scc1 L_sf_{kern}_{n}
            buffer_atomic_umax v1, v8, s[4:7], 0 offen offset:{kern*32+n*8}
            buffer_atomic_umax v0, v8, s[4:7], 0 offen offset:{kern*32+n*8+4}
L_sf_{kern}_{n}:""")
        return
    A("""s_mov_b32 s4, s98
    s_mov_b32 s5, s99
    s_mov_b32 s6, 0x80000
    s_mov_b32 s7, 0x20000
    s_lshl_b32 s8, s2, 4
    s_add_u32 s8, s8, s3
    s_lshl_b32 s8, s8, 6
    s_mov_b64 exec, 1
    v_mov_b32 v8, 0""")
    for i in range(8): A(f"v_mov_b32 v{i}, s{90+i}")
    A("buffer_store_dwordx4 v[0:3], v8, s[4:7], s8 offen\nbuffer_store_dwordx4 v[4:7], v8, s[4:7], s8 offen offset:16")

def qtranspose(X,P,Y):
    for st,(src,dst,pm,m0) in enumerate(((X,P,"[1,0,3,2]",0x55555555),(P,Y,"[2,3,0,1]",0x33333333))):
        bit=1<<st
        for half in range(2):
            m=m0 if half==0 else (~m0)&0xffffffff
            A(f"s_mov_b32 vcc_lo, {hex(m)}\ns_mov_b32 vcc_hi, {hex(m)}")
            for j in range(4):
                if ((j>>st)&1)!=half: continue
                for d in range(4):
                    A(f"v_cndmask_b32_dpp v{dst+4*j+d}, v{src+4*(j^bit)+d}, v{src+4*j+d}, vcc quad_perm:{pm} row_mask:0xf bank_mask:0xf")

K1_E=0; K1_REC=100352; K1_PERM=K1_REC+32768; K1_HIST=K1_PERM+16384; K1_OVF=K1_HIST+1024; K1_LDS=K1_OVF+256
WROW=544
def woff(k): return k*WROW+(k>>5)*128

def k1():
    A(".p2align 8\nprep_kernel:")
    A("""s_cmp_ge_u32 s2, 256
    s_cbranch_scc1 L_k1_end
    s_load_dwordx4 s[4:7], s[0:1], 0
    s_load_dwordx4 s[8:11], s[0:1], 16
    s_load_dwordx4 s[12:15], s[0:1], 32
    s_load_dwordx2 s[16:17], s[0:1], 48
    s_load_dwordx2 s[18:19], s[0:1], 72
    v_lshrrev_b32 v1, 6, v0
    v_and_b32 v2, 63, v0
    v_readfirstlane_b32 s3, v1
    v_lshlrev_b32 v3, 4, v2
    v_lshlrev_b32 v4, 4, v0
    s_waitcnt lgkmcnt(0)""")
    if OPT.get('cpf','1')!='0':
        A(f"""s_cmp_ge_u32 s3, 13
        s_cbranch_scc1 L_k1_nocpf
        s_getpc_b64 s[20:21]
L_k1_pc:
        s_sub_u32 s20, s20, L_k1_pc-prep_kernel
        s_subb_u32 s21, s21, 0
        global_load_dwordx4 v[120:123], v4, s[20:21]
L_k1_nocpf:""")
    stamp_init(0,3,18,19)
    stamp(0,0)
    srd(44,18,19,MISC_OFF,MISC_SZ)
    if (OPT.get('until') or OPT.get('until0') or OPT.get('untilL')) and not OPT.get('nopt0'):
        A(f"""s_memrealtime s[60:61]
        s_waitcnt lgkmcnt(0)
        s_or_b32 s62, s2, s3
        s_cmp_lg_u32 s62, 0
        s_cbranch_scc1 L_k1_not0
        v_mov_b32 v100, s60
        v_mov_b32 v101, {FLAGO+2048}
        buffer_store_dword v100, v101, s[44:47], 0 offen sc0 sc1
L_k1_not0:""")
    A("""s_cmp_ge_u32 s2, 128
    s_cbranch_scc1 L_k1_gemm""")
    srd(20,10,11,0,E*4)
    srd(24,8,9,0,E*4)
    srd(28,6,7,0,E*32)
    srd(32,18,19,REC_OFF,0x400000)
    srd(36,18,19,EP_OFF,0x2000000)
    D=8; S=12
    A(f"""s_mul_i32 s50, s2, {CH}
    s_sub_u32 s51, {E}, s50
    s_lshr_b32 s51, s51, 2
    s_min_u32 s51, s51, {CH//4}
    s_lshl_b32 s52, s50, 2
    v_cmp_gt_u32 vcc, s51, v0
    s_mov_b64 s[54:55], vcc
    s_mov_b64 exec, vcc
    s_cbranch_execz L_k1_noidx
    buffer_load_dwordx4 v[{D}:{D+3}], v4, s[20:23], s52 offen {NTI}
    buffer_load_dwordx4 v[{S}:{S+3}], v4, s[24:27], s52 offen {NTI}
L_k1_noidx:
    s_mov_b64 exec, -1
    s_lshl_b32 s53, s3, 10
    s_lshl_b32 s56, s50, 5
    s_add_u32 s56, s56, s53
    v_mov_b32 v16, -1
    v_mov_b32 v17, -1
    v_mov_b32 v18, -1
    v_mov_b32 v19, -1
    v_mov_b32 v20, 0
    v_add_u32 v5, {K1_REC}, v4
    v_lshlrev_b32 v6, 2, v0
    v_add_u32 v6, {K1_HIST}, v6
    ds_write_b128 v5, v[16:19]
    ds_write_b128 v5, v[16:19] offset:16384
    v_cmp_gt_u32 vcc, 0x140, v0
    s_mov_b64 exec, vcc
    ds_write_b32 v6, v20
    s_mov_b64 exec, -1
    v_mov_b32 v20, 1
    v_mov_b32 v22, 21400
    v_mov_b32 v23, -196
    v_mov_b32 v24, 5372
    v_mov_b32 v25, 208
    v_mov_b32 v26, 669
    s_waitcnt lgkmcnt(0)
    s_barrier""")
    for i in range(7):
        if i==6: A("s_cmp_ge_u32 s3, 2\ns_cbranch_scc1 L_k1_dmadone")
        A(f"""s_mov_b32 m0, s53
        s_add_u32 s53, s53, 16384
        buffer_load_dwordx4 v3, s[28:31], s56 offen {NTE} lds
        s_add_u32 s56, s56, 16384""")
    A("L_k1_dmadone:\ns_waitcnt vmcnt(6)")
    stamp(1,0)
    A("""s_mov_b64 exec, s[54:55]
    s_cbranch_execz L_k1_b1""")
    B,RC,HA,SH,OLD,INC,T=28,32,36,40,44,48,60
    for j in range(4):
        A(f"""v_mul_u32_u24 v{T}, v{D+j}, v22
        v_mul_u32_u24 v{T+1}, v{S+j}, v26
        v_lshrrev_b32 v{B+j}, 22, v{T}
        v_lshrrev_b32 v{T+1}, 22, v{T+1}
        v_lshlrev_b32 v{HA+j}, 2, v{B+j}
        v_sub_u32_e64 v{SH+j}, v{T+1}, 1 clamp
        v_add_u32 v{HA+j}, {K1_HIST}, v{HA+j}
        v_lshlrev_b32 v{SH+j}, 3, v{SH+j}
        v_mad_i32_i24 v{T}, v{B+j}, v23, v{D+j}
        v_lshlrev_b32 v{INC+j}, v{SH+j}, v20
        v_mul_u32_u24 v{T+2}, v{T}, v24
        ds_add_rtn_u32 v{OLD+j}, v{HA+j}, v{INC+j}
        v_lshl_or_b32 v{T}, v{S+j}, 8, v{T}
        v_lshrrev_b32 v{T+2}, 16, v{T+2}
        v_mad_u32_u24 v{T+3}, v{T+2}, 52, v25
        v_mad_i32_i24 v{T}, v{T+2}, -12, v{T}
        v_lshrrev_b32 v{T+3}, 8, v{T+3}
        v_lshl_add_u32 v{T+2}, v{T+2}, 2, v{T+1}
        v_sub_u32 v{T}, v{T}, v{T+3}
        v_lshl_or_b32 v{RC+j}, v{T+2}, 24, v{T}""")
    A("""L_k1_b1:
    s_mov_b64 exec, -1
    s_waitcnt lgkmcnt(0)
    s_barrier""")
    stamp(2,0)
    FIN=8
    A(f"""s_mov_b64 s[70:71], 0
    v_cmp_gt_u32 vcc, 128, v0
    s_mov_b64 exec, vcc
    s_cbranch_execz L_k1_nohdr
    ds_read_b32 v{T}, v6
    v_lshlrev_b32 v{T+1}, 8, v0
    v_add_u32 v{T+1}, {K1_REC+252}, v{T+1}
    s_waitcnt lgkmcnt(0)
    v_and_b32 v{T}, 0x3f3f3f, v{T}
    ds_write_b32 v{T+1}, v{T}
L_k1_nohdr:
    s_mov_b64 exec, s[54:55]
    s_cbranch_execz L_k1_b2""")
    for j in range(4): A(f"ds_read_b32 v{FIN+j}, v{HA+j}")
    A(f"v_lshlrev_b32 v{T+8}, 2, v0")
    for j in range(4):
        A(f"v_bfe_u32 v{OLD+j}, v{OLD+j}, v{SH+j}, 8\nv_add_u32 v{INC+j}, -1, v{INC+j}")
    A("s_waitcnt lgkmcnt(0)")
    for j in range(4):
        A(f"""v_and_b32 v{T}, v{FIN+j}, v{INC+j}
        v_sad_u8 v{T}, v{T}, 0, v{OLD+j}
        v_cmp_lt_u32 vcc, 62, v{T}
        v_min_u32 v{T}, 62, v{T}
        s_or_b64 s[70:71], s[70:71], vcc
        v_lshl_add_u32 v{T+1}, v{B+j}, 6, v{T}
        v_and_b32 v{T+2}, 15, v{T}
        v_lshrrev_b32 v{T+3}, 4, v{T}
        v_lshlrev_b32 v{T+1}, 1, v{T+1}
        v_lshl_add_u32 v{T+2}, v{T+2}, 2, v{T+3}
        v_add_u32 v{T+1}, {K1_PERM}, v{T+1}
        v_lshl_add_u32 v{T+2}, v{B+j}, 6, v{T+2}
        v_add_u32 v{T+9}, {j}, v{T+8}
        v_lshlrev_b32 v{T+2}, 2, v{T+2}
        ds_write_b16 v{T+1}, v{T+9}
        v_add_u32 v{T+2}, {K1_REC}, v{T+2}
        ds_write_b32 v{T+2}, v{RC+j}""")
    A(f"""s_mov_b64 exec, s[70:71]
    v_mov_b32 v{T}, {K1_OVF}
    ds_write_b32 v{T}, v20
L_k1_b2:
    s_mov_b64 exec, -1
    s_waitcnt lgkmcnt(0)
    s_barrier""")
    stamp(3,0)
    EI=8; EV=64
    A(f"""ds_read_b128 v[16:19], v5
    ds_read_b128 v[20:23], v5 offset:16384
    v_and_b32 v24, 7, v2
    s_lshl_b32 s57, s3, 5
    v_lshl_add_u32 v24, v24, 2, s57
    v_add_u32 v24, {K1_HIST}, v24
    ds_read_b32 v26, v24
    v_lshrrev_b32 v28, 1, v2
    s_lshl_b32 s57, s3, 10
    s_add_u32 s57, s57, {K1_PERM}
    v_lshl_add_u32 v29, v28, 1, s57""")
    for i in range(8): A(f"ds_read_u16 v{EI+i}, v29 offset:{i*128}")
    A(f"""v_lshrrev_b32 v30, 4, v0
    v_and_b32 v31, 15, v0
    v_lshlrev_b32 v30, 15, v30
    v_lshl_or_b32 v30, v31, 4, v30
    s_lshl_b32 s58, s2, 8
    s_add_u32 s59, s58, 0x200000
    v_and_b32 v31, 1, v2
    v_lshlrev_b32 v31, 4, v31
    s_waitcnt lgkmcnt(0)
    buffer_store_dwordx4 v[16:19], v30, s[32:35], s58 offen {ST}
    buffer_store_dwordx4 v[20:23], v30, s[32:35], s59 offen {ST}
    v_sad_u8 v26, v26, 0, 3
    v_and_b32 v26, -4, v26
    v_min_u32 v26, 64, v26
    s_waitcnt vmcnt(2)
    s_barrier""")
    stamp(6,0)
    for i in range(8):
        A(f"v_lshl_add_u32 v{EI+i}, v{EI+i}, 5, v31\nds_read_b128 v[{EV+4*i}:{EV+4*i+3}], v{EI+i}\nv_readlane_b32 s{60+i}, v26, {i}")
    A(f"""s_lshl_b32 s57, s3, 21
    s_lshl_b32 s58, s2, 11
    s_add_u32 s57, s57, s58""")
    for i in range(8):
        A(f"""v_cmp_gt_u32 vcc, s{60+i}, v28
        s_mov_b64 exec, vcc
        s_waitcnt lgkmcnt({7-i})
        buffer_store_dwordx4 v[{EV+4*i}:{EV+4*i+3}], v3, s[36:39], s57 offen {ST}
        s_mov_b64 exec, -1
        s_add_u32 s57, s57, 0x40000""")
    A(f"s_sub_u32 s57, s57, 0x200000\nv_add_u32 v32, 32, v28")
    for i in range(8):
        L=A.label("k1long")
        A(f"""s_cmp_le_u32 s{60+i}, 32
        s_cbranch_scc1 {L}
        ds_read_u16 v33, v29 offset:{i*128+64}
        s_waitcnt lgkmcnt(0)
        v_lshl_add_u32 v33, v33, 5, v31
        ds_read_b128 v[36:39], v33
        v_cmp_gt_u32 vcc, s{60+i}, v32
        s_mov_b64 exec, vcc
        s_waitcnt lgkmcnt(0)
        buffer_store_dwordx4 v[36:39], v3, s[36:39], s57 offen offset:1024 {ST}
        s_mov_b64 exec, -1
        s_nop 0
{L}:
        s_add_u32 s57, s57, 0x40000""")
    A("s_branch L_k1_flag")
    A("L_k1_gemm:")
    srd(20,4,5,0,N*256)
    srd(24,16,17,0,272*256)
    srd(28,14,15,0,128*256)
    srd(32,12,13,0,128*256)
    srd(36,18,19,TAB_OFF,HS)
    srd(40,18,19,TAB_OFF+HS,HS)
    XR=8; WL=24; XA=40; ACC=56; BF=8
    A(f"""s_sub_u32 s50, s2, 128
    s_lshr_b32 s51, s50, 3
    s_lshl_b32 s52, s3, 4
    s_add_u32 s51, s51, s52
    s_cmp_lt_u32 s51, 196
    s_cselect_b32 s52, 0, 0x10000
    s_add_u32 s51, s51, s52
    s_and_b32 s52, s2, 3
    s_mul_i32 s52, s52, 392
    s_add_u32 s51, s51, s52
    s_bfe_u32 s52, s2, 0x10002
    s_mul_i32 s52, s52, 196
    s_add_u32 s51, s51, s52
    v_mov_b32 v6, 0
    v_mov_b32 v7, {K1_OVF}
    ds_write_b32 v7, v6
    s_cmp_ge_u32 s51, 1568
    s_cbranch_scc1 L_k1_nox
    s_lshl_b32 s52, s51, 12
    v_bfe_u32 v5, v2, 2, 2
    v_and_b32 v6, 3, v2
    v_lshlrev_b32 v5, 10, v5
    v_lshl_or_b32 v5, v6, 4, v5
    v_lshrrev_b32 v6, 4, v2
    v_lshl_or_b32 v5, v6, 6, v5""")
    for ks in range(4): A(f"buffer_load_dwordx4 v[{XR+4*ks}:{XR+4*ks+3}], v5, s[20:23], s52 offen offset:{ks*256} {NTX}")
    A(f"""L_k1_nox:
    s_mov_b32 s53, {128*256}
    s_mov_b32 s54, {128*256+16384}
    s_mov_b32 s55, 16384
    buffer_load_dwordx4 v[{WL}:{WL+3}], v4, s[24:27], s53 offen
    buffer_load_dwordx4 v[{WL+4}:{WL+7}], v4, s[24:27], s54 offen
    buffer_load_dwordx4 v[{WL+8}:{WL+11}], v4, s[28:31], 0 offen
    buffer_load_dwordx4 v[{WL+12}:{WL+15}], v4, s[28:31], s55 offen
    v_lshrrev_b32 v5, 4, v0
    v_lshrrev_b32 v6, 9, v0
    v_mul_u32_u24 v5, {WROW}, v5
    v_lshl_add_u32 v5, v6, 7, v5
    v_bfe_u32 v6, v0, 3, 1
    v_lshl_add_u32 v5, v6, 7, v5
    v_and_b32 v6, 7, v0
    v_lshl_add_u32 v5, v6, 2, v5
    s_mov_b32 s56, 0x05040100
    s_mov_b32 s57, 0x07060302""")
    A(f"""s_cmp_lg_u32 s3, 15
    s_cbranch_scc1 L_k1_noimg
    s_cmp_ge_u32 s50, 72
    s_cbranch_scc1 L_k1_noimg
    v_and_b32 v6, 15, v2
    v_lshrrev_b32 v7, 4, v2
    v_lshlrev_b32 v6, 3, v6
    s_cmp_ge_u32 s50, 64
    s_cbranch_scc1 L_k1_cimg
    s_bfe_u32 s58, s50, 0x10005
    s_bfe_u32 s59, s50, 0x20002
    s_and_b32 s60, s50, 3
    s_lshl_b32 s58, s58, 7
    s_lshl_b32 s59, s59, 1
    s_lshl_b32 s60, s60, 11
    s_add_u32 s58, s58, s59
    s_add_u32 s58, s58, s60
    v_lshl_add_u32 v6, v7, 13, v6
    s_bitcmp1_b32 s50, 4
    s_cbranch_scc1 L_k1_uimg""")
    for i in range(8): A(f"buffer_load_ushort v{64+i}, v6, s[24:27], s58 offen offset:{i*256}")
    A("s_branch L_k1_imgst\nL_k1_uimg:")
    for i in range(8): A(f"buffer_load_ushort v{64+i}, v6, s[32:35], s58 offen offset:{i*256}")
    A(f"""L_k1_imgst:
    s_and_b32 s58, s50, 31
    s_lshl_b32 s58, s58, 10
    s_lshr_b32 s59, s50, 5
    s_mul_i32 s59, s59, {WH}
    s_add_u32 s58, s58, s59
    s_waitcnt vmcnt(0)
    v_lshl_or_b32 v56, v65, 16, v64
    v_lshl_or_b32 v57, v67, 16, v66
    v_lshl_or_b32 v58, v69, 16, v68
    v_lshl_or_b32 v59, v71, 16, v70
    buffer_store_dwordx4 v[56:59], v3, s[44:47], s58 offen {MST}
    s_branch L_k1_noimg
L_k1_cimg:
    s_sub_u32 s61, s50, 64
    s_lshr_b32 s58, s61, 2
    s_and_b32 s59, s61, 3
    s_lshl_b32 s58, s58, 7
    s_lshl_b32 s59, s59, 1
    s_add_u32 s58, s58, s59
    s_add_u32 s58, s58, {256*256}
    v_lshl_add_u32 v6, v7, 10, v6""")
    for i in range(4): A(f"buffer_load_ushort v{56+i}, v6, s[24:27], s58 offen offset:{i*256}")
    A(f"""s_mov_b32 s59, {hex(LOG2E_NEG)}
    s_and_b32 s58, s61, 3
    s_lshl_b32 s58, s58, 9
    s_lshr_b32 s60, s61, 2
    s_mul_i32 s60, s60, {WH}
    s_add_u32 s58, s58, s60
    s_add_u32 s58, s58, {CIMG}
    v_lshlrev_b32 v7, 3, v2
    s_waitcnt vmcnt(0)""")
    for i in range(4): A(f"v_lshlrev_b32 v{56+i}, 16, v{56+i}\nv_mul_f32 v{56+i}, s59, v{56+i}")
    A(f"""v_cvt_pk_bf16_f32 v56, v56, v57
    v_cvt_pk_bf16_f32 v57, v58, v59
    buffer_store_dwordx2 v[56:57], v7, s[44:47], s58 offen {MST}
L_k1_noimg:""")
    for u in range(4):
        w=WL+4*u; base=(u&1)*woff(64)+(u>>1)*256
        A(f"""s_waitcnt vmcnt({3-u})
        v_perm_b32 v60, v{w+2}, v{w}, s56
        v_perm_b32 v61, v{w+2}, v{w}, s57
        v_perm_b32 v62, v{w+3}, v{w+1}, s56
        v_perm_b32 v63, v{w+3}, v{w+1}, s57
        ds_write_b32 v5, v60 offset:{base}
        ds_write_b32 v5, v61 offset:{base+32}
        ds_write_b32 v5, v62 offset:{base+64}
        ds_write_b32 v5, v63 offset:{base+96}""")
    A(f"""v_and_b32 v6, 15, v2
    v_lshrrev_b32 v7, 4, v2
    s_cmp_ge_u32 s51, 1568
    s_cbranch_scc1 L_k1_nobp""")
    qtranspose(XR,WL,XA)
    A(f"""L_k1_nobp:
    v_bfe_u32 v61, v2, 2, 2
    v_lshl_add_u32 v61, v7, 5, v61
    v_mul_u32_u24 v61, {WROW}, v61
    v_lshl_add_u32 v61, v7, 7, v61
    v_and_b32 v62, 3, v2
    v_lshl_add_u32 v5, v62, 3, v61
    s_waitcnt lgkmcnt(0)
    s_barrier""")
    stamp(1,0)
    A("""s_cmp_ge_u32 s51, 1568
    s_cbranch_scc1 L_k1_gdone""")
    seq=[(h,t,mat,ks) for h in range(2) for t in range(4) for mat in range(2) for ks in range(4)]
    def rd(n):
        h,t,mat,ks=seq[n]; o=woff(8*ks)+mat*256+h*128+t*32; b=BF+4*(n%8)
        A(f"ds_read_b64_tr_b16 v[{b}:{b+1}], v5 offset:{o}\nds_read_b64_tr_b16 v[{b+2}:{b+3}], v5 offset:{o+4*WROW}")
    def acc(h,t,mat): return ACC+((h*4+t)*2+mat)*4
    PF=6
    for n in range(PF): rd(n)
    for n in range(64):
        h,t,mat,ks=seq[n]; b=BF+4*(n%8); a=acc(h,t,mat)
        out=min(63-n,PF-1)
        A(f"s_waitcnt lgkmcnt({2*out})")
        A(f"v_mfma_f32_16x16x32_bf16 v[{a}:{a+3}], v[{XA+4*ks}:{XA+4*ks+3}], v[{b}:{b+3}], {'0' if ks==0 else f'v[{a}:{a+3}]'}")
        if n+PF<64: rd(n+PF)
    stamp(2,0)
    A(f"""v_mov_b32 v8, {hex(LOG2E_NEG)}
    v_mov_b32 v9, 0x7fff
    v_mov_b32 v10, 0xffff0000
    v_mov_b32 v11, 0
    v_lshlrev_b32 v12, 10, v7
    v_lshl_or_b32 v12, v6, 4, v12
    s_nop 3""")
    for h in range(2):
        for r in range(4):
            o=16+4*((h*4+r)%2); tt=24
            for t in range(4): A(f"v_mul_f32 v{tt+t}, v8, v{acc(h,t,0)+r}")
            A(f"v_max3_f32 v11, abs(v{tt}), abs(v{tt+1}), v11\nv_max3_f32 v11, abs(v{tt+2}), abs(v{tt+3}), v11")
            for t in range(4): A(f"v_exp_f32 v{tt+t}, v{tt+t}")
            A("s_nop 0")
            for t in range(4): A(f"v_cvt_pk_f16_f32 v{tt+t}, v{tt+t}, 0")
            for t in range(4): A(f"v_xad_u32 v{tt+4+t}, v{tt+t}, v9, v{acc(h,t,1)+r}")
            for t in range(4): A(f"v_bfi_b32 v{o+t}, v10, v{tt+4+t}, v{tt+t}")
            A(f"buffer_store_dwordx4 v[{o}:{o+3}], v12, s[{36+4*h}:{39+4*h}], s52 offen offset:{r*256} {ST}")
    A(f"""v_mov_b32 v13, 0x41600000
    v_mov_b32 v14, 1
    v_mov_b32 v15, {K1_OVF}
    v_cmp_nle_f32 vcc, v11, v13""")
    A(f"""s_mov_b64 exec, vcc
    ds_write_b32 v15, v14
    s_mov_b64 exec, -1
L_k1_gdone:
    s_waitcnt lgkmcnt(0)
    s_barrier
L_k1_flag:
    s_cmp_lg_u32 s3, 0
    s_cbranch_scc1 L_k1_fin
    v_mov_b32 v15, {K1_OVF}
    ds_read_b32 v14, v15
    s_lshl_b32 s58, s2, 2
    s_add_u32 s58, s58, {FLAGO}
    v_mov_b32 v15, 0
    s_mov_b64 exec, 1
    s_waitcnt lgkmcnt(0)
    buffer_store_dword v14, v15, s[44:47], s58 offen {MST}
    s_mov_b64 exec, -1
L_k1_fin:""")
    if STAMP:
        stamp(4,0)
        A("s_waitcnt vmcnt(0)")
        stamp(5,0)
        stamp_flush()
    if OPT.get('k1delay'):
        A(f"""s_memrealtime s[60:61]
        s_waitcnt lgkmcnt(0)
        s_add_u32 s62, s60, {int(OPT['k1delay'])*100}
L_k1_spin:
        s_memrealtime s[60:61]
        s_waitcnt lgkmcnt(0)
        s_cmp_lt_u32 s60, s62
        s_cbranch_scc1 L_k1_spin""")
    A("L_k1_end:\ns_endpgm")

def spin(T,tag):
    A(f"""s_load_dwordx2 s[60:61], s[0:1], 72
    s_waitcnt lgkmcnt(0)
    s_add_u32 s60, s60, {MISC_OFF+FLAGO+2048}
    s_addc_u32 s61, s61, 0
    s_load_dword s62, s[60:61], 0
    s_waitcnt lgkmcnt(0)
    s_add_u32 s62, s62, {int(float(T)*100)}
L_spin_{tag}:
    s_memrealtime s[60:61]
    s_waitcnt lgkmcnt(0)
    s_cmp_lt_u32 s60, s62
    s_cbranch_scc1 L_spin_{tag}""")

ECAP=3456; BCAP=96; WCAP=4*BCAP
K2_HIST=0; K2_FL=256; K2_C1=260; K2_C2=264; K2_AL=272; K2_OH=288; K2_L1=1024; K2_L2=K2_L1+16*WCAP*4; K2_E=K2_L2+16*WCAP*4
K2_Z=K2_E+ECAP*32; K2_W=K2_Z-34816; K2_SRC=K2_W-8192; K2_LDS=K2_Z+32
assert K2_LDS<=163840 and K2_L1%256==0 and K2_L2%256==0 and K2_SRC-K2_E>=2048*32
O0=K2_L1//256; O1o=K2_L2//256; LST=O1o-O0

def k2():
    L=0; D=32; EE=48; ACC=64; GB=80; AO=96; S=100; LM,LS=102,103; G=104; EA,OA,SA,LMX=108,109,110,111
    WP,CPt=112,113
    cJ16,cG8,cG8O,cS,pL1,pLm,pLs,LANE=114,115,116,117,118,119,120,121
    L16,TID=122,123
    A(".p2align 8\nmain_kernel:")
    A(f"""s_cmp_ge_u32 s2, 256
    s_cbranch_scc1 L_k2_end""")
    if OPT.get('until0'): spin(OPT['until0'],'a')
    A(f"""s_load_dwordx2 s[18:19], s[0:1], 72
    s_load_dwordx2 s[4:5], s[0:1], 0
    s_load_dwordx2 s[6:7], s[0:1], 56
    v_mov_b32 v{TID}, v0
    v_lshrrev_b32 v1, 6, v0
    v_and_b32 v{LANE}, 63, v0
    v_readfirstlane_b32 s3, v1
    v_lshlrev_b32 v{L16}, 4, v{LANE}
    v_lshlrev_b32 v4, 4, v0
    s_bfe_u32 s40, s2, 0x10002
    s_lshr_b32 s41, s2, 3
    s_and_b32 s42, s2, 3
    s_lshl_b32 s42, s42, 5
    s_add_u32 s41, s41, s42
    s_lshl_b32 s45, s41, 15
    s_add_u32 s46, s45, 16384
    s_mov_b32 s10, 0x400000
    s_mov_b32 s11, 0x20000
    s_setprio 3
    s_waitcnt lgkmcnt(0)
    s_add_u32 s8, s18, {hex(REC_OFF)}
    s_addc_u32 s9, s19, 0""")
    R=0; RK=8; HA=16; XR=32
    A(f"""buffer_load_dwordx4 v[{R}:{R+3}], v4, s[8:11], s45 offen {NT}
    buffer_load_dwordx4 v[{R+4}:{R+7}], v4, s[8:11], s46 offen {NT}""")
    stamp_init(1,3,18,19)
    stamp(0,1)
    srd(24,18,19,MISC_OFF,MISC_SZ)
    A(f"""s_lshl_b32 s45, s3, 6
    s_add_u32 s45, s45, {FLAGO}
    v_lshlrev_b32 v25, 2, v{LANE}
    s_mov_b64 exec, 0xffff
    buffer_load_dword v24, v25, s[24:27], s45 offen
    s_mov_b64 exec, -1""")
    A(f"""s_add_u32 s42, s3, 4
    s_mul_i32 s42, s42, 52
    s_lshr_b32 s42, s42, 8
    s_add_u32 s43, s3, 5
    s_mul_i32 s43, s43, 52
    s_lshr_b32 s43, s43, 8
    s_sub_u32 s43, s43, s42
    s_add_u32 s43, s43, 12
    s_mul_i32 s44, s3, 12
    s_add_u32 s42, s42, s44
    s_mul_i32 s44, s41, {BS}
    s_add_u32 s44, s44, s42""")
    srd(20,4,5,0,N*256)
    A(f"""s_lshl_b32 s45, s41, 18
    s_add_u32 s12, s18, s45
    s_addc_u32 s13, s19, 0
    s_add_u32 s12, s12, {hex(EP_OFF)}
    s_addc_u32 s13, s13, 0
    s_mov_b32 s14, 0x40000
    s_mov_b32 s15, 0x20000
    s_mul_i32 s45, s40, {HS}
    s_add_u32 s45, s45, {WSB}
    s_add_u32 s16, s18, s45
    s_addc_u32 s17, s19, 0
    s_mov_b32 s18, {HS}
    s_mov_b32 s19, 0x20000""")
    srd(28,6,7,0,N*256)
    A(f"""v_subrev_u32 v28, 72, v{TID}
    v_and_b32 v29, 7, v28
    v_lshrrev_b32 v30, 4, v28
    v_and_b32 v28, 8, v28
    v_lshlrev_b32 v28, 1, v28
    v_mov_b32 v31, 0x3f80
    v_cmp_eq_u32 vcc, v29, v30
    v_lshlrev_b32 v31, v28, v31
    v_lshlrev_b32 v29, 2, v{TID}
    v_cndmask_b32 v31, 0, v31, vcc
    s_cmp_lg_u32 s3, 1
    s_cbranch_scc1 L_k2_noal
    s_mov_b32 s45, {2048<<16}
    s_mov_b32 s46, 3072
    v_writelane_b32 v31, s45, 4
    v_writelane_b32 v31, s46, 5
L_k2_noal:
    v_cmp_gt_u32 vcc, 208, v{TID}
    s_mov_b64 exec, vcc
    ds_write_b32 v29, v31
    s_cmp_lg_u32 s3, 0
    s_cbranch_scc1 L_k2_noz
    s_mov_b64 exec, 0xff
    v_add_u32 v29, {K2_Z}, v29
    ds_write_b32 v29, v31
L_k2_noz:
    s_mov_b64 exec, -1
    v_bfe_u32 v28, v{LANE}, 2, 2
    v_and_b32 v29, 3, v{LANE}
    v_lshlrev_b32 v28, 10, v28
    v_lshl_or_b32 v28, v29, 4, v28
    v_lshrrev_b32 v29, 4, v{LANE}
    v_lshl_or_b32 v28, v29, 6, v28
    s_cmp_eq_u32 s43, 13
    s_cselect_b32 s50, -1, 0x0fff0fff
    s_lshl_b32 s45, s44, 8
    s_lshl_b32 s47, s3, 11
    s_add_u32 m0, s47, {K2_W}
    s_mul_i32 s48, s40, {WH}
    s_add_u32 s47, s47, s48""")
    for i in range(16): A(f"v_mov_b32 v{XR+i}, 0")
    A(f"""s_waitcnt lgkmcnt(0)
    s_barrier
    s_cmp_lg_u32 s3, 15
    s_cbranch_scc1 L_k2_noc
    buffer_load_dwordx4 v{L16}, s[24:27], s47 offen offset:2048 lds
    buffer_load_dwordx4 v{L16}, s[24:27], s47 offen offset:3072 lds
L_k2_noc:
    buffer_load_dwordx4 v{L16}, s[24:27], s47 offen lds
    buffer_load_dwordx4 v{L16}, s[24:27], s47 offen offset:1024 lds
    v_mov_b32 v78, v28
    s_mov_b32 s84, s50
    s_mov_b32 s85, 0x0fff0fff
    s_mov_b32 s86, s45""")
    XL=int(OPT.get('xlate',16))
    def xload(tag, early):
        A(f"s_cmp_{'ge' if early else 'lt'}_u32 s3, {XL}\ns_cbranch_scc1 L_k2_x{tag}\ns_mov_b32 exec_lo, s84\ns_mov_b32 exec_hi, s84")
        for ks in range(4):
            A(f"buffer_load_dwordx4 v[{XR+4*ks}:{XR+4*ks+3}], v78, s[20:23], s86 offen offset:{ks*256} {NT}")
            if ks==0: A("s_mov_b32 exec_lo, s85\ns_mov_b32 exec_hi, s85")
        A(f"s_mov_b64 exec, -1\nL_k2_x{tag}:")
    xload('e',True)
    A(f"""    v_and_b32 v28, 15, v{LANE}
    v_lshrrev_b32 v29, 4, v{LANE}
    v_lshlrev_b32 v{cJ16}, 4, v28
    v_lshlrev_b32 v30, 3, v29
    v_add_u32 v{cG8}, {K2_E}, v30
    v_add_u32 v{cG8O}, {K2_OH}, v30
    v_and_b32 v30, 3, v{LANE}
    v_lshlrev_b32 v30, 3, v30
    v_add_u32 v{cS}, {K2_OH}, v30
    s_mul_i32 s47, s3, {WCAP*4}
    s_add_u32 s48, s47, {K2_L2}
    s_add_u32 s47, s47, {K2_L1}
    v_lshl_add_u32 v{pL1}, v29, 4, s47
    v_lshl_add_u32 v{pLm}, v28, 2, s48
    v_and_b32 v30, -4, v{LANE}
    v_add_u32 v{pLs}, s48, v30
    v_lshrrev_b32 v30, 4, v{TID}
    v_lshl_add_u32 v29, v30, 6, v28
    v_lshl_or_b32 v28, v28, 16, v28
    v_mov_b32 v31, 1
    v_mov_b32 v30, {OPT.get('srcmask','0x7fff00')}
    v_mov_b32 v25, 0
    v_mov_b32 v72, 0x0c0c0100
    v_mov_b32 v73, 0x202
    v_mov_b32 v74, 0x05040c00
    v_mov_b32 v75, {K2_SRC}
    s_mov_b32 s50, 0x80008000
    s_mov_b32 s51, 0x80008000
    s_mov_b32 s68, 0x0c010c00
    s_mov_b32 s69, 0x0c0c0c02
    s_mov_b32 s70, 0x01000100
    s_mov_b32 s71, 0x05040302
    s_mov_b32 s72, 0x0c010c00
    s_cmp_lt_u32 s3, {XL}
    s_cbranch_scc1 L_k2_rw
    s_waitcnt vmcnt(2)
L_k2_rw:
    s_waitcnt vmcnt(6)""")
    stamp(1,1)
    AL=64; DD=68; PR=76
    A(f"""v_perm_b32 v{AL}, v{R+3}, v{R+3}, s68
    v_perm_b32 v{AL+1}, v{R+3}, v{R+3}, s69
    v_perm_b32 v{AL+2}, v{R+7}, v{R+7}, s68
    v_perm_b32 v{AL+3}, v{R+7}, v{R+7}, s69
    s_mov_b64 exec, s[50:51]
    ds_add_rtn_u64 v[{AL}:{AL+1}], v25, v[{AL}:{AL+1}] offset:{K2_AL}
    ds_add_rtn_u64 v[{AL+2}:{AL+3}], v25, v[{AL+2}:{AL+3}] offset:{K2_AL}
    s_mov_b64 exec, 0xffff
    ds_or_b32 v25, v24 offset:{K2_FL}
    s_mov_b64 exec, -1""")
    MK=52; O1=48
    order=[0,4,1,5,2,6,3,7]
    for j in order:
        Lb=A.label("k2h")
        A(f"v_cmp_le_i32 s[{MK+2*j}:{MK+2*j+1}], 0, v{R+j}")
        if j&3==3: A(f"s_andn2_b64 s[{MK+2*j}:{MK+2*j+1}], s[{MK+2*j}:{MK+2*j+1}], s[50:51]")
        A(f"s_mov_b64 exec, s[{MK+2*j}:{MK+2*j+1}]")
        if j&3>=2: A(f"s_cbranch_execz {Lb}")
        A(f"""v_lshlrev_b32_sdwa v{HA+j}, 2, v{R+j} dst_sel:DWORD dst_unused:UNUSED_PAD src0_sel:DWORD src1_sel:BYTE_3
        v_bfe_u32 v{56+j}, v{R+j}, 24, 2
        ds_add_rtn_u32 v{RK+j}, v{HA+j}, v31 offset:{K2_HIST}
        v_and_b32 v{O1+j}, v30, v{R+j}
        v_mad_u32_u24 v{56+j}, v{56+j}, v73, v72""")
        if j&3>=2: A(f"{Lb}:")
        A("s_mov_b64 exec, -1")
    for u in range(2):
        h=R+3+4*u
        A(f"v_lshl_add_u32 v{PR+u}, v{h}, 8, v{h}\nv_perm_b32 v{PR+u}, v{PR+u}, v{PR+u}, s72")
    A("s_waitcnt lgkmcnt(0)")
    for u in range(2):
        A(f"""v_perm_b32 v{DD+2*u}, v{AL+2*u}, v{AL+2*u}, s70
        v_perm_b32 v{DD+2*u+1}, v{AL+2*u+1}, v{AL+2*u}, s71
        v_pk_sub_u16 v{DD+2*u+1}, v{DD+2*u+1}, v{PR+u}""")
    A("s_nop 0")
    for k in (0,2,1,3): A(f"v_mov_b32_dpp v{DD+k}, v{DD+k} row_newbcast:15 row_mask:0xf bank_mask:0xf")
    for k in (0,2,1,3): A(f"v_pk_add_u16 v{DD+k}, v{DD+k}, v28")
    for j in order:
        Lb=A.label("k2s"); u=j>>2
        A(f"s_mov_b64 exec, s[{MK+2*j}:{MK+2*j+1}]")
        if j&3>=2: A(f"s_cbranch_execz {Lb}")
        A(f"""v_perm_b32 v24, v{DD+2*u+1}, v{DD+2*u}, v{56+j}
        v_mad_u32_u24 v{RK+j}, v{HA+j}, 24, v{RK+j}""")
        if j&3: A(f"v_add_u32 v24, {16*(j&3)}, v24")
        A(f"v_lshlrev_b32 v{RK+j}, 2, v{RK+j}")
        if j: A(f"v_add_u32 v{HA+j}, {16*(j&3)+4096*u}, v29")
        A(f"""v_perm_b32 v{R+j}, v24, v{R+j}, v74
        v_lshl_add_u32 v24, v24, 1, v75
        ds_write2st64_b32 v{RK+j}, v{O1+j}, v{R+j} offset0:{O0} offset1:{O1o}
        ds_write_b16 v24, v{HA+j if j else 29}""")
        if j&3>=2: A(f"{Lb}:")
    A("s_mov_b64 exec, -1")
    xload('l',False)
    A(f"""v_lshlrev_b32 v24, 2, v{LANE}
    v_add_u32 v26, s47, v24
    v_and_b32 v27, -2, v{LANE}
    s_lshl_b32 s45, s3, 6
    s_add_u32 s45, s45, {K2_SRC}
    v_add_u32 v27, s45, v27
    v_and_b32 v28, 1, v{LANE}
    v_lshlrev_b32 v28, 4, v28
    s_lshl_b32 s45, s3, 2
    s_waitcnt vmcnt(4) lgkmcnt(0)
    s_barrier""")
    stamp(2,1)
    H0=0; FLr=1; ALr=2; SR=4; CP=8; S1=124; S2=126
    A(f"""ds_read_b32 v{H0}, v24 offset:{K2_HIST}
    ds_read_b32 v{FLr}, v25 offset:{K2_FL}
    ds_read_b64 v[{ALr}:{ALr+1}], v25 offset:{K2_AL}""")
    for i in range(4): A(f"ds_read_u16 v{SR+i}, v27 offset:{i*1024}")
    for b in range(1,4):
        A(f"""ds_read_b32 v{CP+4*b}, v26 offset:{b*BCAP*4}
        ds_read_b32 v{CP+4*b+1}, v26 offset:{b*BCAP*4+LST*256}""")
    A(f"""s_waitcnt lgkmcnt(6)
    v_cmp_lt_u32 vcc, {BCAP}, v{H0}
    v_readfirstlane_b32 s70, v{FLr}
    v_readfirstlane_b32 s76, v{ALr}
    v_readfirstlane_b32 s78, v{ALr+1}""")
    for i in range(4):
        A(f"v_readlane_b32 s{72+i}, v{H0}, s45\ns_add_u32 s45, s45, 1")
    A(f"""s_cmp_lg_u64 vcc, 0
    s_cbranch_scc1 L_k2_fallback
    s_cmp_lg_u32 s70, 0
    s_cbranch_scc1 L_k2_fallback
    s_lshr_b32 s77, s76, 16
    s_and_b32 s76, s76, 0xffff
    s_sub_u32 s77, s77, 2048
    s_sub_u32 s78, s78, 3072
    s_max_u32 s70, s77, s78
    s_cmp_gt_u32 s70, 1024
    s_cbranch_scc1 L_k2_fallback
    s_cmp_gt_u32 s76, 2048
    s_cbranch_scc1 L_k2_fallback
    s_add_u32 s79, s76, s77
    s_add_u32 s70, s79, s78
    s_cmp_gt_u32 s70, {ECAP-32}
    s_cbranch_scc1 L_k2_fallback""")
    def dma(cnt, n, base, SR, tag):
        A(f"s_lshl_b32 s45, s3, 5")
        if base is None: A(f"s_lshl_b32 s46, s3, 10\ns_add_u32 m0, s46, {K2_E}")
        else: A(f"s_add_u32 s46, s45, s{base}\ns_lshl_b32 s46, s46, 5\ns_add_u32 m0, s46, {K2_E}")
        for i in range(cnt):
            A(f"""s_cmp_ge_u32 s45, s{n}
            s_cbranch_scc1 L_dma_{tag}
            buffer_load_dwordx4 v{SR+i}, s[12:15], 0 offen {NT} lds""")
            if i<cnt-1: A("s_add_u32 s45, s45, 512\ns_add_u32 m0, m0, 16384")
        A(f"L_dma_{tag}:")
    for i in range(4): A(f"v_lshl_add_u32 v{SR+i}, v{SR+i}, 5, v28")
    dma(4,76,None,SR,'p0')
    if OPT.get('fine'): stamp(5,1)
    A("s_max_u32 s45, s73, s74\ns_max_u32 s45, s45, s75\ns_cmp_le_u32 s45, 64\ns_cbranch_scc1 L_k2_nolong")
    for b in range(1,4):
        A(f"""ds_read_b32 v{CP+4*b+2}, v26 offset:{b*BCAP*4+256}
        ds_read_b32 v{CP+4*b+3}, v26 offset:{b*BCAP*4+256+LST*256}""")
    A("L_k2_nolong:")
    for i in range(2): A(f"ds_read_u16 v{S1+i}, v27 offset:{4096+i*1024}\nds_read_u16 v{S2+i}, v27 offset:{6144+i*1024}")
    A(f"""s_mov_b32 s68, s72
    v_add_u32 v29, 64, v{LANE}
    s_sub_u32 s48, s76, 2048
    s_sub_u32 s49, s79, 3072
    s_lshl_b32 s48, s48, 16
    s_lshl_b32 s49, s49, 16
    s_waitcnt lgkmcnt(0)""")
    for i in range(4): A(f"v_lshl_add_u32 v{S1+i}, v{S1+i}, 5, v28")
    for b in range(1,4):
        Lb=A.label("cp")
        if b>=2: A(f"v_add_u32 v{CP+4*b+1}, s{46+b}, v{CP+4*b+1}")
        A(f"""v_cmp_gt_u32 vcc, s{72+b}, v{LANE}
        v_lshl_add_u32 v24, s68, 2, v26
        s_add_u32 s68, s68, s{72+b}
        s_mov_b64 exec, vcc
        ds_write2st64_b32 v24, v{CP+4*b}, v{CP+4*b+1} offset0:0 offset1:{LST}
        s_cmp_le_u32 s{72+b}, 64
        s_cbranch_scc1 {Lb}""")
        if b>=2: A(f"v_add_u32 v{CP+4*b+3}, s{46+b}, v{CP+4*b+3}")
        A(f"""v_cmp_gt_u32 vcc, s{72+b}, v29
        s_mov_b64 exec, vcc
        ds_write2st64_b32 v24, v{CP+4*b+2}, v{CP+4*b+3} offset0:1 offset1:{LST+1}
{Lb}:
        s_mov_b64 exec, -1""")
    A(f"""s_sub_u32 s46, 0, s68
    s_and_b32 s46, s46, 31
    v_cmp_gt_u32 vcc, s46, v{LANE}
    v_lshl_add_u32 v24, s68, 2, v26
    v_mov_b32 v30, {N<<8}
    v_mov_b32 v31, {hex((ECAP<<16)|16)}
    s_mov_b64 exec, vcc
    ds_write2st64_b32 v24, v30, v31 offset0:0 offset1:{LST}
    s_mov_b64 exec, -1
    s_add_u32 s69, s72, s73
    s_add_u32 s80, s69, s74
    s_lshr_b32 s69, s69, 4
    s_lshr_b32 s80, s80, 4
    s_add_u32 s68, s68, 15
    s_lshr_b32 s68, s68, 4""")
    XA=96
    def gathers(Gr, q):
        for i in range(4):
            A(f"v_or_b32 v{Gr+i}, v{Gr+i}, v{cJ16}")
            if not OPT.get('nogather'): A(f"buffer_load_dwordx4 v[{L+16*q+4*i}:{L+16*q+4*i+3}], v{Gr+i}, s[16:19], 0 offen")
    def aread(lm):
        A(f"""v_mad_u32_u16 v{EA}, v{lm}, 32, v{cG8} op_sel:[1,0,0,0]
        v_mad_u32_u16 v{OA}, v{lm}, 32, v{cG8O}
        ds_read_b64 v[{AO}:{AO+1}], v{EA}
        ds_read_b64 v[{AO+2}:{AO+3}], v{OA}""")
    A(f"""v_add_u32 v{WP}, {K2_W}, v{L16}
    v_lshrrev_b32 v{CPt}, 1, v{L16}
    v_add_u32 v{CPt}, {K2_W+CIMG}, v{CPt}
    s_lshl_b32 s45, s3, 5
    s_sub_u32 s45, s76, s45
    s_cmp_gt_i32 s45, 1024
    s_cbranch_scc1 L_k2_x3
    s_waitcnt vmcnt(0)
L_k2_x3:
    s_waitcnt vmcnt(3)""")
    if OPT.get('fine'): stamp(6,1)
    for t in range(4): A(f"ds_read_b64 v[{GB+4*t}:{GB+4*t+1}], v{CPt} offset:{t*512}")
    qtranspose(XR,EE,XA)
    BFR=32
    seq=[(mat,t,ks) for mat in range(2) for t in range(4) for ks in range(4)]
    def rd(n):
        mat,t,ks=seq[n]; b=BFR+4*(n%8)
        A(f"ds_read_b128 v[{b}:{b+3}], v{WP} offset:{n*1024}")
    PF=6
    for n in range(PF): rd(n)
    for n in range(32):
        mat,t,ks=seq[n]; b=BFR+4*(n%8); a=ACC+4*t
        if n==16:
            A(f"s_mov_b32 s45, {hex(LOG2E_NEG)}\ns_nop 6")
            for tt in range(4):
                for r in range(4): A(f"v_mul_f32 v{ACC+4*tt+r}, s45, v{ACC+4*tt+r}")
                A(f"v_cvt_pk_bf16_f32 v{GB+4*tt+2}, v{ACC+4*tt}, v{ACC+4*tt+1}\nv_cvt_pk_bf16_f32 v{GB+4*tt+3}, v{ACC+4*tt+2}, v{ACC+4*tt+3}")
        out=min(31-n,PF-1)
        A(f"s_waitcnt lgkmcnt({out})")
        A(f"v_mfma_f32_16x16x32_bf16 v[{a}:{a+3}], v[{XA+4*ks}:{XA+4*ks+3}], v[{b}:{b+3}], {'0' if ks==0 else f'v[{a}:{a+3}]'}")
        if n+PF<32: rd(n+PF)
    if OPT.get('fine'): stamp(7,1)
    A(f"""ds_read_b128 v[{EE}:{EE+3}], v{pL1}
    ds_read_b128 v[{G}:{G+3}], v{pL1} offset:64
    ds_read_b32 v{LM}, v{pLm}
    ds_read_b32 v{WP}, v{pLm} offset:64
    ds_read_b32 v{LS}, v{pLs}
    v_mov_b32 v{TID}, {K2_C1}
    v_mov_b32 v{L16}, 1
    s_lshl_b32 s45, s3, 5
    s_cmp_lt_u32 s45, s77
    s_cselect_b32 s71, 1, 0
    s_waitcnt vmcnt(0) lgkmcnt(0)""")
    def arrive(k):
        A(f"""s_mov_b64 exec, 1
        ds_add_u32 v{TID}, v{L16} offset:{4*k}
        s_mov_b64 exec, -1""")
    def check(k,tag):
        A(f"""L_k2_spin{tag}:
        ds_read_b32 v{SA}, v{TID} offset:{4*k}
        s_waitcnt lgkmcnt(0)
        v_readfirstlane_b32 s45, v{SA}
        s_cmp_eq_u32 s45, 16
        s_cbranch_scc1 L_k2_ok{tag}
        s_sleep 1
        s_branch L_k2_spin{tag}
L_k2_ok{tag}:""")
    def ensure2(tag):
        A(f"s_cmp_eq_u32 s81, -1\ns_cbranch_scc1 L_k2_iss{tag}")
        dma(2,78,79,S2,'e'+tag)
        A(f"""s_mov_b32 s81, -1
L_k2_iss{tag}:
        s_cmp_eq_u32 s82, -1
        s_cbranch_scc1 L_k2_arr{tag}
        s_mov_b32 s82, -1
        s_waitcnt vmcnt(0)""")
        arrive(1)
        A(f"L_k2_arr{tag}:")
        check(1,'c'+tag)
    arrive(2)
    gathers(EE,0)
    gathers(G,1)
    stamp(3,1)
    check(2,'w')
    if OPT.get('untilL'): spin(OPT['untilL'],'c')
    stamp(4,1)
    if STAMP: A('s_memtime s[100:101]\ns_waitcnt lgkmcnt(0)')
    if OPT.get('tl'):
        A('s_mov_b32 s90, s94')
        for i in range(1,8): A(f's_mov_b32 s{90+i}, 0')
    if OPT.get('reg'):
        A('s_mov_b32 s92, s68\ns_mov_b32 s93, s94\ns_getreg_b32 s91, hwreg(HW_REG_HW_ID)')
    dma(2,77,76,S1,'p1')
    A(f"""s_max_u32 s81, s69, 2
    s_add_u32 s82, s81, 1
    s_mov_b32 s83, 3
    s_cmp_gt_u32 s69, 3
    s_cbranch_scc1 L_k2_nb0
    s_mov_b32 s83, 0
    s_waitcnt vmcnt(0)""")
    arrive(0)
    A("s_cmp_gt_u32 s69, 1\ns_cbranch_scc1 L_k2_nb0")
    check(0,'p')
    A("s_cmp_gt_u32 s80, 1\ns_cbranch_scc1 L_k2_nb0")
    ensure2('p')
    A("L_k2_nb0:")
    def gate():
        if OPT.get('nomfma'): return
        for t in range(4): A(f"v_mfma_f32_16x16x32_bf16 v[{D+4*t}:{D+4*t+3}], v[{AO}:{AO+3}], v[{GB+4*t}:{GB+4*t+3}], 0")
    aread(LM)
    A("s_mov_b32 s70, 2\ns_waitcnt lgkmcnt(0)")
    gate()
    aread(WP)
    A("""s_cmp_eq_u32 s68, 0
    s_cbranch_scc1 L_k2_done""")
    def group(q):
        Lq=L+16*q; o=64*q
        A(f"""v_mad_u32_u16 v{SA}, v{LS}, 32, v{cS}
        ds_read_b128 v[{G}:{G+3}], v{pL1} offset:{128+o}
        ds_read_b32 v{LM}, v{pLm} offset:{128+o}
        ds_read_b64_tr_b16 v[{S}:{S+1}], v{SA}
        ds_read_b32 v{LS}, v{pLs} offset:{64+o}""")
        if q==1: A(f"v_add_u32 v{pL1}, 128, v{pL1}\nv_add_u32 v{pLm}, 128, v{pLm}\nv_add_u32 v{pLs}, 128, v{pLs}")
        def setp(tag, lv):
            p3,p2,p1=[int(x) for x in OPT.get('pth','11,7,4').split(',')]
            A(f"""s_sub_u32 s45, s68, s70
            s_cmp_ge_i32 s45, {p3-2}
            s_cbranch_scc1 L_k2_p3{tag}
            s_cmp_ge_i32 s45, {p2-2}
            s_cbranch_scc1 L_k2_p2{tag}
            s_cmp_ge_i32 s45, {p1-2}
            s_cbranch_scc1 L_k2_p1{tag}
            s_setprio {lv[3]}
            s_branch L_k2_pd{tag}
L_k2_p3{tag}:
            s_setprio {lv[0]}
            s_branch L_k2_pd{tag}
L_k2_p2{tag}:
            s_setprio {lv[1]}
            s_branch L_k2_pd{tag}
L_k2_p1{tag}:
            s_setprio {lv[2]}
L_k2_pd{tag}:""")
        YL=OPT.get('yield')
        if q==0 and not YL: setp('a',[int(x) for x in OPT.get('plv','2,1,1,0').split(',')])
        if not OPT.get('nocomp'):
            for t in range(4):
                for r in range(4): A(f"v_exp_f32 v{EE+4*r+t}, v{D+4*t+r}")
        if OPT.get('tl') and q==0: A("s_memrealtime s[88:89]")
        A("s_waitcnt lgkmcnt(0)")
        if OPT.get('tl') and q==0: A("s_lshr_b32 s45, s70, 1\ns_min_u32 s45, s45, 7\ns_mov_b32 m0, s45\ns_nop 0\ns_movreld_b32 s90, s88")
        gate()
        A(f"""s_cmp_lg_u32 s70, s69
        s_cbranch_scc1 L_k2_nb_{q}""")
        check(0,q)
        A(f"""L_k2_nb_{q}:
        s_cmp_lg_u32 s70, s80
        s_cbranch_scc1 L_k2_nc_{q}""")
        ensure2(str(q))
        A(f"L_k2_nc_{q}:")
        aread(LM)
        A(f"""s_add_u32 s45, s71, 2
        s_cmp_lt_u32 s70, s45
        s_cbranch_scc1 L_k2_w7_{q}
        s_waitcnt vmcnt(4)
L_k2_w7_{q}:
        s_cmp_le_u32 s70, s68
        s_cbranch_scc1 L_k2_w0_{q}
        s_waitcnt vmcnt(0)
L_k2_w0_{q}:
        s_waitcnt vmcnt(5)""")
        if q==1:
            A("s_cmp_lg_u32 s70, s83\ns_cbranch_scc1 L_k2_noarr")
            arrive(0)
            A("L_k2_noarr:")
        A(f"s_cmp_lg_u32 s70, s82\ns_cbranch_scc1 L_k2_noa2_{q}\ns_mov_b32 s82, -1")
        arrive(1)
        A(f"L_k2_noa2_{q}:")
        if not OPT.get('nocomp'):
            order=[(r,t) for tt in (0,2) for r in range(4) for t in (tt,tt+1)]
            fm=lambda r,t: A(f"v_fma_mix_f32 v{EE+4*r+t}, v{Lq+4*r+t}, v{EE+4*r+t}, 1.0 op_sel_hi:[1,0,0]")
            rc=lambda r,t: A(f"v_rcp_f32 v{EE+4*r+t}, v{EE+4*r+t}")
            lag=int(OPT.get('lag','2'))
            MG=OPT.get('merge','0')
            pk=lambda d,a,b: A(f"v_pk_mul_f32 v[{d}:{d+1}], v[{a}:{a+1}], v[{b}:{b+1}]")
            Ea=lambda r,t: EE+4*r+t
            La=lambda r,t: Lq+4*r+t
            if MG=='0':
                for i in range(16+lag):
                    if i<16: fm(*order[i])
                    if i>=lag: rc(*order[i-lag])
                if YL: A("s_setprio 0")
                if OPT.get('nopk'):
                    for r,t in order: A(f"v_mul_f32 v{EE+4*r+t}, v{EE+4*r+t}, v{Lq+4*r+t}")
                else:
                  for t in (0,2):
                    for r in range(4): pk(Ea(r,t),Ea(r,t),La(r,t))
            elif MG=='2':
                for r,t in order: fm(r,t)
                for t in (0,2):
                    for r in (0,2):
                        pk(La(r,t),La(r,t),Ea(r+1,t)); pk(La(r+1,t),La(r+1,t),Ea(r,t)); pk(Ea(r,t),Ea(r,t),Ea(r+1,t))
                for t in range(4):
                    for r in (0,2): rc(r,t)
                A("s_nop 0")
                for t in (0,2):
                    for r in (0,2):
                        pk(Ea(r+1,t),Ea(r,t),La(r+1,t)); pk(Ea(r,t),Ea(r,t),La(r,t))
            else:
                for r,t in order: fm(r,t)
                for t in (0,2):
                    for r in (0,2):
                        pk(La(r,t),La(r,t),Ea(r+1,t)); pk(La(r+1,t),La(r+1,t),Ea(r,t)); pk(Ea(r,t),Ea(r,t),Ea(r+1,t))
                for t in (0,2): pk(Ea(1,t),Ea(0,t),Ea(2,t))
                for t in range(4): rc(1,t)
                A("s_nop 0")
                for t in (0,2):
                    pk(Ea(3,t),Ea(1,t),Ea(0,t)); pk(Ea(1,t),Ea(1,t),Ea(2,t))
                for t in (0,2):
                    pk(Ea(0,t),Ea(1,t),La(0,t)); pk(Ea(2,t),Ea(3,t),La(2,t))
                    pk(Ea(1,t),Ea(1,t),La(1,t)); pk(Ea(3,t),Ea(3,t),La(3,t))
            if YL: setp(f'y{q}',[3,2,1,1])
            for t,p in [(0,0),(2,0),(1,0),(3,0),(0,1),(1,1),(2,1),(3,1)]:
                A(f"v_cvt_pk_bf16_f32 v{EE+2*t+p}, v{EE+8*p+t}, v{EE+8*p+4+t}")
        A("s_nop 1")
        for t in range(0 if OPT.get('nomfma') else 4): A(f"v_mfma_f32_16x16x16_bf16 v[{ACC+4*t}:{ACC+4*t+3}], v[{S}:{S+1}], v[{EE+2*t}:{EE+2*t+1}], v[{ACC+4*t}:{ACC+4*t+3}]")
        A(f"s_cmp_lg_u32 s70, s81\ns_cbranch_scc1 L_k2_ni_{q}\ns_mov_b32 s81, -1")
        dma(2,78,79,S2,f'i{q}')
        A(f"""L_k2_ni_{q}:
        s_cmp_ge_u32 s70, s68
        s_cbranch_scc1 L_k2_ng_{q}""")
        gathers(G,q)
        A(f"""L_k2_ng_{q}:
        s_cmp_gt_u32 s70, s68
        s_cbranch_scc1 L_k2_done
        s_add_u32 s70, s70, 1""")
    A(".p2align 6\nL_k2_loop:")
    group(0); group(1)
    A("s_branch L_k2_loop")
    A("L_k2_done:\ns_waitcnt vmcnt(0)")
    if not OPT.get('tl') and not OPT.get('fine'): stamp(5,1)
    if STAMP and not OPT.get('tl') and not OPT.get('fine'): A('s_memtime s[88:89]\ns_waitcnt lgkmcnt(0)\ns_sub_u32 s97, s88, s100')
    A(f"""v_lshrrev_b32 v0, 4, v{LANE}
    v_lshlrev_b32 v0, 2, v0
    v_add_u32 v1, s44, v0
    v_lshlrev_b32 v1, 8, v1
    v_lshrrev_b32 v2, 1, v{cJ16}
    s_lshl_b32 s45, s40, 7
    v_add3_u32 v1, v1, v2, s45
    v_mov_b32 v3, {hex(LOG2E_NEG)}
    v_mov_b32 v4, 0x80000000""")
    for r in range(4):
        for t in range(4): A(f"v_mul_f32 v{8+t}, v3, v{ACC+4*t+r}")
        for t in range(4): A(f"v_exp_f32 v{8+t}, v{8+t}")
        A(f"v_add_u32 v5, {r}, v0\nv_cmp_gt_u32 vcc, s43, v5")
        for t in range(4): A(f"v_add_f32 v{8+t}, 1.0, v{8+t}")
        for t in range(4): A(f"v_rcp_f32 v{8+t}, v{8+t}")
        A(f"v_cndmask_b32 v{16+r}, v4, v1, vcc")
        for t in range(4): A(f"v_mul_f32 v{8+t}, v{8+t}, v{ACC+4*t+r}")
        A(f"""v_cvt_pk_bf16_f32 v{20+2*r}, v8, v9
        v_cvt_pk_bf16_f32 v{21+2*r}, v10, v11
        buffer_store_dwordx2 v[{20+2*r}:{21+2*r}], v{16+r}, s[28:31], 0 offen offset:{r*256} {OST}""")
    if STAMP:
        A("s_waitcnt vmcnt(0)")
        if not OPT.get('tl') and not OPT.get('fine'): stamp(6,1)
        stamp_flush(1)
    if OPT.get('until'): spin(OPT['until'],'b')
    A("s_endpgm")
    fallback()
    A("L_k2_end:\ns_endpgm")

def fallback():
    LANE=121; TID=123
    A(f"""L_k2_fallback:
    s_mov_b64 exec, -1
    s_load_dwordx2 s[50:51], s[0:1], 8
    s_load_dwordx4 s[52:55], s[0:1], 16
    s_load_dwordx4 s[56:59], s[0:1], 32
    s_load_dwordx2 s[60:61], s[0:1], 48
    s_waitcnt vmcnt(0) lgkmcnt(0)
    s_barrier""")
    srd(8,50,51,0,E*32)
    srd(12,52,53,0,E*4)
    srd(16,54,55,0,E*4)
    srd(24,56,57,0,128*256)
    srd(32,58,59,0,128*256)
    srd(36,60,61,0,272*256)
    A(f"""v_mov_b32 v0, 0
    v_mov_b32 v1, 0
    v_mov_b32 v2, 0
    v_mov_b32 v3, 0
    v_lshlrev_b32 v4, 4, v{TID}
    ds_write_b128 v4, v[0:3]
    ds_write_b128 v4, v[0:3] offset:16384
    ds_write_b128 v4, v[0:3] offset:32768
    ds_write_b128 v4, v[0:3] offset:49152
    s_lshl_b32 s45, s40, 7
    v_lshl_add_u32 v5, v{LANE}, 1, s45
    v_lshlrev_b32 v6, 2, v{LANE}
    s_mul_i32 s46, s41, {BS}
    s_lshl_b32 s47, s3, 6
    s_waitcnt lgkmcnt(0)
    s_barrier
L_fb_chunk:
    s_cmp_ge_u32 s47, {E}
    s_cbranch_scc1 L_fb_fin
    s_lshl_b32 s48, s47, 2
    buffer_load_dword v7, v6, s[16:19], s48 offen
    buffer_load_dword v8, v6, s[12:15], s48 offen
    s_waitcnt vmcnt(0)
    v_subrev_u32 v9, s46, v7
    v_cmp_gt_u32 s[62:63], v10, v9
    """.replace("v_cmp_gt_u32 s[62:63], v10, v9",f"v_mov_b32 v10, {BS}\nv_cmp_gt_u32 s[62:63], v10, v9")+f"""
L_fb_edge:
    s_cmp_eq_u64 s[62:63], 0
    s_cbranch_scc1 L_fb_next
    s_ff1_i32_b64 s49, s[62:63]
    s_bitset0_b64 s[62:63], s49
    v_readlane_b32 s64, v7, s49
    v_readlane_b32 s65, v8, s49
    s_add_u32 s66, s47, s49
    s_lshl_b32 s67, s64, 8
    s_lshl_b32 s68, s65, 8
    s_lshl_b32 s66, s66, 5
    s_nop 2
    buffer_load_dword v11, v6, s[20:23], s67 offen
    buffer_load_dword v12, v6, s[20:23], s68 offen
    v_and_b32 v14, 28, v6
    buffer_load_dword v13, v14, s[8:11], s66 offen
    v_mov_b32 v15, 0
    v_mov_b32 v16, 0
    s_mov_b32 s69, 0
    s_waitcnt vmcnt(0)
L_fb_k:
    s_lshl_b32 s70, s69, 9
    s_add_u32 s71, s70, {128*256}
    buffer_load_ushort v17, v5, s[36:39], s70 offen
    buffer_load_ushort v18, v5, s[36:39], s70 offen offset:256
    buffer_load_ushort v19, v5, s[36:39], s71 offen
    buffer_load_ushort v20, v5, s[36:39], s71 offen offset:256
    buffer_load_ushort v21, v5, s[32:35], s70 offen
    buffer_load_ushort v22, v5, s[32:35], s70 offen offset:256
    v_readlane_b32 s72, v11, s69
    v_readlane_b32 s73, v12, s69
    s_lshl_b32 s74, s72, 16
    s_and_b32 s72, s72, 0xffff0000
    s_lshl_b32 s75, s73, 16
    s_and_b32 s73, s73, 0xffff0000
    s_waitcnt vmcnt(0)""")
    for i in range(17,23): A(f"v_lshlrev_b32 v{i}, 16, v{i}")
    A(f"""v_fmac_f32 v15, s74, v17
    v_fmac_f32 v15, s72, v18
    v_fmac_f32 v15, s75, v19
    v_fmac_f32 v15, s73, v20
    v_fmac_f32 v16, s75, v21
    v_fmac_f32 v16, s73, v22
    s_add_u32 s69, s69, 1
    s_cmp_lt_u32 s69, 64
    s_cbranch_scc1 L_fb_k
    s_mov_b32 s69, 0
L_fb_ke:
    s_lshl_b32 s70, s69, 9
    s_add_u32 s70, s70, {256*256}
    buffer_load_ushort v17, v5, s[36:39], s70 offen
    buffer_load_ushort v18, v5, s[36:39], s70 offen offset:256
    v_readlane_b32 s72, v13, s69
    s_lshl_b32 s74, s72, 16
    s_and_b32 s72, s72, 0xffff0000
    s_waitcnt vmcnt(0)
    v_lshlrev_b32 v17, 16, v17
    v_lshlrev_b32 v18, 16, v18
    v_fmac_f32 v15, s74, v17
    v_fmac_f32 v15, s72, v18
    s_add_u32 s69, s69, 1
    s_cmp_lt_u32 s69, 8
    s_cbranch_scc1 L_fb_ke
    v_mul_f32 v15, {hex(LOG2E_NEG)}, v15
    v_exp_f32 v15, v15
    s_sub_u32 s64, s64, s46
    s_lshl_b32 s64, s64, 8
    v_add_f32 v15, 1.0, v15
    v_rcp_f32 v15, v15
    v_add_u32 v17, s64, v6
    v_mul_f32 v15, v15, v16
    ds_add_f32 v17, v15
    s_branch L_fb_edge
L_fb_next:
    s_add_u32 s47, s47, 1024
    s_branch L_fb_chunk
L_fb_fin:
    s_waitcnt lgkmcnt(0)
    s_barrier
    s_mov_b32 s47, s3
L_fb_node:
    s_cmp_ge_u32 s47, {BS}
    s_cbranch_scc1 L_k2_end
    s_add_u32 s64, s46, s47
    s_lshl_b32 s67, s64, 8
    buffer_load_dword v11, v6, s[20:23], s67 offen
    s_lshl_b32 s48, s47, 8
    v_add_u32 v17, s48, v6
    ds_read_b32 v15, v17
    s_mov_b32 s69, 0
    s_waitcnt vmcnt(0) lgkmcnt(0)
L_fb_ku:
    s_lshl_b32 s70, s69, 9
    buffer_load_ushort v17, v5, s[24:27], s70 offen
    buffer_load_ushort v18, v5, s[24:27], s70 offen offset:256
    v_readlane_b32 s72, v11, s69
    s_lshl_b32 s74, s72, 16
    s_and_b32 s72, s72, 0xffff0000
    s_waitcnt vmcnt(0)
    v_lshlrev_b32 v17, 16, v17
    v_lshlrev_b32 v18, 16, v18
    v_fmac_f32 v15, s74, v17
    v_fmac_f32 v15, s72, v18
    s_add_u32 s69, s69, 1
    s_cmp_lt_u32 s69, 64
    s_cbranch_scc1 L_fb_ku
    v_mul_f32 v16, {hex(LOG2E_NEG)}, v15
    v_exp_f32 v16, v16
    s_nop 0
    v_add_f32 v16, 1.0, v16
    v_rcp_f32 v16, v16
    s_nop 0
    v_mul_f32 v15, v15, v16
    v_cvt_pk_bf16_f32 v15, v15, v15
    buffer_store_short v15, v5, s[28:31], s67 offen
    s_add_u32 s47, s47, 16
    s_branch L_fb_node""")

def desc(name, vg, sg=102):
    return f""".amdhsa_kernel {name}
  .amdhsa_next_free_vgpr {vg}
  .amdhsa_next_free_sgpr {sg}
  .amdhsa_accum_offset {vg}
  .amdhsa_group_segment_fixed_size 0
  .amdhsa_kernarg_size 80
  .amdhsa_user_sgpr_count 2
  .amdhsa_user_sgpr_kernarg_segment_ptr 1
  .amdhsa_system_sgpr_workgroup_id_x 1
.end_amdhsa_kernel
"""
k1(); k2()
errs=check(A.lines)
for e in errs: print(e, file=sys.stderr)
hdr=open('gather_scatter__edge_featured_mpnn_egc__graph.s.ref').read().split('; Override launch')[0]
xl=f"; @launch kernel=nop_kernel grid=({OPT.get('nopg',256)},1,1) block=({OPT.get('nopb',64)},1,1) lds={OPT.get('nopl',0)}\n"
pre=xl if OPT.get('nop')=='pre' else ''; post=xl if OPT.get('nop')=='post' else ''
if OPT.get('nop'):
    A(".p2align 8\nnop_kernel:")
    if OPT.get('nopt0'):
        A(f"""s_memrealtime s[6:7]
        s_load_dwordx2 s[4:5], s[0:1], 72
        s_cmp_lg_u32 s2, 0
        s_cbranch_scc1 L_nop_end
        s_waitcnt lgkmcnt(0)
        s_add_u32 s8, s4, {MISC_OFF}
        s_addc_u32 s9, s5, 0
        s_mov_b32 s10, {MISC_SZ}
        s_mov_b32 s11, 0x20000
        v_mov_b32 v1, s6
        v_mov_b32 v2, {FLAGO+2048}
        buffer_store_dword v1, v2, s[8:11], 0 offen sc0 sc1
L_nop_end:""")
    A("s_endpgm")
out=hdr+pre+f"""; Two launches: prep (edge partition + node tables), main (gated gather / aggregate / silu)
; @launch kernel=prep_kernel grid=(256,1,1) block=(1024,1,1) lds={K1_LDS}
; @launch kernel=main_kernel grid=(256,1,1) block=(1024,1,1) lds={K2_LDS}
{post}.amdgcn_target "amdgcn-amd-amdhsa--gfx950"
.text
.globl prep_kernel
.type prep_kernel,@function
.globl main_kernel
.type main_kernel,@function
"""+A.text()+""".section .rodata,"a"
.p2align 6
"""+desc("prep_kernel",128)+".p2align 6\n"+desc("main_kernel",128)+((".p2align 6\n"+desc("nop_kernel",8,16)) if OPT.get('nop') else '')
open(sys.argv[1],'w').write(out)
print("written",sys.argv[1],len(A.lines),"lines; hazards:",len(errs))
```

```python
import sys
from dsl import *
OPT=dict(a.split('=') if '=' in a else (a,'1') for a in sys.argv[2:])
STAMP=int(OPT.get('stamp',0))
def hint(k,d=''):
    v=OPT.get(k,d); return '' if v=='none' else v.replace('+',' ')
NTI=hint('nti'); NTE=hint('nte'); NTX=hint('ntx'); NT=hint('nt2'); OST=hint('ost','sc0+sc1')
ST=OPT.get('st','sc0 sc1')
if ST=='none': ST=''
ST=ST.replace('+',' ')

MST=hint('mst','none')
N=25000; E=400000; BS=196; CH=3136
NROW=25088; HS=NROW*256
WSB=int(OPT.get('wsb','0'))<<20
TAB_OFF=WSB; REC_OFF=WSB+0x0D00000; EP_OFF=WSB+0x1100000; MISC_OFF=WSB+0x3100000
WH=0x9000; CIMG=0x8000; FLAGO=0x12000; MISC_SZ=0x13000
LOG2E=0x3fb8aa3b
STAMP_OFF=0x3200000
LOG2E_NEG=0xbfb8aa3b
A=Asm()

def srd(s, base_lo, base_hi, off, size):
    if off:
        A(f"s_add_u32 s{s}, s{base_lo}, {hex(off)}\ns_addc_u32 s{s+1}, s{base_hi}, 0")
    else:
        A(f"s_mov_b32 s{s}, s{base_lo}\ns_mov_b32 s{s+1}, s{base_hi}")
    A(f"s_mov_b32 s{s+2}, {hex(size)}\ns_mov_b32 s{s+3}, 0x20000")

def stamp(idx, kern):
    if not STAMP: return
    A(f"""s_memrealtime s[88:89]
    s_waitcnt lgkmcnt(0)
    s_mov_b32 s{90+idx}, s88""")
def stamp_init(kern, wave_s, wsl, wsh):
    if not STAMP: return
    for i in range(8): A(f"s_mov_b32 s{90+i}, 0")
    A(f"s_add_u32 s98, s{wsl}, {hex(STAMP_OFF+kern*0x80000)}\ns_addc_u32 s99, s{wsh}, 0")
def stamp_flush(kern=0):
    if not STAMP: return
    if STAMP==2:
        sel=[0,1,2,5] if kern==0 else [0,2,3,6]
        if kern==0: A("s_and_b32 s4, s2, 15\ns_cmp_lg_u32 s4, 0\ns_cbranch_scc1 L_sf_0_3")
        A(f"""s_load_dwordx2 s[4:5], s[0:1], 64
        s_waitcnt lgkmcnt(0)
        s_add_u32 s4, s4, {512*(1-kern)}
        s_addc_u32 s5, s5, 0
        s_cmp_lg_u32 s3, {12 if kern==0 else 15}
        s_cbranch_scc1 L_sf_{kern}_3
        s_mov_b32 s6, 256
        s_mov_b32 s7, 0x20000
        s_mov_b64 exec, 1
        v_mov_b32 v8, 0""")
        for n,i in enumerate(sel):
            A(f"""v_mov_b32 v0, s{90+i}
            v_not_b32 v1, v0
            s_cmp_eq_u32 s{90+i}, 0
            s_cbranch_scc1 L_sf_{kern}_{n}
            buffer_atomic_umax v1, v8, s[4:7], 0 offen offset:{kern*32+n*8}
            buffer_atomic_umax v0, v8, s[4:7], 0 offen offset:{kern*32+n*8+4}
L_sf_{kern}_{n}:""")
        return
    A("""s_mov_b32 s4, s98
    s_mov_b32 s5, s99
    s_mov_b32 s6, 0x80000
    s_mov_b32 s7, 0x20000
    s_lshl_b32 s8, s2, 4
    s_add_u32 s8, s8, s3
    s_lshl_b32 s8, s8, 6
    s_mov_b64 exec, 1
    v_mov_b32 v8, 0""")
    for i in range(8): A(f"v_mov_b32 v{i}, s{90+i}")
    A("buffer_store_dwordx4 v[0:3], v8, s[4:7], s8 offen\nbuffer_store_dwordx4 v[4:7], v8, s[4:7], s8 offen offset:16")

def qtranspose(X,P,Y):
    for st,(src,dst,pm,m0) in enumerate(((X,P,"[1,0,3,2]",0x55555555),(P,Y,"[2,3,0,1]",0x33333333))):
        bit=1<<st
        for half in range(2):
            m=m0 if half==0 else (~m0)&0xffffffff
            A(f"s_mov_b32 vcc_lo, {hex(m)}\ns_mov_b32 vcc_hi, {hex(m)}")
            for j in range(4):
                if ((j>>st)&1)!=half: continue
                for d in range(4):
                    A(f"v_cndmask_b32_dpp v{dst+4*j+d}, v{src+4*(j^bit)+d}, v{src+4*j+d}, vcc quad_perm:{pm} row_mask:0xf bank_mask:0xf")

K1_E=0; K1_REC=100352; K1_PERM=K1_REC+32768; K1_HIST=K1_PERM+16384; K1_OVF=K1_HIST+1024; K1_LDS=K1_OVF+256
WROW=544
def woff(k): return k*WROW+(k>>5)*128

def k1():
    A(".p2align 8\nprep_kernel:")
    A("""s_cmp_ge_u32 s2, 256
    s_cbranch_scc1 L_k1_end
    s_load_dwordx4 s[4:7], s[0:1], 0
    s_load_dwordx4 s[8:11], s[0:1], 16
    s_load_dwordx4 s[12:15], s[0:1], 32
    s_load_dwordx2 s[16:17], s[0:1], 48
    s_load_dwordx2 s[18:19], s[0:1], 72
    v_lshrrev_b32 v1, 6, v0
    v_and_b32 v2, 63, v0
    v_readfirstlane_b32 s3, v1
    v_lshlrev_b32 v3, 4, v2
    v_lshlrev_b32 v4, 4, v0
    s_waitcnt lgkmcnt(0)""")
    if OPT.get('cpf','1')!='0':
        A(f"""s_cmp_ge_u32 s3, 13
        s_cbranch_scc1 L_k1_nocpf
        s_getpc_b64 s[20:21]
L_k1_pc:
        s_sub_u32 s20, s20, L_k1_pc-prep_kernel
        s_subb_u32 s21, s21, 0
        global_load_dwordx4 v[120:123], v4, s[20:21]
L_k1_nocpf:""")
    stamp_init(0,3,18,19)
    stamp(0,0)
    srd(44,18,19,MISC_OFF,MISC_SZ)
    if (OPT.get('until') or OPT.get('until0') or OPT.get('untilL')) and not OPT.get('nopt0'):
        A(f"""s_memrealtime s[60:61]
        s_waitcnt lgkmcnt(0)
        s_or_b32 s62, s2, s3
        s_cmp_lg_u32 s62, 0
        s_cbranch_scc1 L_k1_not0
        v_mov_b32 v100, s60
        v_mov_b32 v101, {FLAGO+2048}
        buffer_store_dword v100, v101, s[44:47], 0 offen sc0 sc1
L_k1_not0:""")
    A("""s_cmp_ge_u32 s2, 128
    s_cbranch_scc1 L_k1_gemm""")
    srd(20,10,11,0,E*4)
    srd(24,8,9,0,E*4)
    srd(28,6,7,0,E*32)
    srd(32,18,19,REC_OFF,0x400000)
    srd(36,18,19,EP_OFF,0x2000000)
    D=8; S=12
    A(f"""s_mul_i32 s50, s2, {CH}
    s_sub_u32 s51, {E}, s50
    s_lshr_b32 s51, s51, 2
    s_min_u32 s51, s51, {CH//4}
    s_lshl_b32 s52, s50, 2
    v_cmp_gt_u32 vcc, s51, v0
    s_mov_b64 s[54:55], vcc
    s_mov_b64 exec, vcc
    s_cbranch_execz L_k1_noidx
    buffer_load_dwordx4 v[{D}:{D+3}], v4, s[20:23], s52 offen {NTI}
    buffer_load_dwordx4 v[{S}:{S+3}], v4, s[24:27], s52 offen {NTI}
L_k1_noidx:
    s_mov_b64 exec, -1
    s_lshl_b32 s53, s3, 10
    s_lshl_b32 s56, s50, 5
    s_add_u32 s56, s56, s53
    v_mov_b32 v16, -1
    v_mov_b32 v17, -1
    v_mov_b32 v18, -1
    v_mov_b32 v19, -1
    v_mov_b32 v20, 0
    v_add_u32 v5, {K1_REC}, v4
    v_lshlrev_b32 v6, 2, v0
    v_add_u32 v6, {K1_HIST}, v6
    ds_write_b128 v5, v[16:19]
    ds_write_b128 v5, v[16:19] offset:16384
    v_cmp_gt_u32 vcc, 0x140, v0
    s_mov_b64 exec, vcc
    ds_write_b32 v6, v20
    s_mov_b64 exec, -1
    v_mov_b32 v20, 1
    v_mov_b32 v22, 21400
    v_mov_b32 v23, -196
    v_mov_b32 v24, 5372
    v_mov_b32 v25, 208
    v_mov_b32 v26, 669
    s_waitcnt lgkmcnt(0)
    s_barrier""")
    for i in range(7):
        if i==6: A("s_cmp_ge_u32 s3, 2\ns_cbranch_scc1 L_k1_dmadone")
        A(f"""s_mov_b32 m0, s53
        s_add_u32 s53, s53, 16384
        buffer_load_dwordx4 v3, s[28:31], s56 offen {NTE} lds
        s_add_u32 s56, s56, 16384""")
    A("L_k1_dmadone:\ns_waitcnt vmcnt(6)")
    stamp(1,0)
    A("""s_mov_b64 exec, s[54:55]
    s_cbranch_execz L_k1_b1""")
    B,RC,HA,SH,OLD,INC,T=28,32,36,40,44,48,60
    for j in range(4):
        A(f"""v_mul_u32_u24 v{T}, v{D+j}, v22
        v_mul_u32_u24 v{T+1}, v{S+j}, v26
        v_lshrrev_b32 v{B+j}, 22, v{T}
        v_lshrrev_b32 v{T+1}, 22, v{T+1}
        v_lshlrev_b32 v{HA+j}, 2, v{B+j}
        v_sub_u32_e64 v{SH+j}, v{T+1}, 1 clamp
        v_add_u32 v{HA+j}, {K1_HIST}, v{HA+j}
        v_lshlrev_b32 v{SH+j}, 3, v{SH+j}
        v_mad_i32_i24 v{T}, v{B+j}, v23, v{D+j}
        v_lshlrev_b32 v{INC+j}, v{SH+j}, v20
        v_mul_u32_u24 v{T+2}, v{T}, v24
        ds_add_rtn_u32 v{OLD+j}, v{HA+j}, v{INC+j}
        v_lshl_or_b32 v{T}, v{S+j}, 8, v{T}
        v_lshrrev_b32 v{T+2}, 16, v{T+2}
        v_mad_u32_u24 v{T+3}, v{T+2}, 52, v25
        v_mad_i32_i24 v{T}, v{T+2}, -12, v{T}
        v_lshrrev_b32 v{T+3}, 8, v{T+3}
        v_lshl_add_u32 v{T+2}, v{T+2}, 2, v{T+1}
        v_sub_u32 v{T}, v{T}, v{T+3}
        v_lshl_or_b32 v{RC+j}, v{T+2}, 24, v{T}""")
    A("""L_k1_b1:
    s_mov_b64 exec, -1
    s_waitcnt lgkmcnt(0)
    s_barrier""")
    stamp(2,0)
    FIN=8
    A(f"""s_mov_b64 s[70:71], 0
    v_cmp_gt_u32 vcc, 128, v0
    s_mov_b64 exec, vcc
    s_cbranch_execz L_k1_nohdr
    ds_read_b32 v{T}, v6
    v_lshlrev_b32 v{T+1}, 8, v0
    v_add_u32 v{T+1}, {K1_REC+252}, v{T+1}
    s_waitcnt lgkmcnt(0)
    v_and_b32 v{T}, 0x3f3f3f, v{T}
    ds_write_b32 v{T+1}, v{T}
L_k1_nohdr:
    s_mov_b64 exec, s[54:55]
    s_cbranch_execz L_k1_b2""")
    for j in range(4): A(f"ds_read_b32 v{FIN+j}, v{HA+j}")
    A(f"v_lshlrev_b32 v{T+8}, 2, v0")
    for j in range(4):
        A(f"v_bfe_u32 v{OLD+j}, v{OLD+j}, v{SH+j}, 8\nv_add_u32 v{INC+j}, -1, v{INC+j}")
    A("s_waitcnt lgkmcnt(0)")
    for j in range(4):
        A(f"""v_and_b32 v{T}, v{FIN+j}, v{INC+j}
        v_sad_u8 v{T}, v{T}, 0, v{OLD+j}
        v_cmp_lt_u32 vcc, 62, v{T}
        v_min_u32 v{T}, 62, v{T}
        s_or_b64 s[70:71], s[70:71], vcc
        v_lshl_add_u32 v{T+1}, v{B+j}, 6, v{T}
        v_and_b32 v{T+2}, 15, v{T}
        v_lshrrev_b32 v{T+3}, 4, v{T}
        v_lshlrev_b32 v{T+1}, 1, v{T+1}
        v_lshl_add_u32 v{T+2}, v{T+2}, 2, v{T+3}
        v_add_u32 v{T+1}, {K1_PERM}, v{T+1}
        v_lshl_add_u32 v{T+2}, v{B+j}, 6, v{T+2}
        v_add_u32 v{T+9}, {j}, v{T+8}
        v_lshlrev_b32 v{T+2}, 2, v{T+2}
        ds_write_b16 v{T+1}, v{T+9}
        v_add_u32 v{T+2}, {K1_REC}, v{T+2}
        ds_write_b32 v{T+2}, v{RC+j}""")
    A(f"""s_mov_b64 exec, s[70:71]
    v_mov_b32 v{T}, {K1_OVF}
    ds_write_b32 v{T}, v20
L_k1_b2:
    s_mov_b64 exec, -1
    s_waitcnt lgkmcnt(0)
    s_barrier""")
    stamp(3,0)
    EI=8; EV=64
    A(f"""ds_read_b128 v[16:19], v5
    ds_read_b128 v[20:23], v5 offset:16384
    v_and_b32 v24, 7, v2
    s_lshl_b32 s57, s3, 5
    v_lshl_add_u32 v24, v24, 2, s57
    v_add_u32 v24, {K1_HIST}, v24
    ds_read_b32 v26, v24
    v_lshrrev_b32 v28, 1, v2
    s_lshl_b32 s57, s3, 10
    s_add_u32 s57, s57, {K1_PERM}
    v_lshl_add_u32 v29, v28, 1, s57""")
    for i in range(8): A(f"ds_read_u16 v{EI+i}, v29 offset:{i*128}")
    A(f"""v_lshrrev_b32 v30, 4, v0
    v_and_b32 v31, 15, v0
    v_lshlrev_b32 v30, 15, v30
    v_lshl_or_b32 v30, v31, 4, v30
    s_lshl_b32 s58, s2, 8
    s_add_u32 s59, s58, 0x200000
    v_and_b32 v31, 1, v2
    v_lshlrev_b32 v31, 4, v31
    s_waitcnt lgkmcnt(0)
    buffer_store_dwordx4 v[16:19], v30, s[32:35], s58 offen {ST}
    buffer_store_dwordx4 v[20:23], v30, s[32:35], s59 offen {ST}
    v_sad_u8 v26, v26, 0, 3
    v_and_b32 v26, -4, v26
    v_min_u32 v26, 64, v26
    s_waitcnt vmcnt(2)
    s_barrier""")
    stamp(6,0)
    for i in range(8):
        A(f"v_lshl_add_u32 v{EI+i}, v{EI+i}, 5, v31\nds_read_b128 v[{EV+4*i}:{EV+4*i+3}], v{EI+i}\nv_readlane_b32 s{60+i}, v26, {i}")
    A(f"""s_lshl_b32 s57, s3, 21
    s_lshl_b32 s58, s2, 11
    s_add_u32 s57, s57, s58""")
    for i in range(8):
        A(f"""v_cmp_gt_u32 vcc, s{60+i}, v28
        s_mov_b64 exec, vcc
        s_waitcnt lgkmcnt({7-i})
        buffer_store_dwordx4 v[{EV+4*i}:{EV+4*i+3}], v3, s[36:39], s57 offen {ST}
        s_mov_b64 exec, -1
        s_add_u32 s57, s57, 0x40000""")
    A(f"s_sub_u32 s57, s57, 0x200000\nv_add_u32 v32, 32, v28")
    for i in range(8):
        L=A.label("k1long")
        A(f"""s_cmp_le_u32 s{60+i}, 32
        s_cbranch_scc1 {L}
        ds_read_u16 v33, v29 offset:{i*128+64}
        s_waitcnt lgkmcnt(0)
        v_lshl_add_u32 v33, v33, 5, v31
        ds_read_b128 v[36:39], v33
        v_cmp_gt_u32 vcc, s{60+i}, v32
        s_mov_b64 exec, vcc
        s_waitcnt lgkmcnt(0)
        buffer_store_dwordx4 v[36:39], v3, s[36:39], s57 offen offset:1024 {ST}
        s_mov_b64 exec, -1
        s_nop 0
{L}:
        s_add_u32 s57, s57, 0x40000""")
    A("s_branch L_k1_flag")
    A("L_k1_gemm:")
    srd(20,4,5,0,N*256)
    srd(24,16,17,0,272*256)
    srd(28,14,15,0,128*256)
    srd(32,12,13,0,128*256)
    srd(36,18,19,TAB_OFF,HS)
    srd(40,18,19,TAB_OFF+HS,HS)
    XR=8; WL=24; XA=40; ACC=56; BF=8
    A(f"""s_sub_u32 s50, s2, 128
    s_lshr_b32 s51, s50, 3
    s_lshl_b32 s52, s3, 4
    s_add_u32 s51, s51, s52
    s_cmp_lt_u32 s51, 196
    s_cselect_b32 s52, 0, 0x10000
    s_add_u32 s51, s51, s52
    s_and_b32 s52, s2, 3
    s_mul_i32 s52, s52, 392
    s_add_u32 s51, s51, s52
    s_bfe_u32 s52, s2, 0x10002
    s_mul_i32 s52, s52, 196
    s_add_u32 s51, s51, s52
    v_mov_b32 v6, 0
    v_mov_b32 v7, {K1_OVF}
    ds_write_b32 v7, v6
    s_cmp_ge_u32 s51, 1568
    s_cbranch_scc1 L_k1_nox
    s_lshl_b32 s52, s51, 12
    v_bfe_u32 v5, v2, 2, 2
    v_and_b32 v6, 3, v2
    v_lshlrev_b32 v5, 10, v5
    v_lshl_or_b32 v5, v6, 4, v5
    v_lshrrev_b32 v6, 4, v2
    v_lshl_or_b32 v5, v6, 6, v5""")
    for ks in range(4): A(f"buffer_load_dwordx4 v[{XR+4*ks}:{XR+4*ks+3}], v5, s[20:23], s52 offen offset:{ks*256} {NTX}")
    A(f"""L_k1_nox:
    s_mov_b32 s53, {128*256}
    s_mov_b32 s54, {128*256+16384}
    s_mov_b32 s55, 16384
    buffer_load_dwordx4 v[{WL}:{WL+3}], v4, s[24:27], s53 offen
    buffer_load_dwordx4 v[{WL+4}:{WL+7}], v4, s[24:27], s54 offen
    buffer_load_dwordx4 v[{WL+8}:{WL+11}], v4, s[28:31], 0 offen
    buffer_load_dwordx4 v[{WL+12}:{WL+15}], v4, s[28:31], s55 offen
    v_lshrrev_b32 v5, 4, v0
    v_lshrrev_b32 v6, 9, v0
    v_mul_u32_u24 v5, {WROW}, v5
    v_lshl_add_u32 v5, v6, 7, v5
    v_bfe_u32 v6, v0, 3, 1
    v_lshl_add_u32 v5, v6, 7, v5
    v_and_b32 v6, 7, v0
    v_lshl_add_u32 v5, v6, 2, v5
    s_mov_b32 s56, 0x05040100
    s_mov_b32 s57, 0x07060302""")
    A(f"""s_cmp_lg_u32 s3, 15
    s_cbranch_scc1 L_k1_noimg
    s_cmp_ge_u32 s50, 72
    s_cbranch_scc1 L_k1_noimg
    v_and_b32 v6, 15, v2
    v_lshrrev_b32 v7, 4, v2
    v_lshlrev_b32 v6, 3, v6
    s_cmp_ge_u32 s50, 64
    s_cbranch_scc1 L_k1_cimg
    s_bfe_u32 s58, s50, 0x10005
    s_bfe_u32 s59, s50, 0x20002
    s_and_b32 s60, s50, 3
    s_lshl_b32 s58, s58, 7
    s_lshl_b32 s59, s59, 1
    s_lshl_b32 s60, s60, 11
    s_add_u32 s58, s58, s59
    s_add_u32 s58, s58, s60
    v_lshl_add_u32 v6, v7, 13, v6
    s_bitcmp1_b32 s50, 4
    s_cbranch_scc1 L_k1_uimg""")
    for i in range(8): A(f"buffer_load_ushort v{64+i}, v6, s[24:27], s58 offen offset:{i*256}")
    A("s_branch L_k1_imgst\nL_k1_uimg:")
    for i in range(8): A(f"buffer_load_ushort v{64+i}, v6, s[32:35], s58 offen offset:{i*256}")
    A(f"""L_k1_imgst:
    s_and_b32 s58, s50, 31
    s_lshl_b32 s58, s58, 10
    s_lshr_b32 s59, s50, 5
    s_mul_i32 s59, s59, {WH}
    s_add_u32 s58, s58, s59
    s_waitcnt vmcnt(0)
    v_lshl_or_b32 v56, v65, 16, v64
    v_lshl_or_b32 v57, v67, 16, v66
    v_lshl_or_b32 v58, v69, 16, v68
    v_lshl_or_b32 v59, v71, 16, v70
    buffer_store_dwordx4 v[56:59], v3, s[44:47], s58 offen {MST}
    s_branch L_k1_noimg
L_k1_cimg:
    s_sub_u32 s61, s50, 64
    s_lshr_b32 s58, s61, 2
    s_and_b32 s59, s61, 3
    s_lshl_b32 s58, s58, 7
    s_lshl_b32 s59, s59, 1
    s_add_u32 s58, s58, s59
    s_add_u32 s58, s58, {256*256}
    v_lshl_add_u32 v6, v7, 10, v6""")
    for i in range(4): A(f"buffer_load_ushort v{56+i}, v6, s[24:27], s58 offen offset:{i*256}")
    A(f"""s_mov_b32 s59, {hex(LOG2E_NEG)}
    s_and_b32 s58, s61, 3
    s_lshl_b32 s58, s58, 9
    s_lshr_b32 s60, s61, 2
    s_mul_i32 s60, s60, {WH}
    s_add_u32 s58, s58, s60
    s_add_u32 s58, s58, {CIMG}
    v_lshlrev_b32 v7, 3, v2
    s_waitcnt vmcnt(0)""")
    for i in range(4): A(f"v_lshlrev_b32 v{56+i}, 16, v{56+i}\nv_mul_f32 v{56+i}, s59, v{56+i}")
    A(f"""v_cvt_pk_bf16_f32 v56, v56, v57
    v_cvt_pk_bf16_f32 v57, v58, v59
    buffer_store_dwordx2 v[56:57], v7, s[44:47], s58 offen {MST}
L_k1_noimg:""")
    for u in range(4):
        w=WL+4*u; base=(u&1)*woff(64)+(u>>1)*256
        A(f"""s_waitcnt vmcnt({3-u})
        v_perm_b32 v60, v{w+2}, v{w}, s56
        v_perm_b32 v61, v{w+2}, v{w}, s57
        v_perm_b32 v62, v{w+3}, v{w+1}, s56
        v_perm_b32 v63, v{w+3}, v{w+1}, s57
        ds_write_b32 v5, v60 offset:{base}
        ds_write_b32 v5, v61 offset:{base+32}
        ds_write_b32 v5, v62 offset:{base+64}
        ds_write_b32 v5, v63 offset:{base+96}""")
    A(f"""v_and_b32 v6, 15, v2
    v_lshrrev_b32 v7, 4, v2
    s_cmp_ge_u32 s51, 1568
    s_cbranch_scc1 L_k1_nobp""")
    qtranspose(XR,WL,XA)
    A(f"""L_k1_nobp:
    v_bfe_u32 v61, v2, 2, 2
    v_lshl_add_u32 v61, v7, 5, v61
    v_mul_u32_u24 v61, {WROW}, v61
    v_lshl_add_u32 v61, v7, 7, v61
    v_and_b32 v62, 3, v2
    v_lshl_add_u32 v5, v62, 3, v61
    s_waitcnt lgkmcnt(0)
    s_barrier""")
    stamp(1,0)
    A("""s_cmp_ge_u32 s51, 1568
    s_cbranch_scc1 L_k1_gdone""")
    seq=[(h,t,mat,ks) for h in range(2) for t in range(4) for mat in range(2) for ks in range(4)]
    def rd(n):
        h,t,mat,ks=seq[n]; o=woff(8*ks)+mat*256+h*128+t*32; b=BF+4*(n%8)
        A(f"ds_read_b64_tr_b16 v[{b}:{b+1}], v5 offset:{o}\nds_read_b64_tr_b16 v[{b+2}:{b+3}], v5 offset:{o+4*WROW}")
    def acc(h,t,mat): return ACC+((h*4+t)*2+mat)*4
    PF=6
    for n in range(PF): rd(n)
    for n in range(64):
        h,t,mat,ks=seq[n]; b=BF+4*(n%8); a=acc(h,t,mat)
        out=min(63-n,PF-1)
        A(f"s_waitcnt lgkmcnt({2*out})")
        A(f"v_mfma_f32_16x16x32_bf16 v[{a}:{a+3}], v[{XA+4*ks}:{XA+4*ks+3}], v[{b}:{b+3}], {'0' if ks==0 else f'v[{a}:{a+3}]'}")
        if n+PF<64: rd(n+PF)
    stamp(2,0)
    A(f"""v_mov_b32 v8, {hex(LOG2E_NEG)}
    v_mov_b32 v9, 0x7fff
    v_mov_b32 v10, 0xffff0000
    v_mov_b32 v11, 0
    v_lshlrev_b32 v12, 10, v7
    v_lshl_or_b32 v12, v6, 4, v12
    s_nop 3""")
    for h in range(2):
        for r in range(4):
            o=16+4*((h*4+r)%2); tt=24
            for t in range(4): A(f"v_mul_f32 v{tt+t}, v8, v{acc(h,t,0)+r}")
            A(f"v_max3_f32 v11, abs(v{tt}), abs(v{tt+1}), v11\nv_max3_f32 v11, abs(v{tt+2}), abs(v{tt+3}), v11")
            for t in range(4): A(f"v_exp_f32 v{tt+t}, v{tt+t}")
            A("s_nop 0")
            for t in range(4): A(f"v_cvt_pk_f16_f32 v{tt+t}, v{tt+t}, 0")
            for t in range(4): A(f"v_xad_u32 v{tt+4+t}, v{tt+t}, v9, v{acc(h,t,1)+r}")
            for t in range(4): A(f"v_bfi_b32 v{o+t}, v10, v{tt+4+t}, v{tt+t}")
            A(f"buffer_store_dwordx4 v[{o}:{o+3}], v12, s[{36+4*h}:{39+4*h}], s52 offen offset:{r*256} {ST}")
    A(f"""v_mov_b32 v13, 0x41600000
    v_mov_b32 v14, 1
    v_mov_b32 v15, {K1_OVF}
    v_cmp_nle_f32 vcc, v11, v13""")
    A(f"""s_mov_b64 exec, vcc
    ds_write_b32 v15, v14
    s_mov_b64 exec, -1
L_k1_gdone:
    s_waitcnt lgkmcnt(0)
    s_barrier
L_k1_flag:
    s_cmp_lg_u32 s3, 0
    s_cbranch_scc1 L_k1_fin
    v_mov_b32 v15, {K1_OVF}
    ds_read_b32 v14, v15
    s_lshl_b32 s58, s2, 2
    s_add_u32 s58, s58, {FLAGO}
    v_mov_b32 v15, 0
    s_mov_b64 exec, 1
    s_waitcnt lgkmcnt(0)
    buffer_store_dword v14, v15, s[44:47], s58 offen {MST}
    s_mov_b64 exec, -1
L_k1_fin:""")
    if STAMP:
        stamp(4,0)
        A("s_waitcnt vmcnt(0)")
        stamp(5,0)
        stamp_flush()
    if OPT.get('k1delay'):
        A(f"""s_memrealtime s[60:61]
        s_waitcnt lgkmcnt(0)
        s_add_u32 s62, s60, {int(OPT['k1delay'])*100}
L_k1_spin:
        s_memrealtime s[60:61]
        s_waitcnt lgkmcnt(0)
        s_cmp_lt_u32 s60, s62
        s_cbranch_scc1 L_k1_spin""")
    A("L_k1_end:\ns_endpgm")

def spin(T,tag):
    A(f"""s_load_dwordx2 s[60:61], s[0:1], 72
    s_waitcnt lgkmcnt(0)
    s_add_u32 s60, s60, {MISC_OFF+FLAGO+2048}
    s_addc_u32 s61, s61, 0
    s_load_dword s62, s[60:61], 0
    s_waitcnt lgkmcnt(0)
    s_add_u32 s62, s62, {int(float(T)*100)}
L_spin_{tag}:
    s_memrealtime s[60:61]
    s_waitcnt lgkmcnt(0)
    s_cmp_lt_u32 s60, s62
    s_cbranch_scc1 L_spin_{tag}""")

ECAP=3456; BCAP=96; WCAP=4*BCAP
K2_HIST=0; K2_FL=256; K2_C1=260; K2_C2=264; K2_AL=272; K2_TOT=288; K2_OH=320; K2_L1=1024; K2_L2=K2_L1+16*WCAP*4; K2_E=K2_L2+16*WCAP*4
K2_Z=K2_E+ECAP*32; K2_W=K2_Z-34816; K2_SRC=K2_W-8192; K2_LDS=K2_Z+32
assert K2_LDS<=163840 and K2_L1%256==0 and K2_L2%256==0 and K2_SRC-K2_E>=2048*32
O0=K2_L1//256; O1o=K2_L2//256; LST=O1o-O0

def k2():
    L=0; D=32; EE=48; ACC=64; GB=80; AO=96; S=100; LM,LS=102,103; G=104; EA,OA,SA,LMX=108,109,110,111
    WP,CPt=112,113
    cJ16,cG8,cG8O,cS,pL1,pLm,pLs,LANE=114,115,116,117,118,119,120,121
    L16,TID=122,123
    A(".p2align 8\nmain_kernel:")
    A(f"""s_cmp_ge_u32 s2, 256
    s_cbranch_scc1 L_k2_end""")
    if OPT.get('until0'): spin(OPT['until0'],'a')
    A(f"""s_load_dwordx2 s[18:19], s[0:1], 72
    s_load_dwordx2 s[4:5], s[0:1], 0
    s_load_dwordx2 s[6:7], s[0:1], 56
    v_mov_b32 v{TID}, v0
    v_lshrrev_b32 v1, 6, v0
    v_and_b32 v{LANE}, 63, v0
    v_readfirstlane_b32 s3, v1
    v_lshlrev_b32 v{L16}, 4, v{LANE}
    v_lshlrev_b32 v4, 4, v0
    s_bfe_u32 s40, s2, 0x10002
    s_lshr_b32 s41, s2, 3
    s_and_b32 s42, s2, 3
    s_lshl_b32 s42, s42, 5
    s_add_u32 s41, s41, s42
    s_lshl_b32 s45, s41, 15
    s_add_u32 s46, s45, 16384
    s_mov_b32 s10, 0x400000
    s_mov_b32 s11, 0x20000
    s_setprio 3
    s_waitcnt lgkmcnt(0)
    s_add_u32 s8, s18, {hex(REC_OFF)}
    s_addc_u32 s9, s19, 0""")
    R=0; RK=8; HA=16; XR=32
    A(f"""buffer_load_dwordx4 v[{R}:{R+3}], v4, s[8:11], s45 offen {NT}
    buffer_load_dwordx4 v[{R+4}:{R+7}], v4, s[8:11], s46 offen {NT}""")
    stamp_init(1,3,18,19)
    stamp(0,1)
    srd(24,18,19,MISC_OFF,MISC_SZ)
    A(f"""s_lshl_b32 s45, s3, 6
    s_add_u32 s45, s45, {FLAGO}
    v_lshlrev_b32 v25, 2, v{LANE}
    s_mov_b64 exec, 0xffff
    buffer_load_dword v24, v25, s[24:27], s45 offen
    s_mov_b64 exec, -1""")
    A(f"""s_add_u32 s42, s3, 4
    s_mul_i32 s42, s42, 52
    s_lshr_b32 s42, s42, 8
    s_add_u32 s43, s3, 5
    s_mul_i32 s43, s43, 52
    s_lshr_b32 s43, s43, 8
    s_sub_u32 s43, s43, s42
    s_add_u32 s43, s43, 12
    s_mul_i32 s44, s3, 12
    s_add_u32 s42, s42, s44
    s_mul_i32 s44, s41, {BS}
    s_add_u32 s44, s44, s42""")
    srd(20,4,5,0,N*256)
    A(f"""s_lshl_b32 s45, s41, 18
    s_add_u32 s12, s18, s45
    s_addc_u32 s13, s19, 0
    s_add_u32 s12, s12, {hex(EP_OFF)}
    s_addc_u32 s13, s13, 0
    s_mov_b32 s14, 0x40000
    s_mov_b32 s15, 0x20000
    s_mul_i32 s45, s40, {HS}
    s_add_u32 s45, s45, {WSB}
    s_add_u32 s16, s18, s45
    s_addc_u32 s17, s19, 0
    s_mov_b32 s18, {HS}
    s_mov_b32 s19, 0x20000""")
    srd(28,6,7,0,N*256)
    A(f"""v_subrev_u32 v28, 80, v{TID}
    v_and_b32 v29, 7, v28
    v_lshrrev_b32 v30, 4, v28
    v_and_b32 v28, 8, v28
    v_lshlrev_b32 v28, 1, v28
    v_mov_b32 v31, 0x3f80
    v_cmp_eq_u32 vcc, v29, v30
    v_lshlrev_b32 v31, v28, v31
    v_lshlrev_b32 v29, 2, v{TID}
    v_cndmask_b32 v31, 0, v31, vcc
    s_cmp_lg_u32 s3, 1
    s_cbranch_scc1 L_k2_noal
    s_mov_b32 s45, {2048<<16}
    s_mov_b32 s46, 3072
    v_writelane_b32 v31, s45, 4
    v_writelane_b32 v31, s46, 5
L_k2_noal:
    v_cmp_gt_u32 vcc, 216, v{TID}
    s_mov_b64 exec, vcc
    ds_write_b32 v29, v31
    s_cmp_lg_u32 s3, 0
    s_cbranch_scc1 L_k2_noz
    s_mov_b64 exec, 0xff
    v_add_u32 v29, {K2_Z}, v29
    ds_write_b32 v29, v31
L_k2_noz:
    s_mov_b64 exec, -1
    v_bfe_u32 v28, v{LANE}, 2, 2
    v_and_b32 v29, 3, v{LANE}
    v_lshlrev_b32 v28, 10, v28
    v_lshl_or_b32 v28, v29, 4, v28
    v_lshrrev_b32 v29, 4, v{LANE}
    v_lshl_or_b32 v28, v29, 6, v28
    s_cmp_eq_u32 s43, 13
    s_cselect_b32 s50, -1, 0x0fff0fff
    s_lshl_b32 s45, s44, 8
    s_lshl_b32 s47, s3, 11
    s_add_u32 m0, s47, {K2_W}
    s_mul_i32 s48, s40, {WH}
    s_add_u32 s47, s47, s48""")
    for i in range(16): A(f"v_mov_b32 v{XR+i}, 0")
    A(f"""s_waitcnt lgkmcnt(0)
    s_barrier
    s_cmp_lg_u32 s3, 15
    s_cbranch_scc1 L_k2_noc
    buffer_load_dwordx4 v{L16}, s[24:27], s47 offen offset:2048 lds
    buffer_load_dwordx4 v{L16}, s[24:27], s47 offen offset:3072 lds
L_k2_noc:
    buffer_load_dwordx4 v{L16}, s[24:27], s47 offen lds
    buffer_load_dwordx4 v{L16}, s[24:27], s47 offen offset:1024 lds
    v_mov_b32 v78, v28
    s_mov_b32 s84, s50
    s_mov_b32 s85, 0x0fff0fff
    s_mov_b32 s86, s45""")
    XL=int(OPT.get('xlate',16))
    def xload(tag, early):
        A(f"s_cmp_{'ge' if early else 'lt'}_u32 s3, {XL}\ns_cbranch_scc1 L_k2_x{tag}\ns_mov_b32 exec_lo, s84\ns_mov_b32 exec_hi, s84")
        for ks in range(4):
            A(f"buffer_load_dwordx4 v[{XR+4*ks}:{XR+4*ks+3}], v78, s[20:23], s86 offen offset:{ks*256} {NT}")
            if ks==0: A("s_mov_b32 exec_lo, s85\ns_mov_b32 exec_hi, s85")
        A(f"s_mov_b64 exec, -1\nL_k2_x{tag}:")
    xload('e',True)
    A(f"""    v_and_b32 v28, 15, v{LANE}
    v_lshrrev_b32 v29, 4, v{LANE}
    v_lshlrev_b32 v{cJ16}, 4, v28
    v_lshlrev_b32 v30, 3, v29
    v_add_u32 v{cG8}, {K2_E}, v30
    v_add_u32 v{cG8O}, {K2_OH}, v30
    v_and_b32 v30, 3, v{LANE}
    v_lshlrev_b32 v30, 3, v30
    v_add_u32 v{cS}, {K2_OH}, v30
    s_mul_i32 s47, s3, {WCAP*4}
    s_add_u32 s48, s47, {K2_L2}
    s_add_u32 s47, s47, {K2_L1}
    v_lshl_add_u32 v{pL1}, v29, 4, s47
    v_lshl_add_u32 v{pLm}, v28, 2, s48
    v_and_b32 v30, -4, v{LANE}
    v_add_u32 v{pLs}, s48, v30
    v_lshrrev_b32 v30, 4, v{TID}
    v_lshl_add_u32 v29, v30, 6, v28
    v_lshl_or_b32 v28, v28, 16, v28
    v_mov_b32 v31, 1
    v_mov_b32 v30, {OPT.get('srcmask','0x7fff00')}
    v_mov_b32 v25, 0
    v_mov_b32 v72, 0x0c0c0100
    v_mov_b32 v73, 0x202
    v_mov_b32 v74, 0x05040c00
    v_mov_b32 v75, {K2_SRC}
    s_mov_b32 s50, 0x80008000
    s_mov_b32 s51, 0x80008000
    s_mov_b32 s68, 0x0c010c00
    s_mov_b32 s69, 0x0c0c0c02
    s_mov_b32 s70, 0x01000100
    s_mov_b32 s71, 0x05040302
    s_mov_b32 s72, 0x0c010c00
    s_cmp_lt_u32 s3, {XL}
    s_cbranch_scc1 L_k2_rw
    s_waitcnt vmcnt(2)
L_k2_rw:
    s_waitcnt vmcnt(6)""")
    stamp(1,1)
    AL=64; DD=68; PR=76
    A(f"""v_perm_b32 v{AL}, v{R+3}, v{R+3}, s68
    v_perm_b32 v{AL+1}, v{R+3}, v{R+3}, s69
    v_perm_b32 v{AL+2}, v{R+7}, v{R+7}, s68
    v_perm_b32 v{AL+3}, v{R+7}, v{R+7}, s69
    s_mov_b64 exec, s[50:51]
    ds_add_rtn_u64 v[{AL}:{AL+1}], v25, v[{AL}:{AL+1}] offset:{K2_AL}
    ds_add_rtn_u64 v[{AL+2}:{AL+3}], v25, v[{AL+2}:{AL+3}] offset:{K2_AL}
    s_mov_b64 exec, 0xffff
    ds_or_b32 v25, v24 offset:{K2_FL}
    s_mov_b64 exec, -1""")
    MK=52; O1=48
    order=[0,4,1,5,2,6,3,7]
    for j in order:
        Lb=A.label("k2h")
        A(f"v_cmp_le_i32 s[{MK+2*j}:{MK+2*j+1}], 0, v{R+j}")
        if j&3==3: A(f"s_andn2_b64 s[{MK+2*j}:{MK+2*j+1}], s[{MK+2*j}:{MK+2*j+1}], s[50:51]")
        A(f"s_mov_b64 exec, s[{MK+2*j}:{MK+2*j+1}]")
        if j&3>=2: A(f"s_cbranch_execz {Lb}")
        A(f"""v_lshlrev_b32_sdwa v{HA+j}, 2, v{R+j} dst_sel:DWORD dst_unused:UNUSED_PAD src0_sel:DWORD src1_sel:BYTE_3
        v_bfe_u32 v{56+j}, v{R+j}, 24, 2
        ds_add_rtn_u32 v{RK+j}, v{HA+j}, v31 offset:{K2_HIST}
        v_and_b32 v{O1+j}, v30, v{R+j}
        v_mad_u32_u24 v{56+j}, v{56+j}, v73, v72""")
        if j&3>=2: A(f"{Lb}:")
        A("s_mov_b64 exec, -1")
    for u in range(2):
        h=R+3+4*u
        A(f"v_lshl_add_u32 v{PR+u}, v{h}, 8, v{h}\nv_perm_b32 v{PR+u}, v{PR+u}, v{PR+u}, s72")
    A("s_waitcnt lgkmcnt(0)")
    for u in range(2):
        A(f"""v_perm_b32 v{DD+2*u}, v{AL+2*u}, v{AL+2*u}, s70
        v_perm_b32 v{DD+2*u+1}, v{AL+2*u+1}, v{AL+2*u}, s71
        v_pk_sub_u16 v{DD+2*u+1}, v{DD+2*u+1}, v{PR+u}""")
    A("s_nop 0")
    for k in (0,2,1,3): A(f"v_mov_b32_dpp v{DD+k}, v{DD+k} row_newbcast:15 row_mask:0xf bank_mask:0xf")
    for k in (0,2,1,3): A(f"v_pk_add_u16 v{DD+k}, v{DD+k}, v28")
    for j in order:
        Lb=A.label("k2s"); u=j>>2
        A(f"s_mov_b64 exec, s[{MK+2*j}:{MK+2*j+1}]")
        if j&3>=2: A(f"s_cbranch_execz {Lb}")
        A(f"""v_perm_b32 v24, v{DD+2*u+1}, v{DD+2*u}, v{56+j}
        v_mad_u32_u24 v{RK+j}, v{HA+j}, 24, v{RK+j}""")
        if j&3: A(f"v_add_u32 v24, {16*(j&3)}, v24")
        A(f"v_lshlrev_b32 v{RK+j}, 2, v{RK+j}")
        if j: A(f"v_add_u32 v{HA+j}, {16*(j&3)+4096*u}, v29")
        A(f"""v_perm_b32 v{R+j}, v24, v{R+j}, v74
        v_lshl_add_u32 v24, v24, 1, v75
        ds_write2st64_b32 v{RK+j}, v{O1+j}, v{R+j} offset0:{O0} offset1:{O1o}
        ds_write_b16 v24, v{HA+j if j else 29}""")
        if j&3>=2: A(f"{Lb}:")
    A("s_mov_b64 exec, -1")
    xload('l',False)
    A(f"""v_lshlrev_b32 v24, 2, v{LANE}
    v_add_u32 v26, s47, v24
    v_and_b32 v27, -2, v{LANE}
    s_lshl_b32 s45, s3, 6
    s_add_u32 s45, s45, {K2_SRC}
    v_add_u32 v27, s45, v27
    v_and_b32 v28, 1, v{LANE}
    v_lshlrev_b32 v28, 4, v28
    s_lshl_b32 s45, s3, 2
    s_waitcnt vmcnt(4) lgkmcnt(0)
    s_barrier""")
    stamp(2,1)
    H0=0; FLr=1; ALr=2; SR=4; CP=8; S1=124; S2=126
    A(f"""ds_read_b32 v{H0}, v24 offset:{K2_HIST}
    ds_read_b32 v{FLr}, v25 offset:{K2_FL}
    ds_read_b64 v[{ALr}:{ALr+1}], v25 offset:{K2_AL}""")
    for i in range(4): A(f"ds_read_u16 v{SR+i}, v27 offset:{i*1024}")
    for b in range(1,4):
        A(f"""ds_read_b32 v{CP+4*b}, v26 offset:{b*BCAP*4}
        ds_read_b32 v{CP+4*b+1}, v26 offset:{b*BCAP*4+LST*256}""")
    A(f"""s_waitcnt lgkmcnt(6)
    v_cmp_lt_u32 vcc, {BCAP}, v{H0}
    v_readfirstlane_b32 s70, v{FLr}
    v_readfirstlane_b32 s76, v{ALr}
    v_readfirstlane_b32 s78, v{ALr+1}""")
    for i in range(4):
        A(f"v_readlane_b32 s{72+i}, v{H0}, s45\ns_add_u32 s45, s45, 1")
    A(f"""s_cmp_lg_u64 vcc, 0
    s_cbranch_scc1 L_k2_fallback
    s_cmp_lg_u32 s70, 0
    s_cbranch_scc1 L_k2_fallback
    s_lshr_b32 s77, s76, 16
    s_and_b32 s76, s76, 0xffff
    s_sub_u32 s77, s77, 2048
    s_sub_u32 s78, s78, 3072
    s_max_u32 s70, s77, s78
    s_cmp_gt_u32 s70, 1024
    s_cbranch_scc1 L_k2_fallback
    s_cmp_gt_u32 s76, 2048
    s_cbranch_scc1 L_k2_fallback
    s_add_u32 s79, s76, s77
    s_add_u32 s70, s79, s78
    s_cmp_gt_u32 s70, {ECAP-32}
    s_cbranch_scc1 L_k2_fallback""")
    def dma(cnt, n, base, SR, tag):
        A(f"s_lshl_b32 s45, s3, 5")
        if base is None: A(f"s_lshl_b32 s46, s3, 10\ns_add_u32 m0, s46, {K2_E}")
        else: A(f"s_add_u32 s46, s45, s{base}\ns_lshl_b32 s46, s46, 5\ns_add_u32 m0, s46, {K2_E}")
        for i in range(cnt):
            A(f"""s_cmp_ge_u32 s45, s{n}
            s_cbranch_scc1 L_dma_{tag}
            buffer_load_dwordx4 v{SR+i}, s[12:15], 0 offen {NT} lds""")
            if i<cnt-1: A("s_add_u32 s45, s45, 512\ns_add_u32 m0, m0, 16384")
        A(f"L_dma_{tag}:")
    for i in range(4): A(f"v_lshl_add_u32 v{SR+i}, v{SR+i}, 5, v28")
    dma(4,76,None,SR,'p0')
    if OPT.get('fine'): stamp(5,1)
    A("s_max_u32 s45, s73, s74\ns_max_u32 s45, s45, s75\ns_cmp_le_u32 s45, 64\ns_cbranch_scc1 L_k2_nolong")
    for b in range(1,4):
        A(f"""ds_read_b32 v{CP+4*b+2}, v26 offset:{b*BCAP*4+256}
        ds_read_b32 v{CP+4*b+3}, v26 offset:{b*BCAP*4+256+LST*256}""")
    A("L_k2_nolong:")
    for i in range(2): A(f"ds_read_u16 v{S1+i}, v27 offset:{4096+i*1024}\nds_read_u16 v{S2+i}, v27 offset:{6144+i*1024}")
    A(f"""s_mov_b32 s68, s72
    v_add_u32 v29, 64, v{LANE}
    s_sub_u32 s48, s76, 2048
    s_sub_u32 s49, s79, 3072
    s_lshl_b32 s48, s48, 16
    s_lshl_b32 s49, s49, 16
    s_waitcnt lgkmcnt(0)""")
    for i in range(4): A(f"v_lshl_add_u32 v{S1+i}, v{S1+i}, 5, v28")
    for b in range(1,4):
        Lb=A.label("cp")
        if b>=2: A(f"v_add_u32 v{CP+4*b+1}, s{46+b}, v{CP+4*b+1}")
        A(f"""v_cmp_gt_u32 vcc, s{72+b}, v{LANE}
        v_lshl_add_u32 v24, s68, 2, v26
        s_add_u32 s68, s68, s{72+b}
        s_mov_b64 exec, vcc
        ds_write2st64_b32 v24, v{CP+4*b}, v{CP+4*b+1} offset0:0 offset1:{LST}
        s_cmp_le_u32 s{72+b}, 64
        s_cbranch_scc1 {Lb}""")
        if b>=2: A(f"v_add_u32 v{CP+4*b+3}, s{46+b}, v{CP+4*b+3}")
        A(f"""v_cmp_gt_u32 vcc, s{72+b}, v29
        s_mov_b64 exec, vcc
        ds_write2st64_b32 v24, v{CP+4*b+2}, v{CP+4*b+3} offset0:1 offset1:{LST+1}
{Lb}:
        s_mov_b64 exec, -1""")
    A(f"""s_sub_u32 s46, 0, s68
    s_and_b32 s46, s46, 31
    v_cmp_gt_u32 vcc, s46, v{LANE}
    v_lshl_add_u32 v24, s68, 2, v26
    v_mov_b32 v30, {N<<8}
    v_mov_b32 v31, {hex((ECAP<<16)|16)}
    s_mov_b64 exec, vcc
    ds_write2st64_b32 v24, v30, v31 offset0:0 offset1:{LST}
    s_mov_b64 exec, -1
    s_add_u32 s69, s72, s73
    s_add_u32 s80, s69, s74
    s_lshr_b32 s69, s69, 4
    s_lshr_b32 s80, s80, 4
    s_add_u32 s68, s68, 15
    s_lshr_b32 s68, s68, 4""")
    XA=96
    def gathers(Gr, q):
        for i in range(4):
            A(f"v_or_b32 v{Gr+i}, v{Gr+i}, v{cJ16}")
            if not OPT.get('nogather'): A(f"buffer_load_dwordx4 v[{L+16*q+4*i}:{L+16*q+4*i+3}], v{Gr+i}, s[16:19], 0 offen {hint('gld')}")
    def aread(lm):
        A(f"""v_mad_u32_u16 v{EA}, v{lm}, 32, v{cG8} op_sel:[1,0,0,0]
        v_mad_u32_u16 v{OA}, v{lm}, 32, v{cG8O}
        ds_read_b64 v[{AO}:{AO+1}], v{EA}
        ds_read_b64 v[{AO+2}:{AO+3}], v{OA}""")
    A(f"""v_add_u32 v{WP}, {K2_W}, v{L16}
    v_lshrrev_b32 v{CPt}, 1, v{L16}
    v_add_u32 v{CPt}, {K2_W+CIMG}, v{CPt}
    s_lshl_b32 s45, s3, 5
    s_sub_u32 s45, s76, s45
    s_cmp_gt_i32 s45, 1024
    s_cbranch_scc1 L_k2_x3
    s_waitcnt vmcnt(0)
L_k2_x3:
    s_waitcnt vmcnt(3)""")
    if OPT.get('fine'): stamp(6,1)
    for t in range(4): A(f"ds_read_b64 v[{GB+4*t}:{GB+4*t+1}], v{CPt} offset:{t*512}")
    qtranspose(XR,EE,XA)
    BFR=32
    seq=[(mat,t,ks) for mat in range(2) for t in range(4) for ks in range(4)]
    def rd(n):
        mat,t,ks=seq[n]; b=BFR+4*(n%8)
        A(f"ds_read_b128 v[{b}:{b+3}], v{WP} offset:{n*1024}")
    PF=6
    for n in range(PF): rd(n)
    for n in range(32):
        mat,t,ks=seq[n]; b=BFR+4*(n%8); a=ACC+4*t
        if n==16:
            A(f"s_mov_b32 s45, {hex(LOG2E_NEG)}\ns_nop 6")
            for tt in range(4):
                for r in range(4): A(f"v_mul_f32 v{ACC+4*tt+r}, s45, v{ACC+4*tt+r}")
                A(f"v_cvt_pk_bf16_f32 v{GB+4*tt+2}, v{ACC+4*tt}, v{ACC+4*tt+1}\nv_cvt_pk_bf16_f32 v{GB+4*tt+3}, v{ACC+4*tt+2}, v{ACC+4*tt+3}")
        out=min(31-n,PF-1)
        A(f"s_waitcnt lgkmcnt({out})")
        A(f"v_mfma_f32_16x16x32_bf16 v[{a}:{a+3}], v[{XA+4*ks}:{XA+4*ks+3}], v[{b}:{b+3}], {'0' if ks==0 else f'v[{a}:{a+3}]'}")
        if n+PF<32: rd(n+PF)
    if OPT.get('fine'): stamp(7,1)
    A(f"""ds_read_b128 v[{EE}:{EE+3}], v{pL1}
    ds_read_b128 v[{G}:{G+3}], v{pL1} offset:64
    ds_read_b32 v{LM}, v{pLm}
    ds_read_b32 v{WP}, v{pLm} offset:64
    ds_read_b32 v{LS}, v{pLs}
    v_mov_b32 v{TID}, {K2_C1}
    v_mov_b32 v{L16}, 1
    s_lshl_b32 s45, s3, 5
    s_cmp_lt_u32 s45, s77
    s_cselect_b32 s71, 1, 0
    s_waitcnt vmcnt(0) lgkmcnt(0)""")
    def arrive(k):
        A(f"""s_mov_b64 exec, 1
        ds_add_u32 v{TID}, v{L16} offset:{4*k}
        s_mov_b64 exec, -1""")
    def check(k,tag):
        A(f"""L_k2_spin{tag}:
        ds_read_b32 v{SA}, v{TID} offset:{4*k}
        s_waitcnt lgkmcnt(0)
        v_readfirstlane_b32 s45, v{SA}
        s_cmp_eq_u32 s45, 16
        s_cbranch_scc1 L_k2_ok{tag}
        s_sleep 1
        s_branch L_k2_spin{tag}
L_k2_ok{tag}:""")
    def ensure2(tag):
        A(f"s_cmp_eq_u32 s81, -1\ns_cbranch_scc1 L_k2_iss{tag}")
        dma(2,78,79,S2,'e'+tag)
        A(f"""s_mov_b32 s81, -1
L_k2_iss{tag}:
        s_cmp_eq_u32 s82, -1
        s_cbranch_scc1 L_k2_arr{tag}
        s_mov_b32 s82, -1
        s_waitcnt vmcnt(0)""")
        arrive(1)
        A(f"L_k2_arr{tag}:")
        check(1,'c'+tag)
    REL=OPT.get('rel','1')=='1'
    TP,TD,TR=111,113,124
    if REL:
        A(f"""s_and_b32 s45, s3, 3
        s_lshl_b32 s45, s45, 2
        s_add_u32 s45, s45, {K2_TOT}
        v_mov_b32 v{TP}, s45
        v_mov_b32 v{TD}, s68
        s_mov_b64 exec, 1
        ds_add_u32 v{TP}, v{TD}
        s_mov_b64 exec, -1
        s_waitcnt lgkmcnt(0)
        v_mov_b32 v{TD}, -2""")
    arrive(2)
    gathers(EE,0)
    gathers(G,1)
    stamp(3,1)
    check(2,'w')
    if OPT.get('untilL'): spin(OPT['untilL'],'c')
    stamp(4,1)
    if STAMP: A('s_memtime s[100:101]\ns_waitcnt lgkmcnt(0)')
    if OPT.get('tl'):
        A('s_mov_b32 s90, s94')
        for i in range(1,8): A(f's_mov_b32 s{90+i}, 0')
    if OPT.get('reg'):
        A('s_mov_b32 s92, s68\ns_mov_b32 s93, s94\ns_getreg_b32 s91, hwreg(HW_REG_HW_ID)\ns_getreg_b32 s45, hwreg(HW_REG_XCC_ID)\ns_and_b32 s45, s45, 15\ns_and_b32 s91, s91, 0xffffff\ns_lshl_b32 s45, s45, 24\ns_or_b32 s91, s91, s45')
    dma(2,77,76,S1,'p1')
    A(f"""s_max_u32 s81, s69, 2
    s_add_u32 s82, s81, 1
    s_mov_b32 s83, 3
    s_cmp_gt_u32 s69, 3
    s_cbranch_scc1 L_k2_nb0
    s_mov_b32 s83, 0
    s_waitcnt vmcnt(0)""")
    arrive(0)
    A("s_cmp_gt_u32 s69, 1\ns_cbranch_scc1 L_k2_nb0")
    check(0,'p')
    A("s_cmp_gt_u32 s80, 1\ns_cbranch_scc1 L_k2_nb0")
    ensure2('p')
    A("L_k2_nb0:")
    def gate():
        if OPT.get('nomfma'): return
        for t in range(4): A(f"v_mfma_f32_16x16x32_bf16 v[{D+4*t}:{D+4*t+3}], v[{AO}:{AO+3}], v[{GB+4*t}:{GB+4*t+3}], 0")
    aread(LM)
    A("s_mov_b32 s70, 2\ns_waitcnt lgkmcnt(0)")
    gate()
    aread(WP)
    A("""s_setprio 2
    s_cmp_eq_u32 s68, 0
    s_cbranch_scc1 L_k2_done""")
    def group(q):
        Lq=L+16*q; o=64*q
        A(f"""v_mad_u32_u16 v{SA}, v{LS}, 32, v{cS}
        ds_read_b128 v[{G}:{G+3}], v{pL1} offset:{128+o}
        ds_read_b32 v{LM}, v{pLm} offset:{128+o}
        ds_read_b64_tr_b16 v[{S}:{S+1}], v{SA}
        ds_read_b32 v{LS}, v{pLs} offset:{64+o}""")
        if q==1: A(f"v_add_u32 v{pL1}, 128, v{pL1}\nv_add_u32 v{pLm}, 128, v{pLm}\nv_add_u32 v{pLs}, 128, v{pLs}")
        def setp(tag, lv):
            p3,p2,p1=[int(x) for x in OPT.get('pth','11,7,4').split(',')]
            A(f"""s_sub_u32 s45, s68, s70
            s_cmp_ge_i32 s45, {p3-2}
            s_cbranch_scc1 L_k2_p3{tag}
            s_cmp_ge_i32 s45, {p2-2}
            s_cbranch_scc1 L_k2_p2{tag}
            s_cmp_ge_i32 s45, {p1-2}
            s_cbranch_scc1 L_k2_p1{tag}
            s_setprio {lv[3]}
            s_branch L_k2_pd{tag}
L_k2_p3{tag}:
            s_setprio {lv[0]}
            s_branch L_k2_pd{tag}
L_k2_p2{tag}:
            s_setprio {lv[1]}
            s_branch L_k2_pd{tag}
L_k2_p1{tag}:
            s_setprio {lv[2]}
L_k2_pd{tag}:""")
        YL=OPT.get('yield')
        if q==0 and REL:
            A(f"s_mov_b64 exec, 1\nds_add_rtn_u32 v{TR}, v{TP}, v{TD}\ns_mov_b64 exec, -1")
        if q==0 and not YL and not REL: setp('a',[int(x) for x in OPT.get('plv','2,1,1,0').split(',')])
        if not OPT.get('nocomp'):
            for t in range(4):
                for r in range(4): A(f"v_exp_f32 v{EE+4*r+t}, v{D+4*t+r}")
        if OPT.get('tl') and q==0: A("s_memrealtime s[88:89]")
        A("s_waitcnt lgkmcnt(0)")
        if OPT.get('tl') and q==0: A("s_lshr_b32 s45, s70, 1\ns_min_u32 s45, s45, 7\ns_mov_b32 m0, s45\ns_nop 0\ns_movreld_b32 s90, s88")
        gate()
        if q==0 and REL:
            hi,lo=[int(x) for x in OPT.get('rth','3,-3').split(',')]
            A(f"""v_readfirstlane_b32 s46, v{TR}
            s_sub_u32 s45, s68, s70
            s_lshl_b32 s45, s45, 2
            s_sub_u32 s45, s45, s46
            s_cmp_ge_i32 s45, {hi-8}
            s_cbranch_scc1 L_k2_r2
            s_cmp_ge_i32 s45, {lo-8}
            s_cbranch_scc1 L_k2_r1
            s_setprio 0
            s_branch L_k2_rd
L_k2_r2:
            s_setprio 2
            s_branch L_k2_rd
L_k2_r1:
            s_setprio 1
L_k2_rd:""")
        A(f"""s_cmp_lg_u32 s70, s69
        s_cbranch_scc1 L_k2_nb_{q}""")
        check(0,q)
        A(f"""L_k2_nb_{q}:
        s_cmp_lg_u32 s70, s80
        s_cbranch_scc1 L_k2_nc_{q}""")
        ensure2(str(q))
        A(f"L_k2_nc_{q}:")
        aread(LM)
        A(f"""s_add_u32 s45, s71, 2
        s_cmp_lt_u32 s70, s45
        s_cbranch_scc1 L_k2_w7_{q}
        s_waitcnt vmcnt(4)
L_k2_w7_{q}:
        s_cmp_le_u32 s70, s68
        s_cbranch_scc1 L_k2_w0_{q}
        s_waitcnt vmcnt(0)
L_k2_w0_{q}:
        s_waitcnt vmcnt(5)""")
        if q==1:
            A("s_cmp_lg_u32 s70, s83\ns_cbranch_scc1 L_k2_noarr")
            arrive(0)
            A("L_k2_noarr:")
        A(f"s_cmp_lg_u32 s70, s82\ns_cbranch_scc1 L_k2_noa2_{q}\ns_mov_b32 s82, -1")
        arrive(1)
        A(f"L_k2_noa2_{q}:")
        if not OPT.get('nocomp'):
            order=[(r,t) for tt in (0,2) for r in range(4) for t in (tt,tt+1)]
            fm=lambda r,t: A(f"v_fma_mix_f32 v{EE+4*r+t}, v{Lq+4*r+t}, v{EE+4*r+t}, 1.0 op_sel_hi:[1,0,0]")
            rc=lambda r,t: A(f"v_rcp_f32 v{EE+4*r+t}, v{EE+4*r+t}")
            lag=int(OPT.get('lag','2'))
            MG=OPT.get('merge','0')
            pk=lambda d,a,b: A(f"v_pk_mul_f32 v[{d}:{d+1}], v[{a}:{a+1}], v[{b}:{b+1}]")
            Ea=lambda r,t: EE+4*r+t
            La=lambda r,t: Lq+4*r+t
            if MG=='0':
                for i in range(16+lag):
                    if i<16: fm(*order[i])
                    if i>=lag: rc(*order[i-lag])
                if YL: A("s_setprio 0")
                if OPT.get('nopk'):
                    for r,t in order: A(f"v_mul_f32 v{EE+4*r+t}, v{EE+4*r+t}, v{Lq+4*r+t}")
                else:
                  for t in (0,2):
                    for r in range(4): pk(Ea(r,t),Ea(r,t),La(r,t))
            elif MG=='2':
                for r,t in order: fm(r,t)
                for t in (0,2):
                    for r in (0,2):
                        pk(La(r,t),La(r,t),Ea(r+1,t)); pk(La(r+1,t),La(r+1,t),Ea(r,t)); pk(Ea(r,t),Ea(r,t),Ea(r+1,t))
                for t in range(4):
                    for r in (0,2): rc(r,t)
                A("s_nop 0")
                for t in (0,2):
                    for r in (0,2):
                        pk(Ea(r+1,t),Ea(r,t),La(r+1,t)); pk(Ea(r,t),Ea(r,t),La(r,t))
            else:
                for r,t in order: fm(r,t)
                for t in (0,2):
                    for r in (0,2):
                        pk(La(r,t),La(r,t),Ea(r+1,t)); pk(La(r+1,t),La(r+1,t),Ea(r,t)); pk(Ea(r,t),Ea(r,t),Ea(r+1,t))
                for t in (0,2): pk(Ea(1,t),Ea(0,t),Ea(2,t))
                for t in range(4): rc(1,t)
                A("s_nop 0")
                for t in (0,2):
                    pk(Ea(3,t),Ea(1,t),Ea(0,t)); pk(Ea(1,t),Ea(1,t),Ea(2,t))
                for t in (0,2):
                    pk(Ea(0,t),Ea(1,t),La(0,t)); pk(Ea(2,t),Ea(3,t),La(2,t))
                    pk(Ea(1,t),Ea(1,t),La(1,t)); pk(Ea(3,t),Ea(3,t),La(3,t))
            if YL: setp(f'y{q}',[3,2,1,1])
            for t,p in [(0,0),(2,0),(1,0),(3,0),(0,1),(1,1),(2,1),(3,1)]:
                A(f"v_cvt_pk_bf16_f32 v{EE+2*t+p}, v{EE+8*p+t}, v{EE+8*p+4+t}")
        A("s_nop 1")
        for t in range(0 if OPT.get('nomfma') else 4): A(f"v_mfma_f32_16x16x16_bf16 v[{ACC+4*t}:{ACC+4*t+3}], v[{S}:{S+1}], v[{EE+2*t}:{EE+2*t+1}], v[{ACC+4*t}:{ACC+4*t+3}]")
        A(f"s_cmp_lg_u32 s70, s81\ns_cbranch_scc1 L_k2_ni_{q}\ns_mov_b32 s81, -1")
        dma(2,78,79,S2,f'i{q}')
        A(f"""L_k2_ni_{q}:
        s_cmp_ge_u32 s70, s68
        s_cbranch_scc1 L_k2_ng_{q}""")
        gathers(G,q)
        A(f"""L_k2_ng_{q}:
        s_cmp_gt_u32 s70, s68
        s_cbranch_scc1 L_k2_done
        s_add_u32 s70, s70, 1""")
    A(".p2align 6\nL_k2_loop:")
    group(0); group(1)
    A("s_branch L_k2_loop")
    A("L_k2_done:\ns_waitcnt vmcnt(0)")
    if not OPT.get('tl') and not OPT.get('fine'): stamp(5,1)
    if STAMP and not OPT.get('tl') and not OPT.get('fine'): A('s_memtime s[88:89]\ns_waitcnt lgkmcnt(0)\ns_sub_u32 s97, s88, s100')
    A(f"""v_lshrrev_b32 v0, 4, v{LANE}
    v_lshlrev_b32 v0, 2, v0
    v_add_u32 v1, s44, v0
    v_lshlrev_b32 v1, 8, v1
    v_lshrrev_b32 v2, 1, v{cJ16}
    s_lshl_b32 s45, s40, 7
    v_add3_u32 v1, v1, v2, s45
    v_mov_b32 v3, {hex(LOG2E_NEG)}
    v_mov_b32 v4, 0x80000000""")
    for r in range(4):
        for t in range(4): A(f"v_mul_f32 v{8+t}, v3, v{ACC+4*t+r}")
        for t in range(4): A(f"v_exp_f32 v{8+t}, v{8+t}")
        A(f"v_add_u32 v5, {r}, v0\nv_cmp_gt_u32 vcc, s43, v5")
        for t in range(4): A(f"v_add_f32 v{8+t}, 1.0, v{8+t}")
        for t in range(4): A(f"v_rcp_f32 v{8+t}, v{8+t}")
        A(f"v_cndmask_b32 v{16+r}, v4, v1, vcc")
        for t in range(4): A(f"v_mul_f32 v{8+t}, v{8+t}, v{ACC+4*t+r}")
        A(f"""v_cvt_pk_bf16_f32 v{20+2*r}, v8, v9
        v_cvt_pk_bf16_f32 v{21+2*r}, v10, v11
        buffer_store_dwordx2 v[{20+2*r}:{21+2*r}], v{16+r}, s[28:31], 0 offen offset:{r*256} {OST}""")
    if STAMP:
        A("s_waitcnt vmcnt(0)")
        if not OPT.get('tl') and not OPT.get('fine'): stamp(6,1)
        stamp_flush(1)
    if OPT.get('until'): spin(OPT['until'],'b')
    A("s_endpgm")
    fallback()
    A("L_k2_end:\ns_endpgm")

def fallback():
    LANE=121; TID=123
    A(f"""L_k2_fallback:
    s_mov_b64 exec, -1
    s_load_dwordx2 s[50:51], s[0:1], 8
    s_load_dwordx4 s[52:55], s[0:1], 16
    s_load_dwordx4 s[56:59], s[0:1], 32
    s_load_dwordx2 s[60:61], s[0:1], 48
    s_waitcnt vmcnt(0) lgkmcnt(0)
    s_barrier""")
    srd(8,50,51,0,E*32)
    srd(12,52,53,0,E*4)
    srd(16,54,55,0,E*4)
    srd(24,56,57,0,128*256)
    srd(32,58,59,0,128*256)
    srd(36,60,61,0,272*256)
    A(f"""v_mov_b32 v0, 0
    v_mov_b32 v1, 0
    v_mov_b32 v2, 0
    v_mov_b32 v3, 0
    v_lshlrev_b32 v4, 4, v{TID}
    ds_write_b128 v4, v[0:3]
    ds_write_b128 v4, v[0:3] offset:16384
    ds_write_b128 v4, v[0:3] offset:32768
    ds_write_b128 v4, v[0:3] offset:49152
    s_lshl_b32 s45, s40, 7
    v_lshl_add_u32 v5, v{LANE}, 1, s45
    v_lshlrev_b32 v6, 2, v{LANE}
    s_mul_i32 s46, s41, {BS}
    s_lshl_b32 s47, s3, 6
    s_waitcnt lgkmcnt(0)
    s_barrier
L_fb_chunk:
    s_cmp_ge_u32 s47, {E}
    s_cbranch_scc1 L_fb_fin
    s_lshl_b32 s48, s47, 2
    buffer_load_dword v7, v6, s[16:19], s48 offen
    buffer_load_dword v8, v6, s[12:15], s48 offen
    s_waitcnt vmcnt(0)
    v_subrev_u32 v9, s46, v7
    v_cmp_gt_u32 s[62:63], v10, v9
    """.replace("v_cmp_gt_u32 s[62:63], v10, v9",f"v_mov_b32 v10, {BS}\nv_cmp_gt_u32 s[62:63], v10, v9")+f"""
L_fb_edge:
    s_cmp_eq_u64 s[62:63], 0
    s_cbranch_scc1 L_fb_next
    s_ff1_i32_b64 s49, s[62:63]
    s_bitset0_b64 s[62:63], s49
    v_readlane_b32 s64, v7, s49
    v_readlane_b32 s65, v8, s49
    s_add_u32 s66, s47, s49
    s_lshl_b32 s67, s64, 8
    s_lshl_b32 s68, s65, 8
    s_lshl_b32 s66, s66, 5
    s_nop 2
    buffer_load_dword v11, v6, s[20:23], s67 offen
    buffer_load_dword v12, v6, s[20:23], s68 offen
    v_and_b32 v14, 28, v6
    buffer_load_dword v13, v14, s[8:11], s66 offen
    v_mov_b32 v15, 0
    v_mov_b32 v16, 0
    s_mov_b32 s69, 0
    s_waitcnt vmcnt(0)
L_fb_k:
    s_lshl_b32 s70, s69, 9
    s_add_u32 s71, s70, {128*256}
    buffer_load_ushort v17, v5, s[36:39], s70 offen
    buffer_load_ushort v18, v5, s[36:39], s70 offen offset:256
    buffer_load_ushort v19, v5, s[36:39], s71 offen
    buffer_load_ushort v20, v5, s[36:39], s71 offen offset:256
    buffer_load_ushort v21, v5, s[32:35], s70 offen
    buffer_load_ushort v22, v5, s[32:35], s70 offen offset:256
    v_readlane_b32 s72, v11, s69
    v_readlane_b32 s73, v12, s69
    s_lshl_b32 s74, s72, 16
    s_and_b32 s72, s72, 0xffff0000
    s_lshl_b32 s75, s73, 16
    s_and_b32 s73, s73, 0xffff0000
    s_waitcnt vmcnt(0)""")
    for i in range(17,23): A(f"v_lshlrev_b32 v{i}, 16, v{i}")
    A(f"""v_fmac_f32 v15, s74, v17
    v_fmac_f32 v15, s72, v18
    v_fmac_f32 v15, s75, v19
    v_fmac_f32 v15, s73, v20
    v_fmac_f32 v16, s75, v21
    v_fmac_f32 v16, s73, v22
    s_add_u32 s69, s69, 1
    s_cmp_lt_u32 s69, 64
    s_cbranch_scc1 L_fb_k
    s_mov_b32 s69, 0
L_fb_ke:
    s_lshl_b32 s70, s69, 9
    s_add_u32 s70, s70, {256*256}
    buffer_load_ushort v17, v5, s[36:39], s70 offen
    buffer_load_ushort v18, v5, s[36:39], s70 offen offset:256
    v_readlane_b32 s72, v13, s69
    s_lshl_b32 s74, s72, 16
    s_and_b32 s72, s72, 0xffff0000
    s_waitcnt vmcnt(0)
    v_lshlrev_b32 v17, 16, v17
    v_lshlrev_b32 v18, 16, v18
    v_fmac_f32 v15, s74, v17
    v_fmac_f32 v15, s72, v18
    s_add_u32 s69, s69, 1
    s_cmp_lt_u32 s69, 8
    s_cbranch_scc1 L_fb_ke
    v_mul_f32 v15, {hex(LOG2E_NEG)}, v15
    v_exp_f32 v15, v15
    s_sub_u32 s64, s64, s46
    s_lshl_b32 s64, s64, 8
    v_add_f32 v15, 1.0, v15
    v_rcp_f32 v15, v15
    v_add_u32 v17, s64, v6
    v_mul_f32 v15, v15, v16
    ds_add_f32 v17, v15
    s_branch L_fb_edge
L_fb_next:
    s_add_u32 s47, s47, 1024
    s_branch L_fb_chunk
L_fb_fin:
    s_waitcnt lgkmcnt(0)
    s_barrier
    s_mov_b32 s47, s3
L_fb_node:
    s_cmp_ge_u32 s47, {BS}
    s_cbranch_scc1 L_k2_end
    s_add_u32 s64, s46, s47
    s_lshl_b32 s67, s64, 8
    buffer_load_dword v11, v6, s[20:23], s67 offen
    s_lshl_b32 s48, s47, 8
    v_add_u32 v17, s48, v6
    ds_read_b32 v15, v17
    s_mov_b32 s69, 0
    s_waitcnt vmcnt(0) lgkmcnt(0)
L_fb_ku:
    s_lshl_b32 s70, s69, 9
    buffer_load_ushort v17, v5, s[24:27], s70 offen
    buffer_load_ushort v18, v5, s[24:27], s70 offen offset:256
    v_readlane_b32 s72, v11, s69
    s_lshl_b32 s74, s72, 16
    s_and_b32 s72, s72, 0xffff0000
    s_waitcnt vmcnt(0)
    v_lshlrev_b32 v17, 16, v17
    v_lshlrev_b32 v18, 16, v18
    v_fmac_f32 v15, s74, v17
    v_fmac_f32 v15, s72, v18
    s_add_u32 s69, s69, 1
    s_cmp_lt_u32 s69, 64
    s_cbranch_scc1 L_fb_ku
    v_mul_f32 v16, {hex(LOG2E_NEG)}, v15
    v_exp_f32 v16, v16
    s_nop 0
    v_add_f32 v16, 1.0, v16
    v_rcp_f32 v16, v16
    s_nop 0
    v_mul_f32 v15, v15, v16
    v_cvt_pk_bf16_f32 v15, v15, v15
    buffer_store_short v15, v5, s[28:31], s67 offen
    s_add_u32 s47, s47, 16
    s_branch L_fb_node""")

def desc(name, vg, sg=102):
    return f""".amdhsa_kernel {name}
  .amdhsa_next_free_vgpr {vg}
  .amdhsa_next_free_sgpr {sg}
  .amdhsa_accum_offset {vg}
  .amdhsa_group_segment_fixed_size 0
  .amdhsa_kernarg_size 80
  .amdhsa_user_sgpr_count 2
  .amdhsa_user_sgpr_kernarg_segment_ptr 1
  .amdhsa_system_sgpr_workgroup_id_x 1
.end_amdhsa_kernel
"""
k1(); k2()
errs=check(A.lines)
for e in errs: print(e, file=sys.stderr)
hdr=open('gather_scatter__edge_featured_mpnn_egc__graph.s.ref').read().split('; Override launch')[0]
xl=f"; @launch kernel=nop_kernel grid=({OPT.get('nopg',256)},1,1) block=({OPT.get('nopb',64)},1,1) lds={OPT.get('nopl',0)}\n"
pre=xl if OPT.get('nop')=='pre' else ''; post=xl if OPT.get('nop')=='post' else ''
if OPT.get('nop'):
    A(".p2align 8\nnop_kernel:")
    if OPT.get('nopt0'):
        A(f"""s_memrealtime s[6:7]
        s_load_dwordx2 s[4:5], s[0:1], 72
        s_cmp_lg_u32 s2, 0
        s_cbranch_scc1 L_nop_end
        s_waitcnt lgkmcnt(0)
        s_add_u32 s8, s4, {MISC_OFF}
        s_addc_u32 s9, s5, 0
        s_mov_b32 s10, {MISC_SZ}
        s_mov_b32 s11, 0x20000
        v_mov_b32 v1, s6
        v_mov_b32 v2, {FLAGO+2048}
        buffer_store_dword v1, v2, s[8:11], 0 offen sc0 sc1
L_nop_end:""")
    A("s_endpgm")
out=hdr+pre+f"""; Two launches: prep (edge partition + node tables), main (gated gather / aggregate / silu)
; @launch kernel=prep_kernel grid=(256,1,1) block=(1024,1,1) lds={K1_LDS}
; @launch kernel=main_kernel grid=(256,1,1) block=(1024,1,1) lds={K2_LDS}
{post}.amdgcn_target "amdgcn-amd-amdhsa--gfx950"
.text
.globl prep_kernel
.type prep_kernel,@function
.globl main_kernel
.type main_kernel,@function
"""+A.text()+""".section .rodata,"a"
.p2align 6
"""+desc("prep_kernel",128)+".p2align 6\n"+desc("main_kernel",128)+((".p2align 6\n"+desc("nop_kernel",8,16)) if OPT.get('nop') else '')
open(sys.argv[1],'w').write(out)
print("written",sys.argv[1],len(A.lines),"lines; hazards:",len(errs))
```

```python
import sys
from dsl import *
OPT=dict(a.split('=') if '=' in a else (a,'1') for a in sys.argv[2:])
STAMP=int(OPT.get('stamp',0))
def hint(k,d=''):
    v=OPT.get(k,d); return '' if v=='none' else v.replace('+',' ')
NTI=hint('nti'); NTE=hint('nte'); NTX=hint('ntx'); NT=hint('nt2'); OST=hint('ost','sc0+sc1')
ST=OPT.get('st','sc0 sc1')
if ST=='none': ST=''
ST=ST.replace('+',' ')

MST=hint('mst','none')
N=25000; E=400000; BS=196; CH=3136
NROW=25088; HS=NROW*256
WSB=int(OPT.get('wsb','0'))<<20
TAB_OFF=WSB; REC_OFF=WSB+0x0D00000; EP_OFF=WSB+0x1100000; MISC_OFF=WSB+0x3100000
WH=0x9000; CIMG=0x8000; FLAGO=0x12000; MISC_SZ=0x13000
LOG2E=0x3fb8aa3b
STAMP_OFF=0x3200000
LOG2E_NEG=0xbfb8aa3b
A=Asm()

def srd(s, base_lo, base_hi, off, size):
    if off:
        A(f"s_add_u32 s{s}, s{base_lo}, {hex(off)}\ns_addc_u32 s{s+1}, s{base_hi}, 0")
    else:
        A(f"s_mov_b32 s{s}, s{base_lo}\ns_mov_b32 s{s+1}, s{base_hi}")
    A(f"s_mov_b32 s{s+2}, {hex(size)}\ns_mov_b32 s{s+3}, 0x20000")

def stamp(idx, kern):
    if not STAMP: return
    A(f"""s_memrealtime s[88:89]
    s_waitcnt lgkmcnt(0)
    s_mov_b32 s{90+idx}, s88""")
def stamp_init(kern, wave_s, wsl, wsh):
    if not STAMP: return
    for i in range(8): A(f"s_mov_b32 s{90+i}, 0")
    A(f"s_add_u32 s98, s{wsl}, {hex(STAMP_OFF+kern*0x80000)}\ns_addc_u32 s99, s{wsh}, 0")
def stamp_flush(kern=0):
    if not STAMP: return
    if STAMP==2:
        sel=[0,1,2,5] if kern==0 else [0,2,3,6]
        if kern==0: A("s_and_b32 s4, s2, 15\ns_cmp_lg_u32 s4, 0\ns_cbranch_scc1 L_sf_0_3")
        A(f"""s_load_dwordx2 s[4:5], s[0:1], 64
        s_waitcnt lgkmcnt(0)
        s_add_u32 s4, s4, {512*(1-kern)}
        s_addc_u32 s5, s5, 0
        s_cmp_lg_u32 s3, {12 if kern==0 else 15}
        s_cbranch_scc1 L_sf_{kern}_3
        s_mov_b32 s6, 256
        s_mov_b32 s7, 0x20000
        s_mov_b64 exec, 1
        v_mov_b32 v8, 0""")
        for n,i in enumerate(sel):
            A(f"""v_mov_b32 v0, s{90+i}
            v_not_b32 v1, v0
            s_cmp_eq_u32 s{90+i}, 0
            s_cbranch_scc1 L_sf_{kern}_{n}
            buffer_atomic_umax v1, v8, s[4:7], 0 offen offset:{kern*32+n*8}
            buffer_atomic_umax v0, v8, s[4:7], 0 offen offset:{kern*32+n*8+4}
L_sf_{kern}_{n}:""")
        return
    A("""s_mov_b32 s4, s98
    s_mov_b32 s5, s99
    s_mov_b32 s6, 0x80000
    s_mov_b32 s7, 0x20000
    s_lshl_b32 s8, s2, 4
    s_add_u32 s8, s8, s3
    s_lshl_b32 s8, s8, 6
    s_mov_b64 exec, 1
    v_mov_b32 v8, 0""")
    for i in range(8): A(f"v_mov_b32 v{i}, s{90+i}")
    A("buffer_store_dwordx4 v[0:3], v8, s[4:7], s8 offen\nbuffer_store_dwordx4 v[4:7], v8, s[4:7], s8 offen offset:16")

def qtranspose(X,P,Y):
    for st,(src,dst,pm,m0) in enumerate(((X,P,"[1,0,3,2]",0x55555555),(P,Y,"[2,3,0,1]",0x33333333))):
        bit=1<<st
        for half in range(2):
            m=m0 if half==0 else (~m0)&0xffffffff
            A(f"s_mov_b32 vcc_lo, {hex(m)}\ns_mov_b32 vcc_hi, {hex(m)}")
            for j in range(4):
                if ((j>>st)&1)!=half: continue
                for d in range(4):
                    A(f"v_cndmask_b32_dpp v{dst+4*j+d}, v{src+4*(j^bit)+d}, v{src+4*j+d}, vcc quad_perm:{pm} row_mask:0xf bank_mask:0xf")

K1_E=0; K1_REC=100352; K1_PERM=K1_REC+32768; K1_HIST=K1_PERM+16384; K1_OVF=K1_HIST+1024; K1_LDS=K1_OVF+256
WROW=544
def woff(k): return k*WROW+(k>>5)*128

def k1():
    A(".p2align 8\nprep_kernel:")
    A("""s_cmp_ge_u32 s2, 256
    s_cbranch_scc1 L_k1_end
    s_load_dwordx4 s[4:7], s[0:1], 0
    s_load_dwordx4 s[8:11], s[0:1], 16
    s_load_dwordx4 s[12:15], s[0:1], 32
    s_load_dwordx2 s[16:17], s[0:1], 48
    s_load_dwordx2 s[18:19], s[0:1], 72
    v_lshrrev_b32 v1, 6, v0
    v_and_b32 v2, 63, v0
    v_readfirstlane_b32 s3, v1
    v_lshlrev_b32 v3, 4, v2
    v_lshlrev_b32 v4, 4, v0
    s_waitcnt lgkmcnt(0)""")
    if OPT.get('cpf','1')!='0':
        A(f"""s_cmp_ge_u32 s3, 13
        s_cbranch_scc1 L_k1_nocpf
        s_getpc_b64 s[20:21]
L_k1_pc:
        s_sub_u32 s20, s20, L_k1_pc-prep_kernel
        s_subb_u32 s21, s21, 0
        global_load_dwordx4 v[120:123], v4, s[20:21]
L_k1_nocpf:""")
    stamp_init(0,3,18,19)
    stamp(0,0)
    srd(44,18,19,MISC_OFF,MISC_SZ)
    if (OPT.get('until') or OPT.get('until0') or OPT.get('untilL')) and not OPT.get('nopt0'):
        A(f"""s_memrealtime s[60:61]
        s_waitcnt lgkmcnt(0)
        s_or_b32 s62, s2, s3
        s_cmp_lg_u32 s62, 0
        s_cbranch_scc1 L_k1_not0
        v_mov_b32 v100, s60
        v_mov_b32 v101, {FLAGO+2048}
        buffer_store_dword v100, v101, s[44:47], 0 offen sc0 sc1
L_k1_not0:""")
    A("""s_cmp_ge_u32 s2, 128
    s_cbranch_scc1 L_k1_gemm""")
    srd(20,10,11,0,E*4)
    srd(24,8,9,0,E*4)
    srd(28,6,7,0,E*32)
    srd(32,18,19,REC_OFF,0x400000)
    srd(36,18,19,EP_OFF,0x2000000)
    D=8; S=12
    A(f"""s_mul_i32 s50, s2, {CH}
    s_sub_u32 s51, {E}, s50
    s_lshr_b32 s51, s51, 2
    s_min_u32 s51, s51, {CH//4}
    s_lshl_b32 s52, s50, 2
    v_cmp_gt_u32 vcc, s51, v0
    s_mov_b64 s[54:55], vcc
    s_mov_b64 exec, vcc
    s_cbranch_execz L_k1_noidx
    buffer_load_dwordx4 v[{D}:{D+3}], v4, s[20:23], s52 offen {NTI}
    buffer_load_dwordx4 v[{S}:{S+3}], v4, s[24:27], s52 offen {NTI}
L_k1_noidx:
    s_mov_b64 exec, -1
    s_lshl_b32 s53, s3, 10
    s_lshl_b32 s56, s50, 5
    s_add_u32 s56, s56, s53
    v_mov_b32 v16, -1
    v_mov_b32 v17, -1
    v_mov_b32 v18, -1
    v_mov_b32 v19, -1
    v_mov_b32 v20, 0
    v_add_u32 v5, {K1_REC}, v4
    v_lshlrev_b32 v6, 2, v0
    v_add_u32 v6, {K1_HIST}, v6
    ds_write_b128 v5, v[16:19]
    ds_write_b128 v5, v[16:19] offset:16384
    v_cmp_gt_u32 vcc, 0x140, v0
    s_mov_b64 exec, vcc
    ds_write_b32 v6, v20
    s_mov_b64 exec, -1
    v_mov_b32 v20, 1
    v_mov_b32 v22, 21400
    v_mov_b32 v23, -196
    v_mov_b32 v24, 5372
    v_mov_b32 v25, 208
    v_mov_b32 v26, 669
    s_waitcnt lgkmcnt(0)
    s_barrier""")
    for i in range(7):
        if i==6: A("s_cmp_ge_u32 s3, 2\ns_cbranch_scc1 L_k1_dmadone")
        A(f"""s_mov_b32 m0, s53
        s_add_u32 s53, s53, 16384
        buffer_load_dwordx4 v3, s[28:31], s56 offen {NTE} lds
        s_add_u32 s56, s56, 16384""")
    A("L_k1_dmadone:\ns_waitcnt vmcnt(6)")
    stamp(1,0)
    A("""s_mov_b64 exec, s[54:55]
    s_cbranch_execz L_k1_b1""")
    B,RC,HA,SH,OLD,INC,T=28,32,36,40,44,48,60
    for j in range(4):
        A(f"""v_mul_u32_u24 v{T}, v{D+j}, v22
        v_mul_u32_u24 v{T+1}, v{S+j}, v26
        v_lshrrev_b32 v{B+j}, 22, v{T}
        v_lshrrev_b32 v{T+1}, 22, v{T+1}
        v_lshlrev_b32 v{HA+j}, 2, v{B+j}
        v_sub_u32_e64 v{SH+j}, v{T+1}, 1 clamp
        v_add_u32 v{HA+j}, {K1_HIST}, v{HA+j}
        v_lshlrev_b32 v{SH+j}, 3, v{SH+j}
        v_mad_i32_i24 v{T}, v{B+j}, v23, v{D+j}
        v_lshlrev_b32 v{INC+j}, v{SH+j}, v20
        v_mul_u32_u24 v{T+2}, v{T}, v24
        ds_add_rtn_u32 v{OLD+j}, v{HA+j}, v{INC+j}
        v_lshl_or_b32 v{T}, v{S+j}, 8, v{T}
        v_lshrrev_b32 v{T+2}, 16, v{T+2}
        v_mad_u32_u24 v{T+3}, v{T+2}, 52, v25
        v_mad_i32_i24 v{T}, v{T+2}, -12, v{T}
        v_lshrrev_b32 v{T+3}, 8, v{T+3}
        v_lshl_add_u32 v{T+2}, v{T+2}, 2, v{T+1}
        v_sub_u32 v{T}, v{T}, v{T+3}
        v_lshl_or_b32 v{RC+j}, v{T+2}, 24, v{T}""")
    A("""L_k1_b1:
    s_mov_b64 exec, -1
    s_waitcnt lgkmcnt(0)
    s_barrier""")
    stamp(2,0)
    FIN=8
    A(f"""s_mov_b64 s[70:71], 0
    v_cmp_gt_u32 vcc, 128, v0
    s_mov_b64 exec, vcc
    s_cbranch_execz L_k1_nohdr
    ds_read_b32 v{T}, v6
    v_lshlrev_b32 v{T+1}, 8, v0
    v_add_u32 v{T+1}, {K1_REC+252}, v{T+1}
    s_waitcnt lgkmcnt(0)
    v_and_b32 v{T}, 0x3f3f3f, v{T}
    ds_write_b32 v{T+1}, v{T}
L_k1_nohdr:
    s_mov_b64 exec, s[54:55]
    s_cbranch_execz L_k1_b2""")
    for j in range(4): A(f"ds_read_b32 v{FIN+j}, v{HA+j}")
    A(f"v_lshlrev_b32 v{T+8}, 2, v0")
    for j in range(4):
        A(f"v_bfe_u32 v{OLD+j}, v{OLD+j}, v{SH+j}, 8\nv_add_u32 v{INC+j}, -1, v{INC+j}")
    A("s_waitcnt lgkmcnt(0)")
    for j in range(4):
        A(f"""v_and_b32 v{T}, v{FIN+j}, v{INC+j}
        v_sad_u8 v{T}, v{T}, 0, v{OLD+j}
        v_cmp_lt_u32 vcc, 62, v{T}
        v_min_u32 v{T}, 62, v{T}
        s_or_b64 s[70:71], s[70:71], vcc
        v_lshl_add_u32 v{T+1}, v{B+j}, 6, v{T}
        v_and_b32 v{T+2}, 15, v{T}
        v_lshrrev_b32 v{T+3}, 4, v{T}
        v_lshlrev_b32 v{T+1}, 1, v{T+1}
        v_lshl_add_u32 v{T+2}, v{T+2}, 2, v{T+3}
        v_add_u32 v{T+1}, {K1_PERM}, v{T+1}
        v_lshl_add_u32 v{T+2}, v{B+j}, 6, v{T+2}
        v_add_u32 v{T+9}, {j}, v{T+8}
        v_lshlrev_b32 v{T+2}, 2, v{T+2}
        ds_write_b16 v{T+1}, v{T+9}
        v_add_u32 v{T+2}, {K1_REC}, v{T+2}
        ds_write_b32 v{T+2}, v{RC+j}""")
    A(f"""s_mov_b64 exec, s[70:71]
    v_mov_b32 v{T}, {K1_OVF}
    ds_write_b32 v{T}, v20
L_k1_b2:
    s_mov_b64 exec, -1
    s_waitcnt lgkmcnt(0)
    s_barrier""")
    stamp(3,0)
    EI=8; EV=64
    A(f"""ds_read_b128 v[16:19], v5
    ds_read_b128 v[20:23], v5 offset:16384
    v_and_b32 v24, 7, v2
    s_lshl_b32 s57, s3, 5
    v_lshl_add_u32 v24, v24, 2, s57
    v_add_u32 v24, {K1_HIST}, v24
    ds_read_b32 v26, v24
    v_lshrrev_b32 v28, 1, v2
    s_lshl_b32 s57, s3, 10
    s_add_u32 s57, s57, {K1_PERM}
    v_lshl_add_u32 v29, v28, 1, s57""")
    for i in range(8): A(f"ds_read_u16 v{EI+i}, v29 offset:{i*128}")
    A(f"""v_lshrrev_b32 v30, 4, v0
    v_and_b32 v31, 15, v0
    v_lshlrev_b32 v30, 15, v30
    v_lshl_or_b32 v30, v31, 4, v30
    s_lshl_b32 s58, s2, 8
    s_add_u32 s59, s58, 0x200000
    v_and_b32 v31, 1, v2
    v_lshlrev_b32 v31, 4, v31
    s_waitcnt lgkmcnt(0)
    buffer_store_dwordx4 v[16:19], v30, s[32:35], s58 offen {ST}
    buffer_store_dwordx4 v[20:23], v30, s[32:35], s59 offen {ST}
    v_sad_u8 v26, v26, 0, 3
    v_and_b32 v26, -4, v26
    v_min_u32 v26, 64, v26
    s_waitcnt vmcnt(2)
    s_barrier""")
    stamp(6,0)
    for i in range(8):
        A(f"v_lshl_add_u32 v{EI+i}, v{EI+i}, 5, v31\nds_read_b128 v[{EV+4*i}:{EV+4*i+3}], v{EI+i}\nv_readlane_b32 s{60+i}, v26, {i}")
    A(f"""s_lshl_b32 s57, s3, 21
    s_lshl_b32 s58, s2, 11
    s_add_u32 s57, s57, s58""")
    for i in range(8):
        A(f"""v_cmp_gt_u32 vcc, s{60+i}, v28
        s_mov_b64 exec, vcc
        s_waitcnt lgkmcnt({7-i})
        buffer_store_dwordx4 v[{EV+4*i}:{EV+4*i+3}], v3, s[36:39], s57 offen {ST}
        s_mov_b64 exec, -1
        s_add_u32 s57, s57, 0x40000""")
    A(f"s_sub_u32 s57, s57, 0x200000\nv_add_u32 v32, 32, v28")
    for i in range(8):
        L=A.label("k1long")
        A(f"""s_cmp_le_u32 s{60+i}, 32
        s_cbranch_scc1 {L}
        ds_read_u16 v33, v29 offset:{i*128+64}
        s_waitcnt lgkmcnt(0)
        v_lshl_add_u32 v33, v33, 5, v31
        ds_read_b128 v[36:39], v33
        v_cmp_gt_u32 vcc, s{60+i}, v32
        s_mov_b64 exec, vcc
        s_waitcnt lgkmcnt(0)
        buffer_store_dwordx4 v[36:39], v3, s[36:39], s57 offen offset:1024 {ST}
        s_mov_b64 exec, -1
        s_nop 0
{L}:
        s_add_u32 s57, s57, 0x40000""")
    A("s_branch L_k1_flag")
    A("L_k1_gemm:")
    srd(20,4,5,0,N*256)
    srd(24,16,17,0,272*256)
    srd(28,14,15,0,128*256)
    srd(32,12,13,0,128*256)
    srd(36,18,19,TAB_OFF,HS)
    srd(40,18,19,TAB_OFF+HS,HS)
    XR=8; WL=24; XA=40; ACC=56; BF=8
    A(f"""s_sub_u32 s50, s2, 128
    s_lshr_b32 s51, s50, 3
    s_lshl_b32 s52, s3, 4
    s_add_u32 s51, s51, s52
    s_cmp_lt_u32 s51, 196
    s_cselect_b32 s52, 0, 0x10000
    s_add_u32 s51, s51, s52
    s_and_b32 s52, s2, 3
    s_mul_i32 s52, s52, 392
    s_add_u32 s51, s51, s52
    s_bfe_u32 s52, s2, 0x10002
    s_mul_i32 s52, s52, 196
    s_add_u32 s51, s51, s52
    v_mov_b32 v6, 0
    v_mov_b32 v7, {K1_OVF}
    ds_write_b32 v7, v6
    s_cmp_ge_u32 s51, 1568
    s_cbranch_scc1 L_k1_nox
    s_lshl_b32 s52, s51, 12
    v_bfe_u32 v5, v2, 2, 2
    v_and_b32 v6, 3, v2
    v_lshlrev_b32 v5, 10, v5
    v_lshl_or_b32 v5, v6, 4, v5
    v_lshrrev_b32 v6, 4, v2
    v_lshl_or_b32 v5, v6, 6, v5""")
    for ks in range(4): A(f"buffer_load_dwordx4 v[{XR+4*ks}:{XR+4*ks+3}], v5, s[20:23], s52 offen offset:{ks*256} {NTX}")
    A(f"""L_k1_nox:
    s_mov_b32 s53, {128*256}
    s_mov_b32 s54, {128*256+16384}
    s_mov_b32 s55, 16384
    buffer_load_dwordx4 v[{WL}:{WL+3}], v4, s[24:27], s53 offen
    buffer_load_dwordx4 v[{WL+4}:{WL+7}], v4, s[24:27], s54 offen
    buffer_load_dwordx4 v[{WL+8}:{WL+11}], v4, s[28:31], 0 offen
    buffer_load_dwordx4 v[{WL+12}:{WL+15}], v4, s[28:31], s55 offen
    v_lshrrev_b32 v5, 4, v0
    v_lshrrev_b32 v6, 9, v0
    v_mul_u32_u24 v5, {WROW}, v5
    v_lshl_add_u32 v5, v6, 7, v5
    v_bfe_u32 v6, v0, 3, 1
    v_lshl_add_u32 v5, v6, 7, v5
    v_and_b32 v6, 7, v0
    v_lshl_add_u32 v5, v6, 2, v5
    s_mov_b32 s56, 0x05040100
    s_mov_b32 s57, 0x07060302""")
    A(f"""s_cmp_lg_u32 s3, 15
    s_cbranch_scc1 L_k1_noimg
    s_cmp_ge_u32 s50, 72
    s_cbranch_scc1 L_k1_noimg
    v_and_b32 v6, 15, v2
    v_lshrrev_b32 v7, 4, v2
    v_lshlrev_b32 v6, 3, v6
    s_cmp_ge_u32 s50, 64
    s_cbranch_scc1 L_k1_cimg
    s_bfe_u32 s58, s50, 0x10005
    s_bfe_u32 s59, s50, 0x20002
    s_and_b32 s60, s50, 3
    s_lshl_b32 s58, s58, 7
    s_lshl_b32 s59, s59, 1
    s_lshl_b32 s60, s60, 11
    s_add_u32 s58, s58, s59
    s_add_u32 s58, s58, s60
    v_lshl_add_u32 v6, v7, 13, v6
    s_bitcmp1_b32 s50, 4
    s_cbranch_scc1 L_k1_uimg""")
    for i in range(8): A(f"buffer_load_ushort v{64+i}, v6, s[24:27], s58 offen offset:{i*256}")
    A("s_branch L_k1_imgst\nL_k1_uimg:")
    for i in range(8): A(f"buffer_load_ushort v{64+i}, v6, s[32:35], s58 offen offset:{i*256}")
    A(f"""L_k1_imgst:
    s_and_b32 s58, s50, 31
    s_lshl_b32 s58, s58, 10
    s_lshr_b32 s59, s50, 5
    s_mul_i32 s59, s59, {WH}
    s_add_u32 s58, s58, s59
    s_waitcnt vmcnt(0)
    v_lshl_or_b32 v56, v65, 16, v64
    v_lshl_or_b32 v57, v67, 16, v66
    v_lshl_or_b32 v58, v69, 16, v68
    v_lshl_or_b32 v59, v71, 16, v70
    buffer_store_dwordx4 v[56:59], v3, s[44:47], s58 offen {MST}
    s_branch L_k1_noimg
L_k1_cimg:
    s_sub_u32 s61, s50, 64
    s_lshr_b32 s58, s61, 2
    s_and_b32 s59, s61, 3
    s_lshl_b32 s58, s58, 7
    s_lshl_b32 s59, s59, 1
    s_add_u32 s58, s58, s59
    s_add_u32 s58, s58, {256*256}
    v_lshl_add_u32 v6, v7, 10, v6""")
    for i in range(4): A(f"buffer_load_ushort v{56+i}, v6, s[24:27], s58 offen offset:{i*256}")
    A(f"""s_mov_b32 s59, {hex(LOG2E_NEG)}
    s_and_b32 s58, s61, 3
    s_lshl_b32 s58, s58, 9
    s_lshr_b32 s60, s61, 2
    s_mul_i32 s60, s60, {WH}
    s_add_u32 s58, s58, s60
    s_add_u32 s58, s58, {CIMG}
    v_lshlrev_b32 v7, 3, v2
    s_waitcnt vmcnt(0)""")
    for i in range(4): A(f"v_lshlrev_b32 v{56+i}, 16, v{56+i}\nv_mul_f32 v{56+i}, s59, v{56+i}")
    A(f"""v_cvt_pk_bf16_f32 v56, v56, v57
    v_cvt_pk_bf16_f32 v57, v58, v59
    buffer_store_dwordx2 v[56:57], v7, s[44:47], s58 offen {MST}
L_k1_noimg:""")
    for u in range(4):
        w=WL+4*u; base=(u&1)*woff(64)+(u>>1)*256
        A(f"""s_waitcnt vmcnt({3-u})
        v_perm_b32 v60, v{w+2}, v{w}, s56
        v_perm_b32 v61, v{w+2}, v{w}, s57
        v_perm_b32 v62, v{w+3}, v{w+1}, s56
        v_perm_b32 v63, v{w+3}, v{w+1}, s57
        ds_write_b32 v5, v60 offset:{base}
        ds_write_b32 v5, v61 offset:{base+32}
        ds_write_b32 v5, v62 offset:{base+64}
        ds_write_b32 v5, v63 offset:{base+96}""")
    A(f"""v_and_b32 v6, 15, v2
    v_lshrrev_b32 v7, 4, v2
    s_cmp_ge_u32 s51, 1568
    s_cbranch_scc1 L_k1_nobp""")
    qtranspose(XR,WL,XA)
    A(f"""L_k1_nobp:
    v_bfe_u32 v61, v2, 2, 2
    v_lshl_add_u32 v61, v7, 5, v61
    v_mul_u32_u24 v61, {WROW}, v61
    v_lshl_add_u32 v61, v7, 7, v61
    v_and_b32 v62, 3, v2
    v_lshl_add_u32 v5, v62, 3, v61
    s_waitcnt lgkmcnt(0)
    s_barrier""")
    stamp(1,0)
    A("""s_cmp_ge_u32 s51, 1568
    s_cbranch_scc1 L_k1_gdone""")
    seq=[(h,t,mat,ks) for h in range(2) for t in range(4) for mat in range(2) for ks in range(4)]
    def rd(n):
        h,t,mat,ks=seq[n]; o=woff(8*ks)+mat*256+h*128+t*32; b=BF+4*(n%8)
        A(f"ds_read_b64_tr_b16 v[{b}:{b+1}], v5 offset:{o}\nds_read_b64_tr_b16 v[{b+2}:{b+3}], v5 offset:{o+4*WROW}")
    def acc(h,t,mat): return ACC+((h*4+t)*2+mat)*4
    PF=6
    for n in range(PF): rd(n)
    for n in range(64):
        h,t,mat,ks=seq[n]; b=BF+4*(n%8); a=acc(h,t,mat)
        out=min(63-n,PF-1)
        A(f"s_waitcnt lgkmcnt({2*out})")
        A(f"v_mfma_f32_16x16x32_bf16 v[{a}:{a+3}], v[{XA+4*ks}:{XA+4*ks+3}], v[{b}:{b+3}], {'0' if ks==0 else f'v[{a}:{a+3}]'}")
        if n+PF<64: rd(n+PF)
    stamp(2,0)
    A(f"""v_mov_b32 v8, {hex(LOG2E_NEG)}
    v_mov_b32 v9, 0x7fff
    v_mov_b32 v10, 0xffff0000
    v_mov_b32 v11, 0
    v_lshlrev_b32 v12, 10, v7
    v_lshl_or_b32 v12, v6, 4, v12
    s_nop 3""")
    for h in range(2):
        for r in range(4):
            o=16+4*((h*4+r)%2); tt=24
            for t in range(4): A(f"v_mul_f32 v{tt+t}, v8, v{acc(h,t,0)+r}")
            A(f"v_max3_f32 v11, abs(v{tt}), abs(v{tt+1}), v11\nv_max3_f32 v11, abs(v{tt+2}), abs(v{tt+3}), v11")
            for t in range(4): A(f"v_exp_f32 v{tt+t}, v{tt+t}")
            A("s_nop 0")
            for t in range(4): A(f"v_cvt_pk_f16_f32 v{tt+t}, v{tt+t}, 0")
            for t in range(4): A(f"v_xad_u32 v{tt+4+t}, v{tt+t}, v9, v{acc(h,t,1)+r}")
            for t in range(4): A(f"v_bfi_b32 v{o+t}, v10, v{tt+4+t}, v{tt+t}")
            A(f"buffer_store_dwordx4 v[{o}:{o+3}], v12, s[{36+4*h}:{39+4*h}], s52 offen offset:{r*256} {ST}")
    A(f"""v_mov_b32 v13, 0x41600000
    v_mov_b32 v14, 1
    v_mov_b32 v15, {K1_OVF}
    v_cmp_nle_f32 vcc, v11, v13""")
    A(f"""s_mov_b64 exec, vcc
    ds_write_b32 v15, v14
    s_mov_b64 exec, -1
L_k1_gdone:
    s_waitcnt lgkmcnt(0)
    s_barrier
L_k1_flag:
    s_cmp_lg_u32 s3, 0
    s_cbranch_scc1 L_k1_fin
    v_mov_b32 v15, {K1_OVF}
    ds_read_b32 v14, v15
    s_lshl_b32 s58, s2, 2
    s_add_u32 s58, s58, {FLAGO}
    v_mov_b32 v15, 0
    s_mov_b64 exec, 1
    s_waitcnt lgkmcnt(0)
    buffer_store_dword v14, v15, s[44:47], s58 offen {MST}
    s_mov_b64 exec, -1
L_k1_fin:""")
    if STAMP:
        stamp(4,0)
        A("s_waitcnt vmcnt(0)")
        stamp(5,0)
        stamp_flush()
    if OPT.get('k1delay'):
        A(f"""s_memrealtime s[60:61]
        s_waitcnt lgkmcnt(0)
        s_add_u32 s62, s60, {int(OPT['k1delay'])*100}
L_k1_spin:
        s_memrealtime s[60:61]
        s_waitcnt lgkmcnt(0)
        s_cmp_lt_u32 s60, s62
        s_cbranch_scc1 L_k1_spin""")
    A("L_k1_end:\ns_endpgm")

def spin(T,tag):
    A(f"""s_load_dwordx2 s[60:61], s[0:1], 72
    s_waitcnt lgkmcnt(0)
    s_add_u32 s60, s60, {MISC_OFF+FLAGO+2048}
    s_addc_u32 s61, s61, 0
    s_load_dword s62, s[60:61], 0
    s_waitcnt lgkmcnt(0)
    s_add_u32 s62, s62, {int(float(T)*100)}
L_spin_{tag}:
    s_memrealtime s[60:61]
    s_waitcnt lgkmcnt(0)
    s_cmp_lt_u32 s60, s62
    s_cbranch_scc1 L_spin_{tag}""")

ECAP=3456; BCAP=96; WCAP=4*BCAP
K2_HIST=0; K2_FL=256; K2_C1=260; K2_C2=264; K2_AL=272; K2_TOT=288; K2_OH=320; K2_L1=1024; K2_L2=K2_L1+16*WCAP*4; K2_E=K2_L2+16*WCAP*4
K2_Z=K2_E+ECAP*32; K2_W=K2_Z-34816; K2_SRC=K2_W-8192; K2_LDS=K2_Z+32
assert K2_LDS<=163840 and K2_L1%256==0 and K2_L2%256==0 and K2_SRC-K2_E>=2048*32
O0=K2_L1//256; O1o=K2_L2//256; LST=O1o-O0

def k2():
    L=0; D=32; EE=48; ACC=64; GB=80; AO=96; S=100; LM,LS=102,103; G=104; EA,OA,SA,LMX=108,109,110,111
    WP,CPt=112,113
    cJ16,cG8,cG8O,cS,pL1,pLm,pLs,LANE=114,115,116,117,118,119,120,121
    L16,TID=122,123
    A(".p2align 8\nmain_kernel:")
    A(f"""s_cmp_ge_u32 s2, 256
    s_cbranch_scc1 L_k2_end""")
    if OPT.get('until0'): spin(OPT['until0'],'a')
    A(f"""s_load_dwordx2 s[18:19], s[0:1], 72
    s_load_dwordx2 s[4:5], s[0:1], 0
    s_load_dwordx2 s[6:7], s[0:1], 56
    v_mov_b32 v{TID}, v0
    v_lshrrev_b32 v1, 6, v0
    v_and_b32 v{LANE}, 63, v0
    v_readfirstlane_b32 s3, v1
    v_lshlrev_b32 v{L16}, 4, v{LANE}
    v_lshlrev_b32 v4, 4, v0
    s_bfe_u32 s40, s2, 0x10002
    s_lshr_b32 s41, s2, 3
    s_and_b32 s42, s2, 3
    s_lshl_b32 s42, s42, 5
    s_add_u32 s41, s41, s42
    s_lshl_b32 s45, s41, 15
    s_add_u32 s46, s45, 16384
    s_mov_b32 s10, 0x400000
    s_mov_b32 s11, 0x20000
    s_setprio 3
    s_waitcnt lgkmcnt(0)
    s_add_u32 s8, s18, {hex(REC_OFF)}
    s_addc_u32 s9, s19, 0""")
    R=0; RK=8; HA=16; XR=32
    A(f"""buffer_load_dwordx4 v[{R}:{R+3}], v4, s[8:11], s45 offen {NT}
    buffer_load_dwordx4 v[{R+4}:{R+7}], v4, s[8:11], s46 offen {NT}""")
    stamp_init(1,3,18,19)
    stamp(0,1)
    srd(24,18,19,MISC_OFF,MISC_SZ)
    A(f"""s_lshl_b32 s45, s3, 6
    s_add_u32 s45, s45, {FLAGO}
    v_lshlrev_b32 v25, 2, v{LANE}
    s_mov_b64 exec, 0xffff
    buffer_load_dword v24, v25, s[24:27], s45 offen
    s_mov_b64 exec, -1""")
    A(f"""s_add_u32 s42, s3, 4
    s_mul_i32 s42, s42, 52
    s_lshr_b32 s42, s42, 8
    s_add_u32 s43, s3, 5
    s_mul_i32 s43, s43, 52
    s_lshr_b32 s43, s43, 8
    s_sub_u32 s43, s43, s42
    s_add_u32 s43, s43, 12
    s_mul_i32 s44, s3, 12
    s_add_u32 s42, s42, s44
    s_mul_i32 s44, s41, {BS}
    s_add_u32 s44, s44, s42""")
    srd(20,4,5,0,N*256)
    A(f"""s_lshl_b32 s45, s41, 18
    s_add_u32 s12, s18, s45
    s_addc_u32 s13, s19, 0
    s_add_u32 s12, s12, {hex(EP_OFF)}
    s_addc_u32 s13, s13, 0
    s_mov_b32 s14, 0x40000
    s_mov_b32 s15, 0x20000
    s_mul_i32 s45, s40, {HS}
    s_add_u32 s45, s45, {WSB}
    s_add_u32 s16, s18, s45
    s_addc_u32 s17, s19, 0
    s_mov_b32 s18, {HS}
    s_mov_b32 s19, 0x20000""")
    srd(28,6,7,0,N*256)
    A(f"""v_subrev_u32 v28, 80, v{TID}
    v_and_b32 v29, 7, v28
    v_lshrrev_b32 v30, 4, v28
    v_and_b32 v28, 8, v28
    v_lshlrev_b32 v28, 1, v28
    v_mov_b32 v31, 0x3f80
    v_cmp_eq_u32 vcc, v29, v30
    v_lshlrev_b32 v31, v28, v31
    v_lshlrev_b32 v29, 2, v{TID}
    v_cndmask_b32 v31, 0, v31, vcc
    s_cmp_lg_u32 s3, 1
    s_cbranch_scc1 L_k2_noal
    s_mov_b32 s45, {2048<<16}
    s_mov_b32 s46, 3072
    v_writelane_b32 v31, s45, 4
    v_writelane_b32 v31, s46, 5
L_k2_noal:
    v_cmp_gt_u32 vcc, 216, v{TID}
    s_mov_b64 exec, vcc
    ds_write_b32 v29, v31
    s_cmp_lg_u32 s3, 0
    s_cbranch_scc1 L_k2_noz
    s_mov_b64 exec, 0xff
    v_add_u32 v29, {K2_Z}, v29
    ds_write_b32 v29, v31
L_k2_noz:
    s_mov_b64 exec, -1
    v_bfe_u32 v28, v{LANE}, 2, 2
    v_and_b32 v29, 3, v{LANE}
    v_lshlrev_b32 v28, 10, v28
    v_lshl_or_b32 v28, v29, 4, v28
    v_lshrrev_b32 v29, 4, v{LANE}
    v_lshl_or_b32 v28, v29, 6, v28
    s_cmp_eq_u32 s43, 13
    s_cselect_b32 s50, -1, 0x0fff0fff
    s_lshl_b32 s45, s44, 8
    s_lshl_b32 s47, s3, 11
    s_add_u32 m0, s47, {K2_W}
    s_mul_i32 s48, s40, {WH}
    s_add_u32 s47, s47, s48""")
    for i in range(16): A(f"v_mov_b32 v{XR+i}, 0")
    A(f"""s_waitcnt lgkmcnt(0)
    s_barrier
    s_cmp_lg_u32 s3, 15
    s_cbranch_scc1 L_k2_noc
    buffer_load_dwordx4 v{L16}, s[24:27], s47 offen offset:2048 lds
    buffer_load_dwordx4 v{L16}, s[24:27], s47 offen offset:3072 lds
L_k2_noc:
    buffer_load_dwordx4 v{L16}, s[24:27], s47 offen lds
    buffer_load_dwordx4 v{L16}, s[24:27], s47 offen offset:1024 lds
    v_mov_b32 v78, v28
    s_mov_b32 s84, s50
    s_mov_b32 s85, 0x0fff0fff
    s_mov_b32 s86, s45""")
    XL=int(OPT.get('xlate',16))
    def xload(tag, early):
        A(f"s_cmp_{'ge' if early else 'lt'}_u32 s3, {XL}\ns_cbranch_scc1 L_k2_x{tag}\ns_mov_b32 exec_lo, s84\ns_mov_b32 exec_hi, s84")
        for ks in range(4):
            A(f"buffer_load_dwordx4 v[{XR+4*ks}:{XR+4*ks+3}], v78, s[20:23], s86 offen offset:{ks*256} {NT}")
            if ks==0: A("s_mov_b32 exec_lo, s85\ns_mov_b32 exec_hi, s85")
        A(f"s_mov_b64 exec, -1\nL_k2_x{tag}:")
    xload('e',True)
    A(f"""    v_and_b32 v28, 15, v{LANE}
    v_lshrrev_b32 v29, 4, v{LANE}
    v_lshlrev_b32 v{cJ16}, 4, v28
    v_lshlrev_b32 v30, 3, v29
    v_add_u32 v{cG8}, {K2_E}, v30
    v_add_u32 v{cG8O}, {K2_OH}, v30
    v_and_b32 v30, 3, v{LANE}
    v_lshlrev_b32 v30, 3, v30
    v_add_u32 v{cS}, {K2_OH}, v30
    s_mul_i32 s47, s3, {WCAP*4}
    s_add_u32 s48, s47, {K2_L2}
    s_add_u32 s47, s47, {K2_L1}
    v_lshl_add_u32 v{pL1}, v29, 4, s47
    v_lshl_add_u32 v{pLm}, v28, 2, s48
    v_and_b32 v30, -4, v{LANE}
    v_add_u32 v{pLs}, s48, v30
    v_lshrrev_b32 v30, 4, v{TID}
    v_lshl_add_u32 v29, v30, 6, v28
    v_lshl_or_b32 v28, v28, 16, v28
    v_mov_b32 v31, 1
    v_mov_b32 v30, {OPT.get('srcmask','0x7fff00')}
    v_mov_b32 v25, 0
    v_mov_b32 v72, 0x0c0c0100
    v_mov_b32 v73, 0x202
    v_mov_b32 v74, 0x05040c00
    v_mov_b32 v75, {K2_SRC}
    s_mov_b32 s50, 0x80008000
    s_mov_b32 s51, 0x80008000
    s_mov_b32 s68, 0x0c010c00
    s_mov_b32 s69, 0x0c0c0c02
    s_mov_b32 s70, 0x01000100
    s_mov_b32 s71, 0x05040302
    s_mov_b32 s72, 0x0c010c00
    s_cmp_lt_u32 s3, {XL}
    s_cbranch_scc1 L_k2_rw
    s_waitcnt vmcnt(2)
L_k2_rw:
    s_waitcnt vmcnt(6)""")
    stamp(1,1)
    AL=64; DD=68; PR=76
    A(f"""v_perm_b32 v{AL}, v{R+3}, v{R+3}, s68
    v_perm_b32 v{AL+1}, v{R+3}, v{R+3}, s69
    v_perm_b32 v{AL+2}, v{R+7}, v{R+7}, s68
    v_perm_b32 v{AL+3}, v{R+7}, v{R+7}, s69
    s_mov_b64 exec, s[50:51]
    ds_add_rtn_u64 v[{AL}:{AL+1}], v25, v[{AL}:{AL+1}] offset:{K2_AL}
    ds_add_rtn_u64 v[{AL+2}:{AL+3}], v25, v[{AL+2}:{AL+3}] offset:{K2_AL}
    s_mov_b64 exec, 0xffff
    ds_or_b32 v25, v24 offset:{K2_FL}
    s_mov_b64 exec, -1""")
    MK=52; O1=48
    order=[0,4,1,5,2,6,3,7]
    for j in order:
        Lb=A.label("k2h")
        A(f"v_cmp_le_i32 s[{MK+2*j}:{MK+2*j+1}], 0, v{R+j}")
        if j&3==3: A(f"s_andn2_b64 s[{MK+2*j}:{MK+2*j+1}], s[{MK+2*j}:{MK+2*j+1}], s[50:51]")
        A(f"s_mov_b64 exec, s[{MK+2*j}:{MK+2*j+1}]")
        if j&3>=2: A(f"s_cbranch_execz {Lb}")
        A(f"""v_lshlrev_b32_sdwa v{HA+j}, 2, v{R+j} dst_sel:DWORD dst_unused:UNUSED_PAD src0_sel:DWORD src1_sel:BYTE_3
        v_bfe_u32 v{56+j}, v{R+j}, 24, 2
        ds_add_rtn_u32 v{RK+j}, v{HA+j}, v31 offset:{K2_HIST}
        v_and_b32 v{O1+j}, v30, v{R+j}
        v_mad_u32_u24 v{56+j}, v{56+j}, v73, v72""")
        if j&3>=2: A(f"{Lb}:")
        A("s_mov_b64 exec, -1")
    for u in range(2):
        h=R+3+4*u
        A(f"v_lshl_add_u32 v{PR+u}, v{h}, 8, v{h}\nv_perm_b32 v{PR+u}, v{PR+u}, v{PR+u}, s72")
    A("s_waitcnt lgkmcnt(0)")
    for u in range(2):
        A(f"""v_perm_b32 v{DD+2*u}, v{AL+2*u}, v{AL+2*u}, s70
        v_perm_b32 v{DD+2*u+1}, v{AL+2*u+1}, v{AL+2*u}, s71
        v_pk_sub_u16 v{DD+2*u+1}, v{DD+2*u+1}, v{PR+u}""")
    A("s_nop 0")
    for k in (0,2,1,3): A(f"v_mov_b32_dpp v{DD+k}, v{DD+k} row_newbcast:15 row_mask:0xf bank_mask:0xf")
    for k in (0,2,1,3): A(f"v_pk_add_u16 v{DD+k}, v{DD+k}, v28")
    for j in order:
        Lb=A.label("k2s"); u=j>>2
        A(f"s_mov_b64 exec, s[{MK+2*j}:{MK+2*j+1}]")
        if j&3>=2: A(f"s_cbranch_execz {Lb}")
        A(f"""v_perm_b32 v24, v{DD+2*u+1}, v{DD+2*u}, v{56+j}
        v_mad_u32_u24 v{RK+j}, v{HA+j}, 24, v{RK+j}""")
        if j&3: A(f"v_add_u32 v24, {16*(j&3)}, v24")
        A(f"v_lshlrev_b32 v{RK+j}, 2, v{RK+j}")
        if j: A(f"v_add_u32 v{HA+j}, {16*(j&3)+4096*u}, v29")
        A(f"""v_perm_b32 v{R+j}, v24, v{R+j}, v74
        v_lshl_add_u32 v24, v24, 1, v75
        ds_write2st64_b32 v{RK+j}, v{O1+j}, v{R+j} offset0:{O0} offset1:{O1o}
        ds_write_b16 v24, v{HA+j if j else 29}""")
        if j&3>=2: A(f"{Lb}:")
    A("s_mov_b64 exec, -1")
    xload('l',False)
    A(f"""v_lshlrev_b32 v24, 2, v{LANE}
    v_add_u32 v26, s47, v24
    v_and_b32 v27, -2, v{LANE}
    s_lshl_b32 s45, s3, 6
    s_add_u32 s45, s45, {K2_SRC}
    v_add_u32 v27, s45, v27
    v_and_b32 v28, 1, v{LANE}
    v_lshlrev_b32 v28, 4, v28
    s_lshl_b32 s45, s3, 2
    s_waitcnt vmcnt(4) lgkmcnt(0)
    s_barrier""")
    stamp(2,1)
    H0=0; FLr=1; ALr=2; SR=4; CP=8; S1=124; S2=126
    A(f"""ds_read_b32 v{H0}, v24 offset:{K2_HIST}
    ds_read_b32 v{FLr}, v25 offset:{K2_FL}
    ds_read_b64 v[{ALr}:{ALr+1}], v25 offset:{K2_AL}""")
    for i in range(4): A(f"ds_read_u16 v{SR+i}, v27 offset:{i*1024}")
    for b in range(1,4):
        A(f"""ds_read_b32 v{CP+4*b}, v26 offset:{b*BCAP*4}
        ds_read_b32 v{CP+4*b+1}, v26 offset:{b*BCAP*4+LST*256}""")
    A(f"""s_waitcnt lgkmcnt(6)
    v_cmp_lt_u32 vcc, {BCAP}, v{H0}
    v_readfirstlane_b32 s70, v{FLr}
    v_readfirstlane_b32 s76, v{ALr}
    v_readfirstlane_b32 s78, v{ALr+1}""")
    for i in range(4):
        A(f"v_readlane_b32 s{72+i}, v{H0}, s45\ns_add_u32 s45, s45, 1")
    A(f"""s_cmp_lg_u64 vcc, 0
    s_cbranch_scc1 L_k2_fallback
    s_cmp_lg_u32 s70, 0
    s_cbranch_scc1 L_k2_fallback
    s_lshr_b32 s77, s76, 16
    s_and_b32 s76, s76, 0xffff
    s_sub_u32 s77, s77, 2048
    s_sub_u32 s78, s78, 3072
    s_max_u32 s70, s77, s78
    s_cmp_gt_u32 s70, 1024
    s_cbranch_scc1 L_k2_fallback
    s_cmp_gt_u32 s76, 2048
    s_cbranch_scc1 L_k2_fallback
    s_add_u32 s79, s76, s77
    s_add_u32 s70, s79, s78
    s_cmp_gt_u32 s70, {ECAP-32}
    s_cbranch_scc1 L_k2_fallback""")
    def dma(cnt, n, base, SR, tag):
        A(f"s_lshl_b32 s45, s3, 5")
        if base is None: A(f"s_lshl_b32 s46, s3, 10\ns_add_u32 m0, s46, {K2_E}")
        else: A(f"s_add_u32 s46, s45, s{base}\ns_lshl_b32 s46, s46, 5\ns_add_u32 m0, s46, {K2_E}")
        for i in range(cnt):
            A(f"""s_cmp_ge_u32 s45, s{n}
            s_cbranch_scc1 L_dma_{tag}
            buffer_load_dwordx4 v{SR+i}, s[12:15], 0 offen {NT} lds""")
            if i<cnt-1: A("s_add_u32 s45, s45, 512\ns_add_u32 m0, m0, 16384")
        A(f"L_dma_{tag}:")
    for i in range(4): A(f"v_lshl_add_u32 v{SR+i}, v{SR+i}, 5, v28")
    dma(4,76,None,SR,'p0')
    if OPT.get('fine'): stamp(5,1)
    A("s_max_u32 s45, s73, s74\ns_max_u32 s45, s45, s75\ns_cmp_le_u32 s45, 64\ns_cbranch_scc1 L_k2_nolong")
    for b in range(1,4):
        A(f"""ds_read_b32 v{CP+4*b+2}, v26 offset:{b*BCAP*4+256}
        ds_read_b32 v{CP+4*b+3}, v26 offset:{b*BCAP*4+256+LST*256}""")
    A("L_k2_nolong:")
    for i in range(2): A(f"ds_read_u16 v{S1+i}, v27 offset:{4096+i*1024}\nds_read_u16 v{S2+i}, v27 offset:{6144+i*1024}")
    A(f"""s_mov_b32 s68, s72
    v_add_u32 v29, 64, v{LANE}
    s_sub_u32 s48, s76, 2048
    s_sub_u32 s49, s79, 3072
    s_lshl_b32 s48, s48, 16
    s_lshl_b32 s49, s49, 16
    s_waitcnt lgkmcnt(0)""")
    for i in range(4): A(f"v_lshl_add_u32 v{S1+i}, v{S1+i}, 5, v28")
    for b in range(1,4):
        Lb=A.label("cp")
        if b>=2: A(f"v_add_u32 v{CP+4*b+1}, s{46+b}, v{CP+4*b+1}")
        A(f"""v_cmp_gt_u32 vcc, s{72+b}, v{LANE}
        v_lshl_add_u32 v24, s68, 2, v26
        s_add_u32 s68, s68, s{72+b}
        s_mov_b64 exec, vcc
        ds_write2st64_b32 v24, v{CP+4*b}, v{CP+4*b+1} offset0:0 offset1:{LST}
        s_cmp_le_u32 s{72+b}, 64
        s_cbranch_scc1 {Lb}""")
        if b>=2: A(f"v_add_u32 v{CP+4*b+3}, s{46+b}, v{CP+4*b+3}")
        A(f"""v_cmp_gt_u32 vcc, s{72+b}, v29
        s_mov_b64 exec, vcc
        ds_write2st64_b32 v24, v{CP+4*b+2}, v{CP+4*b+3} offset0:1 offset1:{LST+1}
{Lb}:
        s_mov_b64 exec, -1""")
    A(f"""s_sub_u32 s46, 0, s68
    s_and_b32 s46, s46, 31
    v_cmp_gt_u32 vcc, s46, v{LANE}
    v_lshl_add_u32 v24, s68, 2, v26
    v_mov_b32 v30, {N<<8}
    v_mov_b32 v31, {hex((ECAP<<16)|16)}
    s_mov_b64 exec, vcc
    ds_write2st64_b32 v24, v30, v31 offset0:0 offset1:{LST}
    s_mov_b64 exec, -1
    s_add_u32 s69, s72, s73
    s_add_u32 s80, s69, s74
    s_lshr_b32 s69, s69, 4
    s_lshr_b32 s80, s80, 4
    s_add_u32 s68, s68, 15
    s_lshr_b32 s68, s68, 4""")
    XA=96
    def gathers(Gr, q):
        for i in range(4):
            A(f"v_or_b32 v{Gr+i}, v{Gr+i}, v{cJ16}")
            if not OPT.get('nogather'): A(f"buffer_load_dwordx4 v[{L+16*q+4*i}:{L+16*q+4*i+3}], v{Gr+i}, s[16:19], 0 offen {hint('gld')}")
    def aread(lm):
        A(f"""v_mad_u32_u16 v{EA}, v{lm}, 32, v{cG8} op_sel:[1,0,0,0]
        v_mad_u32_u16 v{OA}, v{lm}, 32, v{cG8O}
        ds_read_b64 v[{AO}:{AO+1}], v{EA}
        ds_read_b64 v[{AO+2}:{AO+3}], v{OA}""")
    A(f"""v_add_u32 v{WP}, {K2_W}, v{L16}
    v_lshrrev_b32 v{CPt}, 1, v{L16}
    v_add_u32 v{CPt}, {K2_W+CIMG}, v{CPt}
    s_lshl_b32 s45, s3, 5
    s_sub_u32 s45, s76, s45
    s_cmp_gt_i32 s45, 1024
    s_cbranch_scc1 L_k2_x3
    s_waitcnt vmcnt(0)
L_k2_x3:
    s_waitcnt vmcnt(3)""")
    if OPT.get('fine'): stamp(6,1)
    for t in range(4): A(f"ds_read_b64 v[{GB+4*t}:{GB+4*t+1}], v{CPt} offset:{t*512}")
    qtranspose(XR,EE,XA)
    BFR=32
    seq=[(mat,t,ks) for mat in range(2) for t in range(4) for ks in range(4)]
    def rd(n):
        mat,t,ks=seq[n]; b=BFR+4*(n%8)
        A(f"ds_read_b128 v[{b}:{b+3}], v{WP} offset:{n*1024}")
    PF=6
    for n in range(PF): rd(n)
    for n in range(32):
        mat,t,ks=seq[n]; b=BFR+4*(n%8); a=ACC+4*t
        if n==16:
            A(f"s_mov_b32 s45, {hex(LOG2E_NEG)}\ns_nop 6")
            for tt in range(4):
                for r in range(4): A(f"v_mul_f32 v{ACC+4*tt+r}, s45, v{ACC+4*tt+r}")
                A(f"v_cvt_pk_bf16_f32 v{GB+4*tt+2}, v{ACC+4*tt}, v{ACC+4*tt+1}\nv_cvt_pk_bf16_f32 v{GB+4*tt+3}, v{ACC+4*tt+2}, v{ACC+4*tt+3}")
        out=min(31-n,PF-1)
        A(f"s_waitcnt lgkmcnt({out})")
        A(f"v_mfma_f32_16x16x32_bf16 v[{a}:{a+3}], v[{XA+4*ks}:{XA+4*ks+3}], v[{b}:{b+3}], {'0' if ks==0 else f'v[{a}:{a+3}]'}")
        if n+PF<32: rd(n+PF)
    if OPT.get('fine'): stamp(7,1)
    A(f"""ds_read_b128 v[{EE}:{EE+3}], v{pL1}
    ds_read_b128 v[{G}:{G+3}], v{pL1} offset:64
    ds_read_b32 v{LM}, v{pLm}
    ds_read_b32 v{WP}, v{pLm} offset:64
    ds_read_b32 v{LS}, v{pLs}
    v_mov_b32 v{TID}, {K2_C1}
    v_mov_b32 v{L16}, 1
    s_lshl_b32 s45, s3, 5
    s_cmp_lt_u32 s45, s77
    s_cselect_b32 s71, 1, 0
    s_waitcnt vmcnt(0) lgkmcnt(0)""")
    EV=OPT.get('ev','1')=='1'
    def arrive(k):
        A(f"""s_mov_b64 exec, 1
        ds_add_u32 v{TID}, v{L16} offset:{4*k}
        s_mov_b64 exec, -1""")
        if EV and k<2: A(f"s_setprio {2-k}")
    def check(k,tag):
        A(f"""L_k2_spin{tag}:
        ds_read_b32 v{SA}, v{TID} offset:{4*k}
        s_waitcnt lgkmcnt(0)
        v_readfirstlane_b32 s45, v{SA}
        s_cmp_eq_u32 s45, 16
        s_cbranch_scc1 L_k2_ok{tag}
        s_sleep 1
        s_branch L_k2_spin{tag}
L_k2_ok{tag}:""")
    def ensure2(tag):
        A(f"s_cmp_eq_u32 s81, -1\ns_cbranch_scc1 L_k2_iss{tag}")
        dma(2,78,79,S2,'e'+tag)
        A(f"""s_mov_b32 s81, -1
L_k2_iss{tag}:
        s_cmp_eq_u32 s82, -1
        s_cbranch_scc1 L_k2_arr{tag}
        s_mov_b32 s82, -1
        s_waitcnt vmcnt(0)""")
        arrive(1)
        A(f"L_k2_arr{tag}:")
        check(1,'c'+tag)
    REL=OPT.get('rel','0')=='1'; EV=OPT.get('ev','1')=='1'
    TP,TD,TR=111,113,124
    if REL:
        A(f"""s_and_b32 s45, s3, 3
        s_lshl_b32 s45, s45, 2
        s_add_u32 s45, s45, {K2_TOT}
        v_mov_b32 v{TP}, s45
        v_mov_b32 v{TD}, s68
        s_mov_b64 exec, 1
        ds_add_u32 v{TP}, v{TD}
        s_mov_b64 exec, -1
        s_waitcnt lgkmcnt(0)
        v_mov_b32 v{TD}, -2""")
    arrive(2)
    gathers(EE,0)
    gathers(G,1)
    stamp(3,1)
    check(2,'w')
    if OPT.get('untilL'): spin(OPT['untilL'],'c')
    stamp(4,1)
    if STAMP: A('s_memtime s[100:101]\ns_waitcnt lgkmcnt(0)')
    if OPT.get('tl'):
        A('s_mov_b32 s90, s94')
        for i in range(1,8): A(f's_mov_b32 s{90+i}, 0')
    if OPT.get('reg'):
        A('s_mov_b32 s92, s68\ns_mov_b32 s93, s94\ns_getreg_b32 s91, hwreg(HW_REG_HW_ID)\ns_getreg_b32 s45, hwreg(HW_REG_XCC_ID)\ns_and_b32 s45, s45, 15\ns_and_b32 s91, s91, 0xffffff\ns_lshl_b32 s45, s45, 24\ns_or_b32 s91, s91, s45')
    dma(2,77,76,S1,'p1')
    A(f"""s_max_u32 s81, s69, 2
    s_add_u32 s82, s81, 1
    s_mov_b32 s83, 3
    s_cmp_gt_u32 s69, 3
    s_cbranch_scc1 L_k2_nb0
    s_mov_b32 s83, 0
    s_waitcnt vmcnt(0)""")
    arrive(0)
    A("s_cmp_gt_u32 s69, 1\ns_cbranch_scc1 L_k2_nb0")
    check(0,'p')
    A("s_cmp_gt_u32 s80, 1\ns_cbranch_scc1 L_k2_nb0")
    ensure2('p')
    A("L_k2_nb0:")
    def gate():
        if OPT.get('nomfma'): return
        for t in range(4): A(f"v_mfma_f32_16x16x32_bf16 v[{D+4*t}:{D+4*t+3}], v[{AO}:{AO+3}], v[{GB+4*t}:{GB+4*t+3}], 0")
    aread(LM)
    A("s_mov_b32 s70, 2\ns_waitcnt lgkmcnt(0)")
    gate()
    aread(WP)
    if not EV: A("s_setprio 2")
    A("""s_cmp_eq_u32 s68, 0
    s_cbranch_scc1 L_k2_done""")
    def group(q):
        Lq=L+16*q; o=64*q
        A(f"""v_mad_u32_u16 v{SA}, v{LS}, 32, v{cS}
        ds_read_b128 v[{G}:{G+3}], v{pL1} offset:{128+o}
        ds_read_b32 v{LM}, v{pLm} offset:{128+o}
        ds_read_b64_tr_b16 v[{S}:{S+1}], v{SA}
        ds_read_b32 v{LS}, v{pLs} offset:{64+o}""")
        if q==1: A(f"v_add_u32 v{pL1}, 128, v{pL1}\nv_add_u32 v{pLm}, 128, v{pLm}\nv_add_u32 v{pLs}, 128, v{pLs}")
        def setp(tag, lv):
            p3,p2,p1=[int(x) for x in OPT.get('pth','11,7,4').split(',')]
            A(f"""s_sub_u32 s45, s68, s70
            s_cmp_ge_i32 s45, {p3-2}
            s_cbranch_scc1 L_k2_p3{tag}
            s_cmp_ge_i32 s45, {p2-2}
            s_cbranch_scc1 L_k2_p2{tag}
            s_cmp_ge_i32 s45, {p1-2}
            s_cbranch_scc1 L_k2_p1{tag}
            s_setprio {lv[3]}
            s_branch L_k2_pd{tag}
L_k2_p3{tag}:
            s_setprio {lv[0]}
            s_branch L_k2_pd{tag}
L_k2_p2{tag}:
            s_setprio {lv[1]}
            s_branch L_k2_pd{tag}
L_k2_p1{tag}:
            s_setprio {lv[2]}
L_k2_pd{tag}:""")
        YL=OPT.get('yield')
        if q==0 and REL:
            A(f"s_mov_b64 exec, 1\nds_add_rtn_u32 v{TR}, v{TP}, v{TD}\ns_mov_b64 exec, -1")
        if EV:
            A(f"""s_sub_u32 s45, s68, s70
            s_cmp_lg_u32 s45, {int(OPT.get('evt',4))-3}
            s_cbranch_scc1 L_k2_ev{q}
            s_cmp_lg_u32 s82, -1
            s_cbranch_scc1 L_k2_ev{q}
            s_setprio 0
L_k2_ev{q}:""")
        if q==0 and not YL and not REL and not EV: setp('a',[int(x) for x in OPT.get('plv','2,1,1,0').split(',')])
        if not OPT.get('nocomp'):
            for t in range(4):
                for r in range(4): A(f"v_exp_f32 v{EE+4*r+t}, v{D+4*t+r}")
        if OPT.get('tl') and q==0: A("s_memrealtime s[88:89]")
        A("s_waitcnt lgkmcnt(0)")
        if OPT.get('tl') and q==0: A("s_lshr_b32 s45, s70, 1\ns_min_u32 s45, s45, 7\ns_mov_b32 m0, s45\ns_nop 0\ns_movreld_b32 s90, s88")
        gate()
        if q==0 and REL:
            hi,lo=[int(x) for x in OPT.get('rth','3,-3').split(',')]
            A(f"""v_readfirstlane_b32 s46, v{TR}
            s_sub_u32 s45, s68, s70
            s_lshl_b32 s45, s45, 2
            s_sub_u32 s45, s45, s46
            s_cmp_ge_i32 s45, {hi-8}
            s_cbranch_scc1 L_k2_r2
            s_cmp_ge_i32 s45, {lo-8}
            s_cbranch_scc1 L_k2_r1
            s_setprio 0
            s_branch L_k2_rd
L_k2_r2:
            s_setprio 2
            s_branch L_k2_rd
L_k2_r1:
            s_setprio 1
L_k2_rd:""")
        A(f"""s_cmp_lg_u32 s70, s69
        s_cbranch_scc1 L_k2_nb_{q}""")
        check(0,q)
        A(f"""L_k2_nb_{q}:
        s_cmp_lg_u32 s70, s80
        s_cbranch_scc1 L_k2_nc_{q}""")
        ensure2(str(q))
        A(f"L_k2_nc_{q}:")
        aread(LM)
        A(f"""s_add_u32 s45, s71, 2
        s_cmp_lt_u32 s70, s45
        s_cbranch_scc1 L_k2_w7_{q}
        s_waitcnt vmcnt(4)
L_k2_w7_{q}:
        s_cmp_le_u32 s70, s68
        s_cbranch_scc1 L_k2_w0_{q}
        s_waitcnt vmcnt(0)
L_k2_w0_{q}:
        s_waitcnt vmcnt(5)""")
        if q==1:
            A("s_cmp_lg_u32 s70, s83\ns_cbranch_scc1 L_k2_noarr")
            arrive(0)
            A("L_k2_noarr:")
        A(f"s_cmp_lg_u32 s70, s82\ns_cbranch_scc1 L_k2_noa2_{q}\ns_mov_b32 s82, -1")
        arrive(1)
        A(f"L_k2_noa2_{q}:")
        if not OPT.get('nocomp'):
            order=[(r,t) for tt in (0,2) for r in range(4) for t in (tt,tt+1)]
            fm=lambda r,t: A(f"v_fma_mix_f32 v{EE+4*r+t}, v{Lq+4*r+t}, v{EE+4*r+t}, 1.0 op_sel_hi:[1,0,0]")
            rc=lambda r,t: A(f"v_rcp_f32 v{EE+4*r+t}, v{EE+4*r+t}")
            lag=int(OPT.get('lag','2'))
            MG=OPT.get('merge','0')
            pk=lambda d,a,b: A(f"v_pk_mul_f32 v[{d}:{d+1}], v[{a}:{a+1}], v[{b}:{b+1}]")
            Ea=lambda r,t: EE+4*r+t
            La=lambda r,t: Lq+4*r+t
            if MG=='0':
                for i in range(16+lag):
                    if i<16: fm(*order[i])
                    if i>=lag: rc(*order[i-lag])
                if YL: A("s_setprio 0")
                if OPT.get('nopk'):
                    for r,t in order: A(f"v_mul_f32 v{EE+4*r+t}, v{EE+4*r+t}, v{Lq+4*r+t}")
                else:
                  for t in (0,2):
                    for r in range(4): pk(Ea(r,t),Ea(r,t),La(r,t))
            elif MG=='2':
                for r,t in order: fm(r,t)
                for t in (0,2):
                    for r in (0,2):
                        pk(La(r,t),La(r,t),Ea(r+1,t)); pk(La(r+1,t),La(r+1,t),Ea(r,t)); pk(Ea(r,t),Ea(r,t),Ea(r+1,t))
                for t in range(4):
                    for r in (0,2): rc(r,t)
                A("s_nop 0")
                for t in (0,2):
                    for r in (0,2):
                        pk(Ea(r+1,t),Ea(r,t),La(r+1,t)); pk(Ea(r,t),Ea(r,t),La(r,t))
            else:
                for r,t in order: fm(r,t)
                for t in (0,2):
                    for r in (0,2):
                        pk(La(r,t),La(r,t),Ea(r+1,t)); pk(La(r+1,t),La(r+1,t),Ea(r,t)); pk(Ea(r,t),Ea(r,t),Ea(r+1,t))
                for t in (0,2): pk(Ea(1,t),Ea(0,t),Ea(2,t))
                for t in range(4): rc(1,t)
                A("s_nop 0")
                for t in (0,2):
                    pk(Ea(3,t),Ea(1,t),Ea(0,t)); pk(Ea(1,t),Ea(1,t),Ea(2,t))
                for t in (0,2):
                    pk(Ea(0,t),Ea(1,t),La(0,t)); pk(Ea(2,t),Ea(3,t),La(2,t))
                    pk(Ea(1,t),Ea(1,t),La(1,t)); pk(Ea(3,t),Ea(3,t),La(3,t))
            if YL: setp(f'y{q}',[3,2,1,1])
            for t,p in [(0,0),(2,0),(1,0),(3,0),(0,1),(1,1),(2,1),(3,1)]:
                A(f"v_cvt_pk_bf16_f32 v{EE+2*t+p}, v{EE+8*p+t}, v{EE+8*p+4+t}")
        A("s_nop 1")
        for t in range(0 if OPT.get('nomfma') else 4): A(f"v_mfma_f32_16x16x16_bf16 v[{ACC+4*t}:{ACC+4*t+3}], v[{S}:{S+1}], v[{EE+2*t}:{EE+2*t+1}], v[{ACC+4*t}:{ACC+4*t+3}]")
        A(f"s_cmp_lg_u32 s70, s81\ns_cbranch_scc1 L_k2_ni_{q}\ns_mov_b32 s81, -1")
        dma(2,78,79,S2,f'i{q}')
        A(f"""L_k2_ni_{q}:
        s_cmp_ge_u32 s70, s68
        s_cbranch_scc1 L_k2_ng_{q}""")
        gathers(G,q)
        A(f"""L_k2_ng_{q}:
        s_cmp_gt_u32 s70, s68
        s_cbranch_scc1 L_k2_done
        s_add_u32 s70, s70, 1""")
    A(".p2align 6\nL_k2_loop:")
    group(0); group(1)
    A("s_branch L_k2_loop")
    A("L_k2_done:\ns_waitcnt vmcnt(0)")
    if not OPT.get('tl') and not OPT.get('fine'): stamp(5,1)
    if STAMP and not OPT.get('tl') and not OPT.get('fine'): A('s_memtime s[88:89]\ns_waitcnt lgkmcnt(0)\ns_sub_u32 s97, s88, s100')
    A(f"""v_lshrrev_b32 v0, 4, v{LANE}
    v_lshlrev_b32 v0, 2, v0
    v_add_u32 v1, s44, v0
    v_lshlrev_b32 v1, 8, v1
    v_lshrrev_b32 v2, 1, v{cJ16}
    s_lshl_b32 s45, s40, 7
    v_add3_u32 v1, v1, v2, s45
    v_mov_b32 v3, {hex(LOG2E_NEG)}
    v_mov_b32 v4, 0x80000000""")
    for r in range(4):
        for t in range(4): A(f"v_mul_f32 v{8+t}, v3, v{ACC+4*t+r}")
        for t in range(4): A(f"v_exp_f32 v{8+t}, v{8+t}")
        A(f"v_add_u32 v5, {r}, v0\nv_cmp_gt_u32 vcc, s43, v5")
        for t in range(4): A(f"v_add_f32 v{8+t}, 1.0, v{8+t}")
        for t in range(4): A(f"v_rcp_f32 v{8+t}, v{8+t}")
        A(f"v_cndmask_b32 v{16+r}, v4, v1, vcc")
        for t in range(4): A(f"v_mul_f32 v{8+t}, v{8+t}, v{ACC+4*t+r}")
        A(f"""v_cvt_pk_bf16_f32 v{20+2*r}, v8, v9
        v_cvt_pk_bf16_f32 v{21+2*r}, v10, v11
        buffer_store_dwordx2 v[{20+2*r}:{21+2*r}], v{16+r}, s[28:31], 0 offen offset:{r*256} {OST}""")
    if STAMP:
        A("s_waitcnt vmcnt(0)")
        if not OPT.get('tl') and not OPT.get('fine'): stamp(6,1)
        stamp_flush(1)
    if OPT.get('until'): spin(OPT['until'],'b')
    A("s_endpgm")
    fallback()
    A("L_k2_end:\ns_endpgm")

def fallback():
    LANE=121; TID=123
    A(f"""L_k2_fallback:
    s_mov_b64 exec, -1
    s_load_dwordx2 s[50:51], s[0:1], 8
    s_load_dwordx4 s[52:55], s[0:1], 16
    s_load_dwordx4 s[56:59], s[0:1], 32
    s_load_dwordx2 s[60:61], s[0:1], 48
    s_waitcnt vmcnt(0) lgkmcnt(0)
    s_barrier""")
    srd(8,50,51,0,E*32)
    srd(12,52,53,0,E*4)
    srd(16,54,55,0,E*4)
    srd(24,56,57,0,128*256)
    srd(32,58,59,0,128*256)
    srd(36,60,61,0,272*256)
    A(f"""v_mov_b32 v0, 0
    v_mov_b32 v1, 0
    v_mov_b32 v2, 0
    v_mov_b32 v3, 0
    v_lshlrev_b32 v4, 4, v{TID}
    ds_write_b128 v4, v[0:3]
    ds_write_b128 v4, v[0:3] offset:16384
    ds_write_b128 v4, v[0:3] offset:32768
    ds_write_b128 v4, v[0:3] offset:49152
    s_lshl_b32 s45, s40, 7
    v_lshl_add_u32 v5, v{LANE}, 1, s45
    v_lshlrev_b32 v6, 2, v{LANE}
    s_mul_i32 s46, s41, {BS}
    s_lshl_b32 s47, s3, 6
    s_waitcnt lgkmcnt(0)
    s_barrier
L_fb_chunk:
    s_cmp_ge_u32 s47, {E}
    s_cbranch_scc1 L_fb_fin
    s_lshl_b32 s48, s47, 2
    buffer_load_dword v7, v6, s[16:19], s48 offen
    buffer_load_dword v8, v6, s[12:15], s48 offen
    s_waitcnt vmcnt(0)
    v_subrev_u32 v9, s46, v7
    v_cmp_gt_u32 s[62:63], v10, v9
    """.replace("v_cmp_gt_u32 s[62:63], v10, v9",f"v_mov_b32 v10, {BS}\nv_cmp_gt_u32 s[62:63], v10, v9")+f"""
L_fb_edge:
    s_cmp_eq_u64 s[62:63], 0
    s_cbranch_scc1 L_fb_next
    s_ff1_i32_b64 s49, s[62:63]
    s_bitset0_b64 s[62:63], s49
    v_readlane_b32 s64, v7, s49
    v_readlane_b32 s65, v8, s49
    s_add_u32 s66, s47, s49
    s_lshl_b32 s67, s64, 8
    s_lshl_b32 s68, s65, 8
    s_lshl_b32 s66, s66, 5
    s_nop 2
    buffer_load_dword v11, v6, s[20:23], s67 offen
    buffer_load_dword v12, v6, s[20:23], s68 offen
    v_and_b32 v14, 28, v6
    buffer_load_dword v13, v14, s[8:11], s66 offen
    v_mov_b32 v15, 0
    v_mov_b32 v16, 0
    s_mov_b32 s69, 0
    s_waitcnt vmcnt(0)
L_fb_k:
    s_lshl_b32 s70, s69, 9
    s_add_u32 s71, s70, {128*256}
    buffer_load_ushort v17, v5, s[36:39], s70 offen
    buffer_load_ushort v18, v5, s[36:39], s70 offen offset:256
    buffer_load_ushort v19, v5, s[36:39], s71 offen
    buffer_load_ushort v20, v5, s[36:39], s71 offen offset:256
    buffer_load_ushort v21, v5, s[32:35], s70 offen
    buffer_load_ushort v22, v5, s[32:35], s70 offen offset:256
    v_readlane_b32 s72, v11, s69
    v_readlane_b32 s73, v12, s69
    s_lshl_b32 s74, s72, 16
    s_and_b32 s72, s72, 0xffff0000
    s_lshl_b32 s75, s73, 16
    s_and_b32 s73, s73, 0xffff0000
    s_waitcnt vmcnt(0)""")
    for i in range(17,23): A(f"v_lshlrev_b32 v{i}, 16, v{i}")
    A(f"""v_fmac_f32 v15, s74, v17
    v_fmac_f32 v15, s72, v18
    v_fmac_f32 v15, s75, v19
    v_fmac_f32 v15, s73, v20
    v_fmac_f32 v16, s75, v21
    v_fmac_f32 v16, s73, v22
    s_add_u32 s69, s69, 1
    s_cmp_lt_u32 s69, 64
    s_cbranch_scc1 L_fb_k
    s_mov_b32 s69, 0
L_fb_ke:
    s_lshl_b32 s70, s69, 9
    s_add_u32 s70, s70, {256*256}
    buffer_load_ushort v17, v5, s[36:39], s70 offen
    buffer_load_ushort v18, v5, s[36:39], s70 offen offset:256
    v_readlane_b32 s72, v13, s69
    s_lshl_b32 s74, s72, 16
    s_and_b32 s72, s72, 0xffff0000
    s_waitcnt vmcnt(0)
    v_lshlrev_b32 v17, 16, v17
    v_lshlrev_b32 v18, 16, v18
    v_fmac_f32 v15, s74, v17
    v_fmac_f32 v15, s72, v18
    s_add_u32 s69, s69, 1
    s_cmp_lt_u32 s69, 8
    s_cbranch_scc1 L_fb_ke
    v_mul_f32 v15, {hex(LOG2E_NEG)}, v15
    v_exp_f32 v15, v15
    s_sub_u32 s64, s64, s46
    s_lshl_b32 s64, s64, 8
    v_add_f32 v15, 1.0, v15
    v_rcp_f32 v15, v15
    v_add_u32 v17, s64, v6
    v_mul_f32 v15, v15, v16
    ds_add_f32 v17, v15
    s_branch L_fb_edge
L_fb_next:
    s_add_u32 s47, s47, 1024
    s_branch L_fb_chunk
L_fb_fin:
    s_waitcnt lgkmcnt(0)
    s_barrier
    s_mov_b32 s47, s3
L_fb_node:
    s_cmp_ge_u32 s47, {BS}
    s_cbranch_scc1 L_k2_end
    s_add_u32 s64, s46, s47
    s_lshl_b32 s67, s64, 8
    buffer_load_dword v11, v6, s[20:23], s67 offen
    s_lshl_b32 s48, s47, 8
    v_add_u32 v17, s48, v6
    ds_read_b32 v15, v17
    s_mov_b32 s69, 0
    s_waitcnt vmcnt(0) lgkmcnt(0)
L_fb_ku:
    s_lshl_b32 s70, s69, 9
    buffer_load_ushort v17, v5, s[24:27], s70 offen
    buffer_load_ushort v18, v5, s[24:27], s70 offen offset:256
    v_readlane_b32 s72, v11, s69
    s_lshl_b32 s74, s72, 16
    s_and_b32 s72, s72, 0xffff0000
    s_waitcnt vmcnt(0)
    v_lshlrev_b32 v17, 16, v17
    v_lshlrev_b32 v18, 16, v18
    v_fmac_f32 v15, s74, v17
    v_fmac_f32 v15, s72, v18
    s_add_u32 s69, s69, 1
    s_cmp_lt_u32 s69, 64
    s_cbranch_scc1 L_fb_ku
    v_mul_f32 v16, {hex(LOG2E_NEG)}, v15
    v_exp_f32 v16, v16
    s_nop 0
    v_add_f32 v16, 1.0, v16
    v_rcp_f32 v16, v16
    s_nop 0
    v_mul_f32 v15, v15, v16
    v_cvt_pk_bf16_f32 v15, v15, v15
    buffer_store_short v15, v5, s[28:31], s67 offen
    s_add_u32 s47, s47, 16
    s_branch L_fb_node""")

def desc(name, vg, sg=102):
    return f""".amdhsa_kernel {name}
  .amdhsa_next_free_vgpr {vg}
  .amdhsa_next_free_sgpr {sg}
  .amdhsa_accum_offset {vg}
  .amdhsa_group_segment_fixed_size 0
  .amdhsa_kernarg_size 80
  .amdhsa_user_sgpr_count 2
  .amdhsa_user_sgpr_kernarg_segment_ptr 1
  .amdhsa_system_sgpr_workgroup_id_x 1
.end_amdhsa_kernel
"""
k1(); k2()
errs=check(A.lines)
for e in errs: print(e, file=sys.stderr)
hdr=open('gather_scatter__edge_featured_mpnn_egc__graph.s.ref').read().split('; Override launch')[0]
xl=f"; @launch kernel=nop_kernel grid=({OPT.get('nopg',256)},1,1) block=({OPT.get('nopb',64)},1,1) lds={OPT.get('nopl',0)}\n"
pre=xl if OPT.get('nop')=='pre' else ''; post=xl if OPT.get('nop')=='post' else ''
if OPT.get('nop'):
    A(".p2align 8\nnop_kernel:")
    if OPT.get('nopt0'):
        A(f"""s_memrealtime s[6:7]
        s_load_dwordx2 s[4:5], s[0:1], 72
        s_cmp_lg_u32 s2, 0
        s_cbranch_scc1 L_nop_end
        s_waitcnt lgkmcnt(0)
        s_add_u32 s8, s4, {MISC_OFF}
        s_addc_u32 s9, s5, 0
        s_mov_b32 s10, {MISC_SZ}
        s_mov_b32 s11, 0x20000
        v_mov_b32 v1, s6
        v_mov_b32 v2, {FLAGO+2048}
        buffer_store_dword v1, v2, s[8:11], 0 offen sc0 sc1
L_nop_end:""")
    A("s_endpgm")
out=hdr+pre+f"""; Two launches: prep (edge partition + node tables), main (gated gather / aggregate / silu)
; @launch kernel=prep_kernel grid=(256,1,1) block=(1024,1,1) lds={K1_LDS}
; @launch kernel=main_kernel grid=(256,1,1) block=(1024,1,1) lds={K2_LDS}
{post}.amdgcn_target "amdgcn-amd-amdhsa--gfx950"
.text
.globl prep_kernel
.type prep_kernel,@function
.globl main_kernel
.type main_kernel,@function
"""+A.text()+""".section .rodata,"a"
.p2align 6
"""+desc("prep_kernel",128)+".p2align 6\n"+desc("main_kernel",128)+((".p2align 6\n"+desc("nop_kernel",8,16)) if OPT.get('nop') else '')
open(sys.argv[1],'w').write(out)
print("written",sys.argv[1],len(A.lines),"lines; hazards:",len(errs))
```

```python
import sys
from dsl import *
OPT=dict(a.split('=') if '=' in a else (a,'1') for a in sys.argv[2:])
STAMP=int(OPT.get('stamp',0))
def hint(k,d=''):
    v=OPT.get(k,d); return '' if v=='none' else v.replace('+',' ')
NTI=hint('nti'); NTE=hint('nte'); NTX=hint('ntx'); NT=hint('nt2'); OST=hint('ost','sc0+sc1')
ST=OPT.get('st','sc0 sc1')
if ST=='none': ST=''
ST=ST.replace('+',' ')

MST=hint('mst','none')
X64='_e64' if OPT.get('x64') else ''; R64='_e64' if OPT.get('r64') else ''
N=25000; E=400000; BS=196; CH=3136
NROW=25088; HS=NROW*256
WSB=int(OPT.get('wsb','0'))<<20
TAB_OFF=WSB; REC_OFF=WSB+0x0D00000; EP_OFF=WSB+0x1100000; MISC_OFF=WSB+0x3100000
WH=0x9000; CIMG=0x8000; FLAGO=0x12000; MISC_SZ=0x13000
LOG2E=0x3fb8aa3b
STAMP_OFF=0x3200000
LOG2E_NEG=0xbfb8aa3b
A=Asm()

def srd(s, base_lo, base_hi, off, size):
    if off:
        A(f"s_add_u32 s{s}, s{base_lo}, {hex(off)}\ns_addc_u32 s{s+1}, s{base_hi}, 0")
    else:
        A(f"s_mov_b32 s{s}, s{base_lo}\ns_mov_b32 s{s+1}, s{base_hi}")
    A(f"s_mov_b32 s{s+2}, {hex(size)}\ns_mov_b32 s{s+3}, 0x20000")

def stamp(idx, kern):
    if not STAMP: return
    A(f"""s_memrealtime s[88:89]
    s_waitcnt lgkmcnt(0)
    s_mov_b32 s{90+idx}, s88""")
def stamp_init(kern, wave_s, wsl, wsh):
    if not STAMP: return
    for i in range(8): A(f"s_mov_b32 s{90+i}, 0")
    A(f"s_add_u32 s98, s{wsl}, {hex(STAMP_OFF+kern*0x80000)}\ns_addc_u32 s99, s{wsh}, 0")
def stamp_flush(kern=0):
    if not STAMP: return
    if STAMP==2:
        sel=[0,1,2,5] if kern==0 else [0,2,3,6]
        if kern==0: A("s_and_b32 s4, s2, 15\ns_cmp_lg_u32 s4, 0\ns_cbranch_scc1 L_sf_0_3")
        A(f"""s_load_dwordx2 s[4:5], s[0:1], 64
        s_waitcnt lgkmcnt(0)
        s_add_u32 s4, s4, {512*(1-kern)}
        s_addc_u32 s5, s5, 0
        s_cmp_lg_u32 s3, {12 if kern==0 else 15}
        s_cbranch_scc1 L_sf_{kern}_3
        s_mov_b32 s6, 256
        s_mov_b32 s7, 0x20000
        s_mov_b64 exec, 1
        v_mov_b32 v8, 0""")
        for n,i in enumerate(sel):
            A(f"""v_mov_b32 v0, s{90+i}
            v_not_b32 v1, v0
            s_cmp_eq_u32 s{90+i}, 0
            s_cbranch_scc1 L_sf_{kern}_{n}
            buffer_atomic_umax v1, v8, s[4:7], 0 offen offset:{kern*32+n*8}
            buffer_atomic_umax v0, v8, s[4:7], 0 offen offset:{kern*32+n*8+4}
L_sf_{kern}_{n}:""")
        return
    A("""s_mov_b32 s4, s98
    s_mov_b32 s5, s99
    s_mov_b32 s6, 0x80000
    s_mov_b32 s7, 0x20000
    s_lshl_b32 s8, s2, 4
    s_add_u32 s8, s8, s3
    s_lshl_b32 s8, s8, 6
    s_mov_b64 exec, 1
    v_mov_b32 v8, 0""")
    for i in range(8): A(f"v_mov_b32 v{i}, s{90+i}")
    A("buffer_store_dwordx4 v[0:3], v8, s[4:7], s8 offen\nbuffer_store_dwordx4 v[4:7], v8, s[4:7], s8 offen offset:16")

def qtranspose(X,P,Y):
    for st,(src,dst,pm,m0) in enumerate(((X,P,"[1,0,3,2]",0x55555555),(P,Y,"[2,3,0,1]",0x33333333))):
        bit=1<<st
        for half in range(2):
            m=m0 if half==0 else (~m0)&0xffffffff
            A(f"s_mov_b32 vcc_lo, {hex(m)}\ns_mov_b32 vcc_hi, {hex(m)}")
            for j in range(4):
                if ((j>>st)&1)!=half: continue
                for d in range(4):
                    A(f"v_cndmask_b32_dpp v{dst+4*j+d}, v{src+4*(j^bit)+d}, v{src+4*j+d}, vcc quad_perm:{pm} row_mask:0xf bank_mask:0xf")

K1_E=0; K1_REC=100352; K1_PERM=K1_REC+32768; K1_HIST=K1_PERM+16384; K1_OVF=K1_HIST+1024; K1_LDS=K1_OVF+256
WROW=544
def woff(k): return k*WROW+(k>>5)*128

def k1():
    A(".p2align 8\nprep_kernel:")
    A("""s_cmp_ge_u32 s2, 256
    s_cbranch_scc1 L_k1_end
    s_load_dwordx4 s[4:7], s[0:1], 0
    s_load_dwordx4 s[8:11], s[0:1], 16
    s_load_dwordx4 s[12:15], s[0:1], 32
    s_load_dwordx2 s[16:17], s[0:1], 48
    s_load_dwordx2 s[18:19], s[0:1], 72
    v_lshrrev_b32 v1, 6, v0
    v_and_b32 v2, 63, v0
    v_readfirstlane_b32 s3, v1
    v_lshlrev_b32 v3, 4, v2
    v_lshlrev_b32 v4, 4, v0
    s_waitcnt lgkmcnt(0)""")
    if OPT.get('cpf','1')!='0':
        A(f"""s_cmp_ge_u32 s3, 13
        s_cbranch_scc1 L_k1_nocpf
        s_getpc_b64 s[20:21]
L_k1_pc:
        s_sub_u32 s20, s20, L_k1_pc-prep_kernel
        s_subb_u32 s21, s21, 0
        global_load_dwordx4 v[120:123], v4, s[20:21]
L_k1_nocpf:""")
    stamp_init(0,3,18,19)
    stamp(0,0)
    srd(44,18,19,MISC_OFF,MISC_SZ)
    if (OPT.get('until') or OPT.get('until0') or OPT.get('untilL')) and not OPT.get('nopt0'):
        A(f"""s_memrealtime s[60:61]
        s_waitcnt lgkmcnt(0)
        s_or_b32 s62, s2, s3
        s_cmp_lg_u32 s62, 0
        s_cbranch_scc1 L_k1_not0
        v_mov_b32 v100, s60
        v_mov_b32 v101, {FLAGO+2048}
        buffer_store_dword v100, v101, s[44:47], 0 offen sc0 sc1
L_k1_not0:""")
    A("""s_cmp_ge_u32 s2, 128
    s_cbranch_scc1 L_k1_gemm""")
    srd(20,10,11,0,E*4)
    srd(24,8,9,0,E*4)
    srd(28,6,7,0,E*32)
    srd(32,18,19,REC_OFF,0x400000)
    srd(36,18,19,EP_OFF,0x2000000)
    D=8; S=12
    A(f"""s_mul_i32 s50, s2, {CH}
    s_sub_u32 s51, {E}, s50
    s_lshr_b32 s51, s51, 2
    s_min_u32 s51, s51, {CH//4}
    s_lshl_b32 s52, s50, 2
    v_cmp_gt_u32 vcc, s51, v0
    s_mov_b64 s[54:55], vcc
    s_mov_b64 exec, vcc
    s_cbranch_execz L_k1_noidx
    buffer_load_dwordx4 v[{D}:{D+3}], v4, s[20:23], s52 offen {NTI}
    buffer_load_dwordx4 v[{S}:{S+3}], v4, s[24:27], s52 offen {NTI}
L_k1_noidx:
    s_mov_b64 exec, -1
    s_lshl_b32 s53, s3, 10
    s_lshl_b32 s56, s50, 5
    s_add_u32 s56, s56, s53
    v_mov_b32 v16, -1
    v_mov_b32 v17, -1
    v_mov_b32 v18, -1
    v_mov_b32 v19, -1
    v_mov_b32 v20, 0
    v_add_u32 v5, {K1_REC}, v4
    v_lshlrev_b32 v6, 2, v0
    v_add_u32 v6, {K1_HIST}, v6
    ds_write_b128 v5, v[16:19]
    ds_write_b128 v5, v[16:19] offset:16384
    v_cmp_gt_u32 vcc, 0x140, v0
    s_mov_b64 exec, vcc
    ds_write_b32 v6, v20
    s_mov_b64 exec, -1
    v_mov_b32 v20, 1
    v_mov_b32 v22, 21400
    v_mov_b32 v23, -196
    v_mov_b32 v24, 5372
    v_mov_b32 v25, 208
    v_mov_b32 v26, 669
    s_waitcnt lgkmcnt(0)
    s_barrier""")
    for i in range(7):
        if i==6: A("s_cmp_ge_u32 s3, 2\ns_cbranch_scc1 L_k1_dmadone")
        A(f"""s_mov_b32 m0, s53
        s_add_u32 s53, s53, 16384
        buffer_load_dwordx4 v3, s[28:31], s56 offen {NTE} lds
        s_add_u32 s56, s56, 16384""")
    A("L_k1_dmadone:\ns_waitcnt vmcnt(6)")
    stamp(1,0)
    A("""s_mov_b64 exec, s[54:55]
    s_cbranch_execz L_k1_b1""")
    B,RC,HA,SH,OLD,INC,T=28,32,36,40,44,48,60
    for j in range(4):
        A(f"""v_mul_u32_u24 v{T}, v{D+j}, v22
        v_mul_u32_u24 v{T+1}, v{S+j}, v26
        v_lshrrev_b32 v{B+j}, 22, v{T}
        v_lshrrev_b32 v{T+1}, 22, v{T+1}
        v_lshlrev_b32 v{HA+j}, 2, v{B+j}
        v_sub_u32_e64 v{SH+j}, v{T+1}, 1 clamp
        v_add_u32 v{HA+j}, {K1_HIST}, v{HA+j}
        v_lshlrev_b32 v{SH+j}, 3, v{SH+j}
        v_mad_i32_i24 v{T}, v{B+j}, v23, v{D+j}
        v_lshlrev_b32 v{INC+j}, v{SH+j}, v20
        v_mul_u32_u24 v{T+2}, v{T}, v24
        ds_add_rtn_u32 v{OLD+j}, v{HA+j}, v{INC+j}
        v_lshl_or_b32 v{T}, v{S+j}, 8, v{T}
        v_lshrrev_b32 v{T+2}, 16, v{T+2}
        v_mad_u32_u24 v{T+3}, v{T+2}, 52, v25
        v_mad_i32_i24 v{T}, v{T+2}, -12, v{T}
        v_lshrrev_b32 v{T+3}, 8, v{T+3}
        v_lshl_add_u32 v{T+2}, v{T+2}, 2, v{T+1}
        v_sub_u32 v{T}, v{T}, v{T+3}
        v_lshl_or_b32 v{RC+j}, v{T+2}, 24, v{T}""")
    A("""L_k1_b1:
    s_mov_b64 exec, -1
    s_waitcnt lgkmcnt(0)
    s_barrier""")
    stamp(2,0)
    FIN=8
    A(f"""s_mov_b64 s[70:71], 0
    v_cmp_gt_u32 vcc, 128, v0
    s_mov_b64 exec, vcc
    s_cbranch_execz L_k1_nohdr
    ds_read_b32 v{T}, v6
    v_lshlrev_b32 v{T+1}, 8, v0
    v_add_u32 v{T+1}, {K1_REC+252}, v{T+1}
    s_waitcnt lgkmcnt(0)
    v_and_b32 v{T}, 0x3f3f3f, v{T}
    ds_write_b32 v{T+1}, v{T}
L_k1_nohdr:
    s_mov_b64 exec, s[54:55]
    s_cbranch_execz L_k1_b2""")
    for j in range(4): A(f"ds_read_b32 v{FIN+j}, v{HA+j}")
    A(f"v_lshlrev_b32 v{T+8}, 2, v0")
    for j in range(4):
        A(f"v_bfe_u32 v{OLD+j}, v{OLD+j}, v{SH+j}, 8\nv_add_u32 v{INC+j}, -1, v{INC+j}")
    A("s_waitcnt lgkmcnt(0)")
    for j in range(4):
        A(f"""v_and_b32 v{T}, v{FIN+j}, v{INC+j}
        v_sad_u8 v{T}, v{T}, 0, v{OLD+j}
        v_cmp_lt_u32 vcc, 62, v{T}
        v_min_u32 v{T}, 62, v{T}
        s_or_b64 s[70:71], s[70:71], vcc
        v_lshl_add_u32 v{T+1}, v{B+j}, 6, v{T}
        v_and_b32 v{T+2}, 15, v{T}
        v_lshrrev_b32 v{T+3}, 4, v{T}
        v_lshlrev_b32 v{T+1}, 1, v{T+1}
        v_lshl_add_u32 v{T+2}, v{T+2}, 2, v{T+3}
        v_add_u32 v{T+1}, {K1_PERM}, v{T+1}
        v_lshl_add_u32 v{T+2}, v{B+j}, 6, v{T+2}
        v_add_u32 v{T+9}, {j}, v{T+8}
        v_lshlrev_b32 v{T+2}, 2, v{T+2}
        ds_write_b16 v{T+1}, v{T+9}
        v_add_u32 v{T+2}, {K1_REC}, v{T+2}
        ds_write_b32 v{T+2}, v{RC+j}""")
    A(f"""s_mov_b64 exec, s[70:71]
    v_mov_b32 v{T}, {K1_OVF}
    ds_write_b32 v{T}, v20
L_k1_b2:
    s_mov_b64 exec, -1
    s_waitcnt lgkmcnt(0)
    s_barrier""")
    stamp(3,0)
    EI=8; EV=64
    A(f"""ds_read_b128 v[16:19], v5
    ds_read_b128 v[20:23], v5 offset:16384
    v_and_b32 v24, 7, v2
    s_lshl_b32 s57, s3, 5
    v_lshl_add_u32 v24, v24, 2, s57
    v_add_u32 v24, {K1_HIST}, v24
    ds_read_b32 v26, v24
    v_lshrrev_b32 v28, 1, v2
    s_lshl_b32 s57, s3, 10
    s_add_u32 s57, s57, {K1_PERM}
    v_lshl_add_u32 v29, v28, 1, s57""")
    for i in range(8): A(f"ds_read_u16 v{EI+i}, v29 offset:{i*128}")
    A(f"""v_lshrrev_b32 v30, 4, v0
    v_and_b32 v31, 15, v0
    v_lshlrev_b32 v30, 15, v30
    v_lshl_or_b32 v30, v31, 4, v30
    s_lshl_b32 s58, s2, 8
    s_add_u32 s59, s58, 0x200000
    v_and_b32 v31, 1, v2
    v_lshlrev_b32 v31, 4, v31
    s_waitcnt lgkmcnt(0)
    buffer_store_dwordx4 v[16:19], v30, s[32:35], s58 offen {ST}
    buffer_store_dwordx4 v[20:23], v30, s[32:35], s59 offen {ST}
    v_sad_u8 v26, v26, 0, 3
    v_and_b32 v26, -4, v26
    v_min_u32 v26, 64, v26
    s_waitcnt vmcnt(2)
    s_barrier""")
    stamp(6,0)
    for i in range(8):
        A(f"v_lshl_add_u32 v{EI+i}, v{EI+i}, 5, v31\nds_read_b128 v[{EV+4*i}:{EV+4*i+3}], v{EI+i}\nv_readlane_b32 s{60+i}, v26, {i}")
    A(f"""s_lshl_b32 s57, s3, 21
    s_lshl_b32 s58, s2, 11
    s_add_u32 s57, s57, s58""")
    for i in range(8):
        A(f"""v_cmp_gt_u32 vcc, s{60+i}, v28
        s_mov_b64 exec, vcc
        s_waitcnt lgkmcnt({7-i})
        buffer_store_dwordx4 v[{EV+4*i}:{EV+4*i+3}], v3, s[36:39], s57 offen {ST}
        s_mov_b64 exec, -1
        s_add_u32 s57, s57, 0x40000""")
    A(f"s_sub_u32 s57, s57, 0x200000\nv_add_u32 v32, 32, v28")
    for i in range(8):
        L=A.label("k1long")
        A(f"""s_cmp_le_u32 s{60+i}, 32
        s_cbranch_scc1 {L}
        ds_read_u16 v33, v29 offset:{i*128+64}
        s_waitcnt lgkmcnt(0)
        v_lshl_add_u32 v33, v33, 5, v31
        ds_read_b128 v[36:39], v33
        v_cmp_gt_u32 vcc, s{60+i}, v32
        s_mov_b64 exec, vcc
        s_waitcnt lgkmcnt(0)
        buffer_store_dwordx4 v[36:39], v3, s[36:39], s57 offen offset:1024 {ST}
        s_mov_b64 exec, -1
        s_nop 0
{L}:
        s_add_u32 s57, s57, 0x40000""")
    A("s_branch L_k1_flag")
    A("L_k1_gemm:")
    srd(20,4,5,0,N*256)
    srd(24,16,17,0,272*256)
    srd(28,14,15,0,128*256)
    srd(32,12,13,0,128*256)
    srd(36,18,19,TAB_OFF,HS)
    srd(40,18,19,TAB_OFF+HS,HS)
    XR=8; WL=24; XA=40; ACC=56; BF=8
    A(f"""s_sub_u32 s50, s2, 128
    s_lshr_b32 s51, s50, 3
    s_lshl_b32 s52, s3, 4
    s_add_u32 s51, s51, s52
    s_cmp_lt_u32 s51, 196
    s_cselect_b32 s52, 0, 0x10000
    s_add_u32 s51, s51, s52
    s_and_b32 s52, s2, 3
    s_mul_i32 s52, s52, 392
    s_add_u32 s51, s51, s52
    s_bfe_u32 s52, s2, 0x10002
    s_mul_i32 s52, s52, 196
    s_add_u32 s51, s51, s52
    v_mov_b32 v6, 0
    v_mov_b32 v7, {K1_OVF}
    ds_write_b32 v7, v6
    s_cmp_ge_u32 s51, 1568
    s_cbranch_scc1 L_k1_nox
    s_lshl_b32 s52, s51, 12
    v_bfe_u32 v5, v2, 2, 2
    v_and_b32 v6, 3, v2
    v_lshlrev_b32 v5, 10, v5
    v_lshl_or_b32 v5, v6, 4, v5
    v_lshrrev_b32 v6, 4, v2
    v_lshl_or_b32 v5, v6, 6, v5""")
    for ks in range(4): A(f"buffer_load_dwordx4 v[{XR+4*ks}:{XR+4*ks+3}], v5, s[20:23], s52 offen offset:{ks*256} {NTX}")
    A(f"""L_k1_nox:
    s_mov_b32 s53, {128*256}
    s_mov_b32 s54, {128*256+16384}
    s_mov_b32 s55, 16384
    buffer_load_dwordx4 v[{WL}:{WL+3}], v4, s[24:27], s53 offen
    buffer_load_dwordx4 v[{WL+4}:{WL+7}], v4, s[24:27], s54 offen
    buffer_load_dwordx4 v[{WL+8}:{WL+11}], v4, s[28:31], 0 offen
    buffer_load_dwordx4 v[{WL+12}:{WL+15}], v4, s[28:31], s55 offen
    v_lshrrev_b32 v5, 4, v0
    v_lshrrev_b32 v6, 9, v0
    v_mul_u32_u24 v5, {WROW}, v5
    v_lshl_add_u32 v5, v6, 7, v5
    v_bfe_u32 v6, v0, 3, 1
    v_lshl_add_u32 v5, v6, 7, v5
    v_and_b32 v6, 7, v0
    v_lshl_add_u32 v5, v6, 2, v5
    s_mov_b32 s56, 0x05040100
    s_mov_b32 s57, 0x07060302""")
    A(f"""s_cmp_lg_u32 s3, 15
    s_cbranch_scc1 L_k1_noimg
    s_cmp_ge_u32 s50, 72
    s_cbranch_scc1 L_k1_noimg
    v_and_b32 v6, 15, v2
    v_lshrrev_b32 v7, 4, v2
    v_lshlrev_b32 v6, 3, v6
    s_cmp_ge_u32 s50, 64
    s_cbranch_scc1 L_k1_cimg
    s_bfe_u32 s58, s50, 0x10005
    s_bfe_u32 s59, s50, 0x20002
    s_and_b32 s60, s50, 3
    s_lshl_b32 s58, s58, 7
    s_lshl_b32 s59, s59, 1
    s_lshl_b32 s60, s60, 11
    s_add_u32 s58, s58, s59
    s_add_u32 s58, s58, s60
    v_lshl_add_u32 v6, v7, 13, v6
    s_bitcmp1_b32 s50, 4
    s_cbranch_scc1 L_k1_uimg""")
    for i in range(8): A(f"buffer_load_ushort v{64+i}, v6, s[24:27], s58 offen offset:{i*256}")
    A("s_branch L_k1_imgst\nL_k1_uimg:")
    for i in range(8): A(f"buffer_load_ushort v{64+i}, v6, s[32:35], s58 offen offset:{i*256}")
    A(f"""L_k1_imgst:
    s_and_b32 s58, s50, 31
    s_lshl_b32 s58, s58, 10
    s_lshr_b32 s59, s50, 5
    s_mul_i32 s59, s59, {WH}
    s_add_u32 s58, s58, s59
    s_waitcnt vmcnt(0)
    v_lshl_or_b32 v56, v65, 16, v64
    v_lshl_or_b32 v57, v67, 16, v66
    v_lshl_or_b32 v58, v69, 16, v68
    v_lshl_or_b32 v59, v71, 16, v70
    buffer_store_dwordx4 v[56:59], v3, s[44:47], s58 offen {MST}
    s_branch L_k1_noimg
L_k1_cimg:
    s_sub_u32 s61, s50, 64
    s_lshr_b32 s58, s61, 2
    s_and_b32 s59, s61, 3
    s_lshl_b32 s58, s58, 7
    s_lshl_b32 s59, s59, 1
    s_add_u32 s58, s58, s59
    s_add_u32 s58, s58, {256*256}
    v_lshl_add_u32 v6, v7, 10, v6""")
    for i in range(4): A(f"buffer_load_ushort v{56+i}, v6, s[24:27], s58 offen offset:{i*256}")
    A(f"""s_mov_b32 s59, {hex(LOG2E_NEG)}
    s_and_b32 s58, s61, 3
    s_lshl_b32 s58, s58, 9
    s_lshr_b32 s60, s61, 2
    s_mul_i32 s60, s60, {WH}
    s_add_u32 s58, s58, s60
    s_add_u32 s58, s58, {CIMG}
    v_lshlrev_b32 v7, 3, v2
    s_waitcnt vmcnt(0)""")
    for i in range(4): A(f"v_lshlrev_b32 v{56+i}, 16, v{56+i}\nv_mul_f32 v{56+i}, s59, v{56+i}")
    A(f"""v_cvt_pk_bf16_f32 v56, v56, v57
    v_cvt_pk_bf16_f32 v57, v58, v59
    buffer_store_dwordx2 v[56:57], v7, s[44:47], s58 offen {MST}
L_k1_noimg:""")
    for u in range(4):
        w=WL+4*u; base=(u&1)*woff(64)+(u>>1)*256
        A(f"""s_waitcnt vmcnt({3-u})
        v_perm_b32 v60, v{w+2}, v{w}, s56
        v_perm_b32 v61, v{w+2}, v{w}, s57
        v_perm_b32 v62, v{w+3}, v{w+1}, s56
        v_perm_b32 v63, v{w+3}, v{w+1}, s57
        ds_write_b32 v5, v60 offset:{base}
        ds_write_b32 v5, v61 offset:{base+32}
        ds_write_b32 v5, v62 offset:{base+64}
        ds_write_b32 v5, v63 offset:{base+96}""")
    A(f"""v_and_b32 v6, 15, v2
    v_lshrrev_b32 v7, 4, v2
    s_cmp_ge_u32 s51, 1568
    s_cbranch_scc1 L_k1_nobp""")
    qtranspose(XR,WL,XA)
    A(f"""L_k1_nobp:
    v_bfe_u32 v61, v2, 2, 2
    v_lshl_add_u32 v61, v7, 5, v61
    v_mul_u32_u24 v61, {WROW}, v61
    v_lshl_add_u32 v61, v7, 7, v61
    v_and_b32 v62, 3, v2
    v_lshl_add_u32 v5, v62, 3, v61
    s_waitcnt lgkmcnt(0)
    s_barrier""")
    stamp(1,0)
    A("""s_cmp_ge_u32 s51, 1568
    s_cbranch_scc1 L_k1_gdone""")
    seq=[(h,t,mat,ks) for h in range(2) for t in range(4) for mat in range(2) for ks in range(4)]
    def rd(n):
        h,t,mat,ks=seq[n]; o=woff(8*ks)+mat*256+h*128+t*32; b=BF+4*(n%8)
        A(f"ds_read_b64_tr_b16 v[{b}:{b+1}], v5 offset:{o}\nds_read_b64_tr_b16 v[{b+2}:{b+3}], v5 offset:{o+4*WROW}")
    def acc(h,t,mat): return ACC+((h*4+t)*2+mat)*4
    PF=6
    for n in range(PF): rd(n)
    for n in range(64):
        h,t,mat,ks=seq[n]; b=BF+4*(n%8); a=acc(h,t,mat)
        out=min(63-n,PF-1)
        A(f"s_waitcnt lgkmcnt({2*out})")
        A(f"v_mfma_f32_16x16x32_bf16 v[{a}:{a+3}], v[{XA+4*ks}:{XA+4*ks+3}], v[{b}:{b+3}], {'0' if ks==0 else f'v[{a}:{a+3}]'}")
        if n+PF<64: rd(n+PF)
    stamp(2,0)
    A(f"""v_mov_b32 v8, {hex(LOG2E_NEG)}
    v_mov_b32 v9, 0x7fff
    v_mov_b32 v10, 0xffff0000
    v_mov_b32 v11, 0
    v_lshlrev_b32 v12, 10, v7
    v_lshl_or_b32 v12, v6, 4, v12
    s_nop 3""")
    for h in range(2):
        for r in range(4):
            o=16+4*((h*4+r)%2); tt=24
            for t in range(4): A(f"v_mul_f32 v{tt+t}, v8, v{acc(h,t,0)+r}")
            A(f"v_max3_f32 v11, abs(v{tt}), abs(v{tt+1}), v11\nv_max3_f32 v11, abs(v{tt+2}), abs(v{tt+3}), v11")
            for t in range(4): A(f"v_exp_f32 v{tt+t}, v{tt+t}")
            A("s_nop 0")
            for t in range(4): A(f"v_cvt_pk_f16_f32 v{tt+t}, v{tt+t}, 0")
            for t in range(4): A(f"v_xad_u32 v{tt+4+t}, v{tt+t}, v9, v{acc(h,t,1)+r}")
            for t in range(4): A(f"v_bfi_b32 v{o+t}, v10, v{tt+4+t}, v{tt+t}")
            A(f"buffer_store_dwordx4 v[{o}:{o+3}], v12, s[{36+4*h}:{39+4*h}], s52 offen offset:{r*256} {ST}")
    A(f"""v_mov_b32 v13, 0x41600000
    v_mov_b32 v14, 1
    v_mov_b32 v15, {K1_OVF}
    v_cmp_nle_f32 vcc, v11, v13""")
    A(f"""s_mov_b64 exec, vcc
    ds_write_b32 v15, v14
    s_mov_b64 exec, -1
L_k1_gdone:
    s_waitcnt lgkmcnt(0)
    s_barrier
L_k1_flag:
    s_cmp_lg_u32 s3, 0
    s_cbranch_scc1 L_k1_fin
    v_mov_b32 v15, {K1_OVF}
    ds_read_b32 v14, v15
    s_lshl_b32 s58, s2, 2
    s_add_u32 s58, s58, {FLAGO}
    v_mov_b32 v15, 0
    s_mov_b64 exec, 1
    s_waitcnt lgkmcnt(0)
    buffer_store_dword v14, v15, s[44:47], s58 offen {MST}
    s_mov_b64 exec, -1
L_k1_fin:""")
    if STAMP:
        stamp(4,0)
        A("s_waitcnt vmcnt(0)")
        stamp(5,0)
        stamp_flush()
    if OPT.get('k1delay'):
        A(f"""s_memrealtime s[60:61]
        s_waitcnt lgkmcnt(0)
        s_add_u32 s62, s60, {int(OPT['k1delay'])*100}
L_k1_spin:
        s_memrealtime s[60:61]
        s_waitcnt lgkmcnt(0)
        s_cmp_lt_u32 s60, s62
        s_cbranch_scc1 L_k1_spin""")
    A("L_k1_end:\ns_endpgm")

def spin(T,tag):
    A(f"""s_load_dwordx2 s[60:61], s[0:1], 72
    s_waitcnt lgkmcnt(0)
    s_add_u32 s60, s60, {MISC_OFF+FLAGO+2048}
    s_addc_u32 s61, s61, 0
    s_load_dword s62, s[60:61], 0
    s_waitcnt lgkmcnt(0)
    s_add_u32 s62, s62, {int(float(T)*100)}
L_spin_{tag}:
    s_memrealtime s[60:61]
    s_waitcnt lgkmcnt(0)
    s_cmp_lt_u32 s60, s62
    s_cbranch_scc1 L_spin_{tag}""")

ECAP=3456; BCAP=96; WCAP=4*BCAP
K2_HIST=0; K2_FL=256; K2_C1=260; K2_C2=264; K2_AL=272; K2_CW=280; K2_CL=284; K2_TOT=288; K2_OH=320; K2_L1=1024; K2_L2=K2_L1+16*WCAP*4; K2_E=K2_L2+16*WCAP*4
K2_Z=K2_E+ECAP*32; K2_W=K2_Z-34816; K2_SRC=K2_W-8192; K2_LDS=K2_Z+32
assert K2_LDS<=163840 and K2_L1%256==0 and K2_L2%256==0 and K2_SRC-K2_E>=2048*32
O0=K2_L1//256; O1o=K2_L2//256; LST=O1o-O0

def k2():
    L=0; D=32; EE=48; ACC=64; GB=80; AO=96; S=100; LM,LS=102,103; G=104; EA,OA,SA,LMX=108,109,110,111
    WP,CPt=112,113
    cJ16,cG8,cG8O,cS,pL1,pLm,pLs,LANE=114,115,116,117,118,119,120,121
    L16,TID=122,123
    A(".p2align 8\nmain_kernel:")
    A(f"""s_cmp_ge_u32 s2, 256
    s_cbranch_scc1 L_k2_end""")
    if OPT.get('until0'): spin(OPT['until0'],'a')
    A(f"""s_load_dwordx2 s[18:19], s[0:1], 72
    s_load_dwordx2 s[4:5], s[0:1], 0
    s_load_dwordx2 s[6:7], s[0:1], 56
    v_mov_b32 v{TID}, v0
    v_lshrrev_b32 v1, 6, v0
    v_and_b32 v{LANE}, 63, v0
    v_readfirstlane_b32 s3, v1
    v_lshlrev_b32 v{L16}, 4, v{LANE}
    v_lshlrev_b32 v4, 4, v0
    s_bfe_u32 s40, s2, 0x10002
    s_lshr_b32 s41, s2, 3
    s_and_b32 s42, s2, 3
    s_lshl_b32 s42, s42, 5
    s_add_u32 s41, s41, s42
    s_lshl_b32 s45, s41, 15
    s_add_u32 s46, s45, 16384
    s_mov_b32 s10, 0x400000
    s_mov_b32 s11, 0x20000
    s_setprio 3
    s_waitcnt lgkmcnt(0)
    s_add_u32 s8, s18, {hex(REC_OFF)}
    s_addc_u32 s9, s19, 0""")
    R=0; RK=8; HA=16; XR=32
    A(f"""buffer_load_dwordx4 v[{R}:{R+3}], v4, s[8:11], s45 offen {NT}
    buffer_load_dwordx4 v[{R+4}:{R+7}], v4, s[8:11], s46 offen {NT}""")
    stamp_init(1,3,18,19)
    stamp(0,1)
    srd(24,18,19,MISC_OFF,MISC_SZ)
    A(f"""s_lshl_b32 s45, s3, 6
    s_add_u32 s45, s45, {FLAGO}
    v_lshlrev_b32 v25, 2, v{LANE}
    s_mov_b64 exec, 0xffff
    buffer_load_dword v24, v25, s[24:27], s45 offen
    s_mov_b64 exec, -1""")
    A(f"""s_add_u32 s42, s3, 4
    s_mul_i32 s42, s42, 52
    s_lshr_b32 s42, s42, 8
    s_add_u32 s43, s3, 5
    s_mul_i32 s43, s43, 52
    s_lshr_b32 s43, s43, 8
    s_sub_u32 s43, s43, s42
    s_add_u32 s43, s43, 12
    s_mul_i32 s44, s3, 12
    s_add_u32 s42, s42, s44
    s_mul_i32 s44, s41, {BS}
    s_add_u32 s44, s44, s42""")
    srd(20,4,5,0,N*256)
    A(f"""s_lshl_b32 s45, s41, 18
    s_add_u32 s12, s18, s45
    s_addc_u32 s13, s19, 0
    s_add_u32 s12, s12, {hex(EP_OFF)}
    s_addc_u32 s13, s13, 0
    s_mov_b32 s14, 0x40000
    s_mov_b32 s15, 0x20000
    s_mul_i32 s45, s40, {HS}
    s_add_u32 s45, s45, {WSB}
    s_add_u32 s16, s18, s45
    s_addc_u32 s17, s19, 0
    s_mov_b32 s18, {HS}
    s_mov_b32 s19, 0x20000""")
    srd(28,6,7,0,N*256)
    A(f"""v_subrev_u32 v28, 80, v{TID}
    v_and_b32 v29, 7, v28
    v_lshrrev_b32 v30, 4, v28
    v_and_b32 v28, 8, v28
    v_lshlrev_b32 v28, 1, v28
    v_mov_b32 v31, 0x3f80
    v_cmp_eq_u32 vcc, v29, v30
    v_lshlrev_b32 v31, v28, v31
    v_lshlrev_b32 v29, 2, v{TID}
    v_cndmask_b32 v31, 0, v31, vcc
    s_cmp_lg_u32 s3, 1
    s_cbranch_scc1 L_k2_noal
    s_mov_b32 s46, {2048|(3072<<16)}
    v_writelane_b32 v31, s46, 5
L_k2_noal:
    v_cmp_gt_u32 vcc, 216, v{TID}
    s_mov_b64 exec, vcc
    ds_write_b32 v29, v31
    s_cmp_lg_u32 s3, 0
    s_cbranch_scc1 L_k2_noz
    s_mov_b64 exec, 0xff
    v_add_u32 v29, {K2_Z}, v29
    ds_write_b32 v29, v31
L_k2_noz:
    s_mov_b64 exec, -1
    v_bfe_u32 v28, v{LANE}, 2, 2
    v_and_b32 v29, 3, v{LANE}
    v_lshlrev_b32 v28, 10, v28
    v_lshl_or_b32 v28, v29, 4, v28
    v_lshrrev_b32 v29, 4, v{LANE}
    v_lshl_or_b32 v28, v29, 6, v28
    s_cmp_eq_u32 s43, 13
    s_cselect_b32 s50, -1, 0x0fff0fff
    s_lshl_b32 s45, s44, 8
    s_lshl_b32 s47, s3, 11
    s_add_u32 m0, s47, {K2_W}
    s_mul_i32 s48, s40, {WH}
    s_add_u32 s47, s47, s48""")
    for i in range(16): A(f"v_mov_b32 v{XR+i}, 0")
    A(f"""s_waitcnt lgkmcnt(0)
    s_barrier
    s_cmp_lg_u32 s3, 15
    s_cbranch_scc1 L_k2_noc
    buffer_load_dwordx4 v{L16}, s[24:27], s47 offen offset:2048 lds
    buffer_load_dwordx4 v{L16}, s[24:27], s47 offen offset:3072 lds
L_k2_noc:
    buffer_load_dwordx4 v{L16}, s[24:27], s47 offen lds
    buffer_load_dwordx4 v{L16}, s[24:27], s47 offen offset:1024 lds
    v_mov_b32 v78, v28
    s_mov_b32 s84, s50
    s_mov_b32 s85, 0x0fff0fff
    s_mov_b32 s86, s45""")
    XL=int(OPT.get('xlate',16))
    def xload(tag, early):
        A(f"s_cmp_{'ge' if early else 'lt'}_u32 s3, {XL}\ns_cbranch_scc1 L_k2_x{tag}\ns_mov_b32 exec_lo, s84\ns_mov_b32 exec_hi, s84")
        for ks in range(4):
            A(f"buffer_load_dwordx4 v[{XR+4*ks}:{XR+4*ks+3}], v78, s[20:23], s86 offen offset:{ks*256} {NT}")
            if ks==0: A("s_mov_b32 exec_lo, s85\ns_mov_b32 exec_hi, s85")
        A(f"s_mov_b64 exec, -1\nL_k2_x{tag}:")
    xload('e',True)
    A(f"""    v_and_b32 v28, 15, v{LANE}
    v_lshrrev_b32 v29, 4, v{LANE}
    v_lshlrev_b32 v{cJ16}, 4, v28
    v_lshlrev_b32 v30, 3, v29
    v_add_u32 v{cG8}, {K2_E}, v30
    v_add_u32 v{cG8O}, {K2_OH}, v30
    v_and_b32 v30, 3, v{LANE}
    v_lshlrev_b32 v30, 3, v30
    v_add_u32 v{cS}, {K2_OH}, v30
    s_mul_i32 s47, s3, {WCAP*4}
    s_add_u32 s48, s47, {K2_L2}
    s_add_u32 s47, s47, {K2_L1}
    v_lshl_add_u32 v{pL1}, v29, 4, s47
    v_lshl_add_u32 v{pLm}, v28, 2, s48
    v_and_b32 v30, -4, v{LANE}
    v_add_u32 v{pLs}, s48, v30
    v_lshrrev_b32 v30, 4, v{TID}
    v_lshl_add_u32 v29, v30, 6, v28
    v_lshl_or_b32 v28, v28, 16, v28
    v_mov_b32 v31, 1
    v_mov_b32 v30, {OPT.get('srcmask','0x7fff00')}
    v_mov_b32 v25, 0
    v_mov_b32 v72, 0x0c0c0100
    v_mov_b32 v73, 0x202
    v_mov_b32 v74, 0x05040c00
    v_mov_b32 v75, {K2_SRC}
    s_mov_b32 s50, 0x80008000
    s_mov_b32 s51, 0x80008000
    v_mov_b32 v64, 0
    s_mov_b32 s68, 0x0c040c00
    s_mov_b32 s69, 0x0c020c01
    s_mov_b32 s70, 0x01000100
    s_mov_b32 s71, 0x03020302
    s_mov_b32 s72, 0x0c010c00
    s_cmp_lt_u32 s3, {XL}
    s_cbranch_scc1 L_k2_rw
    s_waitcnt vmcnt(2)
L_k2_rw:
    s_waitcnt vmcnt(6)""")
    stamp(1,1)
    VV=64; VI=65; AL=66; DD=68; PR=76
    def sig(off): A(f"s_mov_b64 exec, 1\nds_add_u32 v25, v31 offset:{off}\ns_mov_b64 exec, -1")
    def chk(off,tag):
        A(f"""L_k2_sp{tag}:
        ds_read_b32 v0, v25 offset:{off}
        s_waitcnt lgkmcnt(0)
        v_readfirstlane_b32 s45, v0
        s_cmp_lt_u32 s45, 16
        s_cbranch_scc1 L_k2_sp{tag}""")
    A(f"""s_mov_b64 exec, s[50:51]
    v_perm_b32 v{VV}, v{R+7}, v{R+3}, s68
    v_perm_b32 v{AL}, v{R+3}, v{R+3}, s69
    v_perm_b32 v{AL+1}, v{R+7}, v{R+7}, s69
    s_mov_b64 exec, -1
    v_add_u32_dpp v{VI}, v{VV}, v{VV} row_bcast:15 row_mask:0xa bank_mask:0xf""".replace(f"v_add_u32_dpp v{VI}",f"v_mov_b32 v{VI}, v{VV}\ns_nop 1\nv_add_u32_dpp v{VI}").replace(f"v{VI}, v{VV}, v{VV} row",f"v{VI}, v{VI}, v{VI} row"))
    A(f"""s_mov_b64 exec, s[50:51]
    ds_add_rtn_u32 v{AL}, v25, v{AL} offset:{K2_AL+4}
    ds_add_rtn_u32 v{AL+1}, v25, v{AL+1} offset:{K2_AL+4}
    s_mov_b64 exec, -1
    v_add_u32_dpp v{VI}, v{VI}, v{VI} row_bcast:31 row_mask:0xc bank_mask:0xf
    s_mov_b64 exec, 0xffff
    ds_or_b32 v25, v24 offset:{K2_FL}
    s_mov_b64 exec, -1
    v_readlane_b32 s73, v{VI}, 63
    v_sub_u32 v{VI}, v{VI}, v{VV}
    s_lshr_b32 s74, s73, 16
    s_and_b32 s73, s73, 0xffff
    s_add_u32 s74, s74, s73
    v_mov_b32 v{VV}, s74
    s_mov_b64 exec, 1
    ds_add_rtn_u32 v{VV}, v25, v{VV} offset:{K2_AL}
    s_mov_b64 exec, -1""")
    MK=52; O1=48
    order=[0,4,1,5,2,6,3,7]
    for j in order:
        Lb=A.label("k2h")
        A(f"v_cmp_le_i32 s[{MK+2*j}:{MK+2*j+1}], 0, v{R+j}")
        if j&3==3: A(f"s_andn2_b64 s[{MK+2*j}:{MK+2*j+1}], s[{MK+2*j}:{MK+2*j+1}], s[50:51]")
        A(f"s_mov_b64 exec, s[{MK+2*j}:{MK+2*j+1}]")
        if j&3>=2: A(f"s_cbranch_execz {Lb}")
        A(f"""v_lshlrev_b32_sdwa v{HA+j}, 2, v{R+j} dst_sel:DWORD dst_unused:UNUSED_PAD src0_sel:DWORD src1_sel:BYTE_3
        v_bfe_u32 v{56+j}, v{R+j}, 24, 2
        ds_add_rtn_u32 v{RK+j}, v{HA+j}, v31 offset:{K2_HIST}
        v_and_b32 v{O1+j}, v30, v{R+j}
        v_mad_u32_u24 v{56+j}, v{56+j}, v73, v72""")
        if j&3>=2: A(f"{Lb}:")
        A("s_mov_b64 exec, -1")
    for u in range(2):
        h=R+3+4*u
        A(f"v_lshl_add_u32 v{PR+u}, v{h}, 8, v{h}\nv_perm_b32 v{PR+u}, v{PR+u}, v{PR+u}, s72")
    A(f"""s_waitcnt vmcnt(4) lgkmcnt(0)
    v_readfirstlane_b32 s75, v{VV}""")
    sig(K2_CW)
    A(f"""s_add_u32 s45, s75, s73
    s_lshl_b32 s45, s45, 16
    s_or_b32 s45, s45, s75
    v_add_u32 v{VI}, s45, v{VI}
    v_pk_sub_u16 v{DD+1}, v{AL}, v{PR}
    v_pk_sub_u16 v{DD+3}, v{AL+1}, v{PR+1}
    v_perm_b32 v{DD}, v{VI}, v{VI}, s70
    v_perm_b32 v{DD+2}, v{VI}, v{VI}, s71""")
    for k in (1,3,0,2): A(f"v_mov_b32_dpp v{DD+k}, v{DD+k} row_newbcast:15 row_mask:0xf bank_mask:0xf")
    for k in (1,3,0,2): A(f"v_pk_add_u16 v{DD+k}, v{DD+k}, v28")
    for j in order:
        Lb=A.label("k2s"); u=j>>2
        A(f"s_mov_b64 exec, s[{MK+2*j}:{MK+2*j+1}]")
        if j&3>=2: A(f"s_cbranch_execz {Lb}")
        A(f"""v_perm_b32 v24, v{DD+2*u+1}, v{DD+2*u}, v{56+j}
        v_mad_u32_u24 v{RK+j}, v{HA+j}, 24, v{RK+j}""")
        if j&3: A(f"v_add_u32 v24, {16*(j&3)}, v24")
        A(f"v_lshlrev_b32 v{RK+j}, 2, v{RK+j}")
        if j: A(f"v_add_u32 v{HA+j}, {16*(j&3)+4096*u}, v29")
        A(f"""v_perm_b32 v{R+j}, v24, v{R+j}, v74
        v_lshl_add_u32 v24, v24, 1, v75
        ds_write2st64_b32 v{RK+j}, v{O1+j}, v{R+j} offset0:{O0} offset1:{O1o}
        ds_write_b16 v24, v{HA+j if j else 29}""")
        if j&3>=2: A(f"{Lb}:")
    SR=4
    A(f"""s_mov_b64 exec, -1
    v_and_b32 v27, -2, v{LANE}
    s_lshl_b32 s45, s75, 1
    s_add_u32 s45, s45, {K2_SRC}
    v_add_u32 v26, s45, v27
    v_and_b32 v28, 1, v{LANE}
    v_lshlrev_b32 v28, 4, v28
    v_lshrrev_b32 v29, 1, v{LANE}
    s_lshl_b32 s45, s75, 5
    s_add_u32 m0, s45, {K2_E}""")
    for i in range(4): A(f"ds_read_u16 v{SR+i}, v26 offset:{i*64}")
    A("s_mov_b32 s46, s74\ns_waitcnt lgkmcnt(0)")
    sig(K2_CL)
    for i in range(4):
        A(f"""v_cmp_gt_i32 vcc, s46, v29
        v_lshl_add_u32 v{SR+i}, v{SR+i}, 5, v28
        s_cbranch_vccz L_k2_d0done
        s_mov_b64 exec, vcc
        buffer_load_dwordx4 v{SR+i}, s[12:15], 0 offen {NT} lds
        s_mov_b64 exec, -1
        s_sub_u32 s46, s46, 32
        s_add_u32 m0, m0, 1024""")
    A(f"""v_add_u32 v26, 256, v26
L_k2_d0more:
    v_cmp_gt_i32 vcc, s46, v29
    s_cbranch_vccz L_k2_d0done
    ds_read_u16 v{SR}, v26
    v_add_u32 v26, 64, v26
    s_waitcnt lgkmcnt(0)
    v_lshl_add_u32 v{SR}, v{SR}, 5, v28
    s_mov_b64 exec, vcc
    buffer_load_dwordx4 v{SR}, s[12:15], 0 offen {NT} lds
    s_mov_b64 exec, -1
    s_sub_u32 s46, s46, 32
    s_add_u32 m0, m0, 1024
    s_branch L_k2_d0more
L_k2_d0done:
    s_setprio {OPT.get('gp',1)}""")
    stamp(2,1)
    XA=96
    A(f"""v_add_u32 v{WP}, {K2_W}, v{L16}
    v_lshrrev_b32 v{CPt}, 1, v{L16}
    v_add_u32 v{CPt}, {K2_W+CIMG}, v{CPt}
    s_cmp_gt_u32 s74, 64
    s_cbranch_scc1 L_k2_x3
    s_waitcnt vmcnt(0)
L_k2_x3:
    s_waitcnt vmcnt(3)""")
    chk(K2_CW,'w')
    if OPT.get('fine'): stamp(6,1)
    for t in range(4): A(f"ds_read_b64 v[{GB+4*t}:{GB+4*t+1}], v{CPt} offset:{t*512}")
    qtranspose(XR,EE,XA)
    BFR=32
    seq=[(mat,t,ks) for mat in range(2) for t in range(4) for ks in range(4)]
    def rd(n):
        mat,t,ks=seq[n]; b=BFR+4*(n%8)
        A(f"ds_read_b128 v[{b}:{b+3}], v{WP} offset:{n*1024}")
    PF=6
    for n in range(PF): rd(n)
    for n in range(32):
        mat,t,ks=seq[n]; b=BFR+4*(n%8); a=ACC+4*t
        if n==16:
            A(f"s_mov_b32 s45, {hex(LOG2E_NEG)}\ns_nop 6")
            for tt in range(4):
                for r in range(4): A(f"v_mul_f32 v{ACC+4*tt+r}, s45, v{ACC+4*tt+r}")
                A(f"v_cvt_pk_bf16_f32 v{GB+4*tt+2}, v{ACC+4*tt}, v{ACC+4*tt+1}\nv_cvt_pk_bf16_f32 v{GB+4*tt+3}, v{ACC+4*tt+2}, v{ACC+4*tt+3}")
        out=min(31-n,PF-1)
        A(f"s_waitcnt lgkmcnt({out})")
        A(f"v_mfma_f32_16x16x32_bf16 v[{a}:{a+3}], v[{XA+4*ks}:{XA+4*ks+3}], v[{b}:{b+3}], {'0' if ks==0 else f'v[{a}:{a+3}]'}")
        if n+PF<32: rd(n+PF)
    if OPT.get('fine'): stamp(7,1)
    A(f"""v_lshlrev_b32 v24, 2, v{LANE}
    v_add_u32 v26, s47, v24
    s_lshl_b32 s45, s3, 6
    s_add_u32 s45, s45, {K2_SRC}
    v_add_u32 v27, s45, v27""")
    A(f"s_setprio {OPT.get('cp',2)}")
    chk(K2_CL,'l')
    if OPT.get('fine'): stamp(5,1)
    A("s_lshl_b32 s45, s3, 2")
    H0=0; FLr=1; ALr=2; SR=4; CP=8; S1=124; S2=126
    A(f"""ds_read_b32 v{H0}, v24 offset:{K2_HIST}
    ds_read_b32 v{FLr}, v25 offset:{K2_FL}
    ds_read_b64 v[{ALr}:{ALr+1}], v25 offset:{K2_AL}""")
    for b in range(1,4):
        A(f"""ds_read_b32 v{CP+4*b}, v26 offset:{b*BCAP*4}
        ds_read_b32 v{CP+4*b+1}, v26 offset:{b*BCAP*4+LST*256}""")
    A(f"""s_waitcnt lgkmcnt(6)
    v_cmp_lt_u32 vcc, {BCAP}, v{H0}
    v_readfirstlane_b32 s70, v{FLr}
    v_readfirstlane_b32 s76, v{ALr}
    v_readfirstlane_b32 s78, v{ALr+1}""")
    for i in range(4):
        A(f"v_readlane_b32 s{72+i}, v{H0}, s45\ns_add_u32 s45, s45, 1")
    A(f"""s_cmp_lg_u64 vcc, 0
    s_cbranch_scc1 L_k2_fallback
    s_cmp_lg_u32 s70, 0
    s_cbranch_scc1 L_k2_fallback
    s_and_b32 s77, s78, 0xffff
    s_lshr_b32 s78, s78, 16
    s_sub_u32 s77, s77, 2048
    s_sub_u32 s78, s78, 3072
    s_max_u32 s70, s77, s78
    s_cmp_gt_u32 s70, 1024
    s_cbranch_scc1 L_k2_fallback
    s_cmp_gt_u32 s76, 2048
    s_cbranch_scc1 L_k2_fallback
    s_add_u32 s79, s76, s77
    s_add_u32 s70, s79, s78
    s_cmp_gt_u32 s70, {ECAP-32}
    s_cbranch_scc1 L_k2_fallback""")
    def dma(cnt, n, base, SR, tag):
        A(f"s_lshl_b32 s45, s3, 5")
        if base is None: A(f"s_lshl_b32 s46, s3, 10\ns_add_u32 m0, s46, {K2_E}")
        else: A(f"s_add_u32 s46, s45, s{base}\ns_lshl_b32 s46, s46, 5\ns_add_u32 m0, s46, {K2_E}")
        for i in range(cnt):
            A(f"""s_cmp_ge_u32 s45, s{n}
            s_cbranch_scc1 L_dma_{tag}
            buffer_load_dwordx4 v{SR+i}, s[12:15], 0 offen {NT} lds""")
            if i<cnt-1: A("s_add_u32 s45, s45, 512\ns_add_u32 m0, m0, 16384")
        A(f"L_dma_{tag}:")
    A("s_max_u32 s45, s73, s74\ns_max_u32 s45, s45, s75\ns_cmp_le_u32 s45, 64\ns_cbranch_scc1 L_k2_nolong")
    for b in range(1,4):
        A(f"""ds_read_b32 v{CP+4*b+2}, v26 offset:{b*BCAP*4+256}
        ds_read_b32 v{CP+4*b+3}, v26 offset:{b*BCAP*4+256+LST*256}""")
    A("L_k2_nolong:")
    for i in range(2): A(f"ds_read_u16 v{S1+i}, v27 offset:{4096+i*1024}\nds_read_u16 v{S2+i}, v27 offset:{6144+i*1024}")
    A(f"""s_mov_b32 s68, s72
    v_add_u32 v29, 64, v{LANE}
    s_sub_u32 s48, s76, 2048
    s_sub_u32 s49, s79, 3072
    s_lshl_b32 s48, s48, 16
    s_lshl_b32 s49, s49, 16
    s_waitcnt lgkmcnt(0)""")
    for i in range(4): A(f"v_lshl_add_u32 v{S1+i}, v{S1+i}, 5, v28")
    for b in range(1,4):
        Lb=A.label("cp")
        if b>=2: A(f"v_add_u32 v{CP+4*b+1}, s{46+b}, v{CP+4*b+1}")
        A(f"""v_cmp_gt_u32 vcc, s{72+b}, v{LANE}
        v_lshl_add_u32 v24, s68, 2, v26
        s_add_u32 s68, s68, s{72+b}
        s_mov_b64 exec, vcc
        ds_write2st64_b32 v24, v{CP+4*b}, v{CP+4*b+1} offset0:0 offset1:{LST}
        s_cmp_le_u32 s{72+b}, 64
        s_cbranch_scc1 {Lb}""")
        if b>=2: A(f"v_add_u32 v{CP+4*b+3}, s{46+b}, v{CP+4*b+3}")
        A(f"""v_cmp_gt_u32 vcc, s{72+b}, v29
        s_mov_b64 exec, vcc
        ds_write2st64_b32 v24, v{CP+4*b+2}, v{CP+4*b+3} offset0:1 offset1:{LST+1}
{Lb}:
        s_mov_b64 exec, -1""")
    A(f"""s_sub_u32 s46, 0, s68
    s_and_b32 s46, s46, 31
    v_cmp_gt_u32 vcc, s46, v{LANE}
    v_lshl_add_u32 v24, s68, 2, v26
    v_mov_b32 v30, {N<<8}
    v_mov_b32 v31, {hex((ECAP<<16)|16)}
    s_mov_b64 exec, vcc
    ds_write2st64_b32 v24, v30, v31 offset0:0 offset1:{LST}
    s_mov_b64 exec, -1
    s_add_u32 s69, s72, s73
    s_add_u32 s80, s69, s74
    s_lshr_b32 s69, s69, 4
    s_lshr_b32 s80, s80, 4
    s_add_u32 s68, s68, 15
    s_lshr_b32 s68, s68, 4""")
    XA=96
    def gathers(Gr, q):
        for i in range(4):
            A(f"v_or_b32 v{Gr+i}, v{Gr+i}, v{cJ16}")
            if not OPT.get('nogather'): A(f"buffer_load_dwordx4 v[{L+16*q+4*i}:{L+16*q+4*i+3}], v{Gr+i}, s[16:19], 0 offen {hint('gld')}")
    def aread(lm):
        A(f"""v_mad_u32_u16 v{EA}, v{lm}, 32, v{cG8} op_sel:[1,0,0,0]
        v_mad_u32_u16 v{OA}, v{lm}, 32, v{cG8O}
        ds_read_b64 v[{AO}:{AO+1}], v{EA}
        ds_read_b64 v[{AO+2}:{AO+3}], v{OA}""")
    A(f"""ds_read_b128 v[{EE}:{EE+3}], v{pL1}
    ds_read_b128 v[{G}:{G+3}], v{pL1} offset:64
    ds_read_b32 v{LM}, v{pLm}
    ds_read_b32 v{WP}, v{pLm} offset:64
    ds_read_b32 v{LS}, v{pLs}
    v_mov_b32 v{TID}, {K2_C1}
    v_mov_b32 v{L16}, 1
    s_lshl_b32 s45, s3, 5
    s_cmp_lt_u32 s45, s77
    s_cselect_b32 s71, 1, 0
    s_waitcnt vmcnt(0) lgkmcnt(0)""")
    EV=OPT.get('ev','1')=='1'
    def arrive(k):
        A(f"""s_mov_b64 exec, 1
        ds_add_u32 v{TID}, v{L16} offset:{4*k}
        s_mov_b64 exec, -1""")
        if EV and k<2: A(f"s_setprio {2-k}")
    def check(k,tag):
        A(f"""L_k2_spin{tag}:
        ds_read_b32 v{SA}, v{TID} offset:{4*k}
        s_waitcnt lgkmcnt(0)
        v_readfirstlane_b32 s45, v{SA}
        s_cmp_eq_u32 s45, 16
        s_cbranch_scc1 L_k2_ok{tag}
        s_sleep 1
        s_branch L_k2_spin{tag}
L_k2_ok{tag}:""")
    def ensure2(tag):
        A(f"s_cmp_eq_u32 s81, -1\ns_cbranch_scc1 L_k2_iss{tag}")
        dma(2,78,79,S2,'e'+tag)
        A(f"""s_mov_b32 s81, -1
L_k2_iss{tag}:
        s_cmp_eq_u32 s82, -1
        s_cbranch_scc1 L_k2_arr{tag}
        s_mov_b32 s82, -1
        s_waitcnt vmcnt(0)""")
        arrive(1)
        A(f"L_k2_arr{tag}:")
        check(1,'c'+tag)
    REL=OPT.get('rel','0')=='1'; EV=OPT.get('ev','1')=='1'
    TP,TD,TR=111,113,124
    if REL:
        A(f"""s_and_b32 s45, s3, 3
        s_lshl_b32 s45, s45, 2
        s_add_u32 s45, s45, {K2_TOT}
        v_mov_b32 v{TP}, s45
        v_mov_b32 v{TD}, s68
        s_mov_b64 exec, 1
        ds_add_u32 v{TP}, v{TD}
        s_mov_b64 exec, -1
        s_waitcnt lgkmcnt(0)
        v_mov_b32 v{TD}, -2""")
    A('s_setprio 3')
    arrive(2)
    gathers(EE,0)
    gathers(G,1)
    stamp(3,1)
    check(2,'w')
    if OPT.get('untilL'): spin(OPT['untilL'],'c')
    stamp(4,1)
    if STAMP: A('s_memtime s[100:101]\ns_waitcnt lgkmcnt(0)')
    if OPT.get('tl'):
        A('s_mov_b32 s90, s94')
        for i in range(1,8): A(f's_mov_b32 s{90+i}, 0')
    if OPT.get('reg'):
        A('s_mov_b32 s92, s68\ns_mov_b32 s93, s94\ns_getreg_b32 s91, hwreg(HW_REG_HW_ID)\ns_getreg_b32 s45, hwreg(HW_REG_XCC_ID)\ns_and_b32 s45, s45, 15\ns_and_b32 s91, s91, 0xffffff\ns_lshl_b32 s45, s45, 24\ns_or_b32 s91, s91, s45')
    dma(2,77,76,S1,'p1')
    A(f"""s_max_u32 s81, s69, 2
    s_add_u32 s82, s81, 1
    s_mov_b32 s83, 3
    s_cmp_gt_u32 s69, 3
    s_cbranch_scc1 L_k2_nb0
    s_mov_b32 s83, 0
    s_waitcnt vmcnt(0)""")
    arrive(0)
    A("s_cmp_gt_u32 s69, 1\ns_cbranch_scc1 L_k2_nb0")
    check(0,'p')
    A("s_cmp_gt_u32 s80, 1\ns_cbranch_scc1 L_k2_nb0")
    ensure2('p')
    A("L_k2_nb0:")
    def gate():
        if OPT.get('nomfma'): return
        for t in range(4): A(f"v_mfma_f32_16x16x32_bf16 v[{D+4*t}:{D+4*t+3}], v[{AO}:{AO+3}], v[{GB+4*t}:{GB+4*t+3}], 0")
    aread(LM)
    A("s_mov_b32 s70, 2\ns_waitcnt lgkmcnt(0)")
    gate()
    aread(WP)
    if not EV: A("s_setprio 2")
    A("""s_cmp_eq_u32 s68, 0
    s_cbranch_scc1 L_k2_done""")
    cold=[]
    def rare(cond, tag, body):
        A(f"s_cmp_{cond[0]} {cond[1]}, {cond[2]}\ns_cbranch_scc1 L_k2_c{tag}\nL_k2_b{tag}:")
        cold.append((tag,body))
    def group(q):
        Lq=L+16*q; o=64*q
        A(f"""v_mad_u32_u16 v{SA}, v{LS}, 32, v{cS}
        ds_read_b128 v[{G}:{G+3}], v{pL1} offset:{128+o}
        ds_read_b32 v{LM}, v{pLm} offset:{128+o}
        ds_read_b64_tr_b16 v[{S}:{S+1}], v{SA}
        ds_read_b32 v{LS}, v{pLs} offset:{64+o}""")
        if q==1: A(f"v_add_u32 v{pL1}, 128, v{pL1}\nv_add_u32 v{pLm}, 128, v{pLm}\nv_add_u32 v{pLs}, 128, v{pLs}")
        for t in range(4):
            for r in range(4): A(f"v_exp_f32{X64} v{EE+4*r+t}, v{D+4*t+r}")
        if OPT.get('tl') and q==0: A("s_memrealtime s[88:89]")
        A("s_waitcnt lgkmcnt(0)")
        if OPT.get('tl') and q==0: A("s_lshr_b32 s45, s70, 1\ns_min_u32 s45, s45, 7\ns_mov_b32 m0, s45\ns_nop 0\ns_movreld_b32 s90, s88")
        gate()
        rare(('eq_u32','s70','s69'),f'k0{q}',lambda q=q: check(0,q))
        rare(('eq_u32','s70','s80'),f'k1{q}',lambda q=q: ensure2(str(q)))
        aread(LM)
        def w(q=q):
            A(f"s_cmp_gt_u32 s70, s68\ns_cbranch_scc1 L_k2_w0{q}\ns_waitcnt vmcnt(5)\ns_branch L_k2_wd{q}\nL_k2_w0{q}:\ns_waitcnt vmcnt(0)")
        A(f"s_sub_u32 s45, s70, s71")
        rare(('gt_u32','s45','s87'),f'w{q}',w)
        A(f"s_waitcnt vmcnt(4)\nL_k2_wd{q}:")
        if q==1: rare(('eq_u32','s70','s83'),'a0',lambda: arrive(0))
        def a1():
            A("s_mov_b32 s82, -1"); arrive(1)
        rare(('eq_u32','s70','s82'),f'a1{q}',a1)
        order=[(r,t) for tt in (0,2) for r in range(4) for t in (tt,tt+1)]
        lag=int(OPT.get('lag','2'))
        for i in range(16+lag):
            if i<16: r,t=order[i]; A(f"v_fma_mix_f32 v{EE+4*r+t}, v{Lq+4*r+t}, v{EE+4*r+t}, 1.0 op_sel_hi:[1,0,0]")
            if i>=lag: r,t=order[i-lag]; A(f"v_rcp_f32{R64} v{EE+4*r+t}, v{EE+4*r+t}")
        for t in (0,2):
            for r in range(4): A(f"v_pk_mul_f32 v[{EE+4*r+t}:{EE+4*r+t+1}], v[{EE+4*r+t}:{EE+4*r+t+1}], v[{Lq+4*r+t}:{Lq+4*r+t+1}]")
        for t,p in [(0,0),(2,0),(1,0),(3,0),(0,1),(1,1),(2,1),(3,1)]:
            A(f"v_cvt_pk_bf16_f32 v{EE+2*t+p}, v{EE+8*p+t}, v{EE+8*p+4+t}")
        def i2(q=q):
            A("s_mov_b32 s81, -1"); dma(2,78,79,S2,f'i{q}')
        rare(('eq_u32','s70','s81'),f'i{q}',i2)
        for t in range(4): A(f"v_mfma_f32_16x16x16_bf16 v[{ACC+4*t}:{ACC+4*t+3}], v[{S}:{S+1}], v[{EE+2*t}:{EE+2*t+1}], v[{ACC+4*t}:{ACC+4*t+3}]")
        def tail(q=q):
            A(f"""s_cmp_lg_u32 s82, -1
            s_cbranch_scc1 L_k2_t{q}
            s_setprio 0
L_k2_t{q}:
            s_cmp_lt_u32 s70, s68
            s_cbranch_scc1 L_k2_bt{q}
            s_cmp_gt_u32 s70, s68
            s_cbranch_scc1 L_k2_done
            s_branch L_k2_ng{q}""")
        rare(('ge_i32','s70','s86'),f't{q}',tail)
        gathers(G,q)
        A(f"L_k2_ng{q}:\ns_add_u32 s70, s70, 1")
    A(f"""s_add_u32 s71, s71, 2
    s_sub_u32 s87, s68, s71
    s_max_i32 s87, s87, 0
    s_cmp_lt_u32 s68, s71
    s_cselect_b32 s71, 0x40000000, s71
    s_sub_u32 s86, s68, {int(OPT.get('evt',4))-2}""")
    A(".p2align 6")
    for i in range(int(OPT.get('shift',0))): A("s_nop 0")
    A("L_k2_loop:")
    group(0); group(1)
    A("s_branch L_k2_loop")
    for tag,body in cold:
        A(f"L_k2_c{tag}:"); body(); A(f"s_branch L_k2_b{tag}")
    A("L_k2_done:\ns_waitcnt vmcnt(0)")
    if not OPT.get('tl') and not OPT.get('fine'): stamp(5,1)
    if STAMP and not OPT.get('tl') and not OPT.get('fine'): A('s_memtime s[88:89]\ns_waitcnt lgkmcnt(0)\ns_sub_u32 s97, s88, s100')
    A(f"""v_lshrrev_b32 v0, 4, v{LANE}
    v_lshlrev_b32 v0, 2, v0
    v_add_u32 v1, s44, v0
    v_lshlrev_b32 v1, 8, v1
    v_lshrrev_b32 v2, 1, v{cJ16}
    s_lshl_b32 s45, s40, 7
    v_add3_u32 v1, v1, v2, s45
    v_mov_b32 v3, {hex(LOG2E_NEG)}
    v_mov_b32 v4, 0x80000000""")
    A("v_mov_b32 v2, v3")
    for rp in (0,2):
        for t in range(4): A(f"v_pk_mul_f32 v[{8+2*t}:{9+2*t}], v[2:3], v[{ACC+4*t+rp}:{ACC+4*t+rp+1}]")
        for i in range(8): A(f"v_exp_f32 v{8+i}, v{8+i}")
        A(f"v_add_u32 v5, {rp}, v0\nv_cmp_gt_u32 vcc, s43, v5\nv_add_u32 v5, {rp+1}, v0\nv_cmp_gt_u32 s[46:47], s43, v5")
        for t in range(4): A(f"v_pk_add_f32 v[{8+2*t}:{9+2*t}], v[{8+2*t}:{9+2*t}], 1.0 op_sel_hi:[1,0]")
        for i in range(8): A(f"v_rcp_f32 v{8+i}, v{8+i}")
        A(f"v_cndmask_b32 v{16+rp}, v4, v1, vcc\nv_cndmask_b32 v{17+rp}, v4, v1, s[46:47]")
        for t in range(4): A(f"v_pk_mul_f32 v[{8+2*t}:{9+2*t}], v[{8+2*t}:{9+2*t}], v[{ACC+4*t+rp}:{ACC+4*t+rp+1}]")
        for k in range(2):
            r=rp+k
            A(f"""v_cvt_pk_bf16_f32 v{20+2*r}, v{8+k}, v{10+k}
            v_cvt_pk_bf16_f32 v{21+2*r}, v{12+k}, v{14+k}
            buffer_store_dwordx2 v[{20+2*r}:{21+2*r}], v{16+r}, s[28:31], 0 offen offset:{r*256} {OST}""")
    if STAMP:
        A("s_waitcnt vmcnt(0)")
        if not OPT.get('tl') and not OPT.get('fine'): stamp(6,1)
        stamp_flush(1)
    if OPT.get('until'): spin(OPT['until'],'b')
    A("s_endpgm")
    fallback()
    A("L_k2_end:\ns_endpgm")

def fallback():
    LANE=121; TID=123
    A(f"""L_k2_fallback:
    s_mov_b64 exec, -1
    s_load_dwordx2 s[50:51], s[0:1], 8
    s_load_dwordx4 s[52:55], s[0:1], 16
    s_load_dwordx4 s[56:59], s[0:1], 32
    s_load_dwordx2 s[60:61], s[0:1], 48
    s_waitcnt vmcnt(0) lgkmcnt(0)
    s_barrier""")
    srd(8,50,51,0,E*32)
    srd(12,52,53,0,E*4)
    srd(16,54,55,0,E*4)
    srd(24,56,57,0,128*256)
    srd(32,58,59,0,128*256)
    srd(36,60,61,0,272*256)
    A(f"""v_mov_b32 v0, 0
    v_mov_b32 v1, 0
    v_mov_b32 v2, 0
    v_mov_b32 v3, 0
    v_lshlrev_b32 v4, 4, v{TID}
    ds_write_b128 v4, v[0:3]
    ds_write_b128 v4, v[0:3] offset:16384
    ds_write_b128 v4, v[0:3] offset:32768
    ds_write_b128 v4, v[0:3] offset:49152
    s_lshl_b32 s45, s40, 7
    v_lshl_add_u32 v5, v{LANE}, 1, s45
    v_lshlrev_b32 v6, 2, v{LANE}
    s_mul_i32 s46, s41, {BS}
    s_lshl_b32 s47, s3, 6
    s_waitcnt lgkmcnt(0)
    s_barrier
L_fb_chunk:
    s_cmp_ge_u32 s47, {E}
    s_cbranch_scc1 L_fb_fin
    s_lshl_b32 s48, s47, 2
    buffer_load_dword v7, v6, s[16:19], s48 offen
    buffer_load_dword v8, v6, s[12:15], s48 offen
    s_waitcnt vmcnt(0)
    v_subrev_u32 v9, s46, v7
    v_cmp_gt_u32 s[62:63], v10, v9
    """.replace("v_cmp_gt_u32 s[62:63], v10, v9",f"v_mov_b32 v10, {BS}\nv_cmp_gt_u32 s[62:63], v10, v9")+f"""
L_fb_edge:
    s_cmp_eq_u64 s[62:63], 0
    s_cbranch_scc1 L_fb_next
    s_ff1_i32_b64 s49, s[62:63]
    s_bitset0_b64 s[62:63], s49
    v_readlane_b32 s64, v7, s49
    v_readlane_b32 s65, v8, s49
    s_add_u32 s66, s47, s49
    s_lshl_b32 s67, s64, 8
    s_lshl_b32 s68, s65, 8
    s_lshl_b32 s66, s66, 5
    s_nop 2
    buffer_load_dword v11, v6, s[20:23], s67 offen
    buffer_load_dword v12, v6, s[20:23], s68 offen
    v_and_b32 v14, 28, v6
    buffer_load_dword v13, v14, s[8:11], s66 offen
    v_mov_b32 v15, 0
    v_mov_b32 v16, 0
    s_mov_b32 s69, 0
    s_waitcnt vmcnt(0)
L_fb_k:
    s_lshl_b32 s70, s69, 9
    s_add_u32 s71, s70, {128*256}
    buffer_load_ushort v17, v5, s[36:39], s70 offen
    buffer_load_ushort v18, v5, s[36:39], s70 offen offset:256
    buffer_load_ushort v19, v5, s[36:39], s71 offen
    buffer_load_ushort v20, v5, s[36:39], s71 offen offset:256
    buffer_load_ushort v21, v5, s[32:35], s70 offen
    buffer_load_ushort v22, v5, s[32:35], s70 offen offset:256
    v_readlane_b32 s72, v11, s69
    v_readlane_b32 s73, v12, s69
    s_lshl_b32 s74, s72, 16
    s_and_b32 s72, s72, 0xffff0000
    s_lshl_b32 s75, s73, 16
    s_and_b32 s73, s73, 0xffff0000
    s_waitcnt vmcnt(0)""")
    for i in range(17,23): A(f"v_lshlrev_b32 v{i}, 16, v{i}")
    A(f"""v_fmac_f32 v15, s74, v17
    v_fmac_f32 v15, s72, v18
    v_fmac_f32 v15, s75, v19
    v_fmac_f32 v15, s73, v20
    v_fmac_f32 v16, s75, v21
    v_fmac_f32 v16, s73, v22
    s_add_u32 s69, s69, 1
    s_cmp_lt_u32 s69, 64
    s_cbranch_scc1 L_fb_k
    s_mov_b32 s69, 0
L_fb_ke:
    s_lshl_b32 s70, s69, 9
    s_add_u32 s70, s70, {256*256}
    buffer_load_ushort v17, v5, s[36:39], s70 offen
    buffer_load_ushort v18, v5, s[36:39], s70 offen offset:256
    v_readlane_b32 s72, v13, s69
    s_lshl_b32 s74, s72, 16
    s_and_b32 s72, s72, 0xffff0000
    s_waitcnt vmcnt(0)
    v_lshlrev_b32 v17, 16, v17
    v_lshlrev_b32 v18, 16, v18
    v_fmac_f32 v15, s74, v17
    v_fmac_f32 v15, s72, v18
    s_add_u32 s69, s69, 1
    s_cmp_lt_u32 s69, 8
    s_cbranch_scc1 L_fb_ke
    v_mul_f32 v15, {hex(LOG2E_NEG)}, v15
    v_exp_f32 v15, v15
    s_sub_u32 s64, s64, s46
    s_lshl_b32 s64, s64, 8
    v_add_f32 v15, 1.0, v15
    v_rcp_f32 v15, v15
    v_add_u32 v17, s64, v6
    v_mul_f32 v15, v15, v16
    ds_add_f32 v17, v15
    s_branch L_fb_edge
L_fb_next:
    s_add_u32 s47, s47, 1024
    s_branch L_fb_chunk
L_fb_fin:
    s_waitcnt lgkmcnt(0)
    s_barrier
    s_mov_b32 s47, s3
L_fb_node:
    s_cmp_ge_u32 s47, {BS}
    s_cbranch_scc1 L_k2_end
    s_add_u32 s64, s46, s47
    s_lshl_b32 s67, s64, 8
    buffer_load_dword v11, v6, s[20:23], s67 offen
    s_lshl_b32 s48, s47, 8
    v_add_u32 v17, s48, v6
    ds_read_b32 v15, v17
    s_mov_b32 s69, 0
    s_waitcnt vmcnt(0) lgkmcnt(0)
L_fb_ku:
    s_lshl_b32 s70, s69, 9
    buffer_load_ushort v17, v5, s[24:27], s70 offen
    buffer_load_ushort v18, v5, s[24:27], s70 offen offset:256
    v_readlane_b32 s72, v11, s69
    s_lshl_b32 s74, s72, 16
    s_and_b32 s72, s72, 0xffff0000
    s_waitcnt vmcnt(0)
    v_lshlrev_b32 v17, 16, v17
    v_lshlrev_b32 v18, 16, v18
    v_fmac_f32 v15, s74, v17
    v_fmac_f32 v15, s72, v18
    s_add_u32 s69, s69, 1
    s_cmp_lt_u32 s69, 64
    s_cbranch_scc1 L_fb_ku
    v_mul_f32 v16, {hex(LOG2E_NEG)}, v15
    v_exp_f32 v16, v16
    s_nop 0
    v_add_f32 v16, 1.0, v16
    v_rcp_f32 v16, v16
    s_nop 0
    v_mul_f32 v15, v15, v16
    v_cvt_pk_bf16_f32 v15, v15, v15
    buffer_store_short v15, v5, s[28:31], s67 offen
    s_add_u32 s47, s47, 16
    s_branch L_fb_node""")

def desc(name, vg, sg=102):
    return f""".amdhsa_kernel {name}
  .amdhsa_next_free_vgpr {vg}
  .amdhsa_next_free_sgpr {sg}
  .amdhsa_accum_offset {vg}
  .amdhsa_group_segment_fixed_size 0
  .amdhsa_kernarg_size 80
  .amdhsa_user_sgpr_count 2
  .amdhsa_user_sgpr_kernarg_segment_ptr 1
  .amdhsa_system_sgpr_workgroup_id_x 1
.end_amdhsa_kernel
"""
k1(); k2()
errs=check(A.lines)
for e in errs: print(e, file=sys.stderr)
hdr=open('gather_scatter__edge_featured_mpnn_egc__graph.s.ref').read().split('; Override launch')[0]
xl=f"; @launch kernel=nop_kernel grid=({OPT.get('nopg',256)},1,1) block=({OPT.get('nopb',64)},1,1) lds={OPT.get('nopl',0)}\n"
pre=xl if OPT.get('nop')=='pre' else ''; post=xl if OPT.get('nop')=='post' else ''
if OPT.get('nop'):
    A(".p2align 8\nnop_kernel:")
    if OPT.get('nopt0'):
        A(f"""s_memrealtime s[6:7]
        s_load_dwordx2 s[4:5], s[0:1], 72
        s_cmp_lg_u32 s2, 0
        s_cbranch_scc1 L_nop_end
        s_waitcnt lgkmcnt(0)
        s_add_u32 s8, s4, {MISC_OFF}
        s_addc_u32 s9, s5, 0
        s_mov_b32 s10, {MISC_SZ}
        s_mov_b32 s11, 0x20000
        v_mov_b32 v1, s6
        v_mov_b32 v2, {FLAGO+2048}
        buffer_store_dword v1, v2, s[8:11], 0 offen sc0 sc1
L_nop_end:""")
    A("s_endpgm")
out=hdr+pre+f"""; Two launches: prep (edge partition + node tables), main (gated gather / aggregate / silu)
; @launch kernel=prep_kernel grid=(256,1,1) block=(1024,1,1) lds={K1_LDS}
; @launch kernel=main_kernel grid=(256,1,1) block=(1024,1,1) lds={K2_LDS}
{post}.amdgcn_target "amdgcn-amd-amdhsa--gfx950"
.text
.globl prep_kernel
.type prep_kernel,@function
.globl main_kernel
.type main_kernel,@function
"""+A.text()+""".section .rodata,"a"
.p2align 6
"""+desc("prep_kernel",128)+".p2align 6\n"+desc("main_kernel",128)+((".p2align 6\n"+desc("nop_kernel",8,16)) if OPT.get('nop') else '')
open(sys.argv[1],'w').write(out)
print("written",sys.argv[1],len(A.lines),"lines; hazards:",len(errs))
```

```python
import sys
from dsl import *
OPT=dict(a.split('=') if '=' in a else (a,'1') for a in sys.argv[2:])
STAMP=int(OPT.get('stamp',0))
def hint(k,d=''):
    v=OPT.get(k,d); return '' if v=='none' else v.replace('+',' ')
NTI=hint('nti'); NTE=hint('nte'); NTX=hint('ntx'); NT=hint('nt2'); OST=hint('ost','sc0+sc1')
ST=OPT.get('st','sc0 sc1')
if ST=='none': ST=''
ST=ST.replace('+',' ')

MST=hint('mst','none')
X64='_e64' if OPT.get('x64') else ''; R64='_e64' if OPT.get('r64') else ''
N=25000; E=400000; BS=196; CH=3136
NROW=25088; HS=NROW*256
WSB=int(OPT.get('wsb','0'))<<20
TAB_OFF=WSB; REC_OFF=WSB+0x0D00000; EP_OFF=WSB+0x1100000; MISC_OFF=WSB+0x3100000
WH=0x9000; CIMG=0x8000; FLAGO=0x12000; MISC_SZ=0x13000
LOG2E=0x3fb8aa3b
STAMP_OFF=0x3200000
LOG2E_NEG=0xbfb8aa3b
A=Asm()

def srd(s, base_lo, base_hi, off, size):
    if off:
        A(f"s_add_u32 s{s}, s{base_lo}, {hex(off)}\ns_addc_u32 s{s+1}, s{base_hi}, 0")
    else:
        A(f"s_mov_b32 s{s}, s{base_lo}\ns_mov_b32 s{s+1}, s{base_hi}")
    A(f"s_mov_b32 s{s+2}, {hex(size)}\ns_mov_b32 s{s+3}, 0x20000")

def stamp(idx, kern):
    if not STAMP: return
    A(f"""s_memrealtime s[88:89]
    s_waitcnt lgkmcnt(0)
    s_mov_b32 s{90+idx}, s88""")
def stamp_init(kern, wave_s, wsl, wsh):
    if not STAMP: return
    for i in range(8): A(f"s_mov_b32 s{90+i}, 0")
    A(f"s_add_u32 s98, s{wsl}, {hex(STAMP_OFF+kern*0x80000)}\ns_addc_u32 s99, s{wsh}, 0")
def stamp_flush(kern=0):
    if not STAMP: return
    if STAMP==2:
        sel=[0,1,2,5] if kern==0 else [0,2,3,6]
        if kern==0: A("s_and_b32 s4, s2, 15\ns_cmp_lg_u32 s4, 0\ns_cbranch_scc1 L_sf_0_3")
        A(f"""s_load_dwordx2 s[4:5], s[0:1], 64
        s_waitcnt lgkmcnt(0)
        s_add_u32 s4, s4, {512*(1-kern)}
        s_addc_u32 s5, s5, 0
        s_cmp_lg_u32 s3, {12 if kern==0 else 15}
        s_cbranch_scc1 L_sf_{kern}_3
        s_mov_b32 s6, 256
        s_mov_b32 s7, 0x20000
        s_mov_b64 exec, 1
        v_mov_b32 v8, 0""")
        for n,i in enumerate(sel):
            A(f"""v_mov_b32 v0, s{90+i}
            v_not_b32 v1, v0
            s_cmp_eq_u32 s{90+i}, 0
            s_cbranch_scc1 L_sf_{kern}_{n}
            buffer_atomic_umax v1, v8, s[4:7], 0 offen offset:{kern*32+n*8}
            buffer_atomic_umax v0, v8, s[4:7], 0 offen offset:{kern*32+n*8+4}
L_sf_{kern}_{n}:""")
        return
    A("""s_mov_b32 s4, s98
    s_mov_b32 s5, s99
    s_mov_b32 s6, 0x80000
    s_mov_b32 s7, 0x20000
    s_lshl_b32 s8, s2, 4
    s_add_u32 s8, s8, s3
    s_lshl_b32 s8, s8, 6
    s_mov_b64 exec, 1
    v_mov_b32 v8, 0""")
    for i in range(8): A(f"v_mov_b32 v{i}, s{90+i}")
    A("buffer_store_dwordx4 v[0:3], v8, s[4:7], s8 offen\nbuffer_store_dwordx4 v[4:7], v8, s[4:7], s8 offen offset:16")
    if OPT.get('tl') and kern==1:
        for i in range(8): A(f"v_mov_b32 v{12+i}, s{60+i}")
        A("buffer_store_dwordx4 v[12:15], v8, s[4:7], s8 offen offset:32\nbuffer_store_dwordx4 v[16:19], v8, s[4:7], s8 offen offset:48")

def qtranspose(X,P,Y):
    for st,(src,dst,pm,m0) in enumerate(((X,P,"[1,0,3,2]",0x55555555),(P,Y,"[2,3,0,1]",0x33333333))):
        bit=1<<st
        for half in range(2):
            m=m0 if half==0 else (~m0)&0xffffffff
            A(f"s_mov_b32 vcc_lo, {hex(m)}\ns_mov_b32 vcc_hi, {hex(m)}")
            for j in range(4):
                if ((j>>st)&1)!=half: continue
                for d in range(4):
                    A(f"v_cndmask_b32_dpp v{dst+4*j+d}, v{src+4*(j^bit)+d}, v{src+4*j+d}, vcc quad_perm:{pm} row_mask:0xf bank_mask:0xf")

K1_E=0; K1_REC=100352; K1_PERM=K1_REC+32768; K1_HIST=K1_PERM+16384; K1_OVF=K1_HIST+1024; K1_LDS=K1_OVF+256
WROW=544
def woff(k): return k*WROW+(k>>5)*128

def k1():
    A(".p2align 8\nprep_kernel:")
    A("""s_cmp_ge_u32 s2, 256
    s_cbranch_scc1 L_k1_end
    s_load_dwordx4 s[4:7], s[0:1], 0
    s_load_dwordx4 s[8:11], s[0:1], 16
    s_load_dwordx4 s[12:15], s[0:1], 32
    s_load_dwordx2 s[16:17], s[0:1], 48
    s_load_dwordx2 s[18:19], s[0:1], 72
    v_lshrrev_b32 v1, 6, v0
    v_and_b32 v2, 63, v0
    v_readfirstlane_b32 s3, v1
    v_lshlrev_b32 v3, 4, v2
    v_lshlrev_b32 v4, 4, v0
    s_waitcnt lgkmcnt(0)""")
    if OPT.get('cpf','1')!='0':
        A(f"""s_cmp_ge_u32 s3, 13
        s_cbranch_scc1 L_k1_nocpf
        s_getpc_b64 s[20:21]
L_k1_pc:
        s_sub_u32 s20, s20, L_k1_pc-prep_kernel
        s_subb_u32 s21, s21, 0
        global_load_dwordx4 v[120:123], v4, s[20:21]
L_k1_nocpf:""")
    stamp_init(0,3,18,19)
    stamp(0,0)
    srd(44,18,19,MISC_OFF,MISC_SZ)
    if (OPT.get('until') or OPT.get('until0') or OPT.get('untilL')) and not OPT.get('nopt0'):
        A(f"""s_memrealtime s[60:61]
        s_waitcnt lgkmcnt(0)
        s_or_b32 s62, s2, s3
        s_cmp_lg_u32 s62, 0
        s_cbranch_scc1 L_k1_not0
        v_mov_b32 v100, s60
        v_mov_b32 v101, {FLAGO+2048}
        buffer_store_dword v100, v101, s[44:47], 0 offen sc0 sc1
L_k1_not0:""")
    A("""s_cmp_ge_u32 s2, 128
    s_cbranch_scc1 L_k1_gemm""")
    srd(20,10,11,0,E*4)
    srd(24,8,9,0,E*4)
    srd(28,6,7,0,E*32)
    srd(32,18,19,REC_OFF,0x400000)
    srd(36,18,19,EP_OFF,0x2000000)
    D=8; S=12
    A(f"""s_mul_i32 s50, s2, {CH}
    s_sub_u32 s51, {E}, s50
    s_lshr_b32 s51, s51, 2
    s_min_u32 s51, s51, {CH//4}
    s_lshl_b32 s52, s50, 2
    v_cmp_gt_u32 vcc, s51, v0
    s_mov_b64 s[54:55], vcc
    s_mov_b64 exec, vcc
    s_cbranch_execz L_k1_noidx
    buffer_load_dwordx4 v[{D}:{D+3}], v4, s[20:23], s52 offen {NTI}
    buffer_load_dwordx4 v[{S}:{S+3}], v4, s[24:27], s52 offen {NTI}
L_k1_noidx:
    s_mov_b64 exec, -1
    s_lshl_b32 s53, s3, 10
    s_lshl_b32 s56, s50, 5
    s_add_u32 s56, s56, s53
    v_mov_b32 v16, -1
    v_mov_b32 v17, -1
    v_mov_b32 v18, -1
    v_mov_b32 v19, -1
    v_mov_b32 v20, 0
    v_add_u32 v5, {K1_REC}, v4
    v_lshlrev_b32 v6, 2, v0
    v_add_u32 v6, {K1_HIST}, v6
    ds_write_b128 v5, v[16:19]
    ds_write_b128 v5, v[16:19] offset:16384
    v_cmp_gt_u32 vcc, 0x140, v0
    s_mov_b64 exec, vcc
    ds_write_b32 v6, v20
    s_mov_b64 exec, -1
    v_mov_b32 v20, 1
    v_mov_b32 v22, 21400
    v_mov_b32 v23, -196
    v_mov_b32 v24, 5372
    v_mov_b32 v25, 208
    v_mov_b32 v26, 669
    s_waitcnt lgkmcnt(0)
    s_barrier""")
    for i in range(7):
        if i==6: A("s_cmp_ge_u32 s3, 2\ns_cbranch_scc1 L_k1_dmadone")
        A(f"""s_mov_b32 m0, s53
        s_add_u32 s53, s53, 16384
        buffer_load_dwordx4 v3, s[28:31], s56 offen {NTE} lds
        s_add_u32 s56, s56, 16384""")
    A("L_k1_dmadone:\ns_waitcnt vmcnt(6)")
    stamp(1,0)
    A("""s_mov_b64 exec, s[54:55]
    s_cbranch_execz L_k1_b1""")
    B,RC,HA,SH,OLD,INC,T=28,32,36,40,44,48,60
    for j in range(4):
        A(f"""v_mul_u32_u24 v{T}, v{D+j}, v22
        v_mul_u32_u24 v{T+1}, v{S+j}, v26
        v_lshrrev_b32 v{B+j}, 22, v{T}
        v_lshrrev_b32 v{T+1}, 22, v{T+1}
        v_lshlrev_b32 v{HA+j}, 2, v{B+j}
        v_sub_u32_e64 v{SH+j}, v{T+1}, 1 clamp
        v_add_u32 v{HA+j}, {K1_HIST}, v{HA+j}
        v_lshlrev_b32 v{SH+j}, 3, v{SH+j}
        v_mad_i32_i24 v{T}, v{B+j}, v23, v{D+j}
        v_lshlrev_b32 v{INC+j}, v{SH+j}, v20
        v_mul_u32_u24 v{T+2}, v{T}, v24
        ds_add_rtn_u32 v{OLD+j}, v{HA+j}, v{INC+j}
        v_lshl_or_b32 v{T}, v{S+j}, 8, v{T}
        v_lshrrev_b32 v{T+2}, 16, v{T+2}
        v_mad_u32_u24 v{T+3}, v{T+2}, 52, v25
        v_mad_i32_i24 v{T}, v{T+2}, -12, v{T}
        v_lshrrev_b32 v{T+3}, 8, v{T+3}
        v_lshl_add_u32 v{T+2}, v{T+2}, 2, v{T+1}
        v_sub_u32 v{T}, v{T}, v{T+3}
        v_lshl_or_b32 v{RC+j}, v{T+2}, 24, v{T}""")
    A("""L_k1_b1:
    s_mov_b64 exec, -1
    s_waitcnt lgkmcnt(0)
    s_barrier""")
    stamp(2,0)
    FIN=8
    A(f"""s_mov_b64 s[70:71], 0
    v_cmp_gt_u32 vcc, 128, v0
    s_mov_b64 exec, vcc
    s_cbranch_execz L_k1_nohdr
    ds_read_b32 v{T}, v6
    v_lshlrev_b32 v{T+1}, 8, v0
    v_add_u32 v{T+1}, {K1_REC+252}, v{T+1}
    s_waitcnt lgkmcnt(0)
    v_and_b32 v{T}, 0x3f3f3f, v{T}
    ds_write_b32 v{T+1}, v{T}
L_k1_nohdr:
    s_mov_b64 exec, s[54:55]
    s_cbranch_execz L_k1_b2""")
    for j in range(4): A(f"ds_read_b32 v{FIN+j}, v{HA+j}")
    A(f"v_lshlrev_b32 v{T+8}, 2, v0")
    for j in range(4):
        A(f"v_bfe_u32 v{OLD+j}, v{OLD+j}, v{SH+j}, 8\nv_add_u32 v{INC+j}, -1, v{INC+j}")
    A("s_waitcnt lgkmcnt(0)")
    for j in range(4):
        A(f"""v_and_b32 v{T}, v{FIN+j}, v{INC+j}
        v_sad_u8 v{T}, v{T}, 0, v{OLD+j}
        v_cmp_lt_u32 vcc, 62, v{T}
        v_min_u32 v{T}, 62, v{T}
        s_or_b64 s[70:71], s[70:71], vcc
        v_lshl_add_u32 v{T+1}, v{B+j}, 6, v{T}
        v_and_b32 v{T+2}, 15, v{T}
        v_lshrrev_b32 v{T+3}, 4, v{T}
        v_lshlrev_b32 v{T+1}, 1, v{T+1}
        v_lshl_add_u32 v{T+2}, v{T+2}, 2, v{T+3}
        v_add_u32 v{T+1}, {K1_PERM}, v{T+1}
        v_lshl_add_u32 v{T+2}, v{B+j}, 6, v{T+2}
        v_add_u32 v{T+9}, {j}, v{T+8}
        v_lshlrev_b32 v{T+2}, 2, v{T+2}
        ds_write_b16 v{T+1}, v{T+9}
        v_add_u32 v{T+2}, {K1_REC}, v{T+2}
        ds_write_b32 v{T+2}, v{RC+j}""")
    A(f"""s_mov_b64 exec, s[70:71]
    v_mov_b32 v{T}, {K1_OVF}
    ds_write_b32 v{T}, v20
L_k1_b2:
    s_mov_b64 exec, -1
    s_waitcnt lgkmcnt(0)
    s_barrier""")
    stamp(3,0)
    EI=8; EV=64
    A(f"""ds_read_b128 v[16:19], v5
    ds_read_b128 v[20:23], v5 offset:16384
    v_and_b32 v24, 7, v2
    s_lshl_b32 s57, s3, 5
    v_lshl_add_u32 v24, v24, 2, s57
    v_add_u32 v24, {K1_HIST}, v24
    ds_read_b32 v26, v24
    v_lshrrev_b32 v28, 1, v2
    s_lshl_b32 s57, s3, 10
    s_add_u32 s57, s57, {K1_PERM}
    v_lshl_add_u32 v29, v28, 1, s57""")
    for i in range(8): A(f"ds_read_u16 v{EI+i}, v29 offset:{i*128}")
    A(f"""v_lshrrev_b32 v30, 4, v0
    v_and_b32 v31, 15, v0
    v_lshlrev_b32 v30, 15, v30
    v_lshl_or_b32 v30, v31, 4, v30
    s_lshl_b32 s58, s2, 8
    s_add_u32 s59, s58, 0x200000
    v_and_b32 v31, 1, v2
    v_lshlrev_b32 v31, 4, v31
    s_waitcnt lgkmcnt(0)
    buffer_store_dwordx4 v[16:19], v30, s[32:35], s58 offen {ST}
    buffer_store_dwordx4 v[20:23], v30, s[32:35], s59 offen {ST}
    v_sad_u8 v26, v26, 0, 3
    v_and_b32 v26, -4, v26
    v_min_u32 v26, 64, v26
    s_waitcnt vmcnt(2)
    s_barrier""")
    stamp(6,0)
    for i in range(8):
        A(f"v_lshl_add_u32 v{EI+i}, v{EI+i}, 5, v31\nds_read_b128 v[{EV+4*i}:{EV+4*i+3}], v{EI+i}\nv_readlane_b32 s{60+i}, v26, {i}")
    A(f"""s_lshl_b32 s57, s3, 21
    s_lshl_b32 s58, s2, 11
    s_add_u32 s57, s57, s58""")
    for i in range(8):
        A(f"""v_cmp_gt_u32 vcc, s{60+i}, v28
        s_mov_b64 exec, vcc
        s_waitcnt lgkmcnt({7-i})
        buffer_store_dwordx4 v[{EV+4*i}:{EV+4*i+3}], v3, s[36:39], s57 offen {ST}
        s_mov_b64 exec, -1
        s_add_u32 s57, s57, 0x40000""")
    A(f"s_sub_u32 s57, s57, 0x200000\nv_add_u32 v32, 32, v28")
    for i in range(8):
        L=A.label("k1long")
        A(f"""s_cmp_le_u32 s{60+i}, 32
        s_cbranch_scc1 {L}
        ds_read_u16 v33, v29 offset:{i*128+64}
        s_waitcnt lgkmcnt(0)
        v_lshl_add_u32 v33, v33, 5, v31
        ds_read_b128 v[36:39], v33
        v_cmp_gt_u32 vcc, s{60+i}, v32
        s_mov_b64 exec, vcc
        s_waitcnt lgkmcnt(0)
        buffer_store_dwordx4 v[36:39], v3, s[36:39], s57 offen offset:1024 {ST}
        s_mov_b64 exec, -1
        s_nop 0
{L}:
        s_add_u32 s57, s57, 0x40000""")
    A("s_branch L_k1_flag")
    A("L_k1_gemm:")
    srd(20,4,5,0,N*256)
    srd(24,16,17,0,272*256)
    srd(28,14,15,0,128*256)
    srd(32,12,13,0,128*256)
    srd(36,18,19,TAB_OFF,HS)
    srd(40,18,19,TAB_OFF+HS,HS)
    XR=8; WL=24; XA=40; ACC=56; BF=8
    A(f"""s_sub_u32 s50, s2, 128
    s_lshr_b32 s51, s50, 3
    s_lshl_b32 s52, s3, 4
    s_add_u32 s51, s51, s52
    s_cmp_lt_u32 s51, 196
    s_cselect_b32 s52, 0, 0x10000
    s_add_u32 s51, s51, s52
    s_and_b32 s52, s2, 3
    s_mul_i32 s52, s52, 392
    s_add_u32 s51, s51, s52
    s_bfe_u32 s52, s2, 0x10002
    s_mul_i32 s52, s52, 196
    s_add_u32 s51, s51, s52
    v_mov_b32 v6, 0
    v_mov_b32 v7, {K1_OVF}
    ds_write_b32 v7, v6
    s_cmp_ge_u32 s51, 1568
    s_cbranch_scc1 L_k1_nox
    s_lshl_b32 s52, s51, 12
    v_bfe_u32 v5, v2, 2, 2
    v_and_b32 v6, 3, v2
    v_lshlrev_b32 v5, 10, v5
    v_lshl_or_b32 v5, v6, 4, v5
    v_lshrrev_b32 v6, 4, v2
    v_lshl_or_b32 v5, v6, 6, v5""")
    for ks in range(4): A(f"buffer_load_dwordx4 v[{XR+4*ks}:{XR+4*ks+3}], v5, s[20:23], s52 offen offset:{ks*256} {NTX}")
    A(f"""L_k1_nox:
    s_mov_b32 s53, {128*256}
    s_mov_b32 s54, {128*256+16384}
    s_mov_b32 s55, 16384
    buffer_load_dwordx4 v[{WL}:{WL+3}], v4, s[24:27], s53 offen
    buffer_load_dwordx4 v[{WL+4}:{WL+7}], v4, s[24:27], s54 offen
    buffer_load_dwordx4 v[{WL+8}:{WL+11}], v4, s[28:31], 0 offen
    buffer_load_dwordx4 v[{WL+12}:{WL+15}], v4, s[28:31], s55 offen
    v_lshrrev_b32 v5, 4, v0
    v_lshrrev_b32 v6, 9, v0
    v_mul_u32_u24 v5, {WROW}, v5
    v_lshl_add_u32 v5, v6, 7, v5
    v_bfe_u32 v6, v0, 3, 1
    v_lshl_add_u32 v5, v6, 7, v5
    v_and_b32 v6, 7, v0
    v_lshl_add_u32 v5, v6, 2, v5
    s_mov_b32 s56, 0x05040100
    s_mov_b32 s57, 0x07060302""")
    A(f"""s_cmp_lg_u32 s3, 15
    s_cbranch_scc1 L_k1_noimg
    s_cmp_ge_u32 s50, 72
    s_cbranch_scc1 L_k1_noimg
    v_and_b32 v6, 15, v2
    v_lshrrev_b32 v7, 4, v2
    v_lshlrev_b32 v6, 3, v6
    s_cmp_ge_u32 s50, 64
    s_cbranch_scc1 L_k1_cimg
    s_bfe_u32 s58, s50, 0x10005
    s_bfe_u32 s59, s50, 0x20002
    s_and_b32 s60, s50, 3
    s_lshl_b32 s58, s58, 7
    s_lshl_b32 s59, s59, 1
    s_lshl_b32 s60, s60, 11
    s_add_u32 s58, s58, s59
    s_add_u32 s58, s58, s60
    v_lshl_add_u32 v6, v7, 13, v6
    s_bitcmp1_b32 s50, 4
    s_cbranch_scc1 L_k1_uimg""")
    for i in range(8): A(f"buffer_load_ushort v{64+i}, v6, s[24:27], s58 offen offset:{i*256}")
    A("s_branch L_k1_imgst\nL_k1_uimg:")
    for i in range(8): A(f"buffer_load_ushort v{64+i}, v6, s[32:35], s58 offen offset:{i*256}")
    A(f"""L_k1_imgst:
    s_and_b32 s58, s50, 31
    s_lshl_b32 s58, s58, 10
    s_lshr_b32 s59, s50, 5
    s_mul_i32 s59, s59, {WH}
    s_add_u32 s58, s58, s59
    s_waitcnt vmcnt(0)
    v_lshl_or_b32 v56, v65, 16, v64
    v_lshl_or_b32 v57, v67, 16, v66
    v_lshl_or_b32 v58, v69, 16, v68
    v_lshl_or_b32 v59, v71, 16, v70
    buffer_store_dwordx4 v[56:59], v3, s[44:47], s58 offen {MST}
    s_branch L_k1_noimg
L_k1_cimg:
    s_sub_u32 s61, s50, 64
    s_lshr_b32 s58, s61, 2
    s_and_b32 s59, s61, 3
    s_lshl_b32 s58, s58, 7
    s_lshl_b32 s59, s59, 1
    s_add_u32 s58, s58, s59
    s_add_u32 s58, s58, {256*256}
    v_lshl_add_u32 v6, v7, 10, v6""")
    for i in range(4): A(f"buffer_load_ushort v{56+i}, v6, s[24:27], s58 offen offset:{i*256}")
    A(f"""s_mov_b32 s59, {hex(LOG2E_NEG)}
    s_and_b32 s58, s61, 3
    s_lshl_b32 s58, s58, 9
    s_lshr_b32 s60, s61, 2
    s_mul_i32 s60, s60, {WH}
    s_add_u32 s58, s58, s60
    s_add_u32 s58, s58, {CIMG}
    v_lshlrev_b32 v7, 3, v2
    s_waitcnt vmcnt(0)""")
    for i in range(4): A(f"v_lshlrev_b32 v{56+i}, 16, v{56+i}\nv_mul_f32 v{56+i}, s59, v{56+i}")
    A(f"""v_cvt_pk_bf16_f32 v56, v56, v57
    v_cvt_pk_bf16_f32 v57, v58, v59
    buffer_store_dwordx2 v[56:57], v7, s[44:47], s58 offen {MST}
L_k1_noimg:""")
    for u in range(4):
        w=WL+4*u; base=(u&1)*woff(64)+(u>>1)*256
        A(f"""s_waitcnt vmcnt({3-u})
        v_perm_b32 v60, v{w+2}, v{w}, s56
        v_perm_b32 v61, v{w+2}, v{w}, s57
        v_perm_b32 v62, v{w+3}, v{w+1}, s56
        v_perm_b32 v63, v{w+3}, v{w+1}, s57
        ds_write_b32 v5, v60 offset:{base}
        ds_write_b32 v5, v61 offset:{base+32}
        ds_write_b32 v5, v62 offset:{base+64}
        ds_write_b32 v5, v63 offset:{base+96}""")
    A(f"""v_and_b32 v6, 15, v2
    v_lshrrev_b32 v7, 4, v2
    s_cmp_ge_u32 s51, 1568
    s_cbranch_scc1 L_k1_nobp""")
    qtranspose(XR,WL,XA)
    A(f"""L_k1_nobp:
    v_bfe_u32 v61, v2, 2, 2
    v_lshl_add_u32 v61, v7, 5, v61
    v_mul_u32_u24 v61, {WROW}, v61
    v_lshl_add_u32 v61, v7, 7, v61
    v_and_b32 v62, 3, v2
    v_lshl_add_u32 v5, v62, 3, v61
    s_waitcnt lgkmcnt(0)
    s_barrier""")
    stamp(1,0)
    A("""s_cmp_ge_u32 s51, 1568
    s_cbranch_scc1 L_k1_gdone""")
    seq=[(h,t,mat,ks) for h in range(2) for t in range(4) for mat in range(2) for ks in range(4)]
    def rd(n):
        h,t,mat,ks=seq[n]; o=woff(8*ks)+mat*256+h*128+t*32; b=BF+4*(n%8)
        A(f"ds_read_b64_tr_b16 v[{b}:{b+1}], v5 offset:{o}\nds_read_b64_tr_b16 v[{b+2}:{b+3}], v5 offset:{o+4*WROW}")
    def acc(h,t,mat): return ACC+((h*4+t)*2+mat)*4
    PF=6
    for n in range(PF): rd(n)
    for n in range(64):
        h,t,mat,ks=seq[n]; b=BF+4*(n%8); a=acc(h,t,mat)
        out=min(63-n,PF-1)
        A(f"s_waitcnt lgkmcnt({2*out})")
        A(f"v_mfma_f32_16x16x32_bf16 v[{a}:{a+3}], v[{XA+4*ks}:{XA+4*ks+3}], v[{b}:{b+3}], {'0' if ks==0 else f'v[{a}:{a+3}]'}")
        if n+PF<64: rd(n+PF)
    stamp(2,0)
    A(f"""v_mov_b32 v8, {hex(LOG2E_NEG)}
    v_mov_b32 v9, 0x7fff
    v_mov_b32 v10, 0xffff0000
    v_mov_b32 v11, 0
    v_lshlrev_b32 v12, 10, v7
    v_lshl_or_b32 v12, v6, 4, v12
    s_nop 3""")
    for h in range(2):
        for r in range(4):
            o=16+4*((h*4+r)%2); tt=24
            for t in range(4): A(f"v_mul_f32 v{tt+t}, v8, v{acc(h,t,0)+r}")
            A(f"v_max3_f32 v11, abs(v{tt}), abs(v{tt+1}), v11\nv_max3_f32 v11, abs(v{tt+2}), abs(v{tt+3}), v11")
            for t in range(4): A(f"v_exp_f32 v{tt+t}, v{tt+t}")
            A("s_nop 0")
            for t in range(4): A(f"v_cvt_pk_f16_f32 v{tt+t}, v{tt+t}, 0")
            for t in range(4): A(f"v_xad_u32 v{tt+4+t}, v{tt+t}, v9, v{acc(h,t,1)+r}")
            for t in range(4): A(f"v_bfi_b32 v{o+t}, v10, v{tt+4+t}, v{tt+t}")
            A(f"buffer_store_dwordx4 v[{o}:{o+3}], v12, s[{36+4*h}:{39+4*h}], s52 offen offset:{r*256} {ST}")
    A(f"""v_mov_b32 v13, 0x41600000
    v_mov_b32 v14, 1
    v_mov_b32 v15, {K1_OVF}
    v_cmp_nle_f32 vcc, v11, v13""")
    A(f"""s_mov_b64 exec, vcc
    ds_write_b32 v15, v14
    s_mov_b64 exec, -1
L_k1_gdone:
    s_waitcnt lgkmcnt(0)
    s_barrier
L_k1_flag:
    s_cmp_lg_u32 s3, 0
    s_cbranch_scc1 L_k1_fin
    v_mov_b32 v15, {K1_OVF}
    ds_read_b32 v14, v15
    s_lshl_b32 s58, s2, 2
    s_add_u32 s58, s58, {FLAGO}
    v_mov_b32 v15, 0
    s_mov_b64 exec, 1
    s_waitcnt lgkmcnt(0)
    buffer_store_dword v14, v15, s[44:47], s58 offen {MST}
    s_mov_b64 exec, -1
L_k1_fin:""")
    if STAMP:
        stamp(4,0)
        A("s_waitcnt vmcnt(0)")
        stamp(5,0)
        stamp_flush()
    if OPT.get('k1delay'):
        A(f"""s_memrealtime s[60:61]
        s_waitcnt lgkmcnt(0)
        s_add_u32 s62, s60, {int(OPT['k1delay'])*100}
L_k1_spin:
        s_memrealtime s[60:61]
        s_waitcnt lgkmcnt(0)
        s_cmp_lt_u32 s60, s62
        s_cbranch_scc1 L_k1_spin""")
    A("L_k1_end:\ns_endpgm")

def spin(T,tag):
    A(f"""s_load_dwordx2 s[60:61], s[0:1], 72
    s_waitcnt lgkmcnt(0)
    s_add_u32 s60, s60, {MISC_OFF+FLAGO+2048}
    s_addc_u32 s61, s61, 0
    s_load_dword s62, s[60:61], 0
    s_waitcnt lgkmcnt(0)
    s_add_u32 s62, s62, {int(float(T)*100)}
L_spin_{tag}:
    s_memrealtime s[60:61]
    s_waitcnt lgkmcnt(0)
    s_cmp_lt_u32 s60, s62
    s_cbranch_scc1 L_spin_{tag}""")

ECAP=3456; BCAP=96; WCAP=4*BCAP
K2_HIST=0; K2_FL=256; K2_C1=260; K2_C2=264; K2_AL=272; K2_CW=280; K2_CL=284; K2_TOT=288; K2_OH=320; K2_L1=1024; K2_L2=K2_L1+16*WCAP*4; K2_E=K2_L2+16*WCAP*4
K2_Z=K2_E+ECAP*32; K2_W=K2_Z-34816; K2_SRC=K2_W-8192; K2_LDS=K2_Z+32
assert K2_LDS<=163840 and K2_L1%256==0 and K2_L2%256==0 and K2_SRC-K2_E>=2048*32
O0=K2_L1//256; O1o=K2_L2//256; LST=O1o-O0

def k2():
    L=0; D=32; EE=48; ACC=64; GB=80; AO=96; S=100; LM,LS=102,103; G=104; EA,OA,SA,LMX=108,109,110,111
    WP,CPt=112,113
    cJ16,cG8,cG8O,cS,pL1,pLm,pLs,LANE=114,115,116,117,118,119,120,121
    L16,TID=122,123
    A(".p2align 8\nmain_kernel:")
    A(f"""s_cmp_ge_u32 s2, 256
    s_cbranch_scc1 L_k2_end""")
    if OPT.get('until0'): spin(OPT['until0'],'a')
    A(f"""s_load_dwordx2 s[18:19], s[0:1], 72
    s_load_dwordx2 s[4:5], s[0:1], 0
    s_load_dwordx2 s[6:7], s[0:1], 56
    v_mov_b32 v{TID}, v0
    v_lshrrev_b32 v1, 6, v0
    v_and_b32 v{LANE}, 63, v0
    v_readfirstlane_b32 s3, v1
    v_lshlrev_b32 v{L16}, 4, v{LANE}
    v_lshlrev_b32 v4, 4, v0
    s_bfe_u32 s40, s2, 0x10002
    s_lshr_b32 s41, s2, 3
    s_and_b32 s42, s2, 3
    s_lshl_b32 s42, s42, 5
    s_add_u32 s41, s41, s42
    s_lshl_b32 s45, s41, 15
    s_add_u32 s46, s45, 16384
    s_mov_b32 s10, 0x400000
    s_mov_b32 s11, 0x20000
    s_setprio 3
    s_waitcnt lgkmcnt(0)
    s_add_u32 s8, s18, {hex(REC_OFF)}
    s_addc_u32 s9, s19, 0""")
    R=0; RK=8; HA=16; XR=32
    A(f"""buffer_load_dwordx4 v[{R}:{R+3}], v4, s[8:11], s45 offen {NT}
    buffer_load_dwordx4 v[{R+4}:{R+7}], v4, s[8:11], s46 offen {NT}""")
    stamp_init(1,3,18,19)
    stamp(0,1)
    srd(24,18,19,MISC_OFF,MISC_SZ)
    A(f"""s_lshl_b32 s45, s3, 6
    s_add_u32 s45, s45, {FLAGO}
    v_lshlrev_b32 v25, 2, v{LANE}
    s_mov_b64 exec, 0xffff
    buffer_load_dword v24, v25, s[24:27], s45 offen
    s_mov_b64 exec, -1""")
    A(f"""s_add_u32 s42, s3, 4
    s_mul_i32 s42, s42, 52
    s_lshr_b32 s42, s42, 8
    s_add_u32 s43, s3, 5
    s_mul_i32 s43, s43, 52
    s_lshr_b32 s43, s43, 8
    s_sub_u32 s43, s43, s42
    s_add_u32 s43, s43, 12
    s_mul_i32 s44, s3, 12
    s_add_u32 s42, s42, s44
    s_mul_i32 s44, s41, {BS}
    s_add_u32 s44, s44, s42""")
    srd(20,4,5,0,N*256)
    A(f"""s_lshl_b32 s45, s41, 18
    s_add_u32 s12, s18, s45
    s_addc_u32 s13, s19, 0
    s_add_u32 s12, s12, {hex(EP_OFF)}
    s_addc_u32 s13, s13, 0
    s_mov_b32 s14, 0x40000
    s_mov_b32 s15, 0x20000
    s_mul_i32 s45, s40, {HS}
    s_add_u32 s45, s45, {WSB}
    s_add_u32 s16, s18, s45
    s_addc_u32 s17, s19, 0
    s_mov_b32 s18, {HS}
    s_mov_b32 s19, 0x20000""")
    srd(28,6,7,0,N*256)
    A(f"""v_subrev_u32 v28, 80, v{TID}
    v_and_b32 v29, 7, v28
    v_lshrrev_b32 v30, 4, v28
    v_and_b32 v28, 8, v28
    v_lshlrev_b32 v28, 1, v28
    v_mov_b32 v31, 0x3f80
    v_cmp_eq_u32 vcc, v29, v30
    v_lshlrev_b32 v31, v28, v31
    v_lshlrev_b32 v29, 2, v{TID}
    v_cndmask_b32 v31, 0, v31, vcc
    s_cmp_lg_u32 s3, 1
    s_cbranch_scc1 L_k2_noal
    s_mov_b32 s46, {2048|(3072<<16)}
    v_writelane_b32 v31, s46, 5
L_k2_noal:
    v_cmp_gt_u32 vcc, 216, v{TID}
    s_mov_b64 exec, vcc
    ds_write_b32 v29, v31
    s_cmp_lg_u32 s3, 0
    s_cbranch_scc1 L_k2_noz
    s_mov_b64 exec, 0xff
    v_add_u32 v29, {K2_Z}, v29
    ds_write_b32 v29, v31
L_k2_noz:
    s_mov_b64 exec, -1
    v_bfe_u32 v28, v{LANE}, 2, 2
    v_and_b32 v29, 3, v{LANE}
    v_lshlrev_b32 v28, 10, v28
    v_lshl_or_b32 v28, v29, 4, v28
    v_lshrrev_b32 v29, 4, v{LANE}
    v_lshl_or_b32 v28, v29, 6, v28
    s_cmp_eq_u32 s43, 13
    s_cselect_b32 s50, -1, 0x0fff0fff
    s_lshl_b32 s45, s44, 8
    s_lshl_b32 s47, s3, 11
    s_add_u32 m0, s47, {K2_W}
    s_mul_i32 s48, s40, {WH}
    s_add_u32 s47, s47, s48""")
    for i in range(16): A(f"v_mov_b32 v{XR+i}, 0")
    A(f"""s_waitcnt lgkmcnt(0)
    s_barrier
    s_cmp_lg_u32 s3, 15
    s_cbranch_scc1 L_k2_noc
    buffer_load_dwordx4 v{L16}, s[24:27], s47 offen offset:2048 lds
    buffer_load_dwordx4 v{L16}, s[24:27], s47 offen offset:3072 lds
L_k2_noc:
    buffer_load_dwordx4 v{L16}, s[24:27], s47 offen lds
    buffer_load_dwordx4 v{L16}, s[24:27], s47 offen offset:1024 lds
    v_mov_b32 v78, v28
    s_mov_b32 s84, s50
    s_mov_b32 s85, 0x0fff0fff
    s_mov_b32 s86, s45""")
    XL=int(OPT.get('xlate',16))
    def xload(tag, early):
        A(f"s_cmp_{'ge' if early else 'lt'}_u32 s3, {XL}\ns_cbranch_scc1 L_k2_x{tag}\ns_mov_b32 exec_lo, s84\ns_mov_b32 exec_hi, s84")
        for ks in range(4):
            A(f"buffer_load_dwordx4 v[{XR+4*ks}:{XR+4*ks+3}], v78, s[20:23], s86 offen offset:{ks*256} {NT}")
            if ks==0: A("s_mov_b32 exec_lo, s85\ns_mov_b32 exec_hi, s85")
        A(f"s_mov_b64 exec, -1\nL_k2_x{tag}:")
    xload('e',True)
    A(f"""    v_and_b32 v28, 15, v{LANE}
    v_lshrrev_b32 v29, 4, v{LANE}
    v_lshlrev_b32 v{cJ16}, 4, v28
    v_lshlrev_b32 v30, 3, v29
    v_add_u32 v{cG8}, {K2_E}, v30
    v_add_u32 v{cG8O}, {K2_OH}, v30
    v_and_b32 v30, 3, v{LANE}
    v_lshlrev_b32 v30, 3, v30
    v_add_u32 v{cS}, {K2_OH}, v30
    s_mul_i32 s47, s3, {WCAP*8}
    s_add_u32 s47, s47, {K2_L1}
    s_add_u32 s48, s47, 4
    v_lshl_add_u32 v{pLm}, v28, 3, s48
    v_and_b32 v30, -4, v{LANE}
    v_lshl_add_u32 v{pL1}, v30, 1, s47
    v_lshrrev_b32 v30, 4, v{TID}
    v_lshl_add_u32 v29, v30, 6, v28
    v_lshl_or_b32 v28, v28, 16, v28
    v_mov_b32 v31, 1
    v_mov_b32 v30, {OPT.get('srcmask','0x7fff00')}
    v_mov_b32 v25, 0
    v_mov_b32 v72, 0x0c0c0100
    v_mov_b32 v73, 0x202
    v_mov_b32 v74, 0x05040c00
    v_mov_b32 v75, {K2_SRC}
    s_mov_b32 s50, 0x80008000
    s_mov_b32 s51, 0x80008000
    v_mov_b32 v64, 0
    s_mov_b32 s68, 0x0c040c00
    s_mov_b32 s69, 0x0c020c01
    s_mov_b32 s70, 0x01000100
    s_mov_b32 s71, 0x03020302
    s_mov_b32 s72, 0x0c010c00
    s_cmp_lt_u32 s3, {XL}
    s_cbranch_scc1 L_k2_rw
    s_waitcnt vmcnt(2)
L_k2_rw:
    s_waitcnt vmcnt(6)""")
    stamp(1,1)
    VV=64; VI=65; AL=66; DD=68; PR=76
    def sig(off): A(f"s_mov_b64 exec, 1\nds_add_u32 v25, v31 offset:{off}\ns_mov_b64 exec, -1")
    def chk(off,tag):
        A(f"""L_k2_sp{tag}:
        ds_read_b32 v0, v25 offset:{off}
        s_waitcnt lgkmcnt(0)
        v_readfirstlane_b32 s45, v0
        s_cmp_lt_u32 s45, 16
        s_cbranch_scc1 L_k2_sp{tag}""")
    A(f"""s_mov_b64 exec, s[50:51]
    v_perm_b32 v{VV}, v{R+7}, v{R+3}, s68
    v_perm_b32 v{AL}, v{R+3}, v{R+3}, s69
    v_perm_b32 v{AL+1}, v{R+7}, v{R+7}, s69
    s_mov_b64 exec, -1
    v_add_u32_dpp v{VI}, v{VV}, v{VV} row_bcast:15 row_mask:0xa bank_mask:0xf""".replace(f"v_add_u32_dpp v{VI}",f"v_mov_b32 v{VI}, v{VV}\n"+"".join(f"v_cmp_le_i32 s[{52+2*j}:{53+2*j}], 0, v{R+j}\n" for j in range(8))+f"v_add_u32_dpp v{VI}").replace(f"v{VI}, v{VV}, v{VV} row",f"v{VI}, v{VI}, v{VI} row"))
    A(f"""s_mov_b64 exec, s[50:51]
    ds_add_rtn_u32 v{AL}, v25, v{AL} offset:{K2_AL+4}
    ds_add_rtn_u32 v{AL+1}, v25, v{AL+1} offset:{K2_AL+4}
    s_mov_b64 exec, -1
    v_add_u32_dpp v{VI}, v{VI}, v{VI} row_bcast:31 row_mask:0xc bank_mask:0xf
    s_mov_b64 exec, 0xffff
    ds_or_b32 v25, v24 offset:{K2_FL}
    s_mov_b64 exec, -1
    v_readlane_b32 s73, v{VI}, 63
    v_sub_u32 v{VI}, v{VI}, v{VV}
    s_lshr_b32 s74, s73, 16
    s_and_b32 s73, s73, 0xffff
    s_add_u32 s74, s74, s73
    v_mov_b32 v{VV}, s74
    s_mov_b64 exec, 1
    ds_add_rtn_u32 v{VV}, v25, v{VV} offset:{K2_AL}""")
    MK=52; O1=80
    order=[0,4,1,5,2,6,3,7]
    for j in order:
        Lb=A.label("k2h")
        if j&3==3: A(f"s_andn2_b64 s[{MK+2*j}:{MK+2*j+1}], s[{MK+2*j}:{MK+2*j+1}], s[50:51]")
        A(f"s_mov_b64 exec, s[{MK+2*j}:{MK+2*j+1}]")
        if j&3>=2: A(f"s_cbranch_execz {Lb}")
        A(f"""v_lshlrev_b32_sdwa v{HA+j}, 2, v{R+j} dst_sel:DWORD dst_unused:UNUSED_PAD src0_sel:DWORD src1_sel:BYTE_3
        v_bfe_u32 v{56+j}, v{R+j}, 24, 2
        ds_add_rtn_u32 v{RK+j}, v{HA+j}, v31 offset:{K2_HIST}
        v_and_b32 v{O1+2*j}, v30, v{R+j}
        v_mad_u32_u24 v{56+j}, v{56+j}, v73, v72""")
        if j&3>=2: A(f"{Lb}:")
    A("s_mov_b64 exec, -1")
    for u in range(2):
        h=R+3+4*u
        A(f"v_lshl_add_u32 v{PR+u}, v{h}, 8, v{h}\nv_perm_b32 v{PR+u}, v{PR+u}, v{PR+u}, s72")
    A(f"""s_waitcnt vmcnt(4) lgkmcnt(0)
    v_readfirstlane_b32 s75, v{VV}""")
    sig(K2_CW)
    A(f"""s_add_u32 s45, s75, s73
    s_lshl_b32 s45, s45, 16
    s_or_b32 s45, s45, s75
    v_add_u32 v{VI}, s45, v{VI}
    v_pk_sub_u16 v{DD+1}, v{AL}, v{PR}
    v_pk_sub_u16 v{DD+3}, v{AL+1}, v{PR+1}
    v_perm_b32 v{DD}, v{VI}, v{VI}, s70
    v_perm_b32 v{DD+2}, v{VI}, v{VI}, s71""")
    for k in (1,3,0,2): A(f"v_mov_b32_dpp v{DD+k}, v{DD+k} row_newbcast:15 row_mask:0xf bank_mask:0xf")
    for k in (1,3,0,2): A(f"v_pk_add_u16 v{DD+k}, v{DD+k}, v28")
    for j in order:
        Lb=A.label("k2s"); u=j>>2
        A(f"s_mov_b64 exec, s[{MK+2*j}:{MK+2*j+1}]")
        if j&3>=2: A(f"s_cbranch_execz {Lb}")
        A(f"""v_perm_b32 v24, v{DD+2*u+1}, v{DD+2*u}, v{56+j}
        v_mad_u32_u24 v{RK+j}, v{HA+j}, 24, v{RK+j}""")
        if j&3: A(f"v_add_u32 v24, {16*(j&3)}, v24")
        A(f"v_lshlrev_b32 v{RK+j}, 3, v{RK+j}")
        if j: A(f"v_add_u32 v{HA+j}, {16*(j&3)+4096*u}, v29")
        A(f"""v_perm_b32 v{O1+2*j+1}, v24, v{R+j}, v74
        v_lshl_add_u32 v24, v24, 1, v75
        ds_write_b64 v{RK+j}, v[{O1+2*j}:{O1+2*j+1}] offset:{K2_L1}
        ds_write_b16 v24, v{HA+j if j else 29}""")
        if j&3>=2: A(f"{Lb}:")
    SR=4
    A(f"""s_mov_b64 exec, -1
    v_and_b32 v27, -2, v{LANE}
    s_lshl_b32 s45, s75, 1
    s_add_u32 s45, s45, {K2_SRC}
    v_add_u32 v26, s45, v27
    v_and_b32 v28, 1, v{LANE}
    v_lshlrev_b32 v28, 4, v28
    v_lshrrev_b32 v29, 1, v{LANE}
    s_lshl_b32 s45, s75, 5
    s_add_u32 m0, s45, {K2_E}""")
    for i in range(4): A(f"ds_read_u16 v{SR+i}, v26 offset:{i*64}")
    A("s_mov_b32 s46, s74\ns_waitcnt lgkmcnt(0)")
    sig(K2_CL)
    for i in range(4):
        A(f"""v_cmp_gt_i32 vcc, s46, v29
        v_lshl_add_u32 v{SR+i}, v{SR+i}, 5, v28
        s_cbranch_vccz L_k2_d0done
        s_mov_b64 exec, vcc
        buffer_load_dwordx4 v{SR+i}, s[12:15], 0 offen {NT} lds
        s_mov_b64 exec, -1
        s_sub_u32 s46, s46, 32
        s_add_u32 m0, m0, 1024""")
    A(f"""v_add_u32 v26, 256, v26
L_k2_d0more:
    v_cmp_gt_i32 vcc, s46, v29
    s_cbranch_vccz L_k2_d0done
    ds_read_u16 v{SR}, v26
    v_add_u32 v26, 64, v26
    s_waitcnt lgkmcnt(0)
    v_lshl_add_u32 v{SR}, v{SR}, 5, v28
    s_mov_b64 exec, vcc
    buffer_load_dwordx4 v{SR}, s[12:15], 0 offen {NT} lds
    s_mov_b64 exec, -1
    s_sub_u32 s46, s46, 32
    s_add_u32 m0, m0, 1024
    s_branch L_k2_d0more
L_k2_d0done:
    s_setprio {OPT.get('gp',1)}""")
    stamp(2,1)
    XA=96
    A(f"""v_add_u32 v{WP}, {K2_W}, v{L16}
    v_lshrrev_b32 v{CPt}, 1, v{L16}
    v_add_u32 v{CPt}, {K2_W+CIMG}, v{CPt}
    s_cmp_gt_u32 s74, 64
    s_cbranch_scc1 L_k2_x3
    s_waitcnt vmcnt(0)
L_k2_x3:
    s_waitcnt vmcnt(3)""")
    chk(K2_CW,'w')
    if OPT.get('fine'): stamp(6,1)
    for t in range(4): A(f"ds_read_b64 v[{GB+4*t}:{GB+4*t+1}], v{CPt} offset:{t*512}")
    qtranspose(XR,EE,XA)
    BFR=32
    seq=[(mat,t,ks) for mat in range(2) for t in range(4) for ks in range(4)]
    def rd(n):
        mat,t,ks=seq[n]; b=BFR+4*(n%8)
        A(f"ds_read_b128 v[{b}:{b+3}], v{WP} offset:{n*1024}")
    PF=6
    ULATE=OPT.get('ulate','1')=='1'
    def cvtA():
        A(f"s_mov_b32 s48, {hex(LOG2E_NEG)}\ns_mov_b32 s49, {hex(LOG2E_NEG)}" + ("" if ULATE else "\ns_nop 6"))
        for tt in range(4):
            for r in (0,2): A(f"v_pk_mul_f32 v[{ACC+4*tt+r}:{ACC+4*tt+r+1}], s[48:49], v[{ACC+4*tt+r}:{ACC+4*tt+r+1}]")
            A(f"v_cvt_pk_bf16_f32 v{GB+4*tt+2}, v{ACC+4*tt}, v{ACC+4*tt+1}\nv_cvt_pk_bf16_f32 v{GB+4*tt+3}, v{ACC+4*tt+2}, v{ACC+4*tt+3}")
    def gpart(lo,hi):
        for n in range(lo,lo+PF): rd(n)
        for n in range(lo,hi):
            mat,t,ks=seq[n]; b=BFR+4*(n%8); a=ACC+4*t
            if n==16 and lo==0: cvtA()
            if (n-lo)%2==0: A(f"s_waitcnt lgkmcnt({max(0,min(hi-1-n,PF-1)-1)})")
            A(f"v_mfma_f32_16x16x32_bf16 v[{a}:{a+3}], v[{XA+4*ks}:{XA+4*ks+3}], v[{b}:{b+3}], {'0' if ks==0 else f'v[{a}:{a+3}]'}")
            if n+PF<hi: rd(n+PF)
    gpart(0,16 if ULATE else 32)
    if OPT.get('fine'): stamp(7,1)
    A(f"""v_lshlrev_b32 v24, 2, v{LANE}
    v_lshl_add_u32 v26, v24, 1, s47
    s_lshl_b32 s45, s3, 6
    s_add_u32 s45, s45, {K2_SRC}
    v_add_u32 v27, s45, v27""")
    A(f"s_setprio {OPT.get('cp',2)}")
    chk(K2_CL,'l')
    if OPT.get('fine'): stamp(5,1)
    A("s_lshl_b32 s45, s3, 2")
    H0=0; FLr=1; ALr=2; SR=4; CP=8; S1=124; S2=126
    A(f"""ds_read_b32 v{H0}, v24 offset:{K2_HIST}
    ds_read_b32 v{FLr}, v25 offset:{K2_FL}
    ds_read_b64 v[{ALr}:{ALr+1}], v25 offset:{K2_AL}""")
    for b in range(1,4):
        A(f"ds_read_b64 v[{CP+4*b}:{CP+4*b+1}], v26 offset:{b*BCAP*8}")
    A(f"""s_waitcnt lgkmcnt(3)
    v_cmp_lt_u32 vcc, {BCAP}, v{H0}
    v_readfirstlane_b32 s70, v{FLr}
    v_readfirstlane_b32 s76, v{ALr}
    v_readfirstlane_b32 s78, v{ALr+1}""")
    for i in range(4):
        A(f"v_readlane_b32 s{72+i}, v{H0}, s45\ns_add_u32 s45, s45, 1")
    A(f"""s_cmp_lg_u64 vcc, 0
    s_cbranch_scc1 L_k2_fallback
    s_cmp_lg_u32 s70, 0
    s_cbranch_scc1 L_k2_fallback
    s_and_b32 s77, s78, 0xffff
    s_lshr_b32 s78, s78, 16
    s_sub_u32 s77, s77, 2048
    s_sub_u32 s78, s78, 3072
    s_max_u32 s70, s77, s78
    s_cmp_gt_u32 s70, 1024
    s_cbranch_scc1 L_k2_fallback
    s_cmp_gt_u32 s76, 2048
    s_cbranch_scc1 L_k2_fallback
    s_add_u32 s79, s76, s77
    s_add_u32 s70, s79, s78
    s_cmp_gt_u32 s70, {ECAP-32}
    s_cbranch_scc1 L_k2_fallback""")
    def dma(cnt, n, base, SR, tag):
        A(f"s_lshl_b32 s45, s3, 5")
        if base is None: A(f"s_lshl_b32 s46, s3, 10\ns_add_u32 m0, s46, {K2_E}")
        else: A(f"s_add_u32 s46, s45, s{base}\ns_lshl_b32 s46, s46, 5\ns_add_u32 m0, s46, {K2_E}")
        for i in range(cnt):
            A(f"""s_cmp_ge_u32 s45, s{n}
            s_cbranch_scc1 L_dma_{tag}
            buffer_load_dwordx4 v{SR+i}, s[12:15], 0 offen {NT} lds""")
            if i<cnt-1: A("s_add_u32 s45, s45, 512\ns_add_u32 m0, m0, 16384")
        A(f"L_dma_{tag}:")
    A("s_max_u32 s45, s73, s74\ns_max_u32 s45, s45, s75\ns_cmp_le_u32 s45, 64\ns_cbranch_scc1 L_k2_nolong")
    for b in range(1,4):
        A(f"ds_read_b64 v[{CP+4*b+2}:{CP+4*b+3}], v26 offset:{b*BCAP*8+512}")
    A("L_k2_nolong:")
    for i in range(2): A(f"ds_read_u16 v{S1+i}, v27 offset:{4096+i*1024}\nds_read_u16 v{S2+i}, v27 offset:{6144+i*1024}")
    A(f"""s_mov_b32 s68, s72
    v_add_u32 v29, 64, v{LANE}
    s_sub_u32 s48, s76, 2048
    s_sub_u32 s49, s79, 3072
    s_lshl_b32 s48, s48, 16
    s_lshl_b32 s49, s49, 16
    s_waitcnt lgkmcnt(0)""")
    for i in range(4): A(f"v_lshl_add_u32 v{S1+i}, v{S1+i}, 5, v28")
    for b in range(1,4):
        Lb=A.label("cp")
        if b>=2: A(f"v_add_u32 v{CP+4*b+1}, s{46+b}, v{CP+4*b+1}")
        A(f"""v_lshl_add_u32 v24, s68, 3, v26
        s_add_u32 s68, s68, s{72+b}
        ds_write_b64 v24, v[{CP+4*b}:{CP+4*b+1}]
        s_cmp_le_u32 s{72+b}, 64
        s_cbranch_scc1 {Lb}""")
        if b>=2: A(f"v_add_u32 v{CP+4*b+3}, s{46+b}, v{CP+4*b+3}")
        A(f"""v_cmp_gt_u32 vcc, s{72+b}, v29
        s_mov_b64 exec, vcc
        ds_write_b64 v24, v[{CP+4*b+2}:{CP+4*b+3}] offset:512
        s_mov_b64 exec, -1
{Lb}:""")
    A(f"""s_sub_u32 s46, 0, s68
    s_and_b32 s46, s46, 31
    v_cmp_gt_u32 vcc, s46, v{LANE}
    v_lshl_add_u32 v24, s68, 3, v26
    v_mov_b32 v30, {N<<8}
    v_mov_b32 v31, {hex((ECAP<<16)|16)}
    s_mov_b64 exec, vcc
    ds_write_b64 v24, v[30:31]
    s_mov_b64 exec, -1
    s_add_u32 s69, s72, s73
    s_add_u32 s80, s69, s74
    s_lshr_b32 s69, s69, 4
    s_lshr_b32 s80, s80, 4
    s_add_u32 s68, s68, 15
    s_lshr_b32 s68, s68, 4""")
    XA=96
    def gathers(Gr, q):
        for i in range(4):
            A(f"v_or_b32_dpp v{G+2+(i&1)}, v{Gr}, v{cJ16} row_newbcast:{4*i} row_mask:0xf bank_mask:0xf")
            A(f"buffer_load_dwordx4 v[{L+16*q+4*i}:{L+16*q+4*i+3}], v{G+2+(i&1)}, s[16:19], 0 offen {hint('gld')}")
    def aread(lm):
        A(f"""v_mad_u32_u16 v{EA}, v{lm}, 32, v{cG8} op_sel:[1,0,0,0]
        v_mad_u32_u16 v{OA}, v{lm}, 32, v{cG8O}
        ds_read_b64 v[{AO}:{AO+1}], v{EA}
        ds_read_b64 v[{AO+2}:{AO+3}], v{OA}""")
    if ULATE:
        cvtA(); gpart(16,32)
    A(f"""ds_read_b64 v[{EE}:{EE+1}], v{pL1}
    ds_read_b64 v[{G}:{G+1}], v{pL1} offset:128
    ds_read_b32 v{LM}, v{pLm}
    ds_read_b32 v{WP}, v{pLm} offset:128
    v_mov_b32 v{TID}, {K2_C1}
    v_mov_b32 v{L16}, 1
    s_lshl_b32 s45, s3, 5
    s_cmp_lt_u32 s45, s77
    s_cselect_b32 s71, 1, 0
    s_waitcnt vmcnt(0) lgkmcnt(0)""")
    EV=OPT.get('ev','1')=='1'
    def arrive(k):
        A(f"""s_mov_b64 exec, 1
        ds_add_u32 v{TID}, v{L16} offset:{4*k}
        s_mov_b64 exec, -1""")
        if EV and k<2: A(f"s_setprio {2-k}")
    def check(k,tag):
        A(f"""L_k2_spin{tag}:
        ds_read_b32 v{EA}, v{TID} offset:{4*k}
        s_waitcnt lgkmcnt(0)
        v_readfirstlane_b32 s45, v{EA}
        s_cmp_eq_u32 s45, 16
        s_cbranch_scc1 L_k2_ok{tag}
        s_sleep 1
        s_branch L_k2_spin{tag}
L_k2_ok{tag}:""")
    def ensure2(tag):
        A(f"s_cmp_eq_u32 s81, -1\ns_cbranch_scc1 L_k2_iss{tag}")
        dma(2,78,79,S2,'e'+tag)
        A(f"""s_mov_b32 s81, -1
L_k2_iss{tag}:
        s_cmp_eq_u32 s82, -1
        s_cbranch_scc1 L_k2_arr{tag}
        s_mov_b32 s82, -1
        s_waitcnt vmcnt(0)""")
        arrive(1)
        A(f"L_k2_arr{tag}:")
        check(1,'c'+tag)
    REL=OPT.get('rel','0')=='1'; EV=OPT.get('ev','1')=='1'
    TP,TD,TR=111,113,124
    if REL:
        A(f"""s_and_b32 s45, s3, 3
        s_lshl_b32 s45, s45, 2
        s_add_u32 s45, s45, {K2_TOT}
        v_mov_b32 v{TP}, s45
        v_mov_b32 v{TD}, s68
        s_mov_b64 exec, 1
        ds_add_u32 v{TP}, v{TD}
        s_mov_b64 exec, -1
        s_waitcnt lgkmcnt(0)
        v_mov_b32 v{TD}, -2""")
    A(f"v_mad_u32_u16 v{SA}, v{EE+1}, 32, v{cS}\nv_mad_u32_u16 v{LS}, v{G+1}, 32, v{cS}\ns_setprio 3")
    arrive(2)
    GL=OPT.get('glate','0')
    if GL=='0': gathers(EE,0); gathers(G,1)
    if GL=='1': gathers(EE,0)
    stamp(3,1)
    check(2,'w')
    if GL=='1': gathers(G,1)
    if GL=='2': gathers(EE,0); gathers(G,1)
    if OPT.get('untilL'): spin(OPT['untilL'],'c')
    stamp(4,1)
    if STAMP: A('s_memtime s[100:101]\ns_waitcnt lgkmcnt(0)')
    if OPT.get('tl'):
        A('s_mov_b32 s90, s94\ns_mov_b32 s60, s100')
        for i in range(1,8): A(f's_mov_b32 s{90+i}, 0')
    if OPT.get('reg'):
        A('s_mov_b32 s92, s68\ns_mov_b32 s93, s94\ns_getreg_b32 s91, hwreg(HW_REG_HW_ID)\ns_getreg_b32 s45, hwreg(HW_REG_XCC_ID)\ns_and_b32 s45, s45, 15\ns_and_b32 s91, s91, 0xffffff\ns_lshl_b32 s45, s45, 24\ns_or_b32 s91, s91, s45')
    dma(2,77,76,S1,'p1')
    A(f"""s_max_u32 s81, s69, 2
    s_add_u32 s82, s81, 1
    s_mov_b32 s83, 3
    s_cmp_gt_u32 s69, 3
    s_cbranch_scc1 L_k2_nb0
    s_mov_b32 s83, 0
    s_waitcnt vmcnt(0)""")
    arrive(0)
    A("s_cmp_gt_u32 s69, 1\ns_cbranch_scc1 L_k2_nb0")
    check(0,'p')
    A("s_cmp_gt_u32 s80, 1\ns_cbranch_scc1 L_k2_nb0")
    ensure2('p')
    A("L_k2_nb0:")
    def gate():
        if OPT.get('nomfma'): return
        for t in range(4): A(f"v_mfma_f32_16x16x32_bf16 v[{D+4*t}:{D+4*t+3}], v[{AO}:{AO+3}], v[{GB+4*t}:{GB+4*t+3}], 0")
    aread(LM)
    A("s_mov_b32 s70, 2\ns_waitcnt lgkmcnt(0)")
    gate()
    aread(WP)
    if not EV: A("s_setprio 2")
    A("""s_cmp_eq_u32 s68, 0
    s_cbranch_scc1 L_k2_done""")
    cold=[]
    def rare(cond, tag, body):
        A(f"s_cmp_{cond[0]} {cond[1]}, {cond[2]}\ns_cbranch_scc1 L_k2_c{tag}\nL_k2_b{tag}:")
        cold.append((tag,body))
    def group(q):
        Lq=L+16*q; o=128*q; SQ=(SA,LS)[q]
        A(f"""ds_read_b64_tr_b16 v[{S}:{S+1}], v{SQ}
        ds_read_b64 v[{G}:{G+1}], v{pL1} offset:{256+o}
        ds_read_b32 v{LM}, v{pLm} offset:{256+o}""")
        if q==1: A(f"v_add_u32 v{pL1}, 256, v{pL1}\nv_add_u32 v{pLm}, 256, v{pLm}")
        for t in range(4):
            for r in range(4): A(f"v_exp_f32{X64} v{EE+4*r+t}, v{D+4*t+r}")
        if OPT.get('tl') and q==0: A("s_memrealtime s[88:89]\ns_memtime s[52:53]")
        A("s_waitcnt lgkmcnt(0)")
        if OPT.get('tl') and q==0: A("s_lshr_b32 s45, s70, 1\ns_min_u32 s45, s45, 7\ns_mov_b32 m0, s45\ns_nop 0\ns_movreld_b32 s90, s88\ns_movreld_b32 s60, s52")
        if 'g' in OPT.get('al',''): A('.p2align 3')
        if 'G' in OPT.get('al',''): A('.p2align 3\ns_nop 0')
        gate()
        rare(('eq_u32','s70','s69'),f'k0{q}',lambda q=q: check(0,q))
        rare(('eq_u32','s70','s80'),f'k1{q}',lambda q=q: ensure2(str(q)))
        aread(LM)
        A(f"v_mad_u32_u16 v{SQ}, v{G+1}, 32, v{cS}")
        def w(q=q):
            A(f"s_cmp_gt_u32 s70, s68\ns_cbranch_scc1 L_k2_w0{q}\ns_waitcnt vmcnt(5)\ns_branch L_k2_wd{q}\nL_k2_w0{q}:\ns_waitcnt vmcnt(0)")
        A(f"s_sub_u32 s45, s70, s71")
        rare(('gt_u32','s45','s87'),f'w{q}',w)
        A(f"s_waitcnt vmcnt(4)\nL_k2_wd{q}:")
        if q==1: rare(('eq_u32','s70','s83'),'a0',lambda: arrive(0))
        def a1():
            A("s_mov_b32 s82, -1"); arrive(1)
        rare(('eq_u32','s70','s82'),f'a1{q}',a1)
        AL8=OPT.get('al','')
        def al(k):
            if k in AL8: A('.p2align 3')
            if k.upper() in AL8: A('.p2align 3\ns_nop 0')
        al('f')
        order=[(r,t) for tt in (0,2) for r in range(4) for t in (tt,tt+1)]
        lag=int(OPT.get('lag','2'))
        for i in range(16+lag):
            if i<16: r,t=order[i]; A(f"v_fma_mix_f32 v{EE+4*r+t}, v{Lq+4*r+t}, v{EE+4*r+t}, 1.0 op_sel_hi:[1,0,0]")
            if i>=lag: r,t=order[i-lag]; A(f"v_rcp_f32{R64} v{EE+4*r+t}, v{EE+4*r+t}")
        al('p')
        for t in (0,2):
            for r in range(4): A(f"v_pk_mul_f32 v[{EE+4*r+t}:{EE+4*r+t+1}], v[{EE+4*r+t}:{EE+4*r+t+1}], v[{Lq+4*r+t}:{Lq+4*r+t+1}]")
        for t,p in [(0,0),(2,0),(1,0),(3,0),(0,1),(1,1),(2,1),(3,1)]:
            A(f"v_cvt_pk_bf16_f32 v{EE+2*t+p}, v{EE+8*p+t}, v{EE+8*p+4+t}")
        def i2(q=q):
            A("s_mov_b32 s81, -1"); dma(2,78,79,S2,f'i{q}')
        rare(('eq_u32','s70','s81'),f'i{q}',i2)
        for t in range(4): A(f"v_mfma_f32_16x16x16_bf16 v[{ACC+4*t}:{ACC+4*t+3}], v[{S}:{S+1}], v[{EE+2*t}:{EE+2*t+1}], v[{ACC+4*t}:{ACC+4*t+3}]")
        def tail(q=q):
            A(f"""s_cmp_lg_u32 s82, -1
            s_cbranch_scc1 L_k2_t{q}
            s_setprio 0
L_k2_t{q}:
            s_cmp_lt_u32 s70, s68
            s_cbranch_scc1 L_k2_bt{q}
            s_cmp_gt_u32 s70, s68
            s_cbranch_scc1 L_k2_done
            s_branch L_k2_ng{q}""")
        rare(('ge_i32','s70','s86'),f't{q}',tail)
        gathers(G,q)
        A(f"L_k2_ng{q}:\ns_add_u32 s70, s70, 1")
    A(f"""s_add_u32 s71, s71, 2
    s_sub_u32 s87, s68, s71
    s_max_i32 s87, s87, 0
    s_cmp_lt_u32 s68, s71
    s_cselect_b32 s71, 0x40000000, s71
    s_sub_u32 s86, s68, {int(OPT.get('evt',4))-2}""")
    A(".p2align 6")
    for i in range(int(OPT.get('shift',0))): A("s_nop 0")
    A("L_k2_loop:")
    group(0); group(1)
    A("s_branch L_k2_loop")
    for tag,body in cold:
        A(f"L_k2_c{tag}:"); body(); A(f"s_branch L_k2_b{tag}")
    A("L_k2_done:\ns_waitcnt vmcnt(0)")
    if not OPT.get('tl') and not OPT.get('fine'): stamp(5,1)
    if STAMP and not OPT.get('tl') and not OPT.get('fine'): A('s_memtime s[88:89]\ns_waitcnt lgkmcnt(0)\ns_sub_u32 s97, s88, s100')
    A(f"""v_lshrrev_b32 v0, 4, v{LANE}
    v_lshlrev_b32 v0, 2, v0
    v_add_u32 v1, s44, v0
    v_lshlrev_b32 v1, 8, v1
    v_lshrrev_b32 v2, 1, v{cJ16}
    s_lshl_b32 s45, s40, 7
    v_add3_u32 v1, v1, v2, s45
    v_mov_b32 v3, {hex(LOG2E_NEG)}
    v_mov_b32 v4, 0x80000000""")
    A("v_mov_b32 v2, v3")
    for rp in (0,2):
        for t in range(4): A(f"v_pk_mul_f32 v[{8+2*t}:{9+2*t}], v[2:3], v[{ACC+4*t+rp}:{ACC+4*t+rp+1}]")
        for i in range(8): A(f"v_exp_f32 v{8+i}, v{8+i}")
        A(f"v_add_u32 v5, {rp}, v0\nv_cmp_gt_u32 vcc, s43, v5\nv_add_u32 v5, {rp+1}, v0\nv_cmp_gt_u32 s[46:47], s43, v5")
        for t in range(4): A(f"v_pk_add_f32 v[{8+2*t}:{9+2*t}], v[{8+2*t}:{9+2*t}], 1.0 op_sel_hi:[1,0]")
        for i in range(8): A(f"v_rcp_f32 v{8+i}, v{8+i}")
        A(f"v_cndmask_b32 v{16+rp}, v4, v1, vcc\nv_cndmask_b32 v{17+rp}, v4, v1, s[46:47]")
        for t in range(4): A(f"v_pk_mul_f32 v[{8+2*t}:{9+2*t}], v[{8+2*t}:{9+2*t}], v[{ACC+4*t+rp}:{ACC+4*t+rp+1}]")
        for k in range(2):
            r=rp+k
            A(f"""v_cvt_pk_bf16_f32 v{20+2*r}, v{8+k}, v{10+k}
            v_cvt_pk_bf16_f32 v{21+2*r}, v{12+k}, v{14+k}
            buffer_store_dwordx2 v[{20+2*r}:{21+2*r}], v{16+r}, s[28:31], 0 offen offset:{r*256} {OST}""")
    if STAMP:
        A("s_waitcnt vmcnt(0)")
        if not OPT.get('tl') and not OPT.get('fine'): stamp(6,1)
        stamp_flush(1)
    if OPT.get('until'): spin(OPT['until'],'b')
    A("s_endpgm")
    fallback()
    A("L_k2_end:\ns_endpgm")

def fallback():
    LANE=121; TID=123
    A(f"""L_k2_fallback:
    s_mov_b64 exec, -1
    s_load_dwordx2 s[50:51], s[0:1], 8
    s_load_dwordx4 s[52:55], s[0:1], 16
    s_load_dwordx4 s[56:59], s[0:1], 32
    s_load_dwordx2 s[60:61], s[0:1], 48
    s_waitcnt vmcnt(0) lgkmcnt(0)
    s_barrier""")
    srd(8,50,51,0,E*32)
    srd(12,52,53,0,E*4)
    srd(16,54,55,0,E*4)
    srd(24,56,57,0,128*256)
    srd(32,58,59,0,128*256)
    srd(36,60,61,0,272*256)
    A(f"""v_mov_b32 v0, 0
    v_mov_b32 v1, 0
    v_mov_b32 v2, 0
    v_mov_b32 v3, 0
    v_lshlrev_b32 v4, 4, v{TID}
    ds_write_b128 v4, v[0:3]
    ds_write_b128 v4, v[0:3] offset:16384
    ds_write_b128 v4, v[0:3] offset:32768
    ds_write_b128 v4, v[0:3] offset:49152
    s_lshl_b32 s45, s40, 7
    v_lshl_add_u32 v5, v{LANE}, 1, s45
    v_lshlrev_b32 v6, 2, v{LANE}
    s_mul_i32 s46, s41, {BS}
    s_lshl_b32 s47, s3, 6
    s_waitcnt lgkmcnt(0)
    s_barrier
L_fb_chunk:
    s_cmp_ge_u32 s47, {E}
    s_cbranch_scc1 L_fb_fin
    s_lshl_b32 s48, s47, 2
    buffer_load_dword v7, v6, s[16:19], s48 offen
    buffer_load_dword v8, v6, s[12:15], s48 offen
    s_waitcnt vmcnt(0)
    v_subrev_u32 v9, s46, v7
    v_cmp_gt_u32 s[62:63], v10, v9
    """.replace("v_cmp_gt_u32 s[62:63], v10, v9",f"v_mov_b32 v10, {BS}\nv_cmp_gt_u32 s[62:63], v10, v9")+f"""
L_fb_edge:
    s_cmp_eq_u64 s[62:63], 0
    s_cbranch_scc1 L_fb_next
    s_ff1_i32_b64 s49, s[62:63]
    s_bitset0_b64 s[62:63], s49
    v_readlane_b32 s64, v7, s49
    v_readlane_b32 s65, v8, s49
    s_add_u32 s66, s47, s49
    s_lshl_b32 s67, s64, 8
    s_lshl_b32 s68, s65, 8
    s_lshl_b32 s66, s66, 5
    s_nop 2
    buffer_load_dword v11, v6, s[20:23], s67 offen
    buffer_load_dword v12, v6, s[20:23], s68 offen
    v_and_b32 v14, 28, v6
    buffer_load_dword v13, v14, s[8:11], s66 offen
    v_mov_b32 v15, 0
    v_mov_b32 v16, 0
    s_mov_b32 s69, 0
    s_waitcnt vmcnt(0)
L_fb_k:
    s_lshl_b32 s70, s69, 9
    s_add_u32 s71, s70, {128*256}
    buffer_load_ushort v17, v5, s[36:39], s70 offen
    buffer_load_ushort v18, v5, s[36:39], s70 offen offset:256
    buffer_load_ushort v19, v5, s[36:39], s71 offen
    buffer_load_ushort v20, v5, s[36:39], s71 offen offset:256
    buffer_load_ushort v21, v5, s[32:35], s70 offen
    buffer_load_ushort v22, v5, s[32:35], s70 offen offset:256
    v_readlane_b32 s72, v11, s69
    v_readlane_b32 s73, v12, s69
    s_lshl_b32 s74, s72, 16
    s_and_b32 s72, s72, 0xffff0000
    s_lshl_b32 s75, s73, 16
    s_and_b32 s73, s73, 0xffff0000
    s_waitcnt vmcnt(0)""")
    for i in range(17,23): A(f"v_lshlrev_b32 v{i}, 16, v{i}")
    A(f"""v_fmac_f32 v15, s74, v17
    v_fmac_f32 v15, s72, v18
    v_fmac_f32 v15, s75, v19
    v_fmac_f32 v15, s73, v20
    v_fmac_f32 v16, s75, v21
    v_fmac_f32 v16, s73, v22
    s_add_u32 s69, s69, 1
    s_cmp_lt_u32 s69, 64
    s_cbranch_scc1 L_fb_k
    s_mov_b32 s69, 0
L_fb_ke:
    s_lshl_b32 s70, s69, 9
    s_add_u32 s70, s70, {256*256}
    buffer_load_ushort v17, v5, s[36:39], s70 offen
    buffer_load_ushort v18, v5, s[36:39], s70 offen offset:256
    v_readlane_b32 s72, v13, s69
    s_lshl_b32 s74, s72, 16
    s_and_b32 s72, s72, 0xffff0000
    s_waitcnt vmcnt(0)
    v_lshlrev_b32 v17, 16, v17
    v_lshlrev_b32 v18, 16, v18
    v_fmac_f32 v15, s74, v17
    v_fmac_f32 v15, s72, v18
    s_add_u32 s69, s69, 1
    s_cmp_lt_u32 s69, 8
    s_cbranch_scc1 L_fb_ke
    v_mul_f32 v15, {hex(LOG2E_NEG)}, v15
    v_exp_f32 v15, v15
    s_sub_u32 s64, s64, s46
    s_lshl_b32 s64, s64, 8
    v_add_f32 v15, 1.0, v15
    v_rcp_f32 v15, v15
    v_add_u32 v17, s64, v6
    v_mul_f32 v15, v15, v16
    ds_add_f32 v17, v15
    s_branch L_fb_edge
L_fb_next:
    s_add_u32 s47, s47, 1024
    s_branch L_fb_chunk
L_fb_fin:
    s_waitcnt lgkmcnt(0)
    s_barrier
    s_mov_b32 s47, s3
L_fb_node:
    s_cmp_ge_u32 s47, {BS}
    s_cbranch_scc1 L_k2_end
    s_add_u32 s64, s46, s47
    s_lshl_b32 s67, s64, 8
    buffer_load_dword v11, v6, s[20:23], s67 offen
    s_lshl_b32 s48, s47, 8
    v_add_u32 v17, s48, v6
    ds_read_b32 v15, v17
    s_mov_b32 s69, 0
    s_waitcnt vmcnt(0) lgkmcnt(0)
L_fb_ku:
    s_lshl_b32 s70, s69, 9
    buffer_load_ushort v17, v5, s[24:27], s70 offen
    buffer_load_ushort v18, v5, s[24:27], s70 offen offset:256
    v_readlane_b32 s72, v11, s69
    s_lshl_b32 s74, s72, 16
    s_and_b32 s72, s72, 0xffff0000
    s_waitcnt vmcnt(0)
    v_lshlrev_b32 v17, 16, v17
    v_lshlrev_b32 v18, 16, v18
    v_fmac_f32 v15, s74, v17
    v_fmac_f32 v15, s72, v18
    s_add_u32 s69, s69, 1
    s_cmp_lt_u32 s69, 64
    s_cbranch_scc1 L_fb_ku
    v_mul_f32 v16, {hex(LOG2E_NEG)}, v15
    v_exp_f32 v16, v16
    s_nop 0
    v_add_f32 v16, 1.0, v16
    v_rcp_f32 v16, v16
    s_nop 0
    v_mul_f32 v15, v15, v16
    v_cvt_pk_bf16_f32 v15, v15, v15
    buffer_store_short v15, v5, s[28:31], s67 offen
    s_add_u32 s47, s47, 16
    s_branch L_fb_node""")

def desc(name, vg, sg=102):
    return f""".amdhsa_kernel {name}
  .amdhsa_next_free_vgpr {vg}
  .amdhsa_next_free_sgpr {sg}
  .amdhsa_accum_offset {vg}
  .amdhsa_group_segment_fixed_size 0
  .amdhsa_kernarg_size 80
  .amdhsa_user_sgpr_count 2
  .amdhsa_user_sgpr_kernarg_segment_ptr 1
  .amdhsa_system_sgpr_workgroup_id_x 1
.end_amdhsa_kernel
"""
k1(); k2()
errs=check(A.lines)
for e in errs: print(e, file=sys.stderr)
hdr=open('gather_scatter__edge_featured_mpnn_egc__graph.s.ref').read().split('; Override launch')[0]
xl=f"; @launch kernel=nop_kernel grid=({OPT.get('nopg',256)},1,1) block=({OPT.get('nopb',64)},1,1) lds={OPT.get('nopl',0)}\n"
pre=xl if OPT.get('nop')=='pre' else ''; post=xl if OPT.get('nop')=='post' else ''
if OPT.get('nop'):
    A(".p2align 8\nnop_kernel:")
    if OPT.get('nopt0'):
        A(f"""s_memrealtime s[6:7]
        s_load_dwordx2 s[4:5], s[0:1], 72
        s_cmp_lg_u32 s2, 0
        s_cbranch_scc1 L_nop_end
        s_waitcnt lgkmcnt(0)
        s_add_u32 s8, s4, {MISC_OFF}
        s_addc_u32 s9, s5, 0
        s_mov_b32 s10, {MISC_SZ}
        s_mov_b32 s11, 0x20000
        v_mov_b32 v1, s6
        v_mov_b32 v2, {FLAGO+2048}
        buffer_store_dword v1, v2, s[8:11], 0 offen sc0 sc1
L_nop_end:""")
    A("s_endpgm")
out=hdr+pre+f"""; Two launches: prep (edge partition + node tables), main (gated gather / aggregate / silu)
; @launch kernel=prep_kernel grid=(256,1,1) block=(1024,1,1) lds={K1_LDS}
; @launch kernel=main_kernel grid=(256,1,1) block=(1024,1,1) lds={K2_LDS}
{post}.amdgcn_target "amdgcn-amd-amdhsa--gfx950"
.text
.globl prep_kernel
.type prep_kernel,@function
.globl main_kernel
.type main_kernel,@function
"""+A.text()+""".section .rodata,"a"
.p2align 6
"""+desc("prep_kernel",128)+".p2align 6\n"+desc("main_kernel",128)+((".p2align 6\n"+desc("nop_kernel",8,16)) if OPT.get('nop') else '')
open(sys.argv[1],'w').write(out)
print("written",sys.argv[1],len(A.lines),"lines; hazards:",len(errs))
```
